```python
import torch

def _softmax(x, axis=-1):
    return torch.softmax(x, dim=axis)
def _gelu(x):
    return torch.nn.functional.gelu(x, approximate="tanh")
def _silu(x):
    return torch.nn.functional.silu(x)
def _sigmoid(x):
    return torch.sigmoid(x)
def _layernorm(x, axis=-1, eps=1e-5):
    m = x.mean(dim=axis, keepdim=True)
    v = x.var(dim=axis, keepdim=True, unbiased=False)
    return (x - m) / torch.sqrt(v + eps)
def _scatter_add(tgt, idx, src, axis=0):
    return tgt.clone().index_add_(axis, idx, src)
def _segment_sum(src, seg, n):
    out = torch.zeros((n,) + src.shape[1:], dtype=src.dtype)
    return out.index_add_(0, seg, src)
def _pad(x, pw):
    flat = tuple(v for pair in reversed(pw) for v in pair)
    return torch.nn.functional.pad(x, flat)

kernel_name = 'standalone__edge_featured_mpnn_mpnn__graph'

def setup_inputs():

    _w = (lambda a: (lambda t: t.to(torch.bfloat16) if t.is_floating_point() else t)(torch.as_tensor(a)))
    N, deg, D, De = 50000, 16, 64, max(4, 1)
    E = N * deg
    H = 2 * D
    return {
        "x": _w((lambda *s: torch.randn(*s, dtype=torch.bfloat16) * 0.05)(N, D)),
        "e_attr": _w((lambda *s: torch.randn(*s, dtype=torch.bfloat16) * 1.6)(E, De)),
        "src": _w((lambda lo, hi, *s: torch.randint(lo, hi, s))(0, N, E).to(torch.int64)),
        "dst": _w((lambda lo, hi, *s: torch.randint(lo, hi, s))(0, N, E).to(torch.int64)),
        "w1": _w((lambda *s: torch.randn(*s, dtype=torch.bfloat16) * 1.6)(2 * D + De, H) * (1.0 / (2 * D + De) ** 0.5)),
        "b1": _w((lambda *s: torch.randn(*s, dtype=torch.bfloat16) * 3.2)(H) * 0.01),
        "w2": _w((lambda *s: torch.randn(*s, dtype=torch.bfloat16) * 0.05)(H, D) * (1.0 / H ** 0.5)),
        "b2": _w((lambda *s: torch.randn(*s, dtype=torch.bfloat16) * 0.1)(D) * 0.01),
    }

def reference(x, e_attr, src, dst, w1, b1, w2, b2):
    N, D = x.shape
    h_src = x[src]
    h_dst = x[dst]
    m_in = torch.concatenate([h_src, h_dst, e_attr], axis=-1)
    h = _silu(m_in @ w1 + b1)
    msg = h @ w2 + b2
    return _segment_sum(msg, dst, N)
```

```python
import re, sys, struct, math

N, E = 50000, 800000
NB = 196
CH = 3200
NCH = 250
CAP = 45
REC_BYTES = E * 12
FRAG_OFF = REC_BYTES
NFRAG = 51
FRAG_BYTES = NFRAG * 1024
TAB_REL = FRAG_BYTES
AUX_BYTES = FRAG_BYTES + NCH * 1024
STAMP_OFF = 16 << 20
X_BYTES = N * 128

def f32(x): return "0x%08x" % struct.unpack("<I", struct.pack("<f", x))[0]
NLOG2E = f32(-math.log2(math.e))
NLN2 = f32(-math.log(2.0))

OPT = dict(stamps=False, force_slow=False)

class Asm:
    def __init__(self): self.l = []
    def __call__(self, *xs):
        for x in xs:
            if isinstance(x, (list, tuple)): self(*x)
            else:
                for y in x.split("\n"):
                    y = y.strip()
                    if y: self.l.append(y)
    def text(self):
        return "\n".join((x if (x.endswith(":") or x.startswith(".")) else "    " + x) for x in self.l) + "\n"

def srd(a, s, lo, hi, nrec):
    a(f"s_mov_b32 s{s}, s{lo}", f"s_mov_b32 s{s+1}, s{hi}", f"s_mov_b32 s{s+2}, {nrec}", f"s_mov_b32 s{s+3}, 0x00020000")

def wave_scan(a, v):
    for sh in (1, 2, 4, 8):
        a("s_nop 1", f"v_add_u32_dpp v{v}, v{v}, v{v} row_shr:{sh} row_mask:0xf bank_mask:0xf")
    a("s_nop 1", f"v_add_u32_dpp v{v}, v{v}, v{v} row_bcast:15 row_mask:0xa bank_mask:0xf")
    a("s_nop 1", f"v_add_u32_dpp v{v}, v{v}, v{v} row_bcast:31 row_mask:0xc bank_mask:0xf")

def isize(x):
    if x.endswith(":") or x.startswith("."): return 0
    op = x.split()[0]
    rest = x[len(op):]
    def lit():
        for tok in re.split(r"[,\s]+", rest):
            if re.fullmatch(r"-?(0x[0-9a-fA-F]+|\d+)", tok):
                v = int(tok, 0)
                if not (-16 <= v <= 64): return True
        return False
    if op in ("s_waitcnt", "s_nop", "s_barrier", "s_branch", "s_endpgm", "s_setprio") or op.startswith("s_cbranch"): return 4
    if op.startswith(("s_load", "s_memtime", "s_memrealtime")): return 8
    if op.startswith("s_"): return 8 if lit() else 4
    if op.startswith(("buffer_", "ds_", "global_", "v_mfma", "v_pk_", "v_accvgpr_read", "v_accvgpr_write")): return 8
    if op.endswith("_e64") or op.endswith("_dpp") or op.endswith("_sdwa"): return 8
    vop3 = ("v_mad_", "v_fma_", "v_max3", "v_min3", "v_cvt_pk_bf16", "v_lshl_add", "v_lshl_or", "v_bfe", "v_add3", "v_and_or",
            "v_readlane", "v_writelane", "v_mul_lo", "v_mul_hi", "v_add_lshl", "v_perm_b32", "v_or3")
    if op.startswith(vop3): return 8
    if op.startswith("v_cmp"):
        if not rest.strip().startswith("vcc"): return 8
        return 8 if lit() else 4
    if op == "v_cndmask_b32" and not rest.strip().endswith("vcc"): return 8
    return 8 if lit() else 4

PROMOTE = ("v_exp_f32 ", "v_rcp_f32 ", "v_mul_f32 ", "v_mov_b32 ")
def align8(lines):
    o = list(lines); pos = 0; last = None
    for i, x in enumerate(o):
        s = isize(x)
        if x.startswith("v_pk_") and pos % 8 == 4:
            assert last is not None, "cannot align " + x
            op = o[last].split()[0]; o[last] = o[last].replace(op, op + "_e64", 1); pos += 4; last = None
        if x.startswith(PROMOTE) and s == 4: last = i
        elif x.startswith("v_pk_"): last = None
        pos += s
    return o, pos

K1_CNT, K1_BASE, K1_STG = 0, 1024, 2048
K1_LDS = K1_STG + CH * 12

def stamp(a, idx, sreg=96):
    if OPT["stamps"]:
        a(f"s_memrealtime s[{sreg}:{sreg+1}]" if False else f"s_memtime s[{sreg}:{sreg+1}]", "s_waitcnt lgkmcnt(0)", f"v_writelane_b32 {OPT['stampv']}, s{sreg}, {idx}")

def gen_k1(a):
    a(".p2align 8", "k1_kernel:")
    a("s_cmp_ge_u32 s2, 254", "s_cbranch_scc1 K1_END")
    a("s_cmp_ge_u32 s2, 250", "s_cbranch_scc1 K1_FRAG")
    a("s_load_dwordx4 s[4:7], s[0:1], 8", "s_load_dwordx2 s[8:9], s[0:1], 24", "s_load_dwordx2 s[10:11], s[0:1], 80")
    a("v_lshlrev_b32 v1, 2, v0", "v_mov_b32 v2, 0", "ds_write_b32 v1, v2")
    a("v_lshlrev_b32 v3, 4, v0", "v_lshlrev_b32 v4, 5, v0", "v_mov_b32 v5, 12")
    a("v_readfirstlane_b32 s3, v0")
    a(f"s_mul_i32 s12, s2, {CH*4}", f"s_mul_i32 s13, s2, {CH*8}", f"s_mul_i32 s14, s2, {CH*12}", "s_movk_i32 s15, -196")
    a("v_cmp_gt_u32 vcc, 800, v0")
    a("s_waitcnt lgkmcnt(0)")
    srd(a, 16, 8, 9, E*4)
    srd(a, 20, 6, 7, E*4)
    srd(a, 24, 4, 5, E*8)
    a("s_add_u32 s32, s10, s14", "s_addc_u32 s33, s11, 0", f"s_mov_b32 s34, {CH*12}", "s_mov_b32 s35, 0x00020000")
    a(f"s_add_u32 s36, s10, {FRAG_OFF}", "s_addc_u32 s37, s11, 0", f"s_mov_b32 s38, {AUX_BYTES}", "s_mov_b32 s39, 0x00020000")
    a("s_and_saveexec_b64 s[30:31], vcc", "s_cbranch_execz K1_A")
    a("buffer_load_dwordx4 v[8:11], v3, s[16:19], s12 offen",
      "buffer_load_dwordx4 v[12:15], v3, s[20:23], s12 offen",
      "buffer_load_dwordx4 v[16:19], v4, s[24:27], s13 offen",
      "buffer_load_dwordx4 v[20:23], v4, s[24:27], s13 offen offset:16")
    a("K1_A:", "s_barrier", "s_cbranch_execz K1_B")
    a("s_waitcnt vmcnt(3)")
    for e in range(4):
        a(f"v_mul_u32_u24 v{24+e}, 85599, v{8+e}", f"v_lshrrev_b32 v{24+e}, 22, v{24+e}", f"v_and_b32 v{24+e}, 0x3fc, v{24+e}",
          f"ds_add_rtn_u32 v{28+e}, v{24+e}, v5")
    for e in range(4):
        a(f"v_lshlrev_b32 v{8+e}, 2, v{8+e}", f"v_mad_i32_i24 v{8+e}, v{24+e}, s15, v{8+e}")
    a("s_waitcnt lgkmcnt(0)")
    a("K1_B:", "s_barrier")
    a("s_cmp_lg_u32 s3, 0", "s_cbranch_scc1 K1_C")
    a("ds_read_b128 v[32:35], v3", "s_waitcnt lgkmcnt(0)")
    a("v_add_u32 v36, v32, v33", "v_add3_u32 v36, v36, v34, v35", "v_mov_b32 v37, v36")
    wave_scan(a, 37)
    a("v_sub_u32 v40, v37, v36", "v_add_u32 v41, v40, v32", "v_add_u32 v42, v41, v33", "v_add_u32 v43, v42, v34")
    a(f"ds_write_b128 v3, v[40:43] offset:{K1_BASE}")
    for e in range(4): a(f"v_lshl_or_b32 v{44+e}, v{32+e}, 16, v{40+e}")
    a("s_waitcnt lgkmcnt(0)")
    a("K1_C:", "s_barrier", "s_cbranch_execz K1_D")
    for e in range(4): a(f"ds_read_b32 v{24+e}, v{24+e} offset:{K1_BASE}")
    a("s_waitcnt vmcnt(0)")
    for e in range(4): a(f"v_lshl_or_b32 v{8+e}, v{12+e}, 16, v{8+e}")
    for e in range(4):
        a(f"s_waitcnt lgkmcnt({3-e+2*e})", f"v_add3_u32 v{28+e}, v{28+e}, v{24+e}, s40" if False else f"v_add_u32 v{28+e}, v{28+e}, v{24+e}")
        a(f"v_add_u32 v{28+e}, {K1_STG}, v{28+e}")
        a(f"ds_write2_b32 v{28+e}, v{16+2*e}, v{17+2*e} offset0:0 offset1:1", f"ds_write_b32 v{28+e}, v{8+e} offset:8")
    a("s_cmp_lg_u32 s3, 0", "s_cbranch_scc1 K1_C2")
    a("s_lshl_b32 s28, s2, 10", f"s_add_u32 s28, s28, {TAB_REL}")
    a("buffer_store_dwordx4 v[44:47], v3, s[36:39], s28 offen")
    a("K1_C2:", "s_waitcnt lgkmcnt(0)")
    a("K1_D:", "s_mov_b64 exec, s[30:31]", "s_barrier")
    a(f"ds_read_b128 v[8:11], v3 offset:{K1_STG}", f"ds_read_b128 v[12:15], v3 offset:{K1_STG+16384}", f"ds_read_b128 v[16:19], v3 offset:{K1_STG+32768}")
    a("s_movk_i32 s28, 0x4000", "s_mov_b32 s29, 0x8000")
    a("s_waitcnt lgkmcnt(2)", "buffer_store_dwordx4 v[8:11], v3, s[32:35], 0 offen",
      "s_waitcnt lgkmcnt(1)", "buffer_store_dwordx4 v[12:15], v3, s[32:35], s28 offen",
      "s_waitcnt lgkmcnt(0)", "buffer_store_dwordx4 v[16:19], v3, s[32:35], s29 offen")
    a("K1_END:", "s_endpgm")
    a("K1_FRAG:")
    a("s_load_dwordx8 s[4:11], s[0:1], 32", "s_load_dwordx2 s[12:13], s[0:1], 80")
    a("v_lshrrev_b32 v1, 6, v0", "v_and_b32 v2, 31, v0", "v_bfe_u32 v3, v0, 5, 1")
    a("v_readfirstlane_b32 s3, v1")
    a("v_bfe_u32 v4, v2, 2, 1", "v_lshlrev_b32 v4, 5, v4", "v_lshrrev_b32 v5, 3, v2", "v_lshl_add_u32 v4, v5, 2, v4",
      "v_and_b32 v5, 3, v2", "v_add_u32 v4, v4, v5")
    a("s_waitcnt lgkmcnt(0)")
    srd(a, 16, 4, 5, 132*128*2)
    srd(a, 20, 6, 7, 256)
    srd(a, 24, 8, 9, 128*64*2)
    srd(a, 28, 10, 11, 128)
    a(f"s_add_u32 s36, s12, {FRAG_OFF}", "s_addc_u32 s37, s13, 0", f"s_mov_b32 s38, {FRAG_BYTES}", "s_mov_b32 s39, 0x00020000")
    a("s_sub_u32 s14, s2, 250", "s_lshl_b32 s15, s14, 14")
    a("v_lshlrev_b32 v7, 4, v0")
    a("s_cmp_eq_u32 s14, 2", "s_cbranch_scc1 K1_FW2", "s_cmp_eq_u32 s14, 3", "s_cbranch_scc1 K1_FMISC")
    a("s_and_b32 s40, s3, 3", "s_lshr_b32 s41, s3, 2", "s_lshl_b32 s40, s40, 11", "s_lshl_b32 s41, s41, 6", "s_add_u32 s40, s40, s41", "s_add_u32 s40, s40, s15")
    a("v_lshlrev_b32 v6, 13, v3", "v_lshl_add_u32 v6, v2, 1, v6")
    for j in range(8): a(f"buffer_load_ushort v{8+j}, v6, s[16:19], s40 offen offset:{256*j}")
    a(f"s_mov_b32 s42, {NLOG2E}", "s_branch K1_FSC")
    a("K1_FW2:")
    a("s_lshr_b32 s40, s3, 1", "s_lshl_b32 s40, s40, 11", "s_and_b32 s41, s3, 1", "s_lshl_b32 s41, s41, 5", "s_add_u32 s40, s40, s41")
    a("v_lshlrev_b32 v6, 9, v3", "v_lshl_add_u32 v6, v4, 1, v6")
    for j in range(8): a(f"buffer_load_ushort v{8+j}, v6, s[24:27], s40 offen offset:{128*(8*(j>>2)+(j&3))}")
    a(f"s_mov_b32 s42, {NLN2}")
    a("K1_FSC:", "s_waitcnt vmcnt(0)")
    for j in range(8): a(f"v_lshlrev_b32 v{8+j}, 16, v{8+j}", f"v_mul_f32 v{8+j}, s42, v{8+j}")
    for j in range(4): a(f"v_cvt_pk_bf16_f32 v{16+j}, v{8+2*j}, v{9+2*j}")
    a("buffer_store_dwordx4 v[16:19], v7, s[36:39], s15 offen", "s_endpgm")
    a("K1_FMISC:")
    a("s_cmp_ge_u32 s3, 3", "s_cbranch_scc1 K1_END")
    a("v_lshlrev_b32 v6, 1, v2", "v_lshlrev_b32 v5, 1, v4")
    a("s_cmp_eq_u32 s3, 2", "s_cbranch_scc1 K1_FB")
    a("s_lshl_b32 s40, s3, 7", f"s_add_u32 s40, s40, {128*256}")
    for j in range(8): a(f"buffer_load_ushort v{8+j}, v6, s[16:19], s40 offen offset:{256*(j&3)+64*(j>>2)}")
    a("s_branch K1_FHL")
    a("K1_FB:")
    for j in range(4): a(f"buffer_load_ushort v{8+j}, v6, s[20:23], 0 offen offset:{64*j}")
    a("buffer_load_ushort v24, v5, s[28:31], 0 offen", "buffer_load_ushort v25, v5, s[28:31], 0 offen offset:32")
    for j in range(4, 8): a(f"v_mov_b32 v{8+j}, 0")
    a("K1_FHL:", f"s_mov_b32 s42, {NLOG2E}", "s_waitcnt vmcnt(0)")
    a("v_cmp_eq_u32 vcc, 1, v3")
    for j in range(8): a(f"v_lshlrev_b32 v{8+j}, 16, v{8+j}", f"v_mul_f32 v{8+j}, s42, v{8+j}")
    for j in range(4):
        a(f"v_cvt_pk_bf16_f32 v{16+j}, v{8+2*j}, v{9+2*j}",
          f"v_lshlrev_b32 v20, 16, v{16+j}", f"v_and_b32 v21, 0xffff0000, v{16+j}",
          f"v_sub_f32 v20, v{8+2*j}, v20", f"v_sub_f32 v21, v{9+2*j}, v21",
          f"v_cvt_pk_bf16_f32 v20, v20, v21", f"v_cndmask_b32 v{16+j}, v{16+j}, v20, vcc")
    a("s_cmp_eq_u32 s3, 2", "s_cbranch_scc0 K1_FST")
    a("v_lshl_or_b32 v18, v25, 16, v24", "v_mov_b32 v19, 0", "v_cndmask_b32 v18, v18, v19, vcc")
    a("K1_FST:", "buffer_store_dwordx4 v[16:19], v7, s[36:39], s15 offen", "s_endpgm")

L_CNT, L_HIST, L_FLAG, L_OUTO, L_SI, L_OST = 0, 1024, 1280, 1536, 2560, 4608
OST_W = 32 * 144
L_XR = L_OST + 4 * OST_W
L_TAB = L_XR + 25 * 1024
ESZ = 12
K2_LDS = L_TAB + NB * CAP * ESZ

Q, NUM, DEN, D, EE = 16, 80, 144, 208, 240
ENT = (0, 4, 8)
vOff, vLds, vHalf, vPad, vLane, vT0, vT1 = 3, 7, 11, 12, 13, 14, 15
RING = (204, 220, 236)
aInfo, aNextL, aNextI, aStamp = 252, 253, 254, 255
def WA(b, q): return 4 * (4 * b + q)
def WB(b, q): return 64 + 4 * (4 * b + q)
def W2(b, m, ob): return 128 + 4 * (4 * b + 2 * m + ob)
def WC(b): return 192 + 2 * b
B1F, B2F = 200, 202
sX, sOut, sRec, sAux = 4, 8, 12, 16
sWave, sBucket, s128, sC, sStage, sTile, sL, sTmp, sTmp2 = 20, 21, 22, 23, 24, 25, 26, 27, 28
sValid, sPair, sBad, sSave = 30, 32, 34, 36
sMask0 = 52

def vr(b, n): return f"v[{b}:{b+n-1}]"
def ar(b, n): return f"a[{b}:{b+n-1}]"
def pkfma(d, x, y, z): return f"v_pk_fma_f32 {vr(d,2)}, {vr(x,2)}, {vr(y,2)}, {vr(z,2)}"
def mf16(d, A, B, c): return f"v_mfma_f32_32x32x16_bf16 {vr(d,16)}, {A}, {B}, {c}"
def mf8(d, A, B, c): return f"v_mfma_f32_32x32x8_bf16 {vr(d,16)}, {A}, {B}, {c}"

def edge_mfmas(b, dst, u):
    o = [mf8(dst, ar(WC(b), 2), vr(ENT[u], 2), vr(Q + 16*b, 16))]
    for q in range(4): o.append(mf16(dst, ar(WA(b, q), 4), ar(RING[u] + 4*q, 4), vr(dst, 16)))
    return o
def gather(u, q): return f"buffer_load_dwordx4 {ar(RING[u]+4*q,4)}, v{vOff}, s[{sX}:{sX+3}], 0 offen offset:{16*q}"
def mkoff(u): return f"v_mad_u32_u16 v{vOff}, v{ENT[u]+2}, s{s128}, v{vHalf} op_sel:[1,0,0,0]"
def entry(u, off): return f"ds_read_b96 {vr(ENT[u],3)}, v{vLds} offset:{off}"

def interleave(v, m, gap=3, start=0):
    o = []; k = 0
    for i, x in enumerate(v):
        if k < len(m) and i == start + k * gap: o.append(m[k]); k += 1
        o.append(x)
    return o + m[k:]

def step(u, first):
    o = []
    nx, pre = (u + 1) % 3, (u + 2) % 3
    for b in range(4):
        n, dn = NUM + 16*b, DEN + 16*b
        t = n if first else D + 16*(b & 1)
        e = dn if first else EE
        ex = [f"v_exp_f32 v{e+i}, v{t+i}" for i in range(16)]
        if b < 3: m = edge_mfmas(b + 1, NUM + 16*(b+1) if first else D + 16*((b+1) & 1), u)
        else: m = edge_mfmas(0, D, nx)
        A = interleave(ex, m)
        head, mid, end = [], [gather(pre, b)], []
        if b == 0:
            head = ["s_waitcnt lgkmcnt(0)", mkoff(pre)]
            if not first: end = [f"v_cmpx_gt_i32 vcc, s{sC}, v{vPad}"]
        if b == 2:
            end = [entry(u, 36 + ESZ*u)]
        if b == 3:
            head = ["s_waitcnt vmcnt(3)"]
            if u == 2: end = [f"v_add_u32 v{vLds}, 36, v{vLds}"]
        if first:
            p = [f"v_pk_add_f32 {vr(dn+i,2)}, {vr(dn+i,2)}, 1.0 op_sel_hi:[1,0]" for i in range(0, 16, 2)]
        else:
            p = [pkfma(n+i, n+i, EE+i, n+i) for i in range(0, 16, 2)]
            p += [pkfma(n+i, t+i, dn+i, n+i) for i in range(0, 16, 2)]
            p += [pkfma(dn+i, dn+i, EE+i, dn+i) for i in range(0, 16, 2)]
        o += head + A[:2] + mid + A[2:] + end + p
    return o

SEL = EE + 4
def selectors():
    return [f"v_mov_b32 v{SEL}, 0x3f80", f"v_mov_b32 v{SEL+1}, 0", f"v_mov_b32 v{SEL+2}, 1.0", f"v_mov_b32 v{SEL+3}, 0",
            f"v_mov_b32 v{SEL+4}, 0", f"v_mov_b32 v{SEL+5}, 0x3f80", f"v_mov_b32 v{SEL+6}, 0", f"v_mov_b32 v{SEL+7}, 1.0"]
def q_mfmas(b):
    o = [mf8(Q + 16*b, ar(B1F, 2), vr(SEL + 2*b, 2), "0")]
    for q in range(4): o.append(mf16(Q + 16*b, ar(WB(b, q), 4), ar(RING[2] + 4*q, 4), vr(Q + 16*b, 16)))
    return o

def tile_open(vinfo):
    o = [entry(0, 0), entry(1, ESZ), f"v_and_b32 v{vT1}, 0xffff, v{vinfo}", f"v_add_u32 v{vT1}, v{vT1}, v{vHalf}"]
    o += [f"ds_read_b128 {ar(RING[2]+4*q,4)}, v{vT1} offset:{L_XR+16*q}" for q in range(4)]
    o += [entry(2, 2*ESZ)]
    return o
def tile_scalars(vinfo):
    return [f"v_bfe_u32 v{vPad}, v{vinfo}, 16, 8", f"v_cmp_le_u32 s[{sPair}:{sPair+1}], s{sTmp2}, v{vinfo}",
            f"v_readfirstlane_b32 s{sL}, v{vPad}", f"v_cmp_lt_u32 s[{sValid}:{sValid+1}], 0, v{vPad}",
            f"s_max_u32 s{sL}, s{sL}, 4", f"s_sub_u32 s{sC}, s{sL}, 4", f"s_sub_u32 s{sL}, s{sL}, 3", f"s_mov_b32 s{sStage}, 0",
            f"v_sub_u32 v{vPad}, s{sL}, v{vPad}"]

def epilogue(a, nxt):
    lab = "T" if nxt else "F"
    OO = EE + 12
    CHK = vT0
    a("s_mov_b64 exec, -1", "s_waitcnt vmcnt(0) lgkmcnt(0)", f"s_mov_b32 s{sX+2}, {X_BYTES}")
    a(f"v_accvgpr_read_b32 v{EE+2}, a{aInfo}")
    if nxt:
        a(f"v_accvgpr_read_b32 v{vLds}, a{aNextL}", f"v_accvgpr_read_b32 v{vT0}, a{aNextI}")
        a(tile_open(vT0))
        a(f"v_accvgpr_write_b32 a{aInfo}, v{vT0}")
    a(f"v_lshrrev_b32 v{vT1}, 3, v{vLane}", f"v_lshl_add_u32 v{vT1}, v{vT1}, 4, s{sTile}", f"ds_read_b128 {vr(OO,4)}, v{vT1} offset:{L_OUTO}")
    a(f"v_bfe_u32 v{EE+2}, v{EE+2}, 16, 8", f"v_cvt_f32_u32 v{EE+2}, v{EE+2}", f"v_mov_b32 v{EE+1}, 0", f"v_mov_b32 v{EE+3}, 0", f"v_lshrrev_b32 v{EE}, 16, v{EE+2}")
    if nxt: a(selectors())
    a(f"v_mov_b32 v{CHK}, 1.0", "s_nop 0")
    mq = [mf8(D, ar(B2F, 2), vr(EE, 2), "0"), mf8(D + 16, ar(B2F, 2), vr(EE + 2, 2), "0")]
    for b in range(4):
        n, dn = NUM + 16*b, DEN + 16*b
        v = [f"v_max3_f32 v{CHK}, v{CHK}, v{dn+i}, v{dn+i+1}" for i in range(0, 16, 2)]
        v += [f"v_rcp_f32 v{dn+i}, v{dn+i}" for i in range(16)]
        v += [f"v_mul_f32 v{n+i}, v{n+i}, v{dn+i}" for i in range(16)]
        v += [f"v_cvt_pk_bf16_f32 v{dn+i//2}, v{n+i}, v{n+i+1}" for i in range(0, 16, 2)]
        if nxt:
            if b == 0:
                v = v[:12] + ["s_waitcnt lgkmcnt(0)", mkoff(0)] + v[12:]
                blk = interleave(v[:14], mq, 4) + interleave(v[14:], [gather(0, 0)] + q_mfmas(0) + [gather(0, 1)], 4)
            else:
                ld = {1: [gather(0, 2), gather(0, 3)], 2: [mkoff(1), gather(1, 0), gather(1, 1)], 3: [gather(1, 2), gather(1, 3)]}[b]
                blk = interleave(v, mq + q_mfmas(b) + ld, 4, 1)
        else:
            blk = interleave(v, mq, 5, 1)
        a(blk)
        mq = [mf16(D + 16*ob, ar(W2(b, m, ob), 4), vr(dn + 4*m, 4), vr(D + 16*ob, 16)) for m in range(2) for ob in range(2)]
    a("s_nop 1", mq)
    P, R = DEN + 32, DEN + 48
    a(f"v_and_b32 v{EE}, 7, v{vLane}", f"v_lshlrev_b32 v{EE}, 4, v{EE}")
    if not nxt: a("s_waitcnt lgkmcnt(0)")
    for q in range(4): a(f"v_add_u32 v{OO+q}, v{OO+q}, v{EE}")
    a(f"v_lshrrev_b32 v{EE+1}, 3, v{vLane}", f"s_mul_i32 s{sTmp}, s{sWave}, {OST_W}", f"v_mul_u32_u24 v{EE+1}, {4*144}, v{EE+1}",
      f"v_add3_u32 v{EE+1}, v{EE+1}, v{EE}, s{sTmp}")
    a(f"v_and_b32 v{EE+2}, 31, v{vLane}", f"v_mul_u32_u24 v{EE+2}, 144, v{EE+2}", f"v_add3_u32 v{EE+2}, v{EE+2}, v{vHalf}, s{sTmp}")
    a(f"v_cmp_le_f32 vcc, {f32(2.0**120)}, v{CHK}", f"v_mov_b32 v{EE+3}, 0x207", f"s_mov_b64 s[{sSave}:{sSave+1}], vcc", "s_nop 7")
    a(f"v_cmp_class_f32 vcc, v{D+16}, v{EE+3}", f"s_or_b64 vcc, vcc, s[{sSave}:{sSave+1}]", f"s_and_b64 vcc, vcc, s[{sValid}:{sValid+1}]",
      f"s_or_b64 s[{sBad}:{sBad+1}], s[{sBad}:{sBad+1}], vcc")
    a(f"s_mov_b64 exec, s[{sPair}:{sPair+1}]", f"s_cbranch_execz K2_{lab}NP", "s_nop 4")
    for i in range(32): a(f"v_add_f32_dpp v{D+i}, v{D+i}, v{D+i} quad_perm:[1,0,3,2] row_mask:0xf bank_mask:0xf")
    a(f"K2_{lab}NP:", "s_mov_b64 exec, -1")
    cv = [f"v_cvt_pk_bf16_f32 v{P+i}, v{D+2*i}, v{D+2*i+1}" for i in range(16)]
    wr = [f"ds_write_b128 v{EE+2}, {vr(P+4*q,4)} offset:{L_OST+16*q}" for q in range(4)]
    seq = []
    for q in range(4): seq += cv[4*q:4*q+4] + [wr[q]]
    if nxt:
        a("s_waitcnt vmcnt(4)")
        seq = interleave(seq, edge_mfmas(0, NUM, 0), 4)
    a(seq)
    a([f"ds_read_b128 {vr(R+4*q,4)}, v{EE+1} offset:{L_OST+144*q}" for q in range(4)])
    if nxt:
        a(f"v_accvgpr_read_b32 v{vT0}, a{aInfo}", f"s_mov_b32 s{sTmp2}, 0x1000000", tile_scalars(vT0))
        a(f"s_lshl_b32 s{sTmp}, s{sWave}, 7", f"s_sub_u32 s{sTile}, {7*128}, s{sTmp}")
    for q in range(4):
        a(f"s_waitcnt lgkmcnt({3-q})", f"buffer_store_dwordx4 {vr(R+4*q,4)}, v{OO+q}, s[{sOut}:{sOut+3}], 0 offen")

def st2(a, idx):
    if OPT["stamps"]:
        a("s_memtime s[100:101]", "s_mov_b64 s[48:49], exec", "s_mov_b64 exec, -1", f"v_accvgpr_read_b32 v{vT1}, a{aStamp}", "s_waitcnt lgkmcnt(0)", "s_nop 0",
          f"v_writelane_b32 v{vT1}, s100, {idx}", "s_nop 0", f"v_accvgpr_write_b32 a{aStamp}, v{vT1}", "s_mov_b64 exec, s[48:49]")

def gen_k2(a):
    a(".p2align 8", "k2_kernel:")
    a("s_cmp_ge_u32 s2, 256", "s_cbranch_scc1 K2_END")
    a("s_load_dwordx2 s[40:41], s[0:1], 0", "s_load_dwordx2 s[42:43], s[0:1], 64", "s_load_dwordx2 s[44:45], s[0:1], 80")
    tid = 16
    a(f"v_mov_b32 v{tid}, v0", f"v_and_b32 v{vLane}, 63, v0", "v_lshrrev_b32 v1, 6, v0")
    a(f"s_and_b32 s{sBucket}, s2, 7", f"s_lshl_b32 s{sBucket}, s{sBucket}, 5", "s_lshr_b32 s3, s2, 3", f"s_add_u32 s{sBucket}, s{sBucket}, s3")
    a(f"v_readfirstlane_b32 s{sWave}, v1")
    if OPT["stamps"]: a(f"v_accvgpr_write_b32 a{aStamp}, 0")
    st2(a, 0)
    vInit = 17
    a(f"v_mul_u32_u24 v{vInit}, {CAP*ESZ}, v{tid}", f"v_add_u32 v{vInit}, {L_TAB}, v{vInit}")
    a(f"v_lshlrev_b32 v18, 2, v{tid}", "v_mov_b32 v20, 0", "v_mov_b32 v21, 0", "v_mov_b32 v22, 0xffffff00", f"v_lshlrev_b32 v19, 3, v{tid}")
    a(f"ds_write_b32 v18, v{vInit} offset:{L_CNT}", f"ds_write_b32 v18, v22 offset:{L_OUTO}", f"ds_write_b64 v19, v[20:21] offset:{L_SI}")
    a(f"v_lshlrev_b32 v23, 3, v{vLane}", f"ds_write_b64 v23, v[20:21] offset:{L_HIST}")
    a(f"v_lshlrev_b32 v24, 10, v{tid}", f"v_lshlrev_b32 v25, 4, v{vLane}")
    a(f"s_lshl_b32 s{sTmp}, s{sBucket}, 2", f"s_add_u32 s{sTmp}, s{sTmp}, {TAB_REL}")
    a(f"s_movk_i32 s{s128}, 128", f"s_mov_b64 s[{sBad}:{sBad+1}], 0")
    a("s_waitcnt lgkmcnt(0)")
    srd(a, sX, 40, 41, X_BYTES)
    srd(a, sOut, 42, 43, X_BYTES)
    srd(a, sRec, 44, 45, REC_BYTES)
    a(f"s_add_u32 s{sAux}, s44, {FRAG_OFF}", f"s_addc_u32 s{sAux+1}, s45, 0", f"s_mov_b32 s{sAux+2}, {AUX_BYTES}", f"s_mov_b32 s{sAux+3}, 0x00020000")
    vE = 26
    a(f"buffer_load_dword v{vE}, v24, s[{sAux}:{sAux+3}], s{sTmp} offen")
    a(f"s_mul_i32 s46, s{sWave}, 6144", f"s_mul_i32 s47, s{sBucket}, {NB*128}", "s_add_u32 s47, s47, s46", f"s_add_u32 m0, s46, {L_XR}", "s_nop 0")
    for i in range(4): a(f"buffer_load_dwordx4 v25, s[{sX}:{sX+3}], s47 offen offset:{1024*i} lds")
    a("s_add_u32 s47, s47, 4096", f"s_add_u32 m0, s46, {L_XR+4096}", "s_nop 0")
    for i in range(3): a(f"buffer_load_dwordx4 v25, s[{sX}:{sX+3}], s47 offen offset:{1024*i} lds")
    a(f"s_mul_i32 s46, s{sWave}, {13*1024}")
    for g in range(4):
        a(f"s_add_u32 m0, s46, {L_TAB+4096*g}", f"s_add_u32 s47, s46, {4096*g}")
        for i in range(4 if g < 3 else 1): a(f"buffer_load_dwordx4 v25, s[{sAux}:{sAux+3}], s47 offen offset:{1024*i} lds")
    vJ16, vN16, vJ4, vN4, vStart, vCnt, vTw = 27, 28, 29, 30, 31, 32, 33
    a(f"v_and_b32 v{vJ16}, 15, v{vLane}", f"v_mul_u32_u24 v{vJ16}, 12, v{vJ16}", f"v_not_b32 v{vN16}, v{vJ16}")
    a(f"v_and_b32 v{vJ4}, 3, v{vLane}", f"v_mul_u32_u24 v{vJ4}, 12, v{vJ4}", f"v_not_b32 v{vN4}, v{vJ4}")
    a(f"v_lshrrev_b32 v{vHalf}, 5, v{vLane}", f"v_lshlrev_b32 v{vHalf}, 6, v{vHalf}", f"v_mov_b32 v{vTw}, 12")
    vAE, vAO = 34, 35
    a(f"v_lshlrev_b32 v{vAE}, 3, v{vLane}", f"v_cmp_gt_u32 vcc, 32, v{vLane}", f"v_add_u32 v{vAO}, -4, v{vAE}", f"v_max_i32 v{vAO}, 0, v{vAO}",
      f"v_cndmask_b32 v{vAE}, 0, v{vAE}, vcc", f"v_cndmask_b32 v{vAO}, 0, v{vAO}, vcc")
    a(f"v_mul_u32_u24 v{vStart}, {CH*12}, v{tid}")
    a("s_waitcnt vmcnt(20)")
    st2(a, 1)
    a(f"v_and_b32 v36, 0xffff, v{vE}", f"v_lshrrev_b32 v{vCnt}, 16, v{vE}", f"v_add_u32 v{vStart}, v{vStart}, v36")
    RB = 64
    def dppq(i): return f"quad_perm:[{i},{i},{i},{i}] row_mask:0xf bank_mask:0xf"
    def dppr(i): return f"row_newbcast:{i} row_mask:0xf bank_mask:0xf"
    def rec(i): return RB + 4*i
    a(f"v_cmp_lt_u32 vcc, {24*12}, v{vCnt}", f"s_mov_b64 s[{sSave}:{sSave+1}], vcc", "s_cbranch_vccz K2_P1")
    a(f"v_cmp_lt_u32 vcc, {40*12}, v{vCnt}", "s_cbranch_vccz K2_P0", f"s_mov_b64 s[{sBad}:{sBad+1}], 1", "K2_P0:")
    for r in range(2, 6):
        for i in range(4):
            s = 16 + 4*r + i
            a(f"v_add_u32_dpp v{rec(s)+3}, v{vStart}, v{vJ4} {dppq(i)}",
              f"buffer_load_dwordx3 {vr(rec(s),3)}, v{rec(s)+3}, s[{sRec}:{sRec+3}], 0 offen offset:{12*(16+4*r)}")
    a("K2_P1:")
    for i in range(16):
        a(f"v_add_u32_dpp v{rec(i)+3}, v{vStart}, v{vJ16} {dppr(i)}",
          f"buffer_load_dwordx3 {vr(rec(i),3)}, v{rec(i)+3}, s[{sRec}:{sRec+3}], 0 offen")
    for r in range(2):
        a(f"v_add_u32 v36, {-12*(16+4*r)}, v{vN4}", "s_nop 0")
        for i in range(4):
            s = 16 + 4*r + i
            a(f"v_add_u32_dpp v{rec(s)+3}, v{vStart}, v{vJ4} {dppq(i)}",
              f"v_add_co_u32_dpp v37, vcc, v{vCnt}, v36 {dppq(i)}", f"s_mov_b64 s[{sMask0+2*s}:{sMask0+2*s+1}], vcc")
    for s in range(16, 24):
        a(f"s_mov_b64 exec, s[{sMask0+2*s}:{sMask0+2*s+1}]",
          f"buffer_load_dwordx3 {vr(rec(s),3)}, v{rec(s)+3}, s[{sRec}:{sRec+3}], 0 offen offset:{12*(16+4*((s-16)//4))}")
    a("s_mov_b64 exec, -1")
    a(f"v_add_u32 v36, {L_TAB}, v25", "s_waitcnt vmcnt(24)", "s_barrier")
    st2(a, 2)
    for f in range(NFRAG): a(f"ds_read_b128 {ar(4*f,4)}, v36 offset:{1024*f}")
    for i in range(16):
        a(f"v_add_co_u32_dpp v37, vcc, v{vCnt}, v{vN16} {dppr(i)}", f"s_mov_b64 s[{sMask0+2*i}:{sMask0+2*i+1}], vcc")
    a("s_waitcnt lgkmcnt(0)", "s_barrier")
    st2(a, 3)
    LAG = 2
    def atom(s): return [f"v_and_b32 v{rec(s)+3}, 0xffff, v{rec(s)+2}", f"ds_add_rtn_u32 v{rec(s)+3}, v{rec(s)+3}, v{vTw}"]
    def put(s): return [f"ds_write2_b32 v{rec(s)+3}, v{rec(s)}, v{rec(s)+1} offset0:0 offset1:1", f"ds_write_b32 v{rec(s)+3}, v{rec(s)+2} offset:8"]
    def ex(s): return f"s_mov_b64 exec, s[{sMask0+2*s}:{sMask0+2*s+1}]"
    ops = []
    for i in range(24 + LAG):
        if i < 24:
            a(f"s_waitcnt vmcnt({23-i})", ex(i), atom(i)); ops.append(("a", i))
        if i >= LAG:
            s = i - LAG
            n = len(ops) - 1 - ops.index(("a", s))
            a(f"s_waitcnt lgkmcnt({n})", ex(s), put(s)); ops += [("w", s), ("w", s)]
    a("s_mov_b64 exec, -1")
    a(f"s_cmp_eq_u64 s[{sSave}:{sSave+1}], 0", "s_cbranch_scc1 K2_P2")
    for r in range(2, 6):
        a(f"v_add_u32 v36, {-12*(16+4*r)}, v{vN4}")
        for i in range(4):
            s = 16 + 4*r + i
            a("s_nop 4", f"v_add_co_u32_dpp v37, vcc, v{vCnt}, v36 {dppq(i)}", "s_mov_b64 exec, vcc", atom(s), "s_waitcnt lgkmcnt(0)", put(s), "s_mov_b64 exec, -1")
    a("K2_P2:", "s_waitcnt lgkmcnt(0)", "s_barrier")
    st2(a, 4)
    vD, vR, vH, vEv, vS = 40, 41, 42, 43, 44
    a(f"ds_read_b32 v{vD}, v18 offset:{L_CNT}", "v_mov_b32 v45, 1", "s_waitcnt lgkmcnt(0)")
    a(f"v_sub_u32 v{vD}, v{vD}, v{vInit}", f"v_cmp_lt_u32 vcc, {CAP*ESZ}, v{vD}", f"v_min_u32 v{vD}, {63*12}, v{vD}", f"v_mul_u32_u24 v{vD}, 5462, v{vD}",
      f"s_or_b64 s[{sBad}:{sBad+1}], s[{sBad}:{sBad+1}], vcc", f"v_lshrrev_b32 v{vD}, 16, v{vD}", f"v_lshlrev_b32 v46, 2, v{vD}")
    a(f"v_cmp_lt_u32 s[{sValid}:{sValid+1}], 0, v{vD}", f"v_cmp_gt_u32 vcc, {NB}, v{tid}", f"s_mov_b64 exec, s[{sValid}:{sValid+1}]",
      f"ds_add_rtn_u32 v{vR}, v46, v45 offset:{L_HIST}")
    a(f"s_mul_i32 s{sTmp}, s{sBucket}, {NB*128}")
    a("s_mov_b64 exec, -1", f"v_lshlrev_b32 v47, 7, v{tid}", f"v_add_u32 v48, s{sTmp}, v47")
    if OPT["force_slow"]: a(f"s_mov_b64 s[{sBad}:{sBad+1}], 1")
    a(f"s_mov_b64 exec, s[{sBad}:{sBad+1}]", f"ds_write_b32 v20, v45 offset:{L_FLAG}")
    a(f"s_andn2_b64 exec, vcc, s[{sValid}:{sValid+1}]", "s_cbranch_execz K2_N0")
    a("v_mov_b32 v52, 0", "v_mov_b32 v53, 0", "v_mov_b32 v54, 0", "v_mov_b32 v55, 0")
    for q in range(8): a(f"buffer_store_dwordx4 v[52:55], v48, s[{sOut}:{sOut+3}], 0 offen offset:{16*q}")
    a("K2_N0:", "s_mov_b64 exec, -1", "s_waitcnt lgkmcnt(0)", "s_barrier")
    a(f"v_lshlrev_b32 v49, 2, v{vLane}", f"ds_read_b32 v{vH}, v49 offset:{L_HIST}", f"ds_read_b32 v50, v20 offset:{L_FLAG}", "s_waitcnt lgkmcnt(0)")
    a(f"v_readfirstlane_b32 s{sTmp}, v50", f"v_add_u32 v{vEv}, 1, v{vH}", f"v_and_b32 v{vEv}, -2, v{vEv}", f"v_lshl_add_u32 v{vS}, v{vH}, 16, v{vEv}",
      f"s_cmp_lg_u32 s{sTmp}, 0", "s_cbranch_scc1 K2_SLOW")
    wave_scan(a, vS)
    a("s_nop 0", f"v_readlane_b32 s{sTmp}, v{vS}, 63", f"v_lshrrev_b32 v50, 16, v{vS}", f"v_and_b32 v{vS}, 0xffff, v{vS}", f"v_lshlrev_b32 v50, 1, v50",
      f"s_lshr_b32 s{sTmp}, s{sTmp}, 16", f"s_lshl_b32 s{sTmp}, s{sTmp}, 1", f"s_sub_u32 s{sTmp}, 256, s{sTmp}", f"v_sub_u32 v{vS}, v{vS}, v50")
    a(f"v_cmp_ge_i32 vcc, s{sTmp}, v{vS}", "s_and_b32 vcc_lo, vcc_lo, -2", f"s_ff1_i32_b64 s{sTmp}, vcc")
    a(f"v_cmp_lt_u32 vcc, s{sTmp}, v{vLane}", f"v_cmp_lt_u32 s[{sPair}:{sPair+1}], s{sTmp}, v{vD}", "s_nop 0",
      f"v_cndmask_b32 v{vH}, 0, v{vH}, vcc", f"v_cndmask_b32 v{vEv}, v{vEv}, v20, vcc")
    a(f"ds_bpermute_b32 v50, v{vAE}, v{vH}", f"ds_bpermute_b32 v51, v{vAO}, v{vH}")
    vK, vSh = 52, 53
    a(f"v_add_u32 v{vK}, 1, v{vD}", f"v_lshrrev_b32 v{vK}, 1, v{vK}", f"v_cndmask_b32 v{vK}, v{vD}, v{vK}, s[{sPair}:{sPair+1}]",
      f"v_and_b32 v{vSh}, 1, v{vD}", f"v_mul_u32_u24 v{vSh}, 10, v{vSh}", f"v_cndmask_b32 v{vSh}, 20, v{vSh}, s[{sPair}:{sPair+1}]",
      f"v_cndmask_b32 v54, 0, 1, s[{sPair}:{sPair+1}]", f"v_lshlrev_b32 v{vR}, v54, v{vR}", f"v_lshlrev_b32 v55, 2, v{vK}")
    a("s_waitcnt lgkmcnt(0)")
    a("v_lshlrev_b32 v50, 1, v50", "v_lshl_add_u32 v51, v51, 1, v50", f"v_add_u32 v{vS}, v51, v{vEv}")
    wave_scan(a, vS)
    a("s_nop 0", f"v_readlane_b32 s{sTmp}, v{vS}, 63", "v_lshlrev_b32 v50, 10, v50", "v_lshl_or_b32 v50, v51, 20, v50", f"s_mov_b32 s{sTmp2}, 0x100401",
      f"v_sub_u32 v{vS}, s{sTmp}, v{vS}", f"v_mad_u32_u24 v{vS}, v{vS}, s{sTmp2}, v50")
    a(f"ds_bpermute_b32 v50, v55, v{vS}")
    a(f"v_mov_b32 v56, v{vInit}", f"v_lshl_or_b32 v57, v{vK}, 16, v47", "v_lshl_or_b32 v57, v54, 24, v57",
      f"v_mad_u32_u24 v58, v{vK}, 12, v{vInit}", f"v_sub_u32 v59, v{vD}, v{vK}", "v_lshl_or_b32 v59, v59, 16, v47", "v_lshl_or_b32 v59, v54, 24, v59")
    a("s_waitcnt lgkmcnt(0)", f"v_bfe_u32 v50, v50, v{vSh}, 10", f"v_add_lshl_u32 v50, v50, v{vR}, 2", "v_lshlrev_b32 v51, 1, v50")
    a(f"s_mov_b64 exec, s[{sValid}:{sValid+1}]", f"ds_write_b64 v51, v[56:57] offset:{L_SI}", f"ds_write_b32 v50, v48 offset:{L_OUTO}",
      f"s_mov_b64 exec, s[{sPair}:{sPair+1}]", f"ds_write_b64 v51, v[58:59] offset:{L_SI+8}", "s_mov_b64 exec, -1")
    a(f"v_and_b32 v50, 31, v{vLane}", f"s_lshl_b32 s{sTmp}, s{sWave}, 8", f"v_lshl_add_u32 v51, v50, 3, s{sTmp}", f"s_sub_u32 s{sTmp}, {7*256}, s{sTmp}",
      f"v_lshl_add_u32 v50, v50, 3, s{sTmp}", f"s_lshl_b32 s{sTile}, s{sWave}, 7", f"s_mov_b32 s{sTmp2}, 0x1000000")
    a("s_waitcnt lgkmcnt(0)", "s_barrier")
    st2(a, 5)
    a(f"ds_read_b64 v[60:61], v51 offset:{L_SI}", f"ds_read_b64 v[62:63], v50 offset:{L_SI}")
    a(selectors())
    a("s_waitcnt lgkmcnt(1)", f"v_mov_b32 v{vLds}, v60", f"v_mov_b32 v{vT0}, v61")
    a(tile_open(vT0))
    a(tile_scalars(vT0))
    a(f"v_accvgpr_write_b32 a{aInfo}, v{vT0}", f"s_cmp_eq_u64 s[{sValid}:{sValid+1}], 0", "s_cbranch_scc1 K2_DONE")
    a("s_waitcnt lgkmcnt(6)", mkoff(0), f"s_mov_b64 exec, s[{sValid}:{sValid+1}]", [gather(0, q) for q in range(4)])
    a("s_waitcnt lgkmcnt(5)", mkoff(1), [gather(1, q) for q in range(4)], "s_mov_b64 exec, -1")
    a(f"v_accvgpr_write_b32 a{aNextL}, v62", f"v_accvgpr_write_b32 a{aNextI}, v63", "v_bfe_u32 v62, v63, 16, 8", "s_nop 0", "v_readfirstlane_b32 s38, v62")
    a("s_waitcnt lgkmcnt(0)")
    for b in range(4): a(q_mfmas(b))
    a("s_waitcnt vmcnt(4)")
    st2(a, 6)
    a(edge_mfmas(0, NUM, 0), "s_nop 7", "s_nop 3")
    a(".p2align 3", "K2_FIRST:")
    body, n = align8([f"s_mov_b64 exec, s[{sValid}:{sValid+1}]"] + step(0, True))
    a(body, "s_branch K2_L1")
    a(".p2align 6")
    for u in range(3):
        body = step(u, False) + [f"s_sub_u32 s{sC}, s{sC}, 1"]
        if u < 2: body += [f"s_cbranch_scc1 K2_X{u}"]
        else: body += ["s_cbranch_scc0 K2_L0"]
        body, n = align8(body)
        assert n % 8 == 0
        a(f"K2_L{u}:", body)
    for u in (2, 0, 1):
        a(f"K2_X{u}:", f"s_cmp_lg_u32 s{sStage}, 0", "s_cbranch_scc1 K2_TEND",
          f"s_mov_b32 s{sStage}, 1", f"s_mov_b32 s{sC}, 1", f"s_mov_b32 s{sX+2}, 0", f"v_add_u32 v{vPad}, 2, v{vPad}", f"s_branch K2_L{(u+1)%3}")
    a("K2_TEND:", "s_cmp_eq_u32 s38, 0", "s_cbranch_scc1 K2_FINAL", "s_mov_b32 s38, 0")
    st2(a, 7)
    epilogue(a, True)
    st2(a, 8)
    a("s_branch K2_FIRST")
    a("K2_FINAL:")
    st2(a, 9)
    epilogue(a, False)
    a("K2_DONE:")
    st2(a, 10)
    a("v_mov_b32 v20, 0", "v_mov_b32 v21, 1", f"s_mov_b64 exec, s[{sBad}:{sBad+1}]", f"ds_write_b32 v20, v21 offset:{L_FLAG}", "s_mov_b64 exec, -1")
    a("s_waitcnt lgkmcnt(0)", "s_barrier", f"ds_read_b32 v21, v20 offset:{L_FLAG}", "s_waitcnt lgkmcnt(0)", f"v_readfirstlane_b32 s{sTmp}, v21",
      f"s_cmp_lg_u32 s{sTmp}, 0", "s_cbranch_scc1 K2_SLOW")
    if OPT["stamps"]:
        a("s_waitcnt vmcnt(0)")
        st2(a, 11)
        a(f"s_add_u32 s48, s44, {STAMP_OFF}", "s_addc_u32 s49, s45, 0", "s_mov_b32 s50, 0x100000", "s_mov_b32 s51, 0x00020000",
          f"s_lshl_b32 s46, s{sBucket}, 2", f"s_add_u32 s46, s46, s{sWave}", "s_lshl_b32 s46, s46, 8",
          f"v_accvgpr_read_b32 v20, a{aStamp}", f"v_lshlrev_b32 v21, 2, v{vLane}", "buffer_store_dword v20, v21, s[48:51], s46 offen")
    a("K2_END:", "s_endpgm")
    gen_slow(a)

def gen_slow(a):
    tid, vStart, vCnt, vJ, vA = 0, 1, 2, 4, 5
    a("K2_SLOW:", "s_mov_b64 exec, -1", "s_waitcnt vmcnt(0) lgkmcnt(0)", f"s_mov_b32 s{sX+2}, {X_BYTES}", "s_barrier")
    a(f"s_lshl_b32 s{sTmp}, s{sWave}, 6", f"v_add_u32 v{tid}, s{sTmp}, v{vLane}")
    a(f"v_lshlrev_b32 v20, 10, v{tid}", f"s_lshl_b32 s{sTmp}, s{sBucket}, 2", f"s_add_u32 s{sTmp}, s{sTmp}, {TAB_REL}",
      f"buffer_load_dword v21, v20, s[{sAux}:{sAux+3}], s{sTmp} offen")
    a("v_mov_b32 v24, 0", "v_mov_b32 v25, 0", "v_mov_b32 v26, 0", "v_mov_b32 v27, 0", f"v_lshlrev_b32 v22, 4, v{tid}", f"v_add_u32 v22, {L_TAB}, v22")
    for i in range(13): a(f"ds_write_b128 v22, v[24:27] offset:{4096*i}")
    a(selectors())
    a(f"v_mul_u32_u24 v{vStart}, {CH*12}, v{tid}", f"v_and_b32 v{vJ}, 31, v{vLane}", f"v_mul_u32_u24 v{vJ}, 12, v{vJ}")
    a("s_waitcnt vmcnt(0) lgkmcnt(0)", "v_and_b32 v22, 0xffff, v21", f"v_lshrrev_b32 v{vCnt}, 16, v21", f"v_add_u32 v{vStart}, v{vStart}, v22", "s_barrier")
    a(f"s_mul_i32 s50, s{sBucket}, {NB*128}", "s_mov_b32 s46, 0")
    a("KS_SEG:", "s_nop 3", f"v_readlane_b32 s47, v{vStart}, s46", f"v_readlane_b32 s48, v{vCnt}, s46", "s_mov_b32 s49, 0")
    a("KS_GRP:", "s_cmp_ge_u32 s49, s48", "s_cbranch_scc1 KS_NEXT")
    a(f"v_add_u32 v20, s49, v{vJ}", f"v_cmp_gt_u32 s[{sValid}:{sValid+1}], s48, v20", "v_add_u32 v20, s47, v20")
    a(f"buffer_load_dwordx3 v[8:10], v20, s[{sRec}:{sRec+3}], 0 offen", "s_waitcnt vmcnt(0)")
    a(mkoff(2), [gather(0, q) for q in range(4)])
    a("v_and_b32 v20, 0xffff, v10", f"v_lshl_add_u32 v{vOff}, v20, 5, v{vHalf}", f"v_add_u32 v{vOff}, s50, v{vOff}", [gather(2, q) for q in range(4)])
    a(f"v_lshlrev_b32 v{vA}, 6, v20", f"v_lshl_add_u32 v{vA}, v{vHalf}, 1, v{vA}", f"v_add_u32 v{vA}, {L_TAB}, v{vA}")
    a("s_waitcnt vmcnt(0)")
    for b in range(4):
        a(q_mfmas(b))
        a(mf8(Q + 16*b, ar(WC(b), 2), "v[8:9]", vr(Q + 16*b, 16)))
        for q in range(4): a(mf16(Q + 16*b, ar(WA(b, q), 4), ar(RING[0] + 4*q, 4), vr(Q + 16*b, 16)))
    a(mf8(D, ar(B2F, 2), vr(SEL, 2), "0"), mf8(D + 16, ar(B2F, 2), vr(SEL + 2, 2), "0"), "s_nop 7", "s_nop 7")
    for i in range(64): a(f"v_exp_f32 v{NUM+i}, v{Q+i}")
    for i in range(64): a(f"v_add_f32 v{NUM+i}, 1.0, v{NUM+i}")
    for i in range(64): a(f"v_rcp_f32 v{NUM+i}, v{NUM+i}")
    for i in range(64): a(f"v_mul_f32 v{NUM+i}, v{NUM+i}, v{Q+i}")
    for i in range(32): a(f"v_cvt_pk_bf16_f32 v{DEN+i}, v{NUM+2*i}, v{NUM+2*i+1}")
    a("s_nop 1")
    for b in range(4):
        for m in range(2):
            for ob in range(2): a(mf16(D + 16*ob, ar(W2(b, m, ob), 4), vr(DEN + 8*b + 4*m, 4), vr(D + 16*ob, 16)))
    a("s_nop 7", "s_nop 7", f"s_mov_b64 exec, s[{sValid}:{sValid+1}]")
    for i in range(32): a(f"ds_add_f32 v{vA}, v{D+i} offset:{4*i}")
    a("s_mov_b64 exec, -1", "s_waitcnt lgkmcnt(0)", f"s_add_u32 s49, s49, {32*12}", "s_branch KS_GRP")
    a("KS_NEXT:", "s_add_u32 s46, s46, 1", "s_cmp_lt_u32 s46, 64", "s_cbranch_scc1 KS_SEG")
    a("s_waitcnt lgkmcnt(0)", "s_barrier")
    a(f"v_lshlrev_b32 v20, 5, v{tid}", f"v_add_u32 v20, {L_TAB}, v20", f"v_lshlrev_b32 v21, 4, v{tid}", "v_add_u32 v21, s50, v21")
    for i in range(7):
        if i == 6: a(f"v_cmp_gt_u32 vcc, {NB*8-1536}, v{tid}", "s_and_saveexec_b64 s[46:47], vcc", "s_cbranch_execz KS_END")
        a(f"ds_read_b128 v[24:27], v20 offset:{8192*i}", f"ds_read_b128 v[28:31], v20 offset:{8192*i+16}", "s_waitcnt lgkmcnt(0)")
        for j in range(4): a(f"v_cvt_pk_bf16_f32 v{32+j}, v{24+2*j}, v{25+2*j}")
        a(f"buffer_store_dwordx4 v[32:35], v21, s[{sOut}:{sOut+3}], 0 offen", "s_nop 1", "v_add_u32 v21, 4096, v21")
    a("KS_END:", "s_endpgm")

def kd(name, vgpr, accum, sgpr=102):
    return f""".amdhsa_kernel {name}
  .amdhsa_next_free_vgpr {vgpr}
  .amdhsa_next_free_sgpr {sgpr}
  .amdhsa_accum_offset {accum}
  .amdhsa_group_segment_fixed_size 0
  .amdhsa_kernarg_size 88
  .amdhsa_user_sgpr_count 2
  .amdhsa_user_sgpr_kernarg_segment_ptr 1
  .amdhsa_system_sgpr_workgroup_id_x 1
  .amdhsa_float_denorm_mode_32 3
.end_amdhsa_kernel
"""

def generate(**opt):
    OPT.update(opt)
    ref = open("standalone__edge_featured_mpnn_mpnn__graph.s.ref").read().split("\n")
    head = [x for x in ref if x.startswith(";") and "@launch" not in x and not x.startswith("; Override") and not x.startswith("; grid=")]
    head += [f"; @launch kernel=k1_kernel grid=(254,1,1) block=(1024,1,1) lds={K1_LDS}",
             f"; @launch kernel=k2_kernel grid=(256,1,1) block=(256,1,1) lds={K2_LDS}"]
    a = Asm()
    a('.amdgcn_target "amdgcn-amd-amdhsa--gfx950"', ".text", ".globl k1_kernel", ".type k1_kernel,@function", ".globl k2_kernel", ".type k2_kernel,@function")
    gen_k1(a); gen_k2(a)
    return "\n".join(head) + "\n" + a.text() + '.section .rodata,"a"\n.p2align 6\n' + kd("k1_kernel", 64, 64, 48) + ".p2align 6\n" + kd("k2_kernel", 512, 256)

if __name__ == "__main__":
    out = sys.argv[1] if len(sys.argv) > 1 else "standalone__edge_featured_mpnn_mpnn__graph.s"
    opt = {}
    for x in sys.argv[2:]:
        k, v = x.split("="); opt[k] = int(v)
    open(out, "w").write(generate(**opt))
```

```python
import re, sys, struct, math

N, E = 50000, 800000
NB = 196
CH = 3200
NCH = 250
CAP = 45
REC_BYTES = E * 12
FRAG_OFF = REC_BYTES
NFRAG = 51
FRAG_BYTES = NFRAG * 1024
TAB_REL = FRAG_BYTES
AUX_BYTES = FRAG_BYTES + NCH * 1024
STAMP_OFF = 16 << 20
X_BYTES = N * 128

def f32(x): return "0x%08x" % struct.unpack("<I", struct.pack("<f", x))[0]
NLOG2E = f32(-math.log2(math.e))
NLN2 = f32(-math.log(2.0))

OPT = dict(stamps=False, force_slow=False)

class Asm:
    def __init__(self): self.l = []
    def __call__(self, *xs):
        for x in xs:
            if isinstance(x, (list, tuple)): self(*x)
            else:
                for y in x.split("\n"):
                    y = y.strip()
                    if y: self.l.append(y)
    def text(self):
        return "\n".join((x if (x.endswith(":") or x.startswith(".")) else "    " + x) for x in self.l) + "\n"

def srd(a, s, lo, hi, nrec):
    a(f"s_mov_b32 s{s}, s{lo}", f"s_mov_b32 s{s+1}, s{hi}", f"s_mov_b32 s{s+2}, {nrec}", f"s_mov_b32 s{s+3}, 0x00020000")

def wave_scan(a, v):
    for sh in (1, 2, 4, 8):
        a("s_nop 1", f"v_add_u32_dpp v{v}, v{v}, v{v} row_shr:{sh} row_mask:0xf bank_mask:0xf")
    a("s_nop 1", f"v_add_u32_dpp v{v}, v{v}, v{v} row_bcast:15 row_mask:0xa bank_mask:0xf")
    a("s_nop 1", f"v_add_u32_dpp v{v}, v{v}, v{v} row_bcast:31 row_mask:0xc bank_mask:0xf")

def isize(x):
    if x.endswith(":") or x.startswith("."): return 0
    op = x.split()[0]
    rest = x[len(op):]
    def lit():
        for tok in re.split(r"[,\s]+", rest):
            if re.fullmatch(r"-?(0x[0-9a-fA-F]+|\d+)", tok):
                v = int(tok, 0)
                if not (-16 <= v <= 64): return True
        return False
    if op in ("s_waitcnt", "s_nop", "s_barrier", "s_branch", "s_endpgm", "s_setprio") or op.startswith("s_cbranch"): return 4
    if op.startswith(("s_load", "s_memtime", "s_memrealtime")): return 8
    if op.startswith("s_"): return 8 if lit() else 4
    if op.startswith(("buffer_", "ds_", "global_", "v_mfma", "v_pk_", "v_accvgpr_read", "v_accvgpr_write")): return 8
    if op.endswith("_e64") or op.endswith("_dpp") or op.endswith("_sdwa"): return 8
    vop3 = ("v_mad_", "v_fma_", "v_max3", "v_min3", "v_cvt_pk_bf16", "v_lshl_add", "v_lshl_or", "v_bfe", "v_add3", "v_and_or",
            "v_readlane", "v_writelane", "v_mul_lo", "v_mul_hi", "v_add_lshl", "v_perm_b32", "v_or3")
    if op.startswith(vop3): return 8
    if op.startswith("v_cmp"):
        if not rest.strip().startswith("vcc"): return 8
        return 8 if lit() else 4
    if op == "v_cndmask_b32" and not rest.strip().endswith("vcc"): return 8
    return 8 if lit() else 4

PROMOTE = ("v_exp_f32 ", "v_rcp_f32 ", "v_mul_f32 ", "v_mov_b32 ")
def align8(lines):
    o = list(lines); pos = 0; last = None
    for i, x in enumerate(o):
        s = isize(x)
        if x.startswith("v_pk_") and pos % 8 == 4:
            assert last is not None, "cannot align " + x
            op = o[last].split()[0]; o[last] = o[last].replace(op, op + "_e64", 1); pos += 4; last = None
        if x.startswith(PROMOTE) and s == 4: last = i
        elif x.startswith("v_pk_"): last = None
        pos += s
    return o, pos

K1_CNT, K1_BASE, K1_STG = 0, 1024, 2048
K1_LDS = K1_STG + CH * 12

def st1(a, idx):
    if OPT["stamps"]:
        a("s_memtime s[44:45]", "s_memrealtime s[46:47]", "s_waitcnt lgkmcnt(0)", f"v_writelane_b32 v60, s44, {idx}", f"v_writelane_b32 v60, s46, {idx+16}")

def gen_k1(a):
    a(".p2align 8", "k1_kernel:")
    a("s_cmp_ge_u32 s2, 254", "s_cbranch_scc1 K1_END")
    a("s_cmp_ge_u32 s2, 250", "s_cbranch_scc1 K1_FRAG")
    st1(a, 0)
    a("s_load_dwordx4 s[4:7], s[0:1], 8", "s_load_dwordx2 s[8:9], s[0:1], 24", "s_load_dwordx2 s[10:11], s[0:1], 80")
    a("v_lshlrev_b32 v1, 2, v0", "v_mov_b32 v2, 0", "ds_write_b32 v1, v2")
    a("v_lshlrev_b32 v3, 4, v0", "v_lshlrev_b32 v4, 5, v0", "v_mov_b32 v5, 12")
    a("v_readfirstlane_b32 s3, v0")
    a(f"s_mul_i32 s12, s2, {CH*4}", f"s_mul_i32 s13, s2, {CH*8}", f"s_mul_i32 s14, s2, {CH*12}", "s_movk_i32 s15, -196")
    a("v_cmp_gt_u32 vcc, 800, v0")
    a("s_waitcnt lgkmcnt(0)")
    st1(a, 1)
    srd(a, 16, 8, 9, E*4)
    srd(a, 20, 6, 7, E*4)
    srd(a, 24, 4, 5, E*8)
    a("s_add_u32 s32, s10, s14", "s_addc_u32 s33, s11, 0", f"s_mov_b32 s34, {CH*12}", "s_mov_b32 s35, 0x00020000")
    a(f"s_add_u32 s36, s10, {FRAG_OFF}", "s_addc_u32 s37, s11, 0", f"s_mov_b32 s38, {AUX_BYTES}", "s_mov_b32 s39, 0x00020000")
    a("s_and_saveexec_b64 s[30:31], vcc", "s_cbranch_execz K1_A")
    a("buffer_load_dwordx4 v[8:11], v3, s[16:19], s12 offen",
      "buffer_load_dwordx4 v[12:15], v3, s[20:23], s12 offen",
      "buffer_load_dwordx4 v[16:19], v4, s[24:27], s13 offen",
      "buffer_load_dwordx4 v[20:23], v4, s[24:27], s13 offen offset:16")
    a("K1_A:", "s_barrier", "s_cbranch_execz K1_B")
    a("s_waitcnt vmcnt(3)")
    st1(a, 2)
    for e in range(4):
        a(f"v_mul_u32_u24 v{24+e}, 85599, v{8+e}", f"v_lshrrev_b32 v{24+e}, 22, v{24+e}", f"v_and_b32 v{24+e}, 0x3fc, v{24+e}",
          f"ds_add_rtn_u32 v{28+e}, v{24+e}, v5")
    for e in range(4):
        a(f"v_lshlrev_b32 v{8+e}, 2, v{8+e}", f"v_mad_i32_i24 v{8+e}, v{24+e}, s15, v{8+e}")
    a("s_waitcnt lgkmcnt(0)")
    a("K1_B:", "s_barrier")
    st1(a, 3)
    a("s_cmp_lg_u32 s3, 0", "s_cbranch_scc1 K1_C")
    a("ds_read_b128 v[32:35], v3", "s_waitcnt lgkmcnt(0)")
    a("v_add_u32 v36, v32, v33", "v_add3_u32 v36, v36, v34, v35", "v_mov_b32 v37, v36")
    wave_scan(a, 37)
    a("v_sub_u32 v40, v37, v36", "v_add_u32 v41, v40, v32", "v_add_u32 v42, v41, v33", "v_add_u32 v43, v42, v34")
    a(f"ds_write_b128 v3, v[40:43] offset:{K1_BASE}")
    for e in range(4): a(f"v_lshl_or_b32 v{44+e}, v{32+e}, 16, v{40+e}")
    a("s_waitcnt lgkmcnt(0)")
    a("K1_C:", "s_barrier")
    st1(a, 4)
    a("s_cbranch_execz K1_D")
    for e in range(4): a(f"ds_read_b32 v{24+e}, v{24+e} offset:{K1_BASE}")
    a("s_waitcnt vmcnt(0)")
    st1(a, 5)
    for e in range(4): a(f"v_lshl_or_b32 v{8+e}, v{12+e}, 16, v{8+e}")
    for e in range(4):
        a(f"s_waitcnt lgkmcnt({3-e+2*e})", f"v_add3_u32 v{28+e}, v{28+e}, v{24+e}, s40" if False else f"v_add_u32 v{28+e}, v{28+e}, v{24+e}")
        a(f"v_add_u32 v{28+e}, {K1_STG}, v{28+e}")
        a(f"ds_write2_b32 v{28+e}, v{16+2*e}, v{17+2*e} offset0:0 offset1:1", f"ds_write_b32 v{28+e}, v{8+e} offset:8")
    a("s_cmp_lg_u32 s3, 0", "s_cbranch_scc1 K1_C2")
    a("s_lshl_b32 s28, s2, 10", f"s_add_u32 s28, s28, {TAB_REL}")
    a("buffer_store_dwordx4 v[44:47], v3, s[36:39], s28 offen")
    a("K1_C2:", "s_waitcnt lgkmcnt(0)")
    a("K1_D:", "s_mov_b64 exec, s[30:31]", "s_barrier")
    st1(a, 6)
    a(f"ds_read_b128 v[8:11], v3 offset:{K1_STG}", f"ds_read_b128 v[12:15], v3 offset:{K1_STG+16384}", f"ds_read_b128 v[16:19], v3 offset:{K1_STG+32768}")
    a("s_movk_i32 s28, 0x4000", "s_mov_b32 s29, 0x8000")
    a("s_waitcnt lgkmcnt(2)", "buffer_store_dwordx4 v[8:11], v3, s[32:35], 0 offen",
      "s_waitcnt lgkmcnt(1)", "buffer_store_dwordx4 v[12:15], v3, s[32:35], s28 offen",
      "s_waitcnt lgkmcnt(0)", "buffer_store_dwordx4 v[16:19], v3, s[32:35], s29 offen")
    if OPT["stamps"]:
        st1(a, 7)
        a("s_waitcnt vmcnt(0)")
        st1(a, 8)
        a(f"s_add_u32 s40, s10, {STAMP_OFF+(1<<20)}", "s_addc_u32 s41, s11, 0", "s_mov_b32 s42, 0x200000", "s_mov_b32 s43, 0x00020000",
          "s_lshl_b32 s28, s2, 12", "buffer_store_dword v60, v1, s[40:43], s28 offen")
    a("K1_END:", "s_endpgm")
    a("K1_FRAG:")
    a("s_load_dwordx8 s[4:11], s[0:1], 32", "s_load_dwordx2 s[12:13], s[0:1], 80")
    a("v_lshrrev_b32 v1, 6, v0", "v_and_b32 v2, 31, v0", "v_bfe_u32 v3, v0, 5, 1")
    a("v_readfirstlane_b32 s3, v1")
    a("v_bfe_u32 v4, v2, 2, 1", "v_lshlrev_b32 v4, 5, v4", "v_lshrrev_b32 v5, 3, v2", "v_lshl_add_u32 v4, v5, 2, v4",
      "v_and_b32 v5, 3, v2", "v_add_u32 v4, v4, v5")
    a("s_waitcnt lgkmcnt(0)")
    srd(a, 16, 4, 5, 132*128*2)
    srd(a, 20, 6, 7, 256)
    srd(a, 24, 8, 9, 128*64*2)
    srd(a, 28, 10, 11, 128)
    a(f"s_add_u32 s36, s12, {FRAG_OFF}", "s_addc_u32 s37, s13, 0", f"s_mov_b32 s38, {FRAG_BYTES}", "s_mov_b32 s39, 0x00020000")
    a("s_sub_u32 s14, s2, 250", "s_lshl_b32 s15, s14, 14")
    a("v_lshlrev_b32 v7, 4, v0")
    a("s_cmp_eq_u32 s14, 2", "s_cbranch_scc1 K1_FW2", "s_cmp_eq_u32 s14, 3", "s_cbranch_scc1 K1_FMISC")
    a("s_and_b32 s40, s3, 3", "s_lshr_b32 s41, s3, 2", "s_lshl_b32 s40, s40, 11", "s_lshl_b32 s41, s41, 6", "s_add_u32 s40, s40, s41", "s_add_u32 s40, s40, s15")
    a("v_lshlrev_b32 v6, 13, v3", "v_lshl_add_u32 v6, v2, 1, v6")
    for j in range(8): a(f"buffer_load_ushort v{8+j}, v6, s[16:19], s40 offen offset:{256*j}")
    a(f"s_mov_b32 s42, {NLOG2E}", "s_branch K1_FSC")
    a("K1_FW2:")
    a("s_lshr_b32 s40, s3, 1", "s_lshl_b32 s40, s40, 11", "s_and_b32 s41, s3, 1", "s_lshl_b32 s41, s41, 5", "s_add_u32 s40, s40, s41")
    a("v_lshlrev_b32 v6, 9, v3", "v_lshl_add_u32 v6, v4, 1, v6")
    for j in range(8): a(f"buffer_load_ushort v{8+j}, v6, s[24:27], s40 offen offset:{128*(8*(j>>2)+(j&3))}")
    a(f"s_mov_b32 s42, {NLN2}")
    a("K1_FSC:", "s_waitcnt vmcnt(0)")
    for j in range(8): a(f"v_lshlrev_b32 v{8+j}, 16, v{8+j}", f"v_mul_f32 v{8+j}, s42, v{8+j}")
    for j in range(4): a(f"v_cvt_pk_bf16_f32 v{16+j}, v{8+2*j}, v{9+2*j}")
    a("buffer_store_dwordx4 v[16:19], v7, s[36:39], s15 offen", "s_endpgm")
    a("K1_FMISC:")
    a("s_cmp_ge_u32 s3, 3", "s_cbranch_scc1 K1_END")
    a("v_lshlrev_b32 v6, 1, v2", "v_lshlrev_b32 v5, 1, v4")
    a("s_cmp_eq_u32 s3, 2", "s_cbranch_scc1 K1_FB")
    a("s_lshl_b32 s40, s3, 7", f"s_add_u32 s40, s40, {128*256}")
    for j in range(8): a(f"buffer_load_ushort v{8+j}, v6, s[16:19], s40 offen offset:{256*(j&3)+64*(j>>2)}")
    a("s_branch K1_FHL")
    a("K1_FB:")
    for j in range(4): a(f"buffer_load_ushort v{8+j}, v6, s[20:23], 0 offen offset:{64*j}")
    a("buffer_load_ushort v24, v5, s[28:31], 0 offen", "buffer_load_ushort v25, v5, s[28:31], 0 offen offset:32")
    for j in range(4, 8): a(f"v_mov_b32 v{8+j}, 0")
    a("K1_FHL:", f"s_mov_b32 s42, {NLOG2E}", "s_waitcnt vmcnt(0)")
    a("v_cmp_eq_u32 vcc, 1, v3")
    for j in range(8): a(f"v_lshlrev_b32 v{8+j}, 16, v{8+j}", f"v_mul_f32 v{8+j}, s42, v{8+j}")
    for j in range(4):
        a(f"v_cvt_pk_bf16_f32 v{16+j}, v{8+2*j}, v{9+2*j}",
          f"v_lshlrev_b32 v20, 16, v{16+j}", f"v_and_b32 v21, 0xffff0000, v{16+j}",
          f"v_sub_f32 v20, v{8+2*j}, v20", f"v_sub_f32 v21, v{9+2*j}, v21",
          f"v_cvt_pk_bf16_f32 v20, v20, v21", f"v_cndmask_b32 v{16+j}, v{16+j}, v20, vcc")
    a("s_cmp_eq_u32 s3, 2", "s_cbranch_scc0 K1_FST")
    a("v_lshl_or_b32 v18, v25, 16, v24", "v_mov_b32 v19, 0", "v_cndmask_b32 v18, v18, v19, vcc")
    a("K1_FST:", "buffer_store_dwordx4 v[16:19], v7, s[36:39], s15 offen", "s_endpgm")

L_CNT, L_HIST, L_FLAG, L_OUTO, L_SI, L_OST = 0, 1024, 1280, 1536, 2560, 4608
OST_W = 32 * 144
L_XR = L_OST + 4 * OST_W
L_TAB = L_XR + 25 * 1024
ESZ = 12
K2_LDS = L_TAB + NB * CAP * ESZ

Q, NUM, DEN, D, EE = 16, 80, 144, 208, 240
ENT = (0, 4, 8)
vOff, vLds, vHalf, vPad, vLane, vT0, vT1 = 3, 7, 11, 12, 13, 14, 15
RING = (204, 220, 236)
aInfo, aNextL, aNextI, aStamp = 252, 253, 254, 255
def WA(b, q): return 4 * (4 * b + q)
def WB(b, q): return 64 + 4 * (4 * b + q)
def W2(b, m, ob): return 128 + 4 * (4 * b + 2 * m + ob)
def WC(b): return 192 + 2 * b
B1F, B2F = 200, 202
sX, sOut, sRec, sAux = 4, 8, 12, 16
sWave, sBucket, s128, sC, sStage, sTile, sL, sTmp, sTmp2 = 20, 21, 22, 23, 24, 25, 26, 27, 28
sValid, sPair, sBad, sSave = 30, 32, 34, 36
sMask0 = 52

def vr(b, n): return f"v[{b}:{b+n-1}]"
def ar(b, n): return f"a[{b}:{b+n-1}]"
def pkfma(d, x, y, z): return f"v_pk_fma_f32 {vr(d,2)}, {vr(x,2)}, {vr(y,2)}, {vr(z,2)}"
def mf16(d, A, B, c): return f"v_mfma_f32_32x32x16_bf16 {vr(d,16)}, {A}, {B}, {c}"
def mf8(d, A, B, c): return f"v_mfma_f32_32x32x8_bf16 {vr(d,16)}, {A}, {B}, {c}"

def edge_mfmas(b, dst, u):
    o = [mf8(dst, ar(WC(b), 2), vr(ENT[u], 2), vr(Q + 16*b, 16))]
    for q in range(4): o.append(mf16(dst, ar(WA(b, q), 4), ar(RING[u] + 4*q, 4), vr(dst, 16)))
    return o
def gather(u, q): return f"buffer_load_dwordx4 {ar(RING[u]+4*q,4)}, v{vOff}, s[{sX}:{sX+3}], 0 offen offset:{16*q}"
def mkoff(u): return f"v_mad_u32_u16 v{vOff}, v{ENT[u]+2}, s{s128}, v{vHalf} op_sel:[1,0,0,0]"
def entry(u, off): return f"ds_read_b96 {vr(ENT[u],3)}, v{vLds} offset:{off}"

def interleave(v, m, gap=3, start=0):
    o = []; k = 0
    for i, x in enumerate(v):
        if k < len(m) and i == start + k * gap: o.append(m[k]); k += 1
        o.append(x)
    return o + m[k:]

def step(u, first):
    o = []
    nx, pre = (u + 1) % 3, (u + 2) % 3
    for b in range(4):
        n, dn = NUM + 16*b, DEN + 16*b
        t = n if first else D + 16*(b & 1)
        e = dn if first else EE
        ex = [f"v_exp_f32 v{e+i}, v{t+i}" for i in range(16)]
        if b < 3: m = edge_mfmas(b + 1, NUM + 16*(b+1) if first else D + 16*((b+1) & 1), u)
        else: m = edge_mfmas(0, D, nx)
        A = interleave(ex, m)
        head, mid, end = [], [gather(pre, b)], []
        if b == 0:
            head = ["s_waitcnt lgkmcnt(0)", mkoff(pre)]
            if not first: end = [f"v_cmpx_gt_i32 vcc, s{sC}, v{vPad}"]
        if b == 2:
            end = [entry(u, 36 + ESZ*u)]
        if b == 3:
            head = ["s_waitcnt vmcnt(3)"]
            if u == 2: end = [f"v_add_u32 v{vLds}, 36, v{vLds}"]
        if first:
            p = [f"v_pk_add_f32 {vr(dn+i,2)}, {vr(dn+i,2)}, 1.0 op_sel_hi:[1,0]" for i in range(0, 16, 2)]
        else:
            p = [pkfma(n+i, n+i, EE+i, n+i) for i in range(0, 16, 2)]
            p += [pkfma(n+i, t+i, dn+i, n+i) for i in range(0, 16, 2)]
            p += [pkfma(dn+i, dn+i, EE+i, dn+i) for i in range(0, 16, 2)]
        blk = head + A[:2] + mid + A[2:] + end + p
        x = OPT.get("exp", 0)
        if not first:
            if x & 1: blk = [("s_nop 1" if i.startswith("v_mfma") else i) for i in blk]
            if x & 2: blk = [("s_nop 0" if i.startswith("v_pk") else i) for i in blk]
            if x & 4: blk = [("s_nop 1" if (i.startswith("v_exp") and not i.endswith(f"v{t+15}")) else i) for i in blk]
            if x & 8: blk = [("s_nop 1" if i.startswith("buffer_load") else i) for i in blk]
            if x & 16: blk = [("s_nop 0" if i.startswith("v_mfma_f32_32x32x8") else i) for i in blk]
        o += blk
    return o

SEL = EE + 4
def selectors():
    return [f"v_mov_b32 v{SEL}, 0x3f80", f"v_mov_b32 v{SEL+1}, 0", f"v_mov_b32 v{SEL+2}, 1.0", f"v_mov_b32 v{SEL+3}, 0",
            f"v_mov_b32 v{SEL+4}, 0", f"v_mov_b32 v{SEL+5}, 0x3f80", f"v_mov_b32 v{SEL+6}, 0", f"v_mov_b32 v{SEL+7}, 1.0"]
def q_mfmas(b):
    o = [mf8(Q + 16*b, ar(B1F, 2), vr(SEL + 2*b, 2), "0")]
    for q in range(4): o.append(mf16(Q + 16*b, ar(WB(b, q), 4), ar(RING[2] + 4*q, 4), vr(Q + 16*b, 16)))
    return o

def tile_open(vinfo):
    o = [entry(0, 0), entry(1, ESZ), f"v_and_b32 v{vT1}, 0xffff, v{vinfo}", f"v_add_u32 v{vT1}, v{vT1}, v{vHalf}"]
    o += [f"ds_read_b128 {ar(RING[2]+4*q,4)}, v{vT1} offset:{L_XR+16*q}" for q in range(4)]
    o += [entry(2, 2*ESZ)]
    return o
def tile_scalars(vinfo):
    return [f"v_bfe_u32 v{vPad}, v{vinfo}, 16, 8", f"v_cmp_le_u32 s[{sPair}:{sPair+1}], s{sTmp2}, v{vinfo}",
            f"v_readfirstlane_b32 s{sL}, v{vPad}", f"v_cmp_lt_u32 s[{sValid}:{sValid+1}], 0, v{vPad}",
            f"s_max_u32 s{sL}, s{sL}, 4", f"s_sub_u32 s{sC}, s{sL}, 4", f"s_sub_u32 s{sL}, s{sL}, 3", f"s_mov_b32 s{sStage}, 0",
            f"v_sub_u32 v{vPad}, s{sL}, v{vPad}"]

def epilogue(a, nxt):
    lab = "T" if nxt else "F"
    OO = EE + 12
    CHK = vT0
    a("s_mov_b64 exec, -1", "s_waitcnt vmcnt(0) lgkmcnt(0)", f"s_mov_b32 s{sX+2}, {X_BYTES}")
    a(f"v_accvgpr_read_b32 v{EE+2}, a{aInfo}")
    if nxt:
        a(f"v_accvgpr_read_b32 v{vLds}, a{aNextL}", f"v_accvgpr_read_b32 v{vT0}, a{aNextI}")
        a(tile_open(vT0))
        a(f"v_accvgpr_write_b32 a{aInfo}, v{vT0}")
    a(f"v_lshrrev_b32 v{vT1}, 3, v{vLane}", f"v_lshl_add_u32 v{vT1}, v{vT1}, 4, s{sTile}", f"ds_read_b128 {vr(OO,4)}, v{vT1} offset:{L_OUTO}")
    a(f"v_bfe_u32 v{EE+2}, v{EE+2}, 16, 8", f"v_cvt_f32_u32 v{EE+2}, v{EE+2}", f"v_mov_b32 v{EE+1}, 0", f"v_mov_b32 v{EE+3}, 0", f"v_lshrrev_b32 v{EE}, 16, v{EE+2}")
    if nxt: a(selectors())
    a(f"v_mov_b32 v{CHK}, 1.0", "s_nop 0")
    mq = [mf8(D, ar(B2F, 2), vr(EE, 2), "0"), mf8(D + 16, ar(B2F, 2), vr(EE + 2, 2), "0")]
    for b in range(4):
        n, dn = NUM + 16*b, DEN + 16*b
        v = [f"v_max3_f32 v{CHK}, v{CHK}, v{dn+i}, v{dn+i+1}" for i in range(0, 16, 2)]
        v += [f"v_rcp_f32 v{dn+i}, v{dn+i}" for i in range(16)]
        v += [f"v_mul_f32 v{n+i}, v{n+i}, v{dn+i}" for i in range(16)]
        v += [f"v_cvt_pk_bf16_f32 v{dn+i//2}, v{n+i}, v{n+i+1}" for i in range(0, 16, 2)]
        if nxt:
            if b == 0:
                v = v[:12] + ["s_waitcnt lgkmcnt(0)", mkoff(0)] + v[12:]
                blk = interleave(v[:14], mq, 4) + interleave(v[14:], [gather(0, 0)] + q_mfmas(0) + [gather(0, 1)], 4)
            else:
                ld = {1: [gather(0, 2), gather(0, 3)], 2: [mkoff(1), gather(1, 0), gather(1, 1)], 3: [gather(1, 2), gather(1, 3)]}[b]
                blk = interleave(v, mq + q_mfmas(b) + ld, 4, 1)
        else:
            blk = interleave(v, mq, 5, 1)
        a(blk)
        mq = [mf16(D + 16*ob, ar(W2(b, m, ob), 4), vr(dn + 4*m, 4), vr(D + 16*ob, 16)) for m in range(2) for ob in range(2)]
    a("s_nop 1", mq)
    P, R = DEN + 32, DEN + 48
    a(f"v_and_b32 v{EE}, 7, v{vLane}", f"v_lshlrev_b32 v{EE}, 4, v{EE}")
    if not nxt: a("s_waitcnt lgkmcnt(0)")
    for q in range(4): a(f"v_add_u32 v{OO+q}, v{OO+q}, v{EE}")
    a(f"v_lshrrev_b32 v{EE+1}, 3, v{vLane}", f"s_mul_i32 s{sTmp}, s{sWave}, {OST_W}", f"v_mul_u32_u24 v{EE+1}, {4*144}, v{EE+1}",
      f"v_add3_u32 v{EE+1}, v{EE+1}, v{EE}, s{sTmp}")
    a(f"v_and_b32 v{EE+2}, 31, v{vLane}", f"v_mul_u32_u24 v{EE+2}, 144, v{EE+2}", f"v_add3_u32 v{EE+2}, v{EE+2}, v{vHalf}, s{sTmp}")
    a(f"v_cmp_le_f32 vcc, {f32(2.0**120)}, v{CHK}", f"v_mov_b32 v{EE+3}, 0x207", f"s_mov_b64 s[{sSave}:{sSave+1}], vcc", "s_nop 7")
    a(f"v_cmp_class_f32 vcc, v{D+16}, v{EE+3}", f"s_or_b64 vcc, vcc, s[{sSave}:{sSave+1}]", f"s_and_b64 vcc, vcc, s[{sValid}:{sValid+1}]",
      f"s_or_b64 s[{sBad}:{sBad+1}], s[{sBad}:{sBad+1}], vcc")
    a(f"s_mov_b64 exec, s[{sPair}:{sPair+1}]", f"s_cbranch_execz K2_{lab}NP", "s_nop 4")
    for i in range(32): a(f"v_add_f32_dpp v{D+i}, v{D+i}, v{D+i} quad_perm:[1,0,3,2] row_mask:0xf bank_mask:0xf")
    a(f"K2_{lab}NP:", "s_mov_b64 exec, -1")
    cv = [f"v_cvt_pk_bf16_f32 v{P+i}, v{D+2*i}, v{D+2*i+1}" for i in range(16)]
    wr = [f"ds_write_b128 v{EE+2}, {vr(P+4*q,4)} offset:{L_OST+16*q}" for q in range(4)]
    seq = []
    for q in range(4): seq += cv[4*q:4*q+4] + [wr[q]]
    if nxt:
        a("s_waitcnt vmcnt(4)")
        seq = interleave(seq, edge_mfmas(0, NUM, 0), 4)
    a(seq)
    a([f"ds_read_b128 {vr(R+4*q,4)}, v{EE+1} offset:{L_OST+144*q}" for q in range(4)])
    if nxt:
        a(f"v_accvgpr_read_b32 v{vT0}, a{aInfo}", f"s_mov_b32 s{sTmp2}, 0x1000000", tile_scalars(vT0))
        a(f"s_lshl_b32 s{sTmp}, s{sWave}, 7", f"s_sub_u32 s{sTile}, {7*128}, s{sTmp}")
    for q in range(4):
        a(f"s_waitcnt lgkmcnt({3-q})", f"buffer_store_dwordx4 {vr(R+4*q,4)}, v{OO+q}, s[{sOut}:{sOut+3}], 0 offen")

def st2(a, idx):
    if OPT["stamps"]:
        a("s_memtime s[100:101]", "s_memrealtime s[50:51]", "s_mov_b64 s[48:49], exec", "s_mov_b64 exec, -1", f"v_accvgpr_read_b32 v{vT1}, a{aStamp}", "s_waitcnt lgkmcnt(0)", "s_nop 0",
          f"v_writelane_b32 v{vT1}, s100, {idx}", f"v_writelane_b32 v{vT1}, s50, {idx+16}", "s_nop 0", f"v_accvgpr_write_b32 a{aStamp}, v{vT1}", "s_mov_b64 exec, s[48:49]")

def gen_k2(a):
    a(".p2align 8", "k2_kernel:")
    a("s_cmp_ge_u32 s2, 256", "s_cbranch_scc1 K2_END")
    if OPT["stamps"]: a(f"v_accvgpr_write_b32 a{aStamp}, 0")
    st2(a, 0)
    a("s_load_dwordx2 s[40:41], s[0:1], 0", "s_load_dwordx2 s[42:43], s[0:1], 64", "s_load_dwordx2 s[44:45], s[0:1], 80")
    tid = 16
    a(f"v_mov_b32 v{tid}, v0", f"v_and_b32 v{vLane}, 63, v0", "v_lshrrev_b32 v1, 6, v0")
    a(f"s_and_b32 s{sBucket}, s2, 7", f"s_lshl_b32 s{sBucket}, s{sBucket}, 5", "s_lshr_b32 s3, s2, 3", f"s_add_u32 s{sBucket}, s{sBucket}, s3")
    a(f"v_readfirstlane_b32 s{sWave}, v1")
    vInit = 17
    a(f"v_mul_u32_u24 v{vInit}, {CAP*ESZ}, v{tid}", f"v_add_u32 v{vInit}, {L_TAB}, v{vInit}")
    a(f"v_lshlrev_b32 v18, 2, v{tid}", "v_mov_b32 v20, 0", "v_mov_b32 v21, 0", "v_mov_b32 v22, 0xffffff00", f"v_lshlrev_b32 v19, 3, v{tid}")
    a(f"ds_write_b32 v18, v{vInit} offset:{L_CNT}", f"ds_write_b32 v18, v22 offset:{L_OUTO}", f"ds_write_b64 v19, v[20:21] offset:{L_SI}")
    a(f"v_lshlrev_b32 v23, 3, v{vLane}", f"ds_write_b64 v23, v[20:21] offset:{L_HIST}")
    a(f"v_lshlrev_b32 v24, 10, v{tid}", f"v_lshlrev_b32 v25, 4, v{vLane}")
    a(f"s_lshl_b32 s{sTmp}, s{sBucket}, 2", f"s_add_u32 s{sTmp}, s{sTmp}, {TAB_REL}")
    a(f"s_movk_i32 s{s128}, 128", f"s_mov_b64 s[{sBad}:{sBad+1}], 0")
    a("s_waitcnt lgkmcnt(0)")
    st2(a, 12)
    srd(a, sX, 40, 41, X_BYTES)
    srd(a, sOut, 42, 43, X_BYTES)
    srd(a, sRec, 44, 45, REC_BYTES)
    a(f"s_add_u32 s{sAux}, s44, {FRAG_OFF}", f"s_addc_u32 s{sAux+1}, s45, 0", f"s_mov_b32 s{sAux+2}, {AUX_BYTES}", f"s_mov_b32 s{sAux+3}, 0x00020000")
    vE = 26
    a(f"buffer_load_dword v{vE}, v24, s[{sAux}:{sAux+3}], s{sTmp} offen")
    a(f"s_mul_i32 s46, s{sWave}, 6144", f"s_mul_i32 s47, s{sBucket}, {NB*128}", "s_add_u32 s47, s47, s46", f"s_add_u32 m0, s46, {L_XR}", "s_nop 0")
    for i in range(4): a(f"buffer_load_dwordx4 v25, s[{sX}:{sX+3}], s47 offen offset:{1024*i} lds")
    a("s_add_u32 s47, s47, 4096", f"s_add_u32 m0, s46, {L_XR+4096}", "s_nop 0")
    for i in range(3): a(f"buffer_load_dwordx4 v25, s[{sX}:{sX+3}], s47 offen offset:{1024*i} lds")
    a(f"s_mul_i32 s46, s{sWave}, {13*1024}")
    for g in range(4):
        a(f"s_add_u32 m0, s46, {L_TAB+4096*g}", f"s_add_u32 s47, s46, {4096*g}")
        for i in range(4 if g < 3 else 1): a(f"buffer_load_dwordx4 v25, s[{sAux}:{sAux+3}], s47 offen offset:{1024*i} lds")
    st2(a, 13)
    vJ16, vN16, vJ4, vN4, vStart, vCnt, vTw = 27, 28, 29, 30, 31, 32, 33
    a(f"v_and_b32 v{vJ16}, 15, v{vLane}", f"v_mul_u32_u24 v{vJ16}, 12, v{vJ16}", f"v_not_b32 v{vN16}, v{vJ16}")
    a(f"v_and_b32 v{vJ4}, 3, v{vLane}", f"v_mul_u32_u24 v{vJ4}, 12, v{vJ4}", f"v_not_b32 v{vN4}, v{vJ4}")
    a(f"v_lshrrev_b32 v{vHalf}, 5, v{vLane}", f"v_lshlrev_b32 v{vHalf}, 6, v{vHalf}", f"v_mov_b32 v{vTw}, 12")
    vAE, vAO = 34, 35
    a(f"v_lshlrev_b32 v{vAE}, 3, v{vLane}", f"v_cmp_gt_u32 vcc, 32, v{vLane}", f"v_add_u32 v{vAO}, -4, v{vAE}", f"v_max_i32 v{vAO}, 0, v{vAO}",
      f"v_cndmask_b32 v{vAE}, 0, v{vAE}, vcc", f"v_cndmask_b32 v{vAO}, 0, v{vAO}, vcc")
    a(f"v_mul_u32_u24 v{vStart}, {CH*12}, v{tid}")
    a("s_waitcnt vmcnt(20)")
    st2(a, 1)
    a(f"v_and_b32 v36, 0xffff, v{vE}", f"v_lshrrev_b32 v{vCnt}, 16, v{vE}", f"v_add_u32 v{vStart}, v{vStart}, v36")
    RB = 64
    def dppq(i): return f"quad_perm:[{i},{i},{i},{i}] row_mask:0xf bank_mask:0xf"
    def dppr(i): return f"row_newbcast:{i} row_mask:0xf bank_mask:0xf"
    def rec(i): return RB + 4*i
    a(f"v_cmp_lt_u32 vcc, {24*12}, v{vCnt}", f"s_mov_b64 s[{sSave}:{sSave+1}], vcc", "s_cbranch_vccz K2_P1")
    a(f"v_cmp_lt_u32 vcc, {40*12}, v{vCnt}", "s_cbranch_vccz K2_P0", f"s_mov_b64 s[{sBad}:{sBad+1}], 1", "K2_P0:")
    for r in range(2, 6):
        for i in range(4):
            s = 16 + 4*r + i
            a(f"v_add_u32_dpp v{rec(s)+3}, v{vStart}, v{vJ4} {dppq(i)}",
              f"buffer_load_dwordx3 {vr(rec(s),3)}, v{rec(s)+3}, s[{sRec}:{sRec+3}], 0 offen offset:{12*(16+4*r)}")
    a("K2_P1:")
    for i in range(16):
        a(f"v_add_u32_dpp v{rec(i)+3}, v{vStart}, v{vJ16} {dppr(i)}",
          f"buffer_load_dwordx3 {vr(rec(i),3)}, v{rec(i)+3}, s[{sRec}:{sRec+3}], 0 offen")
    for r in range(2):
        a(f"v_add_u32 v36, {-12*(16+4*r)}, v{vN4}", "s_nop 0")
        for i in range(4):
            s = 16 + 4*r + i
            a(f"v_add_u32_dpp v{rec(s)+3}, v{vStart}, v{vJ4} {dppq(i)}",
              f"v_add_co_u32_dpp v37, vcc, v{vCnt}, v36 {dppq(i)}", f"s_mov_b64 s[{sMask0+2*s}:{sMask0+2*s+1}], vcc")
    for s in range(16, 24):
        a(f"s_mov_b64 exec, s[{sMask0+2*s}:{sMask0+2*s+1}]",
          f"buffer_load_dwordx3 {vr(rec(s),3)}, v{rec(s)+3}, s[{sRec}:{sRec+3}], 0 offen offset:{12*(16+4*((s-16)//4))}")
    a("s_mov_b64 exec, -1")
    a(f"v_add_u32 v36, {L_TAB}, v25", "s_waitcnt vmcnt(24)", "s_barrier")
    st2(a, 2)
    for f in range(NFRAG): a(f"ds_read_b128 {ar(4*f,4)}, v36 offset:{1024*f}")
    for i in range(16):
        a(f"v_add_co_u32_dpp v37, vcc, v{vCnt}, v{vN16} {dppr(i)}", f"s_mov_b64 s[{sMask0+2*i}:{sMask0+2*i+1}], vcc")
    a("s_waitcnt lgkmcnt(0)", "s_barrier")
    st2(a, 3)
    LAG = 2
    def atom(s): return [f"v_and_b32 v{rec(s)+3}, 0xffff, v{rec(s)+2}", f"ds_add_rtn_u32 v{rec(s)+3}, v{rec(s)+3}, v{vTw}"]
    def put(s): return [f"ds_write2_b32 v{rec(s)+3}, v{rec(s)}, v{rec(s)+1} offset0:0 offset1:1", f"ds_write_b32 v{rec(s)+3}, v{rec(s)+2} offset:8"]
    def ex(s): return f"s_mov_b64 exec, s[{sMask0+2*s}:{sMask0+2*s+1}]"
    ops = []
    for i in range(24 + LAG):
        if i < 24:
            a(f"s_waitcnt vmcnt({23-i})", ex(i), atom(i)); ops.append(("a", i))
        if i >= LAG:
            s = i - LAG
            n = len(ops) - 1 - ops.index(("a", s))
            a(f"s_waitcnt lgkmcnt({n})", ex(s), put(s)); ops += [("w", s), ("w", s)]
    a("s_mov_b64 exec, -1")
    a(f"s_cmp_eq_u64 s[{sSave}:{sSave+1}], 0", "s_cbranch_scc1 K2_P2")
    for r in range(2, 6):
        a(f"v_add_u32 v36, {-12*(16+4*r)}, v{vN4}")
        for i in range(4):
            s = 16 + 4*r + i
            a("s_nop 4", f"v_add_co_u32_dpp v37, vcc, v{vCnt}, v36 {dppq(i)}", "s_mov_b64 exec, vcc", atom(s), "s_waitcnt lgkmcnt(0)", put(s), "s_mov_b64 exec, -1")
    a("K2_P2:", "s_waitcnt lgkmcnt(0)", "s_barrier")
    st2(a, 4)
    vD, vR, vH, vEv, vS = 40, 41, 42, 43, 44
    a(f"ds_read_b32 v{vD}, v18 offset:{L_CNT}", "v_mov_b32 v45, 1", "s_waitcnt lgkmcnt(0)")
    a(f"v_sub_u32 v{vD}, v{vD}, v{vInit}", f"v_cmp_lt_u32 vcc, {CAP*ESZ}, v{vD}", f"v_min_u32 v{vD}, {63*12}, v{vD}", f"v_mul_u32_u24 v{vD}, 5462, v{vD}",
      f"s_or_b64 s[{sBad}:{sBad+1}], s[{sBad}:{sBad+1}], vcc", f"v_lshrrev_b32 v{vD}, 16, v{vD}", f"v_lshlrev_b32 v46, 2, v{vD}")
    a(f"v_cmp_lt_u32 s[{sValid}:{sValid+1}], 0, v{vD}", f"v_cmp_gt_u32 vcc, {NB}, v{tid}", f"s_mov_b64 exec, s[{sValid}:{sValid+1}]",
      f"ds_add_rtn_u32 v{vR}, v46, v45 offset:{L_HIST}")
    a(f"s_mul_i32 s{sTmp}, s{sBucket}, {NB*128}")
    a("s_mov_b64 exec, -1", f"v_lshlrev_b32 v47, 7, v{tid}", f"v_add_u32 v48, s{sTmp}, v47")
    if OPT["force_slow"]: a(f"s_mov_b64 s[{sBad}:{sBad+1}], 1")
    a(f"s_mov_b64 exec, s[{sBad}:{sBad+1}]", f"ds_write_b32 v20, v45 offset:{L_FLAG}")
    a(f"s_andn2_b64 exec, vcc, s[{sValid}:{sValid+1}]", "s_cbranch_execz K2_N0")
    a("v_mov_b32 v52, 0", "v_mov_b32 v53, 0", "v_mov_b32 v54, 0", "v_mov_b32 v55, 0")
    for q in range(8): a(f"buffer_store_dwordx4 v[52:55], v48, s[{sOut}:{sOut+3}], 0 offen offset:{16*q}")
    a("K2_N0:", "s_mov_b64 exec, -1", "s_waitcnt lgkmcnt(0)", "s_barrier")
    a(f"v_lshlrev_b32 v49, 2, v{vLane}", f"ds_read_b32 v{vH}, v49 offset:{L_HIST}", f"ds_read_b32 v50, v20 offset:{L_FLAG}", "s_waitcnt lgkmcnt(0)")
    a(f"v_readfirstlane_b32 s{sTmp}, v50", f"v_add_u32 v{vEv}, 1, v{vH}", f"v_and_b32 v{vEv}, -2, v{vEv}", f"v_lshl_add_u32 v{vS}, v{vH}, 16, v{vEv}",
      f"s_cmp_lg_u32 s{sTmp}, 0", "s_cbranch_scc1 K2_SLOW")
    wave_scan(a, vS)
    a("s_nop 0", f"v_readlane_b32 s{sTmp}, v{vS}, 63", f"v_lshrrev_b32 v50, 16, v{vS}", f"v_and_b32 v{vS}, 0xffff, v{vS}", f"v_lshlrev_b32 v50, 1, v50",
      f"s_lshr_b32 s{sTmp}, s{sTmp}, 16", f"s_lshl_b32 s{sTmp}, s{sTmp}, 1", f"s_sub_u32 s{sTmp}, 256, s{sTmp}", f"v_sub_u32 v{vS}, v{vS}, v50")
    a(f"v_cmp_ge_i32 vcc, s{sTmp}, v{vS}", "s_and_b32 vcc_lo, vcc_lo, -2", f"s_ff1_i32_b64 s{sTmp}, vcc")
    a(f"v_cmp_lt_u32 vcc, s{sTmp}, v{vLane}", f"v_cmp_lt_u32 s[{sPair}:{sPair+1}], s{sTmp}, v{vD}", "s_nop 0",
      f"v_cndmask_b32 v{vH}, 0, v{vH}, vcc", f"v_cndmask_b32 v{vEv}, v{vEv}, v20, vcc")
    a(f"ds_bpermute_b32 v50, v{vAE}, v{vH}", f"ds_bpermute_b32 v51, v{vAO}, v{vH}")
    vK, vSh = 52, 53
    a(f"v_add_u32 v{vK}, 1, v{vD}", f"v_lshrrev_b32 v{vK}, 1, v{vK}", f"v_cndmask_b32 v{vK}, v{vD}, v{vK}, s[{sPair}:{sPair+1}]",
      f"v_and_b32 v{vSh}, 1, v{vD}", f"v_mul_u32_u24 v{vSh}, 10, v{vSh}", f"v_cndmask_b32 v{vSh}, 20, v{vSh}, s[{sPair}:{sPair+1}]",
      f"v_cndmask_b32 v54, 0, 1, s[{sPair}:{sPair+1}]", f"v_lshlrev_b32 v{vR}, v54, v{vR}", f"v_lshlrev_b32 v55, 2, v{vK}")
    a("s_waitcnt lgkmcnt(0)")
    a("v_lshlrev_b32 v50, 1, v50", "v_lshl_add_u32 v51, v51, 1, v50", f"v_add_u32 v{vS}, v51, v{vEv}")
    wave_scan(a, vS)
    a("s_nop 0", f"v_readlane_b32 s{sTmp}, v{vS}, 63", "v_lshlrev_b32 v50, 10, v50", "v_lshl_or_b32 v50, v51, 20, v50", f"s_mov_b32 s{sTmp2}, 0x100401",
      f"v_sub_u32 v{vS}, s{sTmp}, v{vS}", f"v_mad_u32_u24 v{vS}, v{vS}, s{sTmp2}, v50")
    a(f"ds_bpermute_b32 v50, v55, v{vS}")
    a(f"v_mov_b32 v56, v{vInit}", f"v_lshl_or_b32 v57, v{vK}, 16, v47", "v_lshl_or_b32 v57, v54, 24, v57",
      f"v_mad_u32_u24 v58, v{vK}, 12, v{vInit}", f"v_sub_u32 v59, v{vD}, v{vK}", "v_lshl_or_b32 v59, v59, 16, v47", "v_lshl_or_b32 v59, v54, 24, v59")
    a("s_waitcnt lgkmcnt(0)", f"v_bfe_u32 v50, v50, v{vSh}, 10", f"v_add_lshl_u32 v50, v50, v{vR}, 2", "v_lshlrev_b32 v51, 1, v50")
    a(f"s_mov_b64 exec, s[{sValid}:{sValid+1}]", f"ds_write_b64 v51, v[56:57] offset:{L_SI}", f"ds_write_b32 v50, v48 offset:{L_OUTO}",
      f"s_mov_b64 exec, s[{sPair}:{sPair+1}]", f"ds_write_b64 v51, v[58:59] offset:{L_SI+8}", "s_mov_b64 exec, -1")
    a(f"v_and_b32 v50, 31, v{vLane}", f"s_lshl_b32 s{sTmp}, s{sWave}, 8", f"v_lshl_add_u32 v51, v50, 3, s{sTmp}", f"s_sub_u32 s{sTmp}, {7*256}, s{sTmp}",
      f"v_lshl_add_u32 v50, v50, 3, s{sTmp}", f"s_lshl_b32 s{sTile}, s{sWave}, 7", f"s_mov_b32 s{sTmp2}, 0x1000000")
    a("s_waitcnt lgkmcnt(0)", "s_barrier")
    st2(a, 5)
    a(f"ds_read_b64 v[60:61], v51 offset:{L_SI}", f"ds_read_b64 v[62:63], v50 offset:{L_SI}")
    a(selectors())
    a("s_waitcnt lgkmcnt(1)", f"v_mov_b32 v{vLds}, v60", f"v_mov_b32 v{vT0}, v61")
    a(tile_open(vT0))
    a(tile_scalars(vT0))
    a(f"v_accvgpr_write_b32 a{aInfo}, v{vT0}", f"s_cmp_eq_u64 s[{sValid}:{sValid+1}], 0", "s_cbranch_scc1 K2_DONE")
    a("s_waitcnt lgkmcnt(6)", mkoff(0), f"s_mov_b64 exec, s[{sValid}:{sValid+1}]", [gather(0, q) for q in range(4)])
    a("s_waitcnt lgkmcnt(5)", mkoff(1), [gather(1, q) for q in range(4)], "s_mov_b64 exec, -1")
    a(f"v_accvgpr_write_b32 a{aNextL}, v62", f"v_accvgpr_write_b32 a{aNextI}, v63", "v_bfe_u32 v62, v63, 16, 8", "s_nop 0", "v_readfirstlane_b32 s38, v62")
    a("s_waitcnt lgkmcnt(0)")
    for b in range(4): a(q_mfmas(b))
    a("s_waitcnt vmcnt(4)")
    st2(a, 6)
    a(edge_mfmas(0, NUM, 0), "s_nop 7", "s_nop 3")
    a(".p2align 3", "K2_FIRST:")
    body, n = align8([f"s_mov_b64 exec, s[{sValid}:{sValid+1}]"] + step(0, True))
    a(body, "s_branch K2_L1")
    a(".p2align 6")
    for u in range(3):
        body = step(u, False) + [f"s_sub_u32 s{sC}, s{sC}, 1"]
        if u < 2: body += [f"s_cbranch_scc1 K2_X{u}"]
        else: body += ["s_cbranch_scc0 K2_L0"]
        body, n = align8(body)
        assert n % 8 == 0 or OPT.get("exp", 0)
        a(f"K2_L{u}:", body)
    for u in (2, 0, 1):
        a(f"K2_X{u}:", f"s_cmp_lg_u32 s{sStage}, 0", "s_cbranch_scc1 K2_TEND",
          f"s_mov_b32 s{sStage}, 1", f"s_mov_b32 s{sC}, 1", f"s_mov_b32 s{sX+2}, 0", f"v_add_u32 v{vPad}, 2, v{vPad}", f"s_branch K2_L{(u+1)%3}")
    a("K2_TEND:", "s_cmp_eq_u32 s38, 0", "s_cbranch_scc1 K2_FINAL", "s_mov_b32 s38, 0")
    st2(a, 7)
    epilogue(a, True)
    st2(a, 8)
    a("s_branch K2_FIRST")
    a("K2_FINAL:")
    st2(a, 9)
    epilogue(a, False)
    a("K2_DONE:")
    st2(a, 10)
    if OPT.get("exp", 0): a(f"s_mov_b64 s[{sBad}:{sBad+1}], 0")
    a("v_mov_b32 v20, 0", "v_mov_b32 v21, 1", f"s_mov_b64 exec, s[{sBad}:{sBad+1}]", f"ds_write_b32 v20, v21 offset:{L_FLAG}", "s_mov_b64 exec, -1")
    a("s_waitcnt lgkmcnt(0)", "s_barrier", f"ds_read_b32 v21, v20 offset:{L_FLAG}", "s_waitcnt lgkmcnt(0)", f"v_readfirstlane_b32 s{sTmp}, v21",
      f"s_cmp_lg_u32 s{sTmp}, 0", "s_cbranch_scc1 K2_SLOW")
    if OPT["stamps"]:
        a("s_waitcnt vmcnt(0)")
        st2(a, 11)
        a(f"s_add_u32 s48, s44, {STAMP_OFF}", "s_addc_u32 s49, s45, 0", "s_mov_b32 s50, 0x100000", "s_mov_b32 s51, 0x00020000",
          f"s_lshl_b32 s46, s{sBucket}, 2", f"s_add_u32 s46, s46, s{sWave}", "s_lshl_b32 s46, s46, 8",
          f"v_accvgpr_read_b32 v20, a{aStamp}", f"v_lshlrev_b32 v21, 2, v{vLane}", "buffer_store_dword v20, v21, s[48:51], s46 offen")
    a("K2_END:", "s_endpgm")
    gen_slow(a)

def gen_slow(a):
    tid, vStart, vCnt, vJ, vA = 0, 1, 2, 4, 5
    a("K2_SLOW:", "s_mov_b64 exec, -1", "s_waitcnt vmcnt(0) lgkmcnt(0)", f"s_mov_b32 s{sX+2}, {X_BYTES}", "s_barrier")
    a(f"s_lshl_b32 s{sTmp}, s{sWave}, 6", f"v_add_u32 v{tid}, s{sTmp}, v{vLane}")
    a(f"v_lshlrev_b32 v20, 10, v{tid}", f"s_lshl_b32 s{sTmp}, s{sBucket}, 2", f"s_add_u32 s{sTmp}, s{sTmp}, {TAB_REL}",
      f"buffer_load_dword v21, v20, s[{sAux}:{sAux+3}], s{sTmp} offen")
    a("v_mov_b32 v24, 0", "v_mov_b32 v25, 0", "v_mov_b32 v26, 0", "v_mov_b32 v27, 0", f"v_lshlrev_b32 v22, 4, v{tid}", f"v_add_u32 v22, {L_TAB}, v22")
    for i in range(13): a(f"ds_write_b128 v22, v[24:27] offset:{4096*i}")
    a(selectors())
    a(f"v_mul_u32_u24 v{vStart}, {CH*12}, v{tid}", f"v_and_b32 v{vJ}, 31, v{vLane}", f"v_mul_u32_u24 v{vJ}, 12, v{vJ}")
    a("s_waitcnt vmcnt(0) lgkmcnt(0)", "v_and_b32 v22, 0xffff, v21", f"v_lshrrev_b32 v{vCnt}, 16, v21", f"v_add_u32 v{vStart}, v{vStart}, v22", "s_barrier")
    a(f"s_mul_i32 s50, s{sBucket}, {NB*128}", "s_mov_b32 s46, 0")
    a("KS_SEG:", "s_nop 3", f"v_readlane_b32 s47, v{vStart}, s46", f"v_readlane_b32 s48, v{vCnt}, s46", "s_mov_b32 s49, 0")
    a("KS_GRP:", "s_cmp_ge_u32 s49, s48", "s_cbranch_scc1 KS_NEXT")
    a(f"v_add_u32 v20, s49, v{vJ}", f"v_cmp_gt_u32 s[{sValid}:{sValid+1}], s48, v20", "v_add_u32 v20, s47, v20")
    a(f"buffer_load_dwordx3 v[8:10], v20, s[{sRec}:{sRec+3}], 0 offen", "s_waitcnt vmcnt(0)")
    a(mkoff(2), [gather(0, q) for q in range(4)])
    a("v_and_b32 v20, 0xffff, v10", f"v_lshl_add_u32 v{vOff}, v20, 5, v{vHalf}", f"v_add_u32 v{vOff}, s50, v{vOff}", [gather(2, q) for q in range(4)])
    a(f"v_lshlrev_b32 v{vA}, 6, v20", f"v_lshl_add_u32 v{vA}, v{vHalf}, 1, v{vA}", f"v_add_u32 v{vA}, {L_TAB}, v{vA}")
    a("s_waitcnt vmcnt(0)")
    for b in range(4):
        a(q_mfmas(b))
        a(mf8(Q + 16*b, ar(WC(b), 2), "v[8:9]", vr(Q + 16*b, 16)))
        for q in range(4): a(mf16(Q + 16*b, ar(WA(b, q), 4), ar(RING[0] + 4*q, 4), vr(Q + 16*b, 16)))
    a(mf8(D, ar(B2F, 2), vr(SEL, 2), "0"), mf8(D + 16, ar(B2F, 2), vr(SEL + 2, 2), "0"), "s_nop 7", "s_nop 7")
    for i in range(64): a(f"v_exp_f32 v{NUM+i}, v{Q+i}")
    for i in range(64): a(f"v_add_f32 v{NUM+i}, 1.0, v{NUM+i}")
    for i in range(64): a(f"v_rcp_f32 v{NUM+i}, v{NUM+i}")
    for i in range(64): a(f"v_mul_f32 v{NUM+i}, v{NUM+i}, v{Q+i}")
    for i in range(32): a(f"v_cvt_pk_bf16_f32 v{DEN+i}, v{NUM+2*i}, v{NUM+2*i+1}")
    a("s_nop 1")
    for b in range(4):
        for m in range(2):
            for ob in range(2): a(mf16(D + 16*ob, ar(W2(b, m, ob), 4), vr(DEN + 8*b + 4*m, 4), vr(D + 16*ob, 16)))
    a("s_nop 7", "s_nop 7", f"s_mov_b64 exec, s[{sValid}:{sValid+1}]")
    for i in range(32): a(f"ds_add_f32 v{vA}, v{D+i} offset:{4*i}")
    a("s_mov_b64 exec, -1", "s_waitcnt lgkmcnt(0)", f"s_add_u32 s49, s49, {32*12}", "s_branch KS_GRP")
    a("KS_NEXT:", "s_add_u32 s46, s46, 1", "s_cmp_lt_u32 s46, 64", "s_cbranch_scc1 KS_SEG")
    a("s_waitcnt lgkmcnt(0)", "s_barrier")
    a(f"v_lshlrev_b32 v20, 5, v{tid}", f"v_add_u32 v20, {L_TAB}, v20", f"v_lshlrev_b32 v21, 4, v{tid}", "v_add_u32 v21, s50, v21")
    for i in range(7):
        if i == 6: a(f"v_cmp_gt_u32 vcc, {NB*8-1536}, v{tid}", "s_and_saveexec_b64 s[46:47], vcc", "s_cbranch_execz KS_END")
        a(f"ds_read_b128 v[24:27], v20 offset:{8192*i}", f"ds_read_b128 v[28:31], v20 offset:{8192*i+16}", "s_waitcnt lgkmcnt(0)")
        for j in range(4): a(f"v_cvt_pk_bf16_f32 v{32+j}, v{24+2*j}, v{25+2*j}")
        a(f"buffer_store_dwordx4 v[32:35], v21, s[{sOut}:{sOut+3}], 0 offen", "s_nop 1", "v_add_u32 v21, 4096, v21")
    a("KS_END:", "s_endpgm")

def kd(name, vgpr, accum, sgpr=102):
    return f""".amdhsa_kernel {name}
  .amdhsa_next_free_vgpr {vgpr}
  .amdhsa_next_free_sgpr {sgpr}
  .amdhsa_accum_offset {accum}
  .amdhsa_group_segment_fixed_size 0
  .amdhsa_kernarg_size 88
  .amdhsa_user_sgpr_count 2
  .amdhsa_user_sgpr_kernarg_segment_ptr 1
  .amdhsa_system_sgpr_workgroup_id_x 1
  .amdhsa_float_denorm_mode_32 3
.end_amdhsa_kernel
"""

def generate(**opt):
    OPT.update(opt)
    ref = open("standalone__edge_featured_mpnn_mpnn__graph.s.ref").read().split("\n")
    head = [x for x in ref if x.startswith(";") and "@launch" not in x and not x.startswith("; Override") and not x.startswith("; grid=")]
    head += [f"; @launch kernel=k1_kernel grid=(254,1,1) block=(1024,1,1) lds={K1_LDS}",
             f"; @launch kernel=k2_kernel grid=(256,1,1) block=(256,1,1) lds={K2_LDS}"]
    a = Asm()
    a('.amdgcn_target "amdgcn-amd-amdhsa--gfx950"', ".text", ".globl k1_kernel", ".type k1_kernel,@function", ".globl k2_kernel", ".type k2_kernel,@function")
    gen_k1(a); gen_k2(a)
    return "\n".join(head) + "\n" + a.text() + '.section .rodata,"a"\n.p2align 6\n' + kd("k1_kernel", 64, 64, 48) + ".p2align 6\n" + kd("k2_kernel", 512, 256)

if __name__ == "__main__":
    out = sys.argv[1] if len(sys.argv) > 1 else "standalone__edge_featured_mpnn_mpnn__graph.s"
    opt = {}
    for x in sys.argv[2:]:
        k, v = x.split("="); opt[k] = int(v)
    open(out, "w").write(generate(**opt))
```

```python
import sys
sys.path.insert(0,'code')
import gen
def diag(s, kern, idx, red):
    i=s.index(".amdgcn_target"); s=s[:i]+"; @launch kernel=k3_kernel grid=(1,1,1) block=(1024,1,1) lds=64\n"+s[i:]
    if kern==2: ld=f"v_min_u32 v1, 1019, v0\n v_lshlrev_b32 v1, 8, v1\n buffer_load_dword v3, v1, s[8:11], 0 offen offset:{4*(16+idx)}"
    elif kern==1: ld=f"v_mov_b32 v1, v2\n buffer_load_dword v3, v1, s[8:11], s12 offen offset:{4*(16+idx)}"
    else: ld=f"v_mov_b32 v1, v2\n buffer_load_dword v3, v1, s[8:11], s12 offen offset:64"
    if kern==0: red='min'
    op={'max':'ds_max_u32','min':'ds_min_u32','avg':'ds_add_u32'}[red]
    init={'max':'0','min':'-1','avg':'0'}[red]
    k=f"""
.p2align 8
k3_kernel:
 s_cmp_lg_u32 s2, 0
 s_cbranch_scc1 K3_END
 s_load_dwordx2 s[4:5], s[0:1], 80
 v_mov_b32 v5, 0
 v_mov_b32 v6, -1
 v_mov_b32 v7, {init}
 ds_write_b32 v5, v6
 ds_write_b32 v5, v7 offset:4
 s_waitcnt lgkmcnt(0)
 s_add_u32 s8, s4, {gen.STAMP_OFF}
 s_addc_u32 s9, s5, 0
 s_mov_b32 s10, 0x300000
 s_mov_b32 s11, 0x00020000
 s_mov_b32 s12, 0x100000
 v_lshrrev_b32 v2, 2, v0
 v_min_u32 v2, 249, v2
 v_lshlrev_b32 v2, 12, v2
 v_and_b32 v8, 3, v0
 v_mul_u32_u24 v8, 512, v8
 v_add_u32 v2, v2, v8
 buffer_load_dword v4, v2, s[8:11], s12 offen offset:64
 {ld}
 s_barrier
 s_waitcnt vmcnt(0)
 ds_min_u32 v5, v4
 s_waitcnt lgkmcnt(0)
 s_barrier
 ds_read_b32 v4, v5
 s_waitcnt lgkmcnt(0)
 v_sub_u32 v3, v3, v4
 {op} v5, v3 offset:4
 s_waitcnt lgkmcnt(0)
 s_barrier
 ds_read_b32 v3, v5 offset:4
 s_waitcnt lgkmcnt(0)
 {'v_lshrrev_b32 v3, 10, v3' if red=='avg' else 's_nop 0'}
 v_min_u32 v3, 20000, v3
 v_add_u32 v3, 10000, v3
 s_nop 1
 v_readfirstlane_b32 s14, v3
 v_readfirstlane_b32 s15, v4
 s_mov_b32 s20, 200000
K3_L:
 s_memrealtime s[16:17]
 s_waitcnt lgkmcnt(0)
 s_sub_u32 s16, s16, s15
 s_sub_u32 s20, s20, 1
 s_cbranch_scc1 K3_END
 s_cmp_lt_u32 s16, s14
 s_cbranch_scc1 K3_L
K3_END:
 s_endpgm
"""
    i=s.index('.section .rodata')
    return s[:i]+k+s[i:]+".p2align 6\n"+gen.kd("k3_kernel",16,16,32)
if __name__=="__main__":
    opts={}
    specs=[]
    for x in sys.argv[1:]:
        if "=" in x: k,v=x.split("="); opts[k]=int(v) if v.isdigit() else v.replace("+"," ")
        else: specs.append(x)
    s=gen.generate(stamps=1,**opts)
    for n,sp in enumerate(specs):
        kern,idx,red=sp.split(",")
        open(f"d{n}.s","w").write(diag(s,int(kern),int(idx),red))
```

```python
import re, sys, struct, math

N, E = 50000, 800000
NB = 196
CH = 3200
NCH = 250
CAP = 45
REC_BYTES = E * 12
FRAG_OFF = REC_BYTES
NFRAG = 51
FRAG_BYTES = NFRAG * 1024
TAB_REL = FRAG_BYTES
AUX_BYTES = FRAG_BYTES + NCH * 1024
STAMP_OFF = 16 << 20
X_BYTES = N * 128

def f32(x): return "0x%08x" % struct.unpack("<I", struct.pack("<f", x))[0]
NLOG2E = f32(-math.log2(math.e))
NLN2 = f32(-math.log(2.0))

OPT = dict(stamps=False, force_slow=False, k1st="sc1", outst="sc1")

class Asm:
    def __init__(self): self.l = []
    def __call__(self, *xs):
        for x in xs:
            if isinstance(x, (list, tuple)): self(*x)
            else:
                for y in x.split("\n"):
                    y = y.strip()
                    if y: self.l.append(y)
    def text(self):
        return "\n".join((x if (x.endswith(":") or x.startswith(".")) else "    " + x) for x in self.l) + "\n"

def vr(b, n): return f"v[{b}:{b+n-1}]"
def ar(b, n): return f"a[{b}:{b+n-1}]"

def srd(a, s, lo, hi, nrec):
    a(f"s_mov_b32 s{s}, s{lo}", f"s_mov_b32 s{s+1}, s{hi}", f"s_mov_b32 s{s+2}, {nrec}", f"s_mov_b32 s{s+3}, 0x00020000")

def wave_scan(a, v):
    for sh in (1, 2, 4, 8):
        a("s_nop 1", f"v_add_u32_dpp v{v}, v{v}, v{v} row_shr:{sh} row_mask:0xf bank_mask:0xf")
    a("s_nop 1", f"v_add_u32_dpp v{v}, v{v}, v{v} row_bcast:15 row_mask:0xa bank_mask:0xf")
    a("s_nop 1", f"v_add_u32_dpp v{v}, v{v}, v{v} row_bcast:31 row_mask:0xc bank_mask:0xf")

def isize(x):
    if x.endswith(":") or x.startswith("."): return 0
    op = x.split()[0]
    rest = x[len(op):]
    def lit():
        for tok in re.split(r"[,\s]+", rest):
            if re.fullmatch(r"-?(0x[0-9a-fA-F]+|\d+)", tok):
                v = int(tok, 0)
                if not (-16 <= v <= 64): return True
        return False
    if op in ("s_waitcnt", "s_nop", "s_barrier", "s_branch", "s_endpgm", "s_setprio") or op.startswith("s_cbranch"): return 4
    if op.startswith(("s_load", "s_memtime", "s_memrealtime")): return 8
    if op.startswith("s_"): return 8 if lit() else 4
    if op.startswith(("buffer_", "ds_", "global_", "v_mfma", "v_pk_", "v_accvgpr_read", "v_accvgpr_write")): return 8
    if op.endswith("_e64") or op.endswith("_dpp") or op.endswith("_sdwa"): return 8
    vop3 = ("v_mad_", "v_fma_", "v_max3", "v_min3", "v_cvt_pk_bf16", "v_lshl_add", "v_lshl_or", "v_bfe", "v_add3", "v_and_or",
            "v_readlane", "v_writelane", "v_maximum3", "v_mul_lo", "v_mul_hi", "v_add_lshl", "v_perm_b32", "v_or3")
    if op.startswith(vop3): return 8
    if op.startswith("v_cmp"):
        if not rest.strip().startswith("vcc"): return 8
        return 8 if lit() else 4
    if op == "v_cndmask_b32" and not rest.strip().endswith("vcc"): return 8
    return 8 if lit() else 4

PROMOTE = ("v_exp_f32 ", "v_rcp_f32 ", "v_mul_f32 ", "v_mov_b32 ", "v_lshrrev_b32 ", "v_add_u32 ", "v_lshlrev_b32 ")
def align8(lines):
    o = list(lines); pos = 0; last = None
    for i, x in enumerate(o):
        s = isize(x)
        if x.startswith("v_pk_") and pos % 8 == 4:
            assert last is not None, "cannot align " + x
            op = o[last].split()[0]; o[last] = o[last].replace(op, op + "_e64", 1); pos += 4; last = None
        if x.startswith(PROMOTE) and s == 4: last = i
        elif x.startswith("v_pk_"): last = None
        pos += s
    return o, pos

K1_CNT, K1_BASE, K1_STG = 0, 1024, 2048
K1_LDS = K1_STG + CH * 12

def st1(a, idx):
    if OPT["stamps"]:
        a("s_memtime s[44:45]", "s_memrealtime s[46:47]", "s_waitcnt lgkmcnt(0)", f"v_writelane_b32 v70, s44, {idx}", f"v_writelane_b32 v70, s46, {idx+16}")

K1_T = 448
def gen_k1(a):
    sc = OPT.get("k1st", "")
    a(".p2align 8", "k1_kernel:")
    a("s_cmp_ge_u32 s2, 250", "s_cbranch_scc1 K1_FRAG")
    st1(a, 0)
    a("s_load_dwordx4 s[4:7], s[0:1], 8", "s_load_dwordx2 s[8:9], s[0:1], 24", "s_load_dwordx2 s[10:11], s[0:1], 80")
    a("v_lshlrev_b32 v1, 2, v0", "v_mov_b32 v2, 0", "ds_write_b32 v1, v2")
    a("v_lshlrev_b32 v3, 4, v0", "v_lshlrev_b32 v4, 5, v0", "v_mov_b32 v5, 12")
    a("v_readfirstlane_b32 s3, v0")
    a(f"s_mul_i32 s12, s2, {CH*4}", f"s_mul_i32 s13, s2, {CH*8}", f"s_mul_i32 s14, s2, {CH*12}", "s_movk_i32 s15, -196")
    a(f"s_add_u32 s40, s12, {CH*2}", f"s_add_u32 s41, s13, {CH*4}")
    a("v_cmp_gt_u32 vcc, 400, v0")
    a("s_waitcnt lgkmcnt(0)")
    st1(a, 1)
    srd(a, 16, 8, 9, E*4)
    a("s_and_saveexec_b64 s[30:31], vcc")
    DS, SR, AT, BK, RK = 8, 16, 24, 40, 48
    a(f"buffer_load_dwordx4 {vr(DS,4)}, v3, s[16:19], s12 offen", f"buffer_load_dwordx4 {vr(DS+4,4)}, v3, s[16:19], s40 offen")
    srd(a, 20, 6, 7, E*4)
    srd(a, 24, 4, 5, E*8)
    a(f"buffer_load_dwordx4 {vr(SR,4)}, v3, s[20:23], s12 offen", f"buffer_load_dwordx4 {vr(AT,4)}, v4, s[24:27], s13 offen",
      f"buffer_load_dwordx4 {vr(AT+4,4)}, v4, s[24:27], s13 offen offset:16",
      f"buffer_load_dwordx4 {vr(SR+4,4)}, v3, s[20:23], s40 offen", f"buffer_load_dwordx4 {vr(AT+8,4)}, v4, s[24:27], s41 offen",
      f"buffer_load_dwordx4 {vr(AT+12,4)}, v4, s[24:27], s41 offen offset:16")
    a("s_add_u32 s32, s10, s14", "s_addc_u32 s33, s11, 0", f"s_mov_b32 s34, {CH*12}", "s_mov_b32 s35, 0x00020000")
    a(f"s_add_u32 s36, s10, {FRAG_OFF}", "s_addc_u32 s37, s11, 0", f"s_mov_b32 s38, {AUX_BYTES}", "s_mov_b32 s39, 0x00020000")
    a("s_barrier")
    for e in range(8):
        if e % 4 == 0: a(f"s_waitcnt vmcnt({7 - e//4})")
        if e == 0: st1(a, 2)
        a(f"v_mul_u32_u24 v{BK+e}, 85599, v{DS+e}", f"v_lshrrev_b32 v{BK+e}, 22, v{BK+e}", f"v_and_b32 v{BK+e}, 0x3fc, v{BK+e}",
          f"ds_add_rtn_u32 v{RK+e}, v{BK+e}, v5")
    for e in range(8):
        a(f"v_lshlrev_b32 v{DS+e}, 2, v{DS+e}", f"v_mad_i32_i24 v{DS+e}, v{BK+e}, s15, v{DS+e}")
    a("s_waitcnt lgkmcnt(0)", "s_barrier")
    st1(a, 3)
    a("s_cmp_lg_u32 s3, 0", "s_cbranch_scc1 K1_C")
    a("ds_read_b128 v[56:59], v3", "s_waitcnt lgkmcnt(0)")
    a("v_add_u32 v6, v56, v57", "v_add3_u32 v6, v6, v58, v59", "v_mov_b32 v7, v6")
    wave_scan(a, 7)
    a("v_sub_u32 v64, v7, v6", "v_add_u32 v65, v64, v56", "v_add_u32 v66, v65, v57", "v_add_u32 v67, v66, v58")
    a(f"ds_write_b128 v3, v[64:67] offset:{K1_BASE}")
    for e in range(4): a(f"v_lshl_or_b32 v{56+e}, v{56+e}, 16, v{64+e}")
    a("s_waitcnt lgkmcnt(0)")
    a("K1_C:", "s_barrier")
    st1(a, 4)
    for e in range(8): a(f"ds_read_b32 v{BK+e}, v{BK+e} offset:{K1_BASE}")
    a(f"s_movk_i32 s28, {K1_STG}")
    for e in range(8):
        if e % 4 == 0:
            a(f"s_waitcnt vmcnt({3 - 3*(e//4)})")
            if e == 4: st1(a, 5)
            for k in range(4): a(f"v_lshl_or_b32 v{DS+e+k}, v{SR+e+k}, 16, v{DS+e+k}")
        a(f"s_waitcnt lgkmcnt({min(15, 7-e+2*e)})", f"v_add3_u32 v{RK+e}, v{RK+e}, v{BK+e}, s28")
        a(f"ds_write2_b32 v{RK+e}, v{AT+2*e}, v{AT+1+2*e} offset0:0 offset1:1", f"ds_write_b32 v{RK+e}, v{DS+e} offset:8")
    a("s_cmp_lg_u32 s3, 0", "s_cbranch_scc1 K1_C2")
    a("s_lshl_b32 s28, s2, 10", f"s_add_u32 s28, s28, {TAB_REL}")
    a(f"buffer_store_dwordx4 v[56:59], v3, s[36:39], s28 offen {sc}")
    a("K1_C2:", "s_mov_b64 exec, s[30:31]", "s_waitcnt lgkmcnt(0)", "s_barrier")
    st1(a, 6)
    NP = 6
    for i in range(NP): a(f"ds_read_b128 {vr(8+4*i,4)}, v3 offset:{K1_STG+K1_T*16*i}")
    for i in range(NP):
        if i: a(f"s_movk_i32 s28, {K1_T*16*i}" if K1_T*16*i < 32768 else f"s_mov_b32 s28, {K1_T*16*i}")
        a(f"s_waitcnt lgkmcnt({NP-1-i})", f"buffer_store_dwordx4 {vr(8+4*i,4)}, v3, s[32:35], {'s28' if i else '0'} offen {sc}")
    if OPT["stamps"]:
        st1(a, 7)
        a("s_waitcnt vmcnt(0)")
        st1(a, 8)
        a(f"s_add_u32 s40, s10, {STAMP_OFF+(1<<20)}", "s_addc_u32 s41, s11, 0", "s_mov_b32 s42, 0x200000", "s_mov_b32 s43, 0x00020000",
          "s_lshl_b32 s28, s2, 12", "buffer_store_dword v70, v1, s[40:43], s28 offen")
    a("K1_END:", "s_endpgm")
    a("K1_FRAG:")
    a("s_cmp_ge_u32 s2, 256", "s_cbranch_scc1 K1_END")
    a("s_load_dwordx8 s[4:11], s[0:1], 32", "s_load_dwordx2 s[12:13], s[0:1], 80")
    a("v_lshrrev_b32 v1, 6, v0", "v_and_b32 v2, 31, v0", "v_bfe_u32 v3, v0, 5, 1")
    a("v_readfirstlane_b32 s3, v1", "v_and_b32 v7, 63, v0", "v_lshlrev_b32 v7, 4, v7")
    a("s_sub_u32 s14, s2, 250", "s_mul_i32 s14, s14, 7", "s_add_u32 s3, s3, s14")
    a("s_waitcnt lgkmcnt(0)")
    srd(a, 16, 4, 5, 132*128*2)
    srd(a, 20, 6, 7, 256)
    srd(a, 24, 8, 9, 128*64*2)
    srd(a, 28, 10, 11, 128)
    a(f"s_add_u32 s36, s12, {FRAG_OFF}", "s_addc_u32 s37, s13, 0", f"s_mov_b32 s38, {FRAG_BYTES}", "s_mov_b32 s39, 0x00020000")
    a("K1_FLOOP:", "s_lshl_b32 s15, s3, 10")
    a("s_cmp_ge_u32 s3, 35", "s_cbranch_scc1 K1_FW2", "s_cmp_ge_u32 s3, 32", "s_cbranch_scc1 K1_FMISC")
    a("s_and_b32 s40, s3, 3", "s_lshl_b32 s40, s40, 11", "s_bfe_u32 s41, s3, 0x20002", "s_lshl_b32 s41, s41, 6", "s_add_u32 s40, s40, s41",
      "s_lshr_b32 s41, s3, 4", "s_lshl_b32 s41, s41, 14", "s_add_u32 s40, s40, s41")
    a("v_lshlrev_b32 v6, 13, v3", "v_lshl_add_u32 v6, v2, 1, v6")
    for j in range(8): a(f"buffer_load_ushort v{8+j}, v6, s[16:19], s40 offen offset:{256*j}")
    a(f"s_mov_b32 s42, {NLOG2E}", "s_branch K1_FSC")
    a("K1_FW2:")
    a("s_sub_u32 s41, s3, 35", "s_lshr_b32 s40, s41, 1", "s_lshl_b32 s40, s40, 11", "s_and_b32 s41, s41, 1", "s_lshl_b32 s41, s41, 1", "s_add_u32 s40, s40, s41")
    a("v_lshlrev_b32 v6, 9, v3", "v_lshl_add_u32 v6, v2, 2, v6")
    for j in range(8): a(f"buffer_load_ushort v{8+j}, v6, s[24:27], s40 offen offset:{128*(8*(j>>2)+(j&3))}")
    a(f"s_mov_b32 s42, {NLN2}")
    a("K1_FSC:", "s_waitcnt vmcnt(0)")
    for j in range(8): a(f"v_lshlrev_b32 v{8+j}, 16, v{8+j}", f"v_mul_f32 v{8+j}, s42, v{8+j}")
    for j in range(4): a(f"v_cvt_pk_bf16_f32 v{16+j}, v{8+2*j}, v{9+2*j}")
    a("s_branch K1_FST")
    a("K1_FMISC:")
    a("v_lshlrev_b32 v6, 1, v2", "v_lshlrev_b32 v5, 2, v2")
    a("s_cmp_eq_u32 s3, 34", "s_cbranch_scc1 K1_FB")
    a("s_and_b32 s40, s3, 1", "s_lshl_b32 s40, s40, 7", f"s_add_u32 s40, s40, {128*256}")
    for j in range(8): a(f"buffer_load_ushort v{8+j}, v6, s[16:19], s40 offen offset:{256*(j&3)+64*(j>>2)}")
    a("s_branch K1_FHL")
    a("K1_FB:")
    for j in range(4): a(f"buffer_load_ushort v{8+j}, v6, s[20:23], 0 offen offset:{64*j}")
    a("buffer_load_dword v24, v5, s[28:31], 0 offen")
    for j in range(4, 8): a(f"v_mov_b32 v{8+j}, 0")
    a("K1_FHL:", f"s_mov_b32 s42, {NLOG2E}", "s_waitcnt vmcnt(0)")
    a("v_cmp_eq_u32 vcc, 1, v3")
    for j in range(8): a(f"v_lshlrev_b32 v{8+j}, 16, v{8+j}", f"v_mul_f32 v{8+j}, s42, v{8+j}")
    for j in range(4):
        a(f"v_cvt_pk_bf16_f32 v{16+j}, v{8+2*j}, v{9+2*j}",
          f"v_lshlrev_b32 v20, 16, v{16+j}", f"v_and_b32 v21, 0xffff0000, v{16+j}",
          f"v_sub_f32 v20, v{8+2*j}, v20", f"v_sub_f32 v21, v{9+2*j}, v21",
          f"v_cvt_pk_bf16_f32 v20, v20, v21")
        if OPT.get("nolo"): a("v_mov_b32 v20, 0")
        a(f"v_cndmask_b32 v{16+j}, v{16+j}, v20, vcc")
    a("s_cmp_eq_u32 s3, 34", "s_cbranch_scc0 K1_FST")
    a("v_mov_b32 v19, 0", "v_cndmask_b32 v18, v24, v19, vcc")
    a("K1_FST:", f"buffer_store_dwordx4 v[16:19], v7, s[36:39], s15 offen {sc}")
    a("s_add_u32 s3, s3, 42", f"s_cmp_lt_u32 s3, {NFRAG}", "s_cbranch_scc1 K1_FLOOP", "s_endpgm")

L_CNT, L_HIST, L_FLAG, L_RANK, L_OUTO, L_W2S = 0, 1024, 1280, 1536, 2560, 4096
L_XR = L_W2S + 16 * 1024
L_TAB = L_XR + 25 * 1024
ESZ = 12
K2_LDS = L_TAB + NB * CAP * ESZ

Q, NUM, DEN, D, EE = 16, 80, 144, 208, 240
ENT = (0, 4, 8)
vOff, vLds, vHalf, vPad, vLane, vT0, vT1 = 3, 7, 11, 12, 13, 14, 15
RING = (204, 220, 236)
aInfo, aNextL, aNextI, aStamp = 252, 253, 254, 255
def WA(b, q): return 4 * (4 * b + q)
def WB(b, q): return 64 + 4 * (4 * b + q)
def WC(b): return 128 + 2 * b
B1F, B2F = 136, 138
def W2(b, m, ob): return 140 + 4 * (4 * b + 2 * m + ob)
sX, sOut, sRec, sAux = 4, 8, 12, 16
sWave, sBucket, s128, sC, sStage, sTile, sL, sTmp, sTmp2, sP2B = 20, 21, 22, 23, 24, 25, 26, 27, 28, 29
sValid, sBad, sSave, sP2A = 30, 34, 36, 38
sMask0 = 52
TILE_A = [(0, 0, 30), (1, 0, 76), (3, 1, 106), (1, 4, 132)]
TILE_B = [(16, 166, 0), (14, 62, 192), (11, 19, 182), (14, 5, 162)]
def _check_map():
    seen = []
    for P, rp, rs in TILE_A + TILE_B: seen += list(range(rp, rp + P)) + list(range(rs, rs + 32 - 2*P))
    assert sorted(seen) == list(range(NB))
_check_map()

def pkfma(d, x, y, z): return f"v_pk_fma_f32 {vr(d,2)}, {vr(x,2)}, {vr(y,2)}, {vr(z,2)}"
def pkmul(d, x, y): return f"v_pk_mul_f32 {vr(d,2)}, {vr(x,2)}, {vr(y,2)}"
def mf16(d, A, B, c): return f"v_mfma_f32_32x32x16_bf16 {vr(d,16)}, {A}, {B}, {c}"
def mf8(d, A, B, c): return f"v_mfma_f32_32x32x8_bf16 {vr(d,16)}, {A}, {B}, {c}"

def edge_mfmas(b, dst, u):
    o = [mf8(dst, ar(WC(b), 2), vr(ENT[u], 2), vr(Q + 16*b, 16))]
    for q in range(4): o.append(mf16(dst, ar(WA(b, q), 4), ar(RING[u] + 4*q, 4), vr(dst, 16)))
    return o
def gather(u, q): return f"buffer_load_dwordx4 {ar(RING[u]+4*q,4)}, v{vOff}, s[{sX}:{sX+3}], 0 offen offset:{16*q}"
def mkoff(u): return f"v_mad_u32_u16 v{vOff}, v{ENT[u]+2}, s{s128}, v{vHalf} op_sel:[1,0,0,0]"
def entry(u, off): return f"ds_read_b96 {vr(ENT[u],3)}, v{vLds} offset:{off}"

def interleave(v, m, gap=3, start=0):
    o = []; k = 0
    for i, x in enumerate(v):
        if k < len(m) and i == start + k * gap: o.append(m[k]); k += 1
        o.append(x)
    return o + m[k:]

def icost(x):
    if x.startswith(("v_exp", "v_rcp", "v_mfma_f32_32x32x16")): return 8
    if x.startswith(("buffer_", "ds_")): return 10
    return 4
def weave(fill, mf):
    o = []; k = 0; since = 99
    for i, x in enumerate(fill):
        if k < len(mf) and since >= 32 and i >= mf[k][1]:
            o.append(mf[k][0]); since = icost(mf[k][0]); k += 1
        o.append(x); since += icost(x)
    return o + [m for m, _ in mf[k:]]

def step(u, first, vm=3):
    o = []
    nx, pre = (u + 1) % 3, (u + 2) % 3
    for b in range(4):
        n, dn = NUM + 16*b, DEN + 16*b
        t = n if first else D + 16*(b & 1)
        e = dn if first else EE
        ex = [f"v_exp_f32 v{e+i}, v{t+i}" for i in range(16)]
        if b < 3: m = edge_mfmas(b + 1, NUM + 16*(b+1) if first else D + 16*((b+1) & 1), u)
        else: m = edge_mfmas(0, D, nx)
        A = interleave(ex, m)
        mid, end = [gather(pre, b)], []
        if b == 0 and not first: end = [f"v_cmpx_gt_i32 vcc, s{sC}, v{vPad}"]
        if b == 1:
            if not first: end = [f"s_sub_u32 s{sC}, s{sC}, 1"]
        if b == 2: end = [entry(u, 36 + ESZ*u)]
        if b == 3:
            mid = [f"s_waitcnt vmcnt({vm}) lgkmcnt(0)"] + mid if OPT.get("onewait") else [f"s_waitcnt vmcnt({vm})"] + mid
            end = ([] if OPT.get("onewait") else ["s_waitcnt lgkmcnt(0)"]) + [mkoff(u)]
            if u == 2: end += [f"v_add_u32 v{vLds}, 36, v{vLds}"]
        if first:
            p = [f"v_pk_add_f32 {vr(dn+i,2)}, {vr(dn+i,2)}, 1.0 op_sel_hi:[1,0]" for i in range(0, 16, 2)]
        else:
            p = [pkfma(n+i, n+i, EE+i, n+i) for i in range(0, 16, 2)]
            p += [pkfma(n+i, t+i, dn+i, n+i) for i in range(0, 16, 2)]
            p += [pkfma(dn+i, dn+i, EE+i, dn+i) for i in range(0, 16, 2)]
        blk = A[:2] + mid + A[2:] + end + p
        x = OPT.get("exp", 0)
        if not first:
            if x & 1: blk = [("s_nop 1" if i.startswith("v_mfma") else i) for i in blk]
            if x & 2: blk = [("s_nop 0" if i.startswith("v_pk") else i) for i in blk]
            if x & 4: blk = [("s_nop 1" if (i.startswith("v_exp") and not i.endswith(f"v{t+15}")) else i) for i in blk]
            if x & 8: blk = [("s_nop 1" if i.startswith("buffer_load") else i) for i in blk]
            if x & 16: blk = [("s_nop 0" if i.startswith("v_mfma_f32_32x32x8") else i) for i in blk]
        o += blk
    return o

SEL = EE + 4
def selectors():
    return [f"v_mov_b32 v{SEL}, 0x3f80", f"v_mov_b32 v{SEL+1}, 0", f"v_mov_b32 v{SEL+2}, 1.0", f"v_mov_b32 v{SEL+3}, 0",
            f"v_mov_b32 v{SEL+4}, 0", f"v_mov_b32 v{SEL+5}, 0x3f80", f"v_mov_b32 v{SEL+6}, 0", f"v_mov_b32 v{SEL+7}, 1.0"]
def q_mfmas(b):
    o = [mf8(Q + 16*b, ar(B1F, 2), vr(SEL + 2*b, 2), "0")]
    for q in range(4): o.append(mf16(Q + 16*b, ar(WB(b, q), 4), ar(RING[2] + 4*q, 4), vr(Q + 16*b, 16)))
    return o
def hdr_reads(vinfo, tmp):
    o = [f"v_and_b32 v{tmp[0]}, 0xffff, v{vinfo}", f"ds_read_b128 {ar(RING[2],4)}, v{tmp[0]} offset:{L_XR}"]
    for q in range(1, 4): o += [f"v_xor_b32 v{tmp[q]}, {16*q}, v{tmp[0]}", f"ds_read_b128 {ar(RING[2]+4*q,4)}, v{tmp[q]} offset:{L_XR}"]
    return o
def tile_scalars(vinfo, sp2):
    return [f"v_lshrrev_b32 v{vPad}, 16, v{vinfo}", f"s_mov_b32 s{sStage}, 0",
            f"v_readlane_b32 s{sL}, v{vPad}, 0", f"v_readlane_b32 s{sTmp}, v{vPad}, s{sp2}", f"v_cmp_lt_u32 s[{sValid}:{sValid+1}], 0, v{vPad}",
            f"s_max_u32 s{sL}, s{sL}, s{sTmp}", f"s_max_u32 s{sL}, s{sL}, 4", f"s_sub_u32 s{sC}, s{sL}, 4", f"s_sub_u32 s{sL}, s{sL}, 3",
            f"v_sub_u32 v{vPad}, s{sL}, v{vPad}"]

def epilogue(a, nxt):
    lab = "T" if nxt else "F"
    CHK, AD, P = EE + 12, NUM + 16, NUM + 32
    so = OPT.get("outst", "")
    a("s_mov_b64 exec, -1", f"s_cmp_lg_u64 s[{sValid}:{sValid+1}], -1", f"s_cbranch_scc1 K2_{lab}FIX", ".p2align 3", f"K2_{lab}GO:")
    o = [f"v_accvgpr_read_b32 v{EE+2}, a{aInfo}"]
    if nxt:
        o += [f"v_accvgpr_read_b32 v{vT0}, a{aNextI}", f"v_accvgpr_read_b32 v{vLds}, a{aNextL}", "s_waitcnt vmcnt(0) lgkmcnt(0)"]
        o += hdr_reads(vT0, [vT1, vOff, EE+14, EE+15]) + [entry(0, 0), entry(1, ESZ), entry(2, 2*ESZ), f"s_mov_b32 s{sX+2}, {X_BYTES}"]
    o += [f"v_lshrrev_b32 v{EE+2}, 16, v{EE+2}", f"v_cvt_f32_u32 v{EE+2}, v{EE+2}", f"v_mov_b32 v{EE+1}, 0", f"v_mov_b32 v{EE+3}, 0", f"v_lshrrev_b32 v{EE}, 16, v{EE+2}"]
    def chk(b):
        dn = DEN + 16*b
        return [(pkmul(CHK, dn, dn + 8) if (b == 0 and i == 0) else pkfma(CHK, dn+i, dn+8+i, CHK)) for i in range(0, 8, 2)]
    def cvt(b): return [f"v_cvt_pk_bf16_f32 v{DEN+16*b+i//2}, v{NUM+16*b+i}, v{NUM+16*b+i+1}" for i in range(0, 16, 2)]
    def w2(b): return [mf16(D + 16*ob, vr(DEN + 16*b + 4*m, 4), ar(W2(b, m, ob), 4), vr(D + 16*ob, 16)) for m in range(2) for ob in range(2)]
    o += chk(0)
    oread = [f"v_lshrrev_b32 v{vT1}, 2, v{vHalf}", f"v_add_u32 v{vT1}, s{sTile}, v{vT1}"] + \
            [f"ds_read_b128 {vr(AD+4*g,4)}, v{vT1} offset:{L_OUTO+32*g}" for g in range(4)] + \
            [f"v_and_b32 v{vT1}, 31, v{vLane}", f"v_lshlrev_b32 v{vT1}, 2, v{vT1}"]
    oadd = [f"v_add_u32 v{AD+i}, v{AD+i}, v{vT1}" for i in range(16)]
    for b in range(4):
        n, dn = NUM + 16*b, DEN + 16*b
        rc = [f"v_rcp_f32 v{dn+i}, v{dn+i}" for i in range(16)]
        pre = cvt(b - 1) if b else []
        if b == 0: mf = [(mf8(D, vr(EE, 2), ar(B2F, 2), "0"), 0), (mf8(D + 16, vr(EE + 2, 2), ar(B2F, 2), "0"), 0)]
        else: mf = [(x, 10) for x in w2(b - 1)]
        if nxt:
            if b == 0:
                fill = selectors() + rc[:5] + ["s_waitcnt lgkmcnt(2)", mkoff(0), gather(0, 0)] + rc[5:10] + [gather(0, 1)] + rc[10:] + [f"v_accvgpr_write_b32 a{aInfo}, v{vT0}"]
                qm = q_mfmas(0); mf = mf + [(qm[0], 10)] + [(x, 14) for x in qm[1:]]
            else:
                ex = {1: [gather(0, 2), gather(0, 3), "s_waitcnt lgkmcnt(0)", mkoff(1), gather(1, 0)],
                      2: [gather(1, 1), gather(1, 2)] + oread,
                      3: [gather(1, 3), "s_waitcnt lgkmcnt(0)"] + oadd[:8]}[b]
                k = max(1, 16 // len(ex))
                fill = pre + interleave(rc, ex, k, 1)
                mf = [(x, 0) for x in q_mfmas(b)] + mf
        else:
            ex = {0: [], 1: [], 2: oread, 3: []}[b]
            fill = pre + rc + ex
        o += weave(fill, mf)
        mu = [pkmul(n+i, n+i, dn+i) for i in range(0, 16, 2)]
        o += interleave(mu, chk(b + 1), 2, 1) if b < 3 else mu
    wm = w2(3)
    lim = [f"v_lshrrev_b32 v{EE}, 4, v{vHalf}", f"v_sub_u32 v{EE}, s{sP2A if nxt else sP2B}, v{EE}", f"v_add_f32 v{CHK}, v{CHK}, v{CHK+1}"]
    c3 = cvt(3)
    if nxt:
        fm = edge_mfmas(0, NUM, 0)
        o += [fm[0]] + c3[:6] + [wm[0]] + c3[6:] + oadd[8:12] + [wm[1]] + oadd[12:] + lim[:2] + [wm[2]] + lim[2:] + tile_scalars(vT0, sP2B)[:5] + [wm[3]]
        o += tile_scalars(vT0, sP2B)[5:] + ["s_waitcnt vmcnt(4)", fm[1], f"s_add_u32 s{sTile}, s{sTile}, 128", mkoff(2), "s_nop 3"]
        rest = [(x, 0) for x in fm[2:]]
    else:
        o += c3[:6] + [wm[0]] + c3[6:] + ["s_waitcnt lgkmcnt(0)"] + oadd[:3] + [wm[1]] + oadd[3:9] + [wm[2]] + oadd[9:15] + [wm[3]] + oadd[15:] + lim + ["s_nop 7"]
        rest = []
    fill = [f"v_maximum3_f32 v{CHK}, v{CHK}, |v{D+i}|, |v{D+i+1}|" for i in range(0, 16, 2)]
    fill += [f"v_cmp_ngt_f32 vcc, {f32(2.0**120)}, v{CHK}", f"s_or_b64 s[{sBad}:{sBad+1}], s[{sBad}:{sBad+1}], vcc"]
    o += weave(fill, rest[:2]); rest = rest[2:]
    for j in range(2 if nxt else 8):
        i = 2*j
        o += [f"v_cmpx_lt_i32 vcc, {8*(i>>2) + (i&3)}, v{EE}", f"v_add_f32 v{D+i}, v{D+i}, v{D+i+1}", f"v_add_f32 v{D+16+i}, v{D+16+i}, v{D+17+i}"]
    o += ["s_mov_b64 exec, -1"]
    fill = []
    for i in range(16):
        fill += [f"v_cvt_pk_bf16_f32 v{P+i}, v{D+i}, v{D+16+i}"]
        if i: fill += [f"buffer_store_dword v{P+i-1}, v{AD+i-1}, s[{sOut}:{sOut+3}], 0 offen {so}"]
    fill += [f"buffer_store_dword v{P+15}, v{AD+15}, s[{sOut}:{sOut+3}], 0 offen {so}"]
    o += weave(fill, [(x, 2) for x, _ in rest])
    o, n = align8(o)
    a(o)
    return n

def fixup(a, lab):
    a(f"K2_{lab}FIX:", f"s_andn2_b64 exec, -1, s[{sValid}:{sValid+1}]")
    for i in range(64): a(f"v_mov_b32 v{NUM+i}, 0", f"v_mov_b32 v{DEN+i}, 1.0")
    a("s_mov_b64 exec, -1", f"s_branch K2_{lab}GO")

def st2(a, idx):
    if OPT["stamps"]:
        a("s_memtime s[100:101]", "s_memrealtime s[50:51]", "s_mov_b64 s[48:49], exec", "s_mov_b64 exec, -1", f"v_accvgpr_read_b32 v{vT1}, a{aStamp}", "s_waitcnt lgkmcnt(0)", "s_nop 0",
          f"v_writelane_b32 v{vT1}, s100, {idx}", f"v_writelane_b32 v{vT1}, s50, {idx+16}", f"v_writelane_b32 v{vT1}, s{sL}, {idx+32}", "s_nop 0", f"v_accvgpr_write_b32 a{aStamp}, v{vT1}", "s_mov_b64 exec, s[48:49]")

def gen_k2(a):
    a(".p2align 8", "k2_kernel:")
    a("s_cmp_ge_u32 s2, 256", "s_cbranch_scc1 K2_END")
    if OPT["stamps"]: a(f"v_accvgpr_write_b32 a{aStamp}, 0")
    st2(a, 0)
    a("s_load_dwordx2 s[44:45], s[0:1], 80", "s_load_dwordx2 s[40:41], s[0:1], 0", "s_load_dwordx2 s[42:43], s[0:1], 64")
    tid, vInit, vT4, vZ, vL16 = 16, 17, 18, 20, 25
    a(f"v_mov_b32 v{tid}, v0", f"v_and_b32 v{vLane}, 63, v0", "v_lshrrev_b32 v1, 6, v0")
    a(f"s_and_b32 s{sBucket}, s2, 7", f"s_lshl_b32 s{sBucket}, s{sBucket}, 5", "s_lshr_b32 s3, s2, 3", f"s_add_u32 s{sBucket}, s{sBucket}, s3")
    a(f"v_readfirstlane_b32 s{sWave}, v1")
    a(f"v_lshlrev_b32 v24, 10, v{tid}", f"v_lshlrev_b32 v{vL16}, 4, v{vLane}")
    a(f"s_lshl_b32 s{sTmp}, s{sBucket}, 2", f"s_add_u32 s{sTmp}, s{sTmp}, {TAB_REL}", f"s_mul_i32 s46, s{sWave}, {9*1024}")
    a(f"s_mov_b32 s{sAux+2}, {AUX_BYTES}", f"s_mov_b32 s{sAux+3}, 0x00020000", f"s_add_u32 m0, s46, {L_TAB}")
    a(f"v_mul_u32_u24 v{vInit}, {CAP*ESZ}, v{tid}", f"v_add_u32 v{vInit}, {L_TAB}, v{vInit}")
    a(f"v_lshlrev_b32 v{vT4}, 2, v{tid}", f"v_mov_b32 v{vZ}, 0", f"v_mov_b32 v{vZ+1}, 0", f"v_lshlrev_b32 v23, 3, v{vLane}")
    a(f"ds_write_b32 v{vT4}, v{vInit} offset:{L_CNT}", f"ds_write_b64 v23, v[{vZ}:{vZ+1}] offset:{L_HIST}")
    a("s_waitcnt lgkmcnt(0)")
    st2(a, 12)
    a(f"s_add_u32 s{sAux}, s44, {FRAG_OFF}", f"s_addc_u32 s{sAux+1}, s45, 0")
    vE = 26
    a(f"buffer_load_dword v{vE}, v24, s[{sAux}:{sAux+3}], s{sTmp} offen")
    for g in range(3):
        if g: a(f"s_add_u32 m0, s46, {L_TAB+4096*g}", f"s_add_u32 s47, s46, {4096*g}")
        for i in range(4 if g < 2 else 1): a(f"buffer_load_dwordx4 v{vL16}, s[{sAux}:{sAux+3}], s{47 if g else 46} offen offset:{1024*i} lds")
    st2(a, 13)
    srd(a, sX, 40, 41, X_BYTES)
    srd(a, sOut, 42, 43, X_BYTES)
    srd(a, sRec, 44, 45, REC_BYTES)
    a(f"s_movk_i32 s{s128}, 128", f"s_mov_b64 s[{sBad}:{sBad+1}], 0")
    vJ16, vN16, vJ4, vN4, vStart, vCnt, vTw, vXs = 27, 28, 29, 30, 31, 32, 33, 34
    a(f"v_and_b32 v{vJ16}, 15, v{vLane}", f"v_mul_u32_u24 v{vJ16}, 12, v{vJ16}", f"v_not_b32 v{vN16}, v{vJ16}")
    a(f"v_and_b32 v{vJ4}, 3, v{vLane}", f"v_mul_u32_u24 v{vJ4}, 12, v{vJ4}", f"v_not_b32 v{vN4}, v{vJ4}")
    a(f"v_lshrrev_b32 v{vHalf}, 5, v{vLane}", f"v_lshlrev_b32 v{vHalf}, 6, v{vHalf}", f"v_mov_b32 v{vTw}, 12")
    a(f"v_lshrrev_b32 v{vXs}, 3, v{vLane}", f"v_lshlrev_b32 v{vXs}, 4, v{vXs}", f"v_xor_b32 v{vXs}, v{vXs}, v{vL16}")
    a(f"v_mul_u32_u24 v{vStart}, {CH*12}, v{tid}")
    ROLE = {"A": 44, "B": 50}
    a(f"s_lshl_b32 s3, s{sWave}, 3", "s_or_b32 s3, s3, 0x80000", f"v_and_b32 v36, 31, v{vLane}", "v_lshrrev_b32 v37, 1, v36", "v_and_b32 v38, 1, v36")
    for nm, T, sp in (("A", TILE_A, sP2A), ("B", TILE_B, sP2B)):
        r = ROLE[nm]
        pk = lambda f: hex(sum((f(t) & 255) << (8*w) for w, t in enumerate(T)))
        a(f"s_bfe_u32 s{sp}, {pk(lambda t: 2*t[0])}, s3", f"s_bfe_u32 s46, {pk(lambda t: t[1])}, s3", f"s_bfe_u32 s47, {pk(lambda t: t[2])}, s3", f"s_sub_u32 s47, s47, s{sp}")
        a(f"v_cmp_gt_u32 vcc, s{sp}, v36", f"v_add_u32 v{r}, s47, v36", f"v_add_u32 v39, s46, v37", f"v_cndmask_b32 v{r}, v{r}, v39, vcc", f"v_lshlrev_b32 v{r}, 2, v{r}",
          f"v_cndmask_b32 v{r+2}, 0, 1, vcc", f"v_and_b32 v{r+3}, v{r+2}, v38", f"v_sub_u32 v{r+1}, v{r+2}, v{r+3}", f"v_lshlrev_b32 v{r+4}, 30, v{r+3}", f"v_mul_u32_u24 v{r+3}, 12, v{r+3}")
    a("s_waitcnt vmcnt(9)")
    st2(a, 1)
    a(f"v_and_b32 v36, 0xffff, v{vE}", f"v_lshrrev_b32 v{vCnt}, 16, v{vE}", f"v_add_u32 v{vStart}, v{vStart}, v36")
    RB = 64
    def dppq(i): return f"quad_perm:[{i},{i},{i},{i}] row_mask:0xf bank_mask:0xf"
    def dppr(i): return f"row_newbcast:{i} row_mask:0xf bank_mask:0xf"
    def rec(i): return RB + 4*i
    def addr(s): return f"v_add_u32_dpp v{rec(s)+3}, v{vStart}, v{vJ16} {dppr(s)}" if s < 16 else f"v_add_u32_dpp v{rec(s)+3}, v{vStart}, v{vJ4} {dppq(s & 3)}"
    def load(s): return f"buffer_load_dwordx3 {vr(rec(s),3)}, v{rec(s)+3}, s[{sRec}:{sRec+3}], 0 offen" + (f" offset:{12*(s & ~3)}" if s >= 16 else "")
    def msk(s): return f"s[{sMask0+2*s}:{sMask0+2*s+1}]"
    a(f"v_cmp_lt_u32 vcc, {24*12}, v{vCnt}", f"s_mov_b64 s[{sSave}:{sSave+1}], vcc", "s_cbranch_vccnz K2_RARE1", "K2_P1:")
    W = OPT.get("win", 6)
    for s in range(W): a(addr(s), load(s))
    a(f"v_add_u32 v39, {L_TAB}, v{vL16}", f"s_waitcnt vmcnt({W})", "s_barrier")
    st2(a, 2)
    side = [addr(s) for s in range(W, 24)]
    for i in range(16): side += [f"v_add_co_u32_dpp v37, vcc, v{vCnt}, v{vN16} {dppr(i)}", f"s_mov_b64 {msk(i)}, vcc"]
    for r in range(2):
        side += [f"v_add_u32 v36, {-12*(16+4*r)}, v{vN4}", "s_nop 1"]
        for i in range(4): side += [f"v_add_co_u32_dpp v37, vcc, v{vCnt}, v36 {dppq(i)}", f"s_mov_b64 {msk(16+4*r+i)}, vcc"]
    a(interleave(side, [f"ds_read_b128 {ar(4*f,4)}, v39 offset:{1024*f}" for f in range(35)], 2))
    a(f"s_mul_i32 s46, s{sWave}, 6144", f"s_mul_i32 s47, s{sBucket}, {NB*128}", "s_add_u32 s47, s47, s46", f"s_lshl_b32 s3, s{sWave}, 12")
    a("s_waitcnt lgkmcnt(0)", "s_barrier")
    st2(a, 3)
    LAG = 2
    def atom(s): return [f"v_and_b32 v{rec(s)+3}, 0xffff, v{rec(s)+2}", f"ds_add_rtn_u32 v{rec(s)+3}, v{rec(s)+3}, v{vTw}"]
    def put(s): return [f"ds_write2_b32 v{rec(s)+3}, v{rec(s)}, v{rec(s)+1} offset0:0 offset1:1", f"ds_write_b32 v{rec(s)+3}, v{rec(s)+2} offset:8"]
    def ex(s): return f"s_mov_b64 exec, {msk(s)}"
    late = [[f"s_add_u32 m0, s46, {L_XR}", "s_mov_b64 exec, -1"] + [f"buffer_load_dwordx4 v{vXs}, s[{sX}:{sX+3}], s47 offen offset:{1024*i} lds" for i in (0, 1)],
            ["s_mov_b64 exec, -1"] + [f"buffer_load_dwordx4 v{vXs}, s[{sX}:{sX+3}], s47 offen offset:{1024*i} lds" for i in (2, 3)],
            [f"s_add_u32 m0, s46, {L_XR+4096}", "s_add_u32 s47, s47, 4096", "s_mov_b64 exec, -1"] + [f"buffer_load_dwordx4 v{vXs}, s[{sX}:{sX+3}], s47 offen offset:{1024*i} lds" for i in (0, 1, 2)],
            [f"s_add_u32 m0, s3, {L_W2S}", f"s_add_u32 s3, s3, {35*1024}", "s_mov_b64 exec, -1"] + [f"buffer_load_dwordx4 v{vL16}, s[{sAux}:{sAux+3}], s3 offen offset:{1024*i} lds" for i in (0, 1)],
            ["s_mov_b64 exec, -1"] + [f"buffer_load_dwordx4 v{vL16}, s[{sAux}:{sAux+3}], s3 offen offset:{1024*i} lds" for i in (2, 3)]]
    ops = []; vm = list(range(W))
    for i in range(24 + LAG):
        if i < 24:
            a(f"s_waitcnt vmcnt({len(vm) - 1 - vm.index(i)})", ex(i), atom(i)); ops.append(("a", i))
        if i + W < 24:
            a(ex(i + W), load(i + W)); vm.append(i + W)
        elif late and i >= 24 - OPT.get("late", 3):
            x = late.pop(0); a(x); vm += [-1] * sum(y.startswith("buffer") for y in x)
        if i >= LAG:
            s = i - LAG
            n = len(ops) - 1 - ops.index(("a", s))
            a(f"s_waitcnt lgkmcnt({n})", ex(s), put(s)); ops += [("w", s), ("w", s)]
    for x in late: a(x)
    a("s_mov_b64 exec, -1")
    a(f"s_cmp_lg_u64 s[{sSave}:{sSave+1}], 0", "s_cbranch_scc1 K2_RARE2")
    a("K2_P2:", "s_waitcnt lgkmcnt(0)", "s_barrier")
    st2(a, 4)
    vD, vR, vS = 40, 41, 42
    a(f"ds_read_b32 v{vD}, v{vT4} offset:{L_CNT}", "v_mov_b32 v43, 1", f"v_cmp_gt_u32 vcc, {NB}, v{tid}", f"v_lshlrev_b32 v36, 2, v{vLane}",
      f"s_mov_b64 s[{sValid}:{sValid+1}], vcc", "s_waitcnt lgkmcnt(0)")
    a(f"v_sub_u32 v{vD}, v{vD}, v{vInit}", f"v_cmp_lt_u32 vcc, {CAP*ESZ}, v{vD}", f"v_min_u32 v{vD}, {63*12}, v{vD}", f"v_mul_u32_u24 v{vD}, 5462, v{vD}",
      f"s_or_b64 s[{sBad}:{sBad+1}], s[{sBad}:{sBad+1}], vcc", f"v_lshrrev_b32 v{vD}, 16, v{vD}", f"v_lshlrev_b32 v37, 2, v{vD}")
    a(f"s_mov_b64 exec, s[{sValid}:{sValid+1}]", f"ds_add_rtn_u32 v{vR}, v37, v43 offset:{L_HIST}")
    if OPT["force_slow"]: a(f"s_mov_b64 s[{sBad}:{sBad+1}], 1")
    a(f"s_mov_b64 exec, s[{sBad}:{sBad+1}]", f"ds_write_b32 v{vZ}, v43 offset:{L_FLAG}", "s_mov_b64 exec, -1")
    a(f"v_lshl_or_b32 v{vD}, v{vD}, 8, v{tid}", "s_waitcnt lgkmcnt(0)", "s_barrier")
    a(f"ds_read_b32 v{vS}, v36 offset:{L_HIST}", f"ds_read_b32 v38, v{vZ} offset:{L_FLAG}", "s_waitcnt lgkmcnt(1)")
    wave_scan(a, vS)
    a(f"v_sub_u32 v{vS}, {NB}, v{vS}", f"ds_bpermute_b32 v{vS}, v37, v{vS}", "s_waitcnt lgkmcnt(1)", f"v_readfirstlane_b32 s{sTmp}, v38",
      f"s_mul_i32 s{sTmp2}, s{sBucket}, {NB*128}", f"s_lshl_b32 s{sTile}, s{sWave}, 8", f"s_cmp_lg_u32 s{sTmp}, 0", "s_cbranch_scc1 K2_SLOW")
    a("s_waitcnt lgkmcnt(0)", f"v_add_lshl_u32 v{vS}, v{vS}, v{vR}, 2", f"s_mov_b64 exec, s[{sValid}:{sValid+1}]", f"ds_write_b32 v{vS}, v{vD} offset:{L_RANK}", "s_mov_b64 exec, -1")
    a(f"s_movk_i32 s46, {CAP*ESZ}", f"v_mov_b32 v39, {L_TAB}", f"v_lshrrev_b32 v38, 4, v{vHalf}", f"v_and_b32 v36, 31, v{vLane}", f"v_lshl_add_u32 v36, v36, 2, s{sTile}")
    a("s_waitcnt vmcnt(0) lgkmcnt(0)", "s_barrier")
    st2(a, 5)
    def decode1(w, r, base):
        return [f"v_lshrrev_b32 v{w+1}, 8, v{w}", f"v_and_b32 v{w}, 0xff, v{w}", f"v_add_u32 v{w+2}, v{w+1}, v{r+1}", f"v_lshrrev_b32 v{w+2}, v{r+2}, v{w+2}",
                f"v_mad_u32_u24 v{base}, v{w}, s46, v39", f"v_sub_u32 v{w+1}, v{w+1}, v{w+2}", f"v_mad_u32_u24 v{base}, v{w+1}, v{r+3}, v{base}"]
    def decode2(w, r, info):
        return [f"v_and_b32 v{w+1}, 7, v{w}", f"v_xor_b32 v{w+1}, v{w+1}, v38", f"v_lshlrev_b32 v{w+1}, 4, v{w+1}", f"v_lshl_add_u32 v{w+1}, v{w}, 7, v{w+1}",
                f"v_lshl_or_b32 v{info}, v{w+2}, 16, v{w+1}"]
    def decode3(w, r, off):
        return [f"v_lshl_add_u32 v{w}, v{w}, 7, s{sTmp2}", f"v_or_b32 v{w}, v{w}, v{r+4}", f"ds_write_b32 v36, v{w} offset:{L_OUTO+off}"]
    a(f"ds_read_b32 v56, v{ROLE['A']} offset:{L_RANK}", f"ds_read_b32 v60, v{ROLE['B']} offset:{L_RANK}")
    a(selectors())
    a("s_waitcnt lgkmcnt(1)", decode1(56, ROLE["A"], vLds))
    a(f"ds_read_b32 v{ENT[0]+2}, v{vLds} offset:8", f"ds_read_b32 v{ENT[1]+2}, v{vLds} offset:20", f"ds_read_b32 v{ENT[2]+2}, v{vLds} offset:32")
    a(decode2(56, ROLE["A"], vT0), tile_scalars(vT0, sP2A))
    a("s_waitcnt lgkmcnt(0)", mkoff(0), f"s_mov_b64 exec, s[{sValid}:{sValid+1}]", [gather(0, q) for q in range(4)], "s_mov_b64 exec, -1")
    a(hdr_reads(vT0, [vT1, 59, EE+14, EE+15]))
    a([f"ds_read2_b32 {vr(ENT[u],2)}, v{vLds} offset0:{3*u} offset1:{3*u+1}" for u in range(3)])
    a(f"v_accvgpr_write_b32 a{aInfo}, v{vT0}", decode3(56, ROLE["A"], 0))
    a(decode1(60, ROLE["B"], 63), f"v_accvgpr_write_b32 a{aNextL}, v63", decode2(60, ROLE["B"], 63), f"v_accvgpr_write_b32 a{aNextI}, v63", decode3(60, ROLE["B"], 128))
    a(f"v_add_u32 v{vT1}, {L_W2S}, v{vL16}", mkoff(1), f"s_mov_b64 exec, s[{sValid}:{sValid+1}]", [gather(1, q) for q in range(4)], "s_mov_b64 exec, -1")
    a("s_waitcnt lgkmcnt(0)")
    a(interleave(sum([q_mfmas(b) for b in range(4)], []), [f"ds_read_b128 {ar(140+4*f,4)}, v{vT1} offset:{1024*f}" for f in range(16)], 1, 1))
    a(mkoff(2), "s_waitcnt vmcnt(4)")
    st2(a, 6)
    a(edge_mfmas(0, NUM, 0), "s_nop 7", "s_nop 2")
    a(".p2align 3")
    body, n = align8([f"s_mov_b64 exec, s[{sValid}:{sValid+1}]"] + step(0, True))
    a(body, "s_branch K2_L1")
    a(".p2align 6")
    for u in range(3):
        body = step(u, False) + [f"s_cbranch_scc1 K2_X{u}" if u < 2 else "s_cbranch_scc0 K2_L0"]
        if u: body = ["s_nop 0"] + body
        body, n = align8(body)
        if u: body = body[1:]
        a(f"K2_L{u}:", body)
    for u in (2, 0, 1):
        a(f"K2_X{u}:", f"s_cmp_lg_u32 s{sStage}, 0", "s_cbranch_scc1 K2_TEND",
          f"s_mov_b32 s{sStage}, 1", f"s_mov_b32 s{sC}, 1", f"s_mov_b32 s{sX+2}, 0", f"v_add_u32 v{vPad}, 2, v{vPad}", f"s_branch K2_L{(u+1)%3}")
    a("K2_TEND:", f"s_bitcmp1_b32 s{sTile}, 7", "s_cbranch_scc1 K2_FINAL")
    st2(a, 7)
    n = epilogue(a, True)
    st2(a, 8)
    a(".p2align 3")
    body, n = align8([f"s_mov_b64 exec, s[{sValid}:{sValid+1}]"] + step(0, True, 19))
    a(body, "s_branch K2_L1")
    a("K2_FINAL:")
    st2(a, 9)
    epilogue(a, False)
    st2(a, 10)
    if OPT.get("exp", 0): a(f"s_mov_b64 s[{sBad}:{sBad+1}], 0")
    a("v_mov_b32 v20, 0", "v_mov_b32 v21, 1", f"s_mov_b64 exec, s[{sBad}:{sBad+1}]", f"ds_write_b32 v20, v21 offset:{L_FLAG}", "s_mov_b64 exec, -1")
    a("s_waitcnt lgkmcnt(0)", "s_barrier", f"ds_read_b32 v21, v20 offset:{L_FLAG}", "s_waitcnt lgkmcnt(0)", f"v_readfirstlane_b32 s{sTmp}, v21",
      f"s_cmp_lg_u32 s{sTmp}, 0", "s_cbranch_scc1 K2_SLOW")
    if OPT["stamps"]:
        a("s_waitcnt vmcnt(0)")
        st2(a, 11)
        a(f"s_add_u32 s48, s44, {STAMP_OFF}", "s_addc_u32 s49, s45, 0", "s_mov_b32 s50, 0x100000", "s_mov_b32 s51, 0x00020000",
          f"s_lshl_b32 s46, s{sBucket}, 2", f"s_add_u32 s46, s46, s{sWave}", "s_lshl_b32 s46, s46, 8",
          f"v_accvgpr_read_b32 v20, a{aStamp}", f"v_lshlrev_b32 v21, 2, v{vLane}", "buffer_store_dword v20, v21, s[48:51], s46 offen")
    a("K2_END:", "s_endpgm")
    a("K2_RARE1:")
    for r in range(2, 6):
        for i in range(4): a(addr(16 + 4*r + i), load(16 + 4*r + i))
        a(f"v_cmp_lt_u32 vcc, {(20+4*r)*12}, v{vCnt}", "s_cbranch_vccz K2_P1")
    a(f"s_mov_b64 s[{sBad}:{sBad+1}], 1", "s_branch K2_P1")
    a("K2_RARE2:")
    for r in range(2, 6):
        a(f"v_add_u32 v36, {-12*(16+4*r)}, v{vN4}", "s_nop 1")
        for i in range(4): a(f"v_add_co_u32_dpp v37, vcc, v{vCnt}, v36 {dppq(i)}", f"s_mov_b64 {msk(i)}, vcc")
        for i in range(4): a(ex(i), atom(16 + 4*r + i))
        a("s_waitcnt lgkmcnt(0)")
        for i in range(4): a(ex(i), put(16 + 4*r + i))
        a("s_mov_b64 exec, -1")
        if r < 5: a(f"v_cmp_lt_u32 vcc, {(20+4*r)*12}, v{vCnt}", "s_cbranch_vccz K2_P2")
    a("s_branch K2_P2")
    fixup(a, "T"); fixup(a, "F")
    gen_slow(a)

def gen_slow(a):
    tid, vStart, vCnt, vJ, vA = 0, 1, 2, 4, 5
    a("K2_SLOW:", "s_mov_b64 exec, -1", "s_waitcnt vmcnt(0) lgkmcnt(0)", f"s_mov_b32 s{sX+2}, {X_BYTES}", "s_barrier")
    a(f"s_lshl_b32 s{sTmp}, s{sWave}, 6", f"v_add_u32 v{tid}, s{sTmp}, v{vLane}", f"v_lshlrev_b32 v23, 4, v{vLane}")
    a([f"ds_read_b128 {ar(140+4*f,4)}, v23 offset:{L_W2S+1024*f}" for f in range(16)])
    a(f"v_lshlrev_b32 v20, 10, v{tid}", f"s_lshl_b32 s{sTmp}, s{sBucket}, 2", f"s_add_u32 s{sTmp}, s{sTmp}, {TAB_REL}",
      f"buffer_load_dword v21, v20, s[{sAux}:{sAux+3}], s{sTmp} offen")
    a("v_mov_b32 v24, 0", "v_mov_b32 v25, 0", "v_mov_b32 v26, 0", "v_mov_b32 v27, 0", f"v_lshlrev_b32 v22, 4, v{tid}", f"v_add_u32 v22, {L_TAB}, v22")
    for i in range(13): a(f"ds_write_b128 v22, v[24:27] offset:{4096*i}")
    a(selectors())
    a(f"v_mul_u32_u24 v{vStart}, {CH*12}, v{tid}", f"v_and_b32 v{vJ}, 31, v{vLane}", f"v_mul_u32_u24 v{vJ}, 12, v{vJ}")
    a("s_waitcnt vmcnt(0) lgkmcnt(0)", "v_and_b32 v22, 0xffff, v21", f"v_lshrrev_b32 v{vCnt}, 16, v21", f"v_add_u32 v{vStart}, v{vStart}, v22", "s_barrier")
    a(f"s_mul_i32 s50, s{sBucket}, {NB*128}", "s_mov_b32 s46, 0")
    a("KS_SEG:", "s_nop 3", f"v_readlane_b32 s47, v{vStart}, s46", f"v_readlane_b32 s48, v{vCnt}, s46", "s_mov_b32 s49, 0")
    a("KS_GRP:", "s_cmp_ge_u32 s49, s48", "s_cbranch_scc1 KS_NEXT")
    a(f"v_add_u32 v20, s49, v{vJ}", f"v_cmp_gt_u32 s[{sValid}:{sValid+1}], s48, v20", "v_add_u32 v20, s47, v20")
    a(f"buffer_load_dwordx3 v[8:10], v20, s[{sRec}:{sRec+3}], 0 offen", "s_waitcnt vmcnt(0)")
    a(mkoff(2), [gather(0, q) for q in range(4)])
    a("v_and_b32 v20, 0xffff, v10", f"v_lshl_add_u32 v{vOff}, v20, 5, v{vHalf}", f"v_add_u32 v{vOff}, s50, v{vOff}", [gather(2, q) for q in range(4)])
    a(f"v_lshlrev_b32 v{vA}, 6, v20", f"v_lshrrev_b32 v21, 1, v{vHalf}", f"v_add_u32 v{vA}, v21, v{vA}", f"v_add_u32 v{vA}, {L_TAB}, v{vA}")
    a("s_waitcnt vmcnt(0)")
    for b in range(4):
        a(q_mfmas(b))
        a(mf8(Q + 16*b, ar(WC(b), 2), "v[8:9]", vr(Q + 16*b, 16)))
        for q in range(4): a(mf16(Q + 16*b, ar(WA(b, q), 4), ar(RING[0] + 4*q, 4), vr(Q + 16*b, 16)))
    a(mf8(D, ar(B2F, 2), vr(SEL, 2), "0"), mf8(D + 16, ar(B2F, 2), vr(SEL + 2, 2), "0"), "s_nop 7", "s_nop 7")
    for i in range(64): a(f"v_exp_f32 v{NUM+i}, v{Q+i}")
    for i in range(64): a(f"v_add_f32 v{NUM+i}, 1.0, v{NUM+i}")
    for i in range(64): a(f"v_rcp_f32 v{NUM+i}, v{NUM+i}")
    for i in range(64): a(f"v_mul_f32 v{NUM+i}, v{NUM+i}, v{Q+i}")
    for i in range(32): a(f"v_cvt_pk_bf16_f32 v{DEN+i}, v{NUM+2*i}, v{NUM+2*i+1}")
    a("s_nop 1")
    for b in range(4):
        for m in range(2):
            for ob in range(2): a(mf16(D + 16*ob, ar(W2(b, m, ob), 4), vr(DEN + 8*b + 4*m, 4), vr(D + 16*ob, 16)))
    a("s_nop 7", "s_nop 7", f"s_mov_b64 exec, s[{sValid}:{sValid+1}]")
    for ob in range(2):
        for i in range(16): a(f"ds_add_f32 v{vA}, v{D+16*ob+i} offset:{4*(2*(8*(i>>2)+(i&3))+ob)}")
    a("s_mov_b64 exec, -1", "s_waitcnt lgkmcnt(0)", f"s_add_u32 s49, s49, {32*12}", "s_branch KS_GRP")
    a("KS_NEXT:", "s_add_u32 s46, s46, 1", "s_cmp_lt_u32 s46, 64", "s_cbranch_scc1 KS_SEG")
    a("s_waitcnt lgkmcnt(0)", "s_barrier")
    a(f"v_lshlrev_b32 v20, 5, v{tid}", f"v_add_u32 v20, {L_TAB}, v20", f"v_lshlrev_b32 v21, 4, v{tid}", "v_add_u32 v21, s50, v21")
    for i in range(7):
        if i == 6: a(f"v_cmp_gt_u32 vcc, {NB*8-1536}, v{tid}", "s_and_saveexec_b64 s[46:47], vcc", "s_cbranch_execz KS_END")
        a(f"ds_read_b128 v[24:27], v20 offset:{8192*i}", f"ds_read_b128 v[28:31], v20 offset:{8192*i+16}", "s_waitcnt lgkmcnt(0)")
        for j in range(4): a(f"v_cvt_pk_bf16_f32 v{32+j}, v{24+2*j}, v{25+2*j}")
        a(f"buffer_store_dwordx4 v[32:35], v21, s[{sOut}:{sOut+3}], 0 offen", "s_nop 1", "v_add_u32 v21, 4096, v21")
    a("KS_END:", "s_endpgm")

def kd(name, vgpr, accum, sgpr=102):
    return f""".amdhsa_kernel {name}
  .amdhsa_next_free_vgpr {vgpr}
  .amdhsa_next_free_sgpr {sgpr}
  .amdhsa_accum_offset {accum}
  .amdhsa_group_segment_fixed_size 0
  .amdhsa_kernarg_size 88
  .amdhsa_user_sgpr_count 2
  .amdhsa_user_sgpr_kernarg_segment_ptr 1
  .amdhsa_system_sgpr_workgroup_id_x 1
  .amdhsa_float_denorm_mode_32 3
.end_amdhsa_kernel
"""

def generate(**opt):
    OPT.update(opt)
    ref = open("standalone__edge_featured_mpnn_mpnn__graph.s.ref").read().split("\n")
    head = [x for x in ref if x.startswith(";") and "@launch" not in x and not x.startswith("; Override") and not x.startswith("; grid=")]
    head += [f"; @launch kernel=k1_kernel grid=(256,1,1) block=(448,1,1) lds={K1_LDS}",
             f"; @launch kernel=k2_kernel grid=(256,1,1) block=(256,1,1) lds={K2_LDS}"]
    a = Asm()
    a('.amdgcn_target "amdgcn-amd-amdhsa--gfx950"', ".text", ".globl k1_kernel", ".type k1_kernel,@function", ".globl k2_kernel", ".type k2_kernel,@function")
    gen_k1(a); gen_k2(a)
    return "\n".join(head) + "\n" + a.text() + '.section .rodata,"a"\n.p2align 6\n' + kd("k1_kernel", 72, 72, 48) + ".p2align 6\n" + kd("k2_kernel", 512, 256)

if __name__ == "__main__":
    out = sys.argv[1] if len(sys.argv) > 1 else "standalone__edge_featured_mpnn_mpnn__graph.s"
    opt = {}
    for x in sys.argv[2:]:
        k, v = x.split("="); opt[k] = int(v) if v.lstrip("-").isdigit() else v.replace("+", " ")
    open(out, "w").write(generate(**opt))
```

```python
import re, sys, struct, math

N, E = 50000, 800000
NB = 196
CH = 3200
NCH = 250
CAP = 42
REC_BYTES = E * 12
FRAG_OFF = REC_BYTES
NFRAG = 51
FRAG_BYTES = NFRAG * 1024
TAB_REL = FRAG_BYTES
AUX_BYTES = FRAG_BYTES + NCH * 1024
STAMP_OFF = 16 << 20
X_BYTES = N * 128

def f32(x): return "0x%08x" % struct.unpack("<I", struct.pack("<f", x))[0]
NLOG2E = f32(-math.log2(math.e))
NLN2 = f32(-math.log(2.0))

OPT = dict(stamps=False, force_slow=False, k1st="sc1", outst="sc1")

class Asm:
    def __init__(self): self.l = []
    def __call__(self, *xs):
        for x in xs:
            if isinstance(x, (list, tuple)): self(*x)
            else:
                for y in x.split("\n"):
                    y = y.strip()
                    if y: self.l.append(y)
    def text(self):
        return "\n".join((x if (x.endswith(":") or x.startswith(".")) else "    " + x) for x in self.l) + "\n"

def vr(b, n): return f"v[{b}:{b+n-1}]"
def ar(b, n): return f"a[{b}:{b+n-1}]"

def srd(a, s, lo, hi, nrec):
    a(f"s_mov_b32 s{s}, s{lo}", f"s_mov_b32 s{s+1}, s{hi}", f"s_mov_b32 s{s+2}, {nrec}", f"s_mov_b32 s{s+3}, 0x00020000")

def wave_scan(a, v):
    for sh in (1, 2, 4, 8):
        a("s_nop 1", f"v_add_u32_dpp v{v}, v{v}, v{v} row_shr:{sh} row_mask:0xf bank_mask:0xf")
    a("s_nop 1", f"v_add_u32_dpp v{v}, v{v}, v{v} row_bcast:15 row_mask:0xa bank_mask:0xf")
    a("s_nop 1", f"v_add_u32_dpp v{v}, v{v}, v{v} row_bcast:31 row_mask:0xc bank_mask:0xf")

def isize(x):
    if x.endswith(":") or x.startswith("."): return 0
    op = x.split()[0]
    rest = x[len(op):]
    def lit():
        for tok in re.split(r"[,\s]+", rest):
            if re.fullmatch(r"-?(0x[0-9a-fA-F]+|\d+)", tok):
                v = int(tok, 0)
                if not (-16 <= v <= 64): return True
        return False
    if op in ("s_waitcnt", "s_nop", "s_barrier", "s_branch", "s_endpgm", "s_setprio") or op.startswith("s_cbranch"): return 4
    if op.startswith(("s_load", "s_memtime", "s_memrealtime")): return 8
    if op.startswith("s_"): return 8 if lit() else 4
    if op.startswith(("buffer_", "ds_", "global_", "v_mfma", "v_pk_", "v_accvgpr_read", "v_accvgpr_write")): return 8
    if op.endswith("_e64") or op.endswith("_dpp") or op.endswith("_sdwa"): return 8
    vop3 = ("v_mad_", "v_fma_", "v_max3", "v_min3", "v_cvt_pk_bf16", "v_lshl_add", "v_lshl_or", "v_bfe", "v_add3", "v_and_or",
            "v_readlane", "v_writelane", "v_maximum3", "v_mul_lo", "v_mul_hi", "v_add_lshl", "v_perm_b32", "v_or3")
    if op.startswith(vop3): return 8
    if op.startswith("v_cmp"):
        if not rest.strip().startswith("vcc"): return 8
        return 8 if lit() else 4
    if op == "v_cndmask_b32" and not rest.strip().endswith("vcc"): return 8
    return 8 if lit() else 4

PROMOTE = ("v_exp_f32 ", "v_rcp_f32 ", "v_mul_f32 ", "v_mov_b32 ", "v_lshrrev_b32 ", "v_add_u32 ", "v_lshlrev_b32 ")
def align8(lines):
    o = sum([x.split("\n") for x in lines], []); pos = 0; last = None
    for i, x in enumerate(o):
        s = isize(x)
        if x.startswith("v_pk_") and pos % 8 == 4:
            assert last is not None, "cannot align " + x
            op = o[last].split()[0]; o[last] = o[last].replace(op, op + "_e64", 1); pos += 4; last = None
        if x.startswith(PROMOTE) and s == 4: last = i
        elif x.startswith("v_pk_"): last = None
        pos += s
    return o, pos

K1_CNT, K1_BASE, K1_STG = 0, 1024, 2048
K1_LDS = K1_STG + CH * 12

def st1(a, idx):
    if OPT["stamps"]:
        a("s_memtime s[48:49]", "s_memrealtime s[50:51]", "s_waitcnt lgkmcnt(0)", f"v_writelane_b32 v70, s48, {idx}", f"v_writelane_b32 v70, s50, {idx+16}")

K1_T = 448
def gen_k1(a):
    sc = OPT.get("k1st", "")
    a(".p2align 8", "k1_kernel:")
    a("s_cmp_ge_u32 s2, 250", "s_cbranch_scc1 K1_FRAG")
    st1(a, 0)
    a("s_load_dwordx4 s[4:7], s[0:1], 8", "s_load_dwordx2 s[8:9], s[0:1], 24", "s_load_dwordx2 s[10:11], s[0:1], 80", "s_load_dwordx2 s[52:53], s[0:1], 0")
    a("v_lshlrev_b32 v1, 2, v0", "v_mov_b32 v2, 0", "ds_write_b32 v1, v2")
    a("v_lshlrev_b32 v3, 4, v0", "v_lshlrev_b32 v4, 5, v0", "v_mov_b32 v5, 12")
    a("v_readfirstlane_b32 s3, v0")
    a(f"s_mul_i32 s12, s2, {CH*4}", f"s_mul_i32 s13, s2, {CH*8}", f"s_mul_i32 s14, s2, {CH*12}", "s_movk_i32 s15, -196")
    a(f"s_add_u32 s40, s12, {CH*2}", f"s_add_u32 s41, s13, {CH*4}")
    a("v_cmp_gt_u32 vcc, 400, v0")
    a("s_waitcnt lgkmcnt(0)")
    st1(a, 1)
    srd(a, 16, 8, 9, E*4)
    a("s_and_saveexec_b64 s[30:31], vcc")
    DS, SR, AT, BK, RK = 8, 16, 24, 40, 48
    a(f"buffer_load_dwordx4 {vr(DS,4)}, v3, s[16:19], s12 offen", f"buffer_load_dwordx4 {vr(DS+4,4)}, v3, s[16:19], s40 offen")
    srd(a, 20, 6, 7, E*4)
    srd(a, 24, 4, 5, E*8)
    a("s_barrier")
    a(f"buffer_load_dwordx4 {vr(SR,4)}, v3, s[20:23], s12 offen", f"buffer_load_dwordx4 {vr(AT,4)}, v4, s[24:27], s13 offen",
      f"buffer_load_dwordx4 {vr(AT+4,4)}, v4, s[24:27], s13 offen offset:16",
      f"buffer_load_dwordx4 {vr(SR+4,4)}, v3, s[20:23], s40 offen", f"buffer_load_dwordx4 {vr(AT+8,4)}, v4, s[24:27], s41 offen",
      f"buffer_load_dwordx4 {vr(AT+12,4)}, v4, s[24:27], s41 offen offset:16")
    a("s_add_u32 s32, s10, s14", "s_addc_u32 s33, s11, 0", f"s_mov_b32 s34, {CH*12}", "s_mov_b32 s35, 0x00020000")
    a(f"s_add_u32 s36, s10, {FRAG_OFF}", "s_addc_u32 s37, s11, 0", f"s_mov_b32 s38, {AUX_BYTES}", "s_mov_b32 s39, 0x00020000")
    for e in range(8):
        if e % 4 == 0: a(f"s_waitcnt vmcnt({7 - e//4})")
        if e == 0: st1(a, 2)
        a(f"v_mul_u32_u24 v{BK+e}, 85599, v{DS+e}", f"v_lshrrev_b32 v{BK+e}, 22, v{BK+e}", f"v_and_b32 v{BK+e}, 0x3fc, v{BK+e}",
          f"ds_add_rtn_u32 v{RK+e}, v{BK+e}, v5")
    for e in range(8):
        a(f"v_lshlrev_b32 v{DS+e}, 2, v{DS+e}", f"v_mad_i32_i24 v{DS+e}, v{BK+e}, s15, v{DS+e}")
    a("s_waitcnt lgkmcnt(0)", "s_barrier")
    st1(a, 3)
    a("s_cmp_lg_u32 s3, 0", "s_cbranch_scc1 K1_C")
    a("ds_read_b128 v[56:59], v3", "s_waitcnt lgkmcnt(0)")
    a("v_add_u32 v6, v56, v57", "v_add3_u32 v6, v6, v58, v59", "v_mov_b32 v7, v6")
    wave_scan(a, 7)
    a("v_sub_u32 v64, v7, v6", "v_add_u32 v65, v64, v56", "v_add_u32 v66, v65, v57", "v_add_u32 v67, v66, v58")
    a(f"ds_write_b128 v3, v[64:67] offset:{K1_BASE}")
    for e in range(4): a(f"v_lshl_or_b32 v{56+e}, v{56+e}, 16, v{64+e}")
    a("s_waitcnt lgkmcnt(0)")
    a("K1_C:")
    def pfx():
        n = OPT.get("pfxn", NB)
        a("s_and_b32 s28, s2, 7", "s_lshl_b32 s28, s28, 5", "s_lshr_b32 s29, s2, 3", "s_add_u32 s28, s28, s29", f"s_mul_i32 s28, s28, {NB*128}",
          f"s_add_u32 s54, s28, {n*128}", f"s_min_u32 s54, s54, {X_BYTES}", "s_mov_b32 s55, 0x00020000", "v_lshlrev_b32 v69, 7, v0", "buffer_load_dword v69, v69, s[52:55], s28 offen")
    if OPT.get("pfx", 0) == 1: pfx()
    if OPT.get("pf1", 1):
        a("s_getpc_b64 s[44:45]", "K1_PC:", "s_add_u32 s44, s44, k2_kernel-K1_PC", "s_addc_u32 s45, s45, 0", "s_mov_b32 s46, K2_SLOW-k2_kernel", "s_mov_b32 s47, 0x00020000",
          "v_lshlrev_b32 v68, 7, v0", "buffer_load_dword v68, v68, s[44:47], 0 offen")
    a("s_barrier")
    st1(a, 4)
    for e in range(8): a(f"ds_read_b32 v{BK+e}, v{BK+e} offset:{K1_BASE}")
    a(f"s_movk_i32 s28, {K1_STG}")
    for e in range(8):
        if e % 4 == 0:
            a(f"s_waitcnt vmcnt({3 - 3*(e//4) + OPT.get('pf1', 1) + (OPT.get('pfx', 0) == 1)})")
            if e == 4: st1(a, 5)
            for k in range(4): a(f"v_lshl_or_b32 v{DS+e+k}, v{SR+e+k}, 16, v{DS+e+k}")
        a(f"s_waitcnt lgkmcnt({min(15, 7-e+2*e)})", f"v_add3_u32 v{RK+e}, v{RK+e}, v{BK+e}, s28")
        a(f"ds_write2_b32 v{RK+e}, v{AT+2*e}, v{AT+1+2*e} offset0:0 offset1:1", f"ds_write_b32 v{RK+e}, v{DS+e} offset:8")
    a("s_cmp_lg_u32 s3, 0", "s_cbranch_scc1 K1_C2")
    a("s_lshl_b32 s28, s2, 10", f"s_add_u32 s28, s28, {TAB_REL}")
    a(f"buffer_store_dwordx4 v[56:59], v3, s[36:39], s28 offen {sc}")
    a("K1_C2:", "s_mov_b64 exec, s[30:31]", "s_waitcnt lgkmcnt(0)", "s_barrier")
    st1(a, 6)
    if OPT.get("pfx", 0) == 4: pfx()
    NP = 6
    for i in range(NP): a(f"ds_read_b128 {vr(8+4*i,4)}, v3 offset:{K1_STG+K1_T*16*i}")
    for i in range(NP):
        if i: a(f"s_movk_i32 s28, {K1_T*16*i}" if K1_T*16*i < 32768 else f"s_mov_b32 s28, {K1_T*16*i}")
        a(f"s_waitcnt lgkmcnt({NP-1-i})", f"buffer_store_dwordx4 {vr(8+4*i,4)}, v3, s[32:35], {'s28' if i else '0'} offen {sc}")
    if OPT["stamps"]:
        st1(a, 7)
        if OPT.get("k1wait", 1): a("s_waitcnt vmcnt(0)")
        st1(a, 8)
        a(f"s_add_u32 s40, s10, {STAMP_OFF+(1<<20)}", "s_addc_u32 s41, s11, 0", "s_mov_b32 s42, 0x200000", "s_mov_b32 s43, 0x00020000",
          "s_lshl_b32 s28, s2, 12", "buffer_store_dword v70, v1, s[40:43], s28 offen")
    if OPT.get("pfx", 0) == 3: pfx()
    a("K1_END:", "s_endpgm")
    a("K1_FRAG:")
    a("s_cmp_ge_u32 s2, 256", "s_cbranch_scc1 K1_END")
    a("s_load_dwordx8 s[4:11], s[0:1], 32", "s_load_dwordx2 s[12:13], s[0:1], 80")
    a("v_lshrrev_b32 v1, 6, v0", "v_and_b32 v2, 31, v0", "v_bfe_u32 v3, v0, 5, 1")
    a("v_readfirstlane_b32 s3, v1", "v_and_b32 v7, 63, v0", "v_lshlrev_b32 v7, 4, v7")
    a("s_sub_u32 s14, s2, 250", "s_mul_i32 s14, s14, 7", "s_add_u32 s3, s3, s14")
    a("s_waitcnt lgkmcnt(0)")
    srd(a, 16, 4, 5, 132*128*2)
    srd(a, 20, 6, 7, 256)
    srd(a, 24, 8, 9, 128*64*2)
    srd(a, 28, 10, 11, 128)
    a(f"s_add_u32 s36, s12, {FRAG_OFF}", "s_addc_u32 s37, s13, 0", f"s_mov_b32 s38, {FRAG_BYTES}", "s_mov_b32 s39, 0x00020000")
    a("K1_FLOOP:", "s_cmp_ge_u32 s3, 16", "s_cselect_b32 s15, 3, 0", "s_cmp_ge_u32 s3, 32", "s_cselect_b32 s15, -16, s15", "s_cmp_ge_u32 s3, 35", "s_cselect_b32 s15, 0, s15",
      "s_add_u32 s15, s15, s3", "s_lshl_b32 s15, s15, 10")
    a("s_cmp_ge_u32 s3, 35", "s_cbranch_scc1 K1_FW2", "s_cmp_ge_u32 s3, 32", "s_cbranch_scc1 K1_FMISC")
    a("s_and_b32 s40, s3, 3", "s_lshl_b32 s40, s40, 11", "s_bfe_u32 s41, s3, 0x20002", "s_lshl_b32 s41, s41, 6", "s_add_u32 s40, s40, s41",
      "s_lshr_b32 s41, s3, 4", "s_lshl_b32 s41, s41, 14", "s_add_u32 s40, s40, s41")
    a("v_lshlrev_b32 v6, 13, v3", "v_lshl_add_u32 v6, v2, 1, v6")
    for j in range(8): a(f"buffer_load_ushort v{8+j}, v6, s[16:19], s40 offen offset:{256*j}")
    a(f"s_mov_b32 s42, {NLOG2E}", "s_branch K1_FSC")
    a("K1_FW2:")
    a("s_sub_u32 s41, s3, 35", "s_lshr_b32 s40, s41, 1", "s_lshl_b32 s40, s40, 11", "s_and_b32 s41, s41, 1", "s_lshl_b32 s41, s41, 1", "s_add_u32 s40, s40, s41")
    a("v_lshlrev_b32 v6, 9, v3", "v_lshl_add_u32 v6, v2, 2, v6")
    for j in range(8): a(f"buffer_load_ushort v{8+j}, v6, s[24:27], s40 offen offset:{128*(8*(j>>2)+(j&3))}")
    a(f"s_mov_b32 s42, {NLN2}")
    a("K1_FSC:", "s_waitcnt vmcnt(0)")
    for j in range(8): a(f"v_lshlrev_b32 v{8+j}, 16, v{8+j}", f"v_mul_f32 v{8+j}, s42, v{8+j}")
    for j in range(4): a(f"v_cvt_pk_bf16_f32 v{16+j}, v{8+2*j}, v{9+2*j}")
    a("s_branch K1_FST")
    a("K1_FMISC:")
    a("v_lshlrev_b32 v6, 1, v2", "v_lshlrev_b32 v5, 2, v2")
    a("s_cmp_eq_u32 s3, 34", "s_cbranch_scc1 K1_FB")
    a("s_and_b32 s40, s3, 1", "s_lshl_b32 s40, s40, 7", f"s_add_u32 s40, s40, {128*256}")
    for j in range(8): a(f"buffer_load_ushort v{8+j}, v6, s[16:19], s40 offen offset:{256*(j&3)+64*(j>>2)}")
    a("s_branch K1_FHL")
    a("K1_FB:")
    for j in range(4): a(f"buffer_load_ushort v{8+j}, v6, s[20:23], 0 offen offset:{64*j}")
    a("buffer_load_dword v24, v5, s[28:31], 0 offen")
    for j in range(4, 8): a(f"v_mov_b32 v{8+j}, 0")
    a("K1_FHL:", f"s_mov_b32 s42, {NLOG2E}", "s_waitcnt vmcnt(0)")
    a("v_cmp_eq_u32 vcc, 1, v3")
    for j in range(8): a(f"v_lshlrev_b32 v{8+j}, 16, v{8+j}", f"v_mul_f32 v{8+j}, s42, v{8+j}")
    for j in range(4):
        a(f"v_cvt_pk_bf16_f32 v{16+j}, v{8+2*j}, v{9+2*j}",
          f"v_lshlrev_b32 v20, 16, v{16+j}", f"v_and_b32 v21, 0xffff0000, v{16+j}",
          f"v_sub_f32 v20, v{8+2*j}, v20", f"v_sub_f32 v21, v{9+2*j}, v21",
          f"v_cvt_pk_bf16_f32 v20, v20, v21")
        if OPT.get("nolo"): a("v_mov_b32 v20, 0")
        a(f"v_cndmask_b32 v{16+j}, v{16+j}, v20, vcc")
    a("s_cmp_eq_u32 s3, 34", "s_cbranch_scc0 K1_FST")
    a("v_mov_b32 v19, 0", "v_cndmask_b32 v18, v24, v19, vcc")
    a("K1_FST:", f"buffer_store_dwordx4 v[16:19], v7, s[36:39], s15 offen {sc}")
    a("s_add_u32 s3, s3, 42", f"s_cmp_lt_u32 s3, {NFRAG}", "s_cbranch_scc1 K1_FLOOP", "s_endpgm")

L_CNT, L_HIST, L_FLAG, L_RANK, L_OUTO, L_W2S = 0, 1024, 1280, 1536, 2560, 3584
L_XR = L_W2S + 16 * 1024
L_W1S = L_XR + NB * 128
L_TAB = L_W1S + 19 * 1024
ESZ = 12
K2_LDS = L_TAB + NB * CAP * ESZ

Q, NUM, DEN, D, EE = 16, 80, 144, 208, 240
ENT = (0, 4, 8)
vOff, vLds, vHalf, vPad, vLane, vT0, vT1 = 3, 7, 11, 12, 13, 14, 15
RING = (204, 220, 236)
aInfo, aNextL, aNextI, aStamp = 252, 253, 254, 255
def WA(b, q): return 4 * (4 * b + q)
def WC(b): return 64 + 2 * b
B1F, B2F = 72, 74
def WB(b, q): return 76 + 4 * (4 * b + q)
def W2(b, m, ob): return 140 + 4 * (4 * b + 2 * m + ob)
sX, sOut, sRec, sAux = 4, 8, 12, 16
sWave, sBucket, s128, sC, sStage, sTile, sL, sTmp, sTmp2, sP2B = 20, 21, 22, 23, 24, 25, 26, 27, 28, 29
sValid, sBad, sSave, sP2A = 30, 34, 36, 38
sMask0 = 52
TILE_A = [(0, 0, 30), (1, 0, 76), (3, 1, 106), (1, 4, 132)]
TILE_B = [(16, 166, 0), (14, 62, 192), (11, 19, 182), (14, 5, 162)]
def _check_map():
    seen = []
    for P, rp, rs in TILE_A + TILE_B: seen += list(range(rp, rp + P)) + list(range(rs, rs + 32 - 2*P))
    assert sorted(seen) == list(range(NB))
_check_map()

def pkfma(d, x, y, z): return f"v_pk_fma_f32 {vr(d,2)}, {vr(x,2)}, {vr(y,2)}, {vr(z,2)}"
def pkmul(d, x, y): return f"v_pk_mul_f32 {vr(d,2)}, {vr(x,2)}, {vr(y,2)}"
def mf16(d, A, B, c): return f"v_mfma_f32_32x32x16_bf16 {vr(d,16)}, {A}, {B}, {c}"
def mf8(d, A, B, c): return f"v_mfma_f32_32x32x8_bf16 {vr(d,16)}, {A}, {B}, {c}"

def edge_mfmas(b, dst, u):
    o = [mf8(dst, ar(WC(b), 2), vr(ENT[u], 2), vr(Q + 16*b, 16))]
    for q in range(4): o.append(mf16(dst, ar(WA(b, q), 4), ar(RING[u] + 4*q, 4), vr(dst, 16)))
    return o
def gather(u, q): return f"buffer_load_dwordx4 {ar(RING[u]+4*q,4)}, v{vOff}, s[{sX}:{sX+3}], 0 offen offset:{16*q}"
def mkoff(u): return f"v_mad_u32_u16 v{vOff}, v{ENT[u]+2}, s{s128}, v{vHalf} op_sel:[1,0,0,0]"
def entry(u, off): return f"ds_read_b96 {vr(ENT[u],3)}, v{vLds} offset:{off}"

def interleave(v, m, gap=3, start=0):
    o = []; k = 0
    for i, x in enumerate(v):
        if k < len(m) and i == start + k * gap: o.append(m[k]); k += 1
        o.append(x)
    return o + m[k:]

def icost(x):
    if x.startswith(("v_exp", "v_rcp", "v_mfma_f32_32x32x16")): return 8
    if x.startswith(("buffer_", "ds_")): return 10
    return 4
def weave(fill, mf):
    o = []; k = 0; since = 99
    for i, x in enumerate(fill):
        if k < len(mf) and since >= 32 and i >= mf[k][1]:
            o.append(mf[k][0]); since = icost(mf[k][0]); k += 1
        o.append(x); since += icost(x)
    return o + [m for m, _ in mf[k:]]

def step(u, first, vm=3):
    o = []
    nx, pre = (u + 1) % 3, (u + 2) % 3
    for b in range(4):
        n, dn = NUM + 16*b, DEN + 16*b
        t = n if first else D + 16*(b & 1)
        e = dn if first else EE
        ex = [f"v_exp_f32 v{e+i}, v{t+i}" for i in range(16)]
        if b < 3: m = edge_mfmas(b + 1, NUM + 16*(b+1) if first else D + 16*((b+1) & 1), u)
        else: m = edge_mfmas(0, D, nx)
        A = interleave(ex, m)
        mid, end = [gather(pre, b)], []
        if b == 0 and not first: end = [f"v_cmpx_gt_i32 vcc, s{sC}, v{vPad}"]
        if b == 1:
            if not first: end = [f"s_sub_u32 s{sC}, s{sC}, 1"]
        if b == 2:
            if OPT.get("onewait"): A = A[:6] + [entry(u, 36 + ESZ*u)] + A[6:]
            else: end = [entry(u, 36 + ESZ*u)]
        if b == 3:
            mid = [f"s_waitcnt vmcnt({vm}) lgkmcnt(0)"] + mid if OPT.get("onewait") else [f"s_waitcnt vmcnt({vm})"] + mid
            end = ([] if OPT.get("onewait") else ["s_waitcnt lgkmcnt(0)"]) + [mkoff(u)]
            if u == 2: end += [f"v_add_u32 v{vLds}, 36, v{vLds}"]
            if OPT.get("steps"): end += [f"v_writelane_b32 v{vT0}, s100, m0", "s_mov_b32 s99, m0", "s_addk_i32 s99, 1" if first else "s_cselect_b32 s98, 1, 0\ns_addk_i32 s99, 1\ns_cmp_lg_u32 s98, 0", "s_mov_b32 m0, s99"]
        if b == 2 and OPT.get("steps"): end = end + ["s_memtime s[100:101]"]
        if first:
            p = [f"v_pk_add_f32 {vr(dn+i,2)}, {vr(dn+i,2)}, 1.0 op_sel_hi:[1,0]" for i in range(0, 16, 2)]
        else:
            p = [pkfma(n+i, n+i, EE+i, n+i) for i in range(0, 16, 2)]
            p += [pkfma(n+i, t+i, dn+i, n+i) for i in range(0, 16, 2)]
            p += [pkfma(dn+i, dn+i, EE+i, dn+i) for i in range(0, 16, 2)]
        if not first and OPT.get("pkord", 0):
            pa, pb, pc = p[:8], p[8:16], p[16:]
            if OPT["pkord"] == 1: p = sum([[pa[i], pb[i], pc[i]] for i in range(8)], [])
            if OPT["pkord"] == 2:
                p = [pa[0]]
                for i in range(8): p += ([pa[i+1]] if i < 7 else []) + [pb[i], pc[i]]
            if OPT["pkord"] == 3:
                p = [pkfma(n+i, EE+i, n+i, n+i) for i in range(0, 16, 2)] + [pkfma(n+i, dn+i, t+i, n+i) for i in range(0, 16, 2)] + [pkfma(dn+i, EE+i, dn+i, dn+i) for i in range(0, 16, 2)]
        blk = A[:2] + mid + A[2:] + end + p
        x = OPT.get("exp", 0)
        if not first:
            if x & 1: blk = [("s_nop 1" if i.startswith("v_mfma") else i) for i in blk]
            if x & 2: blk = [("s_nop 0" if i.startswith("v_pk") else i) for i in blk]
            if x & 4: blk = [("s_nop 1" if (i.startswith("v_exp") and not i.endswith(f"v{t+15}")) else i) for i in blk]
            if x & 8: blk = [("s_nop 1" if i.startswith("buffer_load") else i) for i in blk]
            if x & 16: blk = [("s_nop 0" if i.startswith("v_mfma_f32_32x32x8") else i) for i in blk]
        o += blk
    return o

SEL = EE + 4
def selectors():
    return [f"v_mov_b32 v{SEL}, 0x3f80", f"v_mov_b32 v{SEL+1}, 0", f"v_mov_b32 v{SEL+2}, 1.0", f"v_mov_b32 v{SEL+3}, 0",
            f"v_mov_b32 v{SEL+4}, 0", f"v_mov_b32 v{SEL+5}, 0x3f80", f"v_mov_b32 v{SEL+6}, 0", f"v_mov_b32 v{SEL+7}, 1.0"]
def q_mfmas(b):
    o = [mf8(Q + 16*b, ar(B1F, 2), vr(SEL + 2*b, 2), "0")]
    for q in range(4): o.append(mf16(Q + 16*b, ar(WB(b, q), 4), ar(RING[2] + 4*q, 4), vr(Q + 16*b, 16)))
    return o
def hdr_reads(vinfo, tmp):
    o = [f"v_and_b32 v{tmp[0]}, 0xffff, v{vinfo}", f"ds_read_b128 {ar(RING[2],4)}, v{tmp[0]} offset:{L_XR}"]
    for q in range(1, 4): o += [f"v_xor_b32 v{tmp[q]}, {16*q}, v{tmp[0]}", f"ds_read_b128 {ar(RING[2]+4*q,4)}, v{tmp[q]} offset:{L_XR}"]
    return o
def tile_scalars(vinfo, sp2):
    return [f"v_lshrrev_b32 v{vPad}, 16, v{vinfo}", f"s_mov_b32 s{sStage}, 0",
            f"v_readlane_b32 s{sL}, v{vPad}, 0", f"v_readlane_b32 s{sTmp}, v{vPad}, s{sp2}", f"v_cmp_lt_u32 s[{sValid}:{sValid+1}], 0, v{vPad}",
            f"s_max_u32 s{sL}, s{sL}, s{sTmp}", f"s_max_u32 s{sL}, s{sL}, 4", f"s_sub_u32 s{sC}, s{sL}, 4", f"s_sub_u32 s{sL}, s{sL}, 3",
            f"v_sub_u32 v{vPad}, s{sL}, v{vPad}"]

def epilogue(a, nxt):
    lab = "T" if nxt else "F"
    CHK, AD, P = EE + 12, NUM + 16, NUM + 32
    so = OPT.get("outst", "")
    a("s_mov_b64 exec, -1", f"s_cmp_lg_u64 s[{sValid}:{sValid+1}], -1", f"s_cbranch_scc1 K2_{lab}FIX", ".p2align 3", f"K2_{lab}GO:")
    o = [f"v_accvgpr_read_b32 v{EE+2}, a{aInfo}"]
    if nxt:
        o += [f"v_accvgpr_read_b32 v{vT0}, a{aNextI}", f"v_accvgpr_read_b32 v{vLds}, a{aNextL}", "s_waitcnt vmcnt(0) lgkmcnt(0)"]
        o += hdr_reads(vT0, [vT1, vOff, EE+14, EE+15]) + [entry(0, 0), entry(1, ESZ), entry(2, 2*ESZ), f"s_mov_b32 s{sX+2}, {X_BYTES}"]
    o += [f"v_lshrrev_b32 v{EE+2}, 16, v{EE+2}", f"v_cvt_f32_u32 v{EE+2}, v{EE+2}", f"v_mov_b32 v{EE+1}, 0", f"v_mov_b32 v{EE+3}, 0", f"v_lshrrev_b32 v{EE}, 16, v{EE+2}"]
    def chk(b):
        dn = DEN + 16*b
        return [(pkmul(CHK, dn, dn + 8) if (b == 0 and i == 0) else pkfma(CHK, dn+i, dn+8+i, CHK)) for i in range(0, 8, 2)]
    def cvt(b): return [f"v_cvt_pk_bf16_f32 v{DEN+16*b+i//2}, v{NUM+16*b+i}, v{NUM+16*b+i+1}" for i in range(0, 16, 2)]
    def w2(b): return [mf16(D + 16*ob, vr(DEN + 16*b + 4*m, 4), ar(W2(b, m, ob), 4), vr(D + 16*ob, 16)) for m in range(2) for ob in range(2)]
    o += chk(0)
    oread = [f"v_lshrrev_b32 v{vT1}, 2, v{vHalf}", f"v_add_u32 v{vT1}, s{sTile}, v{vT1}"] + \
            [f"ds_read_b128 {vr(AD+4*g,4)}, v{vT1} offset:{L_OUTO+32*g}" for g in range(4)] + \
            [f"v_and_b32 v{vT1}, 31, v{vLane}", f"v_lshlrev_b32 v{vT1}, 2, v{vT1}"]
    oadd = [f"v_add_u32 v{AD+i}, v{AD+i}, v{vT1}" for i in range(16)]
    for b in range(4):
        n, dn = NUM + 16*b, DEN + 16*b
        rc = [f"v_rcp_f32 v{dn+i}, v{dn+i}" for i in range(16)]
        pre = cvt(b - 1) if b else []
        if b == 0: mf = [(mf8(D, vr(EE, 2), ar(B2F, 2), "0"), 0), (mf8(D + 16, vr(EE + 2, 2), ar(B2F, 2), "0"), 0)]
        else: mf = [(x, 10) for x in w2(b - 1)]
        if nxt:
            if b == 0:
                fill = selectors() + rc[:5] + ["s_waitcnt lgkmcnt(2)", mkoff(0), gather(0, 0)] + rc[5:10] + [gather(0, 1)] + rc[10:] + [f"v_accvgpr_write_b32 a{aInfo}, v{vT0}"]
                qm = q_mfmas(0); mf = mf + [(qm[0], 10)] + [(x, 14) for x in qm[1:]]
            else:
                ex = {1: [gather(0, 2), gather(0, 3), "s_waitcnt lgkmcnt(0)", mkoff(1), gather(1, 0)],
                      2: [gather(1, 1), gather(1, 2)] + oread,
                      3: [gather(1, 3), "s_waitcnt lgkmcnt(0)"] + oadd[:8]}[b]
                k = max(1, 16 // len(ex))
                fill = pre + interleave(rc, ex, k, 1)
                mf = [(x, 0) for x in q_mfmas(b)] + mf
        else:
            ex = {0: [], 1: [], 2: oread, 3: []}[b]
            fill = pre + rc + ex
        o += weave(fill, mf)
        mu = [pkmul(n+i, n+i, dn+i) for i in range(0, 16, 2)]
        o += interleave(mu, chk(b + 1), 2, 1) if b < 3 else mu
    wm = w2(3)
    lim = [f"v_lshrrev_b32 v{EE}, 4, v{vHalf}", f"v_sub_u32 v{EE}, s{sP2A if nxt else sP2B}, v{EE}", f"v_add_f32 v{CHK}, v{CHK}, v{CHK+1}"]
    c3 = cvt(3)
    if nxt:
        fm = edge_mfmas(0, NUM, 0)
        o += [fm[0]] + c3[:6] + [wm[0]] + c3[6:] + oadd[8:12] + [wm[1]] + oadd[12:] + lim[:2] + [wm[2]] + lim[2:] + tile_scalars(vT0, sP2B)[:5] + [wm[3]]
        o += tile_scalars(vT0, sP2B)[5:] + ["s_waitcnt vmcnt(4)", fm[1], f"s_add_u32 s{sTile}, s{sTile}, 128", mkoff(2), "s_nop 3"]
        rest = [(x, 0) for x in fm[2:]]
    else:
        o += c3[:6] + [wm[0]] + c3[6:] + ["s_waitcnt lgkmcnt(0)"] + oadd[:3] + [wm[1]] + oadd[3:9] + [wm[2]] + oadd[9:15] + [wm[3]] + oadd[15:] + lim + ["s_nop 7"]
        rest = []
    fill = [f"v_maximum3_f32 v{CHK}, v{CHK}, |v{D+i}|, |v{D+i+1}|" for i in range(0, 16, 2)]
    fill += [f"v_cmp_ngt_f32 vcc, {f32(2.0**120)}, v{CHK}", f"s_or_b64 s[{sBad}:{sBad+1}], s[{sBad}:{sBad+1}], vcc"]
    o += weave(fill, rest[:2]); rest = rest[2:]
    for j in range(2 if nxt else 8):
        i = 2*j
        o += [f"v_cmpx_lt_i32 vcc, {8*(i>>2) + (i&3)}, v{EE}", f"v_add_f32 v{D+i}, v{D+i}, v{D+i+1}", f"v_add_f32 v{D+16+i}, v{D+16+i}, v{D+17+i}"]
    o += ["s_mov_b64 exec, -1"]
    fill = []
    for i in range(16):
        fill += [f"v_cvt_pk_bf16_f32 v{P+i}, v{D+i}, v{D+16+i}"]
        if i: fill += [f"buffer_store_dword v{P+i-1}, v{AD+i-1}, s[{sOut}:{sOut+3}], 0 offen {so}"]
    fill += [f"buffer_store_dword v{P+15}, v{AD+15}, s[{sOut}:{sOut+3}], 0 offen {so}"]
    o += weave(fill, [(x, 2) for x, _ in rest])
    o, n = align8(o)
    a(o)
    return n

def fixup(a, lab):
    a(f"K2_{lab}FIX:", f"s_andn2_b64 exec, -1, s[{sValid}:{sValid+1}]")
    for i in range(64): a(f"v_mov_b32 v{NUM+i}, 0", f"v_mov_b32 v{DEN+i}, 1.0")
    a("s_mov_b64 exec, -1", f"s_branch K2_{lab}GO")

def st2(a, idx):
    if OPT["stamps"]:
        a("s_memtime s[100:101]", "s_memrealtime s[50:51]", "s_mov_b64 s[48:49], exec", "s_mov_b64 exec, -1", f"v_accvgpr_read_b32 v{vT1}, a{aStamp}", "s_waitcnt lgkmcnt(0)", "s_nop 0",
          f"v_writelane_b32 v{vT1}, s100, {idx}", f"v_writelane_b32 v{vT1}, s50, {idx+16}", f"v_writelane_b32 v{vT1}, s{sL}, {idx+32}", "s_nop 0", f"v_accvgpr_write_b32 a{aStamp}, v{vT1}", "s_mov_b64 exec, s[48:49]")

def gen_k2(a):
    a(".p2align 8", "k2_kernel:")
    a("s_cmp_ge_u32 s2, 256", "s_cbranch_scc1 K2_END")
    if OPT["stamps"]: a(f"v_accvgpr_write_b32 a{aStamp}, 0")
    st2(a, 0)
    a("s_load_dwordx2 s[44:45], s[0:1], 80", "s_load_dwordx2 s[40:41], s[0:1], 0", "s_load_dwordx2 s[42:43], s[0:1], 64")
    tid, vInit, vT4, vZ, vL16 = 16, 17, 18, 20, 25
    if OPT.get("pf2", 0):
        a("s_getpc_b64 s[52:53]", "K2_PC:", "s_mov_b32 s54, K2_SLOW-K2_PC", "s_mov_b32 s55, 0x00020000", "v_lshlrev_b32 v2, 7, v0", "buffer_load_dword v2, v2, s[52:55], 0 offen")
    a(f"v_mov_b32 v{tid}, v0", f"v_and_b32 v{vLane}, 63, v0", "v_lshrrev_b32 v1, 6, v0")
    a(f"s_and_b32 s{sBucket}, s2, 7", f"s_lshl_b32 s{sBucket}, s{sBucket}, 5", "s_lshr_b32 s3, s2, 3", f"s_add_u32 s{sBucket}, s{sBucket}, s3")
    if OPT.get("nogroup"): a(f"s_mov_b32 s{sBucket}, s2")
    a(f"v_readfirstlane_b32 s{sWave}, v1")
    a(f"v_lshlrev_b32 v24, 10, v{tid}", f"v_lshlrev_b32 v{vL16}, 4, v{vLane}")
    a(f"v_mul_u32_u24 v{vInit}, {CAP*ESZ}, v{tid}", f"v_add_u32 v{vInit}, {L_TAB}, v{vInit}")
    a(f"v_lshlrev_b32 v{vT4}, 2, v{tid}", f"v_mov_b32 v{vZ}, 0", f"v_mov_b32 v{vZ+1}, 0", f"v_lshlrev_b32 v23, 3, v{vLane}")
    a(f"ds_write_b32 v{vT4}, v{vInit} offset:{L_CNT}", f"ds_write_b64 v23, v[{vZ}:{vZ+1}] offset:{L_HIST}")
    a(f"s_movk_i32 s{s128}, 128", f"s_mov_b64 s[{sBad}:{sBad+1}], 0")
    vJ16, vN16, vJ4, vN4, vStart, vCnt, vTw, vXs = 27, 28, 29, 30, 31, 32, 33, 34
    a(f"v_and_b32 v{vJ16}, 15, v{vLane}", f"v_mul_u32_u24 v{vJ16}, 12, v{vJ16}", f"v_not_b32 v{vN16}, v{vJ16}")
    a(f"v_and_b32 v{vJ4}, 3, v{vLane}", f"v_mul_u32_u24 v{vJ4}, 12, v{vJ4}", f"v_not_b32 v{vN4}, v{vJ4}")
    a(f"v_lshrrev_b32 v{vHalf}, 5, v{vLane}", f"v_lshlrev_b32 v{vHalf}, 6, v{vHalf}", f"v_mov_b32 v{vTw}, 12")
    a(f"v_lshrrev_b32 v{vXs}, 3, v{vLane}", f"v_lshlrev_b32 v{vXs}, 4, v{vXs}", f"v_xor_b32 v{vXs}, v{vXs}, v{vL16}")
    a(f"v_mul_u32_u24 v{vStart}, {CH*12}, v{tid}")
    ROLE = {"A": 44, "B": 50}
    a(f"s_lshl_b32 s3, s{sWave}, 3", "s_or_b32 s3, s3, 0x80000", f"v_and_b32 v36, 31, v{vLane}", "v_lshrrev_b32 v37, 1, v36", "v_and_b32 v38, 1, v36")
    for nm, T, sp in (("A", TILE_A, sP2A), ("B", TILE_B, sP2B)):
        r = ROLE[nm]
        pk = lambda f: hex(sum((f(t) & 255) << (8*w) for w, t in enumerate(T)))
        a(f"s_bfe_u32 s{sp}, {pk(lambda t: 2*t[0])}, s3", f"s_bfe_u32 s46, {pk(lambda t: t[1])}, s3", f"s_bfe_u32 s47, {pk(lambda t: t[2])}, s3", f"s_sub_u32 s47, s47, s{sp}")
        a(f"v_cmp_gt_u32 vcc, s{sp}, v36", f"v_add_u32 v{r}, s47, v36", f"v_add_u32 v39, s46, v37", f"v_cndmask_b32 v{r}, v{r}, v39, vcc", f"v_lshlrev_b32 v{r}, 2, v{r}",
          f"v_cndmask_b32 v{r+2}, 0, 1, vcc", f"v_and_b32 v{r+3}, v{r+2}, v38", f"v_sub_u32 v{r+1}, v{r+2}, v{r+3}", f"v_lshlrev_b32 v{r+4}, 30, v{r+3}", f"v_mul_u32_u24 v{r+3}, 12, v{r+3}")
    a(f"s_lshl_b32 s{sTmp}, s{sBucket}, 2", f"s_add_u32 s{sTmp}, s{sTmp}, {TAB_REL}", f"s_lshl_b32 s3, s{sWave}, 12", f"s_add_u32 s47, s3, {19*1024}",
      f"s_mul_i32 s46, s{sWave}, {5*1024}", f"s_min_u32 s46, s46, {14*1024}")
    for r_, n_ in ((sAux, AUX_BYTES), (sX, X_BYTES), (sOut, X_BYTES), (sRec, REC_BYTES)): a(f"s_mov_b32 s{r_+2}, {n_}", f"s_mov_b32 s{r_+3}, 0x00020000")
    a(f"s_mul_i32 s33, s{sWave}, 6144", f"s_mul_i32 s39, s{sBucket}, {NB*128}", "s_add_u32 s39, s39, s33")
    a("s_waitcnt lgkmcnt(0)")
    st2(a, 12)
    a(f"s_add_u32 s{sAux}, s44, {FRAG_OFF}", f"s_addc_u32 s{sAux+1}, s45, 0")
    vE = 26
    a(f"buffer_load_dword v{vE}, v24, s[{sAux}:{sAux+3}], s{sTmp} offen")
    a(f"s_mov_b64 s[{sRec}:{sRec+1}], s[44:45]", f"s_mov_b64 s[{sX}:{sX+1}], s[40:41]")
    xl = lambda i: f"buffer_load_dwordx4 v{vXs}, s[{sX}:{sX+3}], s39 offen offset:{1024*i} lds"
    wl = lambda i: f"buffer_load_dwordx4 v{vL16}, s[{sAux}:{sAux+3}], s46 offen offset:{1024*i} lds"
    xg = [[f"s_add_u32 m0, s33, {L_XR}", "s_mov_b64 exec, -1", xl(0), xl(1)], ["s_mov_b64 exec, -1", xl(2), xl(3)],
          [f"s_add_u32 m0, s33, {L_XR+4096}", "s_add_u32 s39, s39, 4096", "s_mov_b64 exec, -1", xl(0), xl(1)], ["s_mov_b32 exec_lo, -1", "s_mov_b32 exec_hi, 0", xl(2), "s_mov_b64 exec, -1"]]
    wg = [[f"s_add_u32 m0, s46, {L_W1S}", "s_mov_b64 exec, -1", wl(0), wl(1)], ["s_mov_b64 exec, -1", wl(2), wl(3)],
          [f"s_add_u32 m0, s46, {L_W1S+4096}", "s_add_u32 s46, s46, 4096", "s_mov_b64 exec, -1", wl(0)]]
    NX = 0
    for k in range(OPT.get("xpre", 0)):
        x = xg.pop(0); a(x); NX += sum(y.startswith("buffer") for y in x)
    if OPT.get("xpre", 0) in (1, 3): xg[0] = [f"s_add_u32 m0, s33, {L_XR + 4096*(OPT['xpre']//2)}"] + xg[0]
    a(f"s_add_u32 m0, s3, {L_W2S}", "s_nop 0")
    for i in range(4): a(f"buffer_load_dwordx4 v{vL16}, s[{sAux}:{sAux+3}], s47 offen offset:{1024*i} lds")
    late = (xg + wg) if OPT.get("xfirst", 0) else (wg + xg)
    NE = 0
    for k in range(OPT.get("early", 3)):
        x = late.pop(0); a(x); NE += sum(y.startswith("buffer") for y in x)
    a(f"s_mov_b64 s[{sOut}:{sOut+1}], s[42:43]")
    st2(a, 13)
    a(f"s_waitcnt vmcnt({4+NE+NX})")
    st2(a, 1)
    a(f"v_and_b32 v36, 0xffff, v{vE}", f"v_lshrrev_b32 v{vCnt}, 16, v{vE}", f"v_add_u32 v{vStart}, v{vStart}, v36")
    RB = 64
    def dppq(i): return f"quad_perm:[{i},{i},{i},{i}] row_mask:0xf bank_mask:0xf"
    def dppr(i): return f"row_newbcast:{i} row_mask:0xf bank_mask:0xf"
    def rec(i): return RB + 4*i
    def addr(s): return f"v_add_u32_dpp v{rec(s)+3}, v{vStart}, v{vJ16} {dppr(s)}" if s < 16 else f"v_add_u32_dpp v{rec(s)+3}, v{vStart}, v{vJ4} {dppq(s & 3)}"
    def load(s): return f"buffer_load_dwordx3 {vr(rec(s),3)}, v{rec(s)+3}, s[{sRec}:{sRec+3}], 0 offen" + (f" offset:{12*(s & ~3)}" if s >= 16 else "")
    def msk(s): return f"s[{sMask0+2*s}:{sMask0+2*s+1}]"
    a(f"v_cmp_lt_u32 vcc, {24*12}, v{vCnt}", f"s_mov_b64 s[{sSave}:{sSave+1}], vcc", "s_cbranch_vccnz K2_RARE1", "K2_P1:")
    W0, W = OPT.get("win0", 6), OPT.get("win", 12)
    for s in range(W0): a(addr(s), load(s))
    side = [addr(s) for s in range(W0, 24)]
    for i in range(16): side += [f"v_add_co_u32_dpp v37, vcc, v{vCnt}, v{vN16} {dppr(i)}", f"s_mov_b64 {msk(i)}, vcc"]
    for r in range(2):
        side += [f"v_add_u32 v36, {-12*(16+4*r)}, v{vN4}", "s_nop 1"]
        for i in range(4): side += [f"v_add_co_u32_dpp v37, vcc, v{vCnt}, v36 {dppq(i)}", f"s_mov_b64 {msk(16+4*r+i)}, vcc"]
    a(side)
    a(f"s_waitcnt vmcnt({NE+W0})", "s_barrier")
    st2(a, 2)
    a(interleave([f"ds_read_b128 {ar(76+4*f,4)}, v{vL16} offset:{L_W2S+1024*f}" for f in range(16)], [load(s) for s in range(W0, W)], 4, 2))
    st2(a, 3)
    LAG = OPT.get("lag", 4)
    def atom(s): return [f"v_and_b32 v{rec(s)+3}, 0xffff, v{rec(s)+2}", f"ds_add_rtn_u32 v{rec(s)+3}, v{rec(s)+3}, v{vTw}"]
    def put(s): return [f"ds_write2_b32 v{rec(s)+3}, v{rec(s)}, v{rec(s)+1} offset0:0 offset1:1", f"ds_write_b32 v{rec(s)+3}, v{rec(s)+2} offset:8"]
    def ex(s): return f"s_mov_b64 exec, {msk(s)}"
    sx = OPT.get("sx", 0)
    if sx & 1: put = lambda s: ["s_nop 0", "s_nop 0"]
    if sx & 2: atom = lambda s: [f"v_and_b32 v{rec(s)+3}, 0xffff, v{rec(s)+2}", f"v_lshl_add_u32 v{rec(s)+3}, v{rec(s)+3}, 5, v{vInit}"]
    if sx & 4: a("s_waitcnt vmcnt(0)"); st2(a, 3)
    ops = []; vm = list(range(W))
    for i in range(24 + LAG):
        if i < 24:
            a(f"s_waitcnt vmcnt({len(vm) - 1 - vm.index(i)})", ex(i), atom(i)); ops.append(("a", i))
        if i + W < 24:
            a(ex(i + W), load(i + W)); vm.append(i + W)
        elif late and i >= 24 - OPT.get("late", 6):
            x = late.pop(0); a(x); vm += [-1] * sum(y.startswith("buffer") for y in x)
        if i >= LAG:
            s = i - LAG
            n = len(ops) - 1 - ops.index(("a", s))
            a(f"s_waitcnt lgkmcnt({n})", ex(s), put(s)); ops += [("w", s), ("w", s)]
    for x in late: a(x)
    a("s_mov_b64 exec, -1")
    a(f"s_cmp_lg_u64 s[{sSave}:{sSave+1}], 0", "s_cbranch_scc1 K2_RARE2")
    a("K2_P2:", "s_waitcnt lgkmcnt(0)", "s_barrier")
    st2(a, 4)
    if sx: a("s_branch K2_STOUT")
    vD, vR, vS = 40, 41, 42
    a(f"ds_read_b32 v{vD}, v{vT4} offset:{L_CNT}", "v_mov_b32 v43, 1", f"v_cmp_gt_u32 vcc, {NB}, v{tid}", f"v_lshlrev_b32 v36, 2, v{vLane}",
      f"s_mov_b64 s[{sValid}:{sValid+1}], vcc", f"s_add_u32 m0, s3, {L_W2S}", f"s_add_u32 s3, s3, {35*1024}", "s_waitcnt lgkmcnt(0)")
    a(f"v_sub_u32 v{vD}, v{vD}, v{vInit}", f"v_cmp_lt_u32 vcc, {CAP*ESZ}, v{vD}", f"v_min_u32 v{vD}, {63*12}, v{vD}", f"v_mul_u32_u24 v{vD}, 5462, v{vD}",
      f"s_or_b64 s[{sBad}:{sBad+1}], s[{sBad}:{sBad+1}], vcc", f"v_lshrrev_b32 v{vD}, 16, v{vD}", f"v_lshlrev_b32 v37, 2, v{vD}")
    a(f"s_mov_b64 exec, s[{sValid}:{sValid+1}]", f"ds_add_rtn_u32 v{vR}, v37, v43 offset:{L_HIST}")
    if OPT["force_slow"]: a(f"s_mov_b64 s[{sBad}:{sBad+1}], 1")
    a(f"s_mov_b64 exec, s[{sBad}:{sBad+1}]", f"ds_write_b32 v{vZ}, v43 offset:{L_FLAG}", "s_mov_b64 exec, -1")
    a([f"buffer_load_dwordx4 v{vL16}, s[{sAux}:{sAux+3}], s3 offen offset:{1024*i} lds" for i in range(4)])
    a(f"v_lshl_or_b32 v{vD}, v{vD}, 8, v{tid}", "s_waitcnt lgkmcnt(0)", "s_barrier")
    a(f"ds_read_b32 v{vS}, v36 offset:{L_HIST}", f"ds_read_b32 v38, v{vZ} offset:{L_FLAG}", "s_waitcnt lgkmcnt(1)")
    wave_scan(a, vS)
    a(f"v_sub_u32 v{vS}, {NB}, v{vS}", f"ds_bpermute_b32 v{vS}, v37, v{vS}", "s_waitcnt lgkmcnt(1)", f"v_readfirstlane_b32 s{sTmp}, v38",
      f"s_mul_i32 s{sTmp2}, s{sBucket}, {NB*128}", f"s_lshl_b32 s{sTile}, s{sWave}, 8", f"s_cmp_lg_u32 s{sTmp}, 0", "s_cbranch_scc1 K2_SLOW")
    a("s_waitcnt lgkmcnt(0)", f"v_add_lshl_u32 v{vS}, v{vS}, v{vR}, 2", f"s_mov_b64 exec, s[{sValid}:{sValid+1}]", f"ds_write_b32 v{vS}, v{vD} offset:{L_RANK}", "s_mov_b64 exec, -1")
    a(f"s_movk_i32 s46, {CAP*ESZ}", f"v_mov_b32 v39, {L_TAB}", f"v_lshrrev_b32 v38, 4, v{vHalf}", f"v_and_b32 v36, 31, v{vLane}", f"v_lshl_add_u32 v36, v36, 2, s{sTile}")
    a(f"v_add_u32 v{EE}, {L_W1S}, v{vL16}", f"v_add_u32 v{EE+1}, {L_W2S}, v{vL16}")
    a("s_waitcnt vmcnt(4) lgkmcnt(0)", "s_barrier")
    st2(a, 5)
    def decode1(w, r, base):
        return [f"v_lshrrev_b32 v{w+1}, 8, v{w}", f"v_and_b32 v{w}, 0xff, v{w}", f"v_add_u32 v{w+2}, v{w+1}, v{r+1}", f"v_lshrrev_b32 v{w+2}, v{r+2}, v{w+2}",
                f"v_mad_u32_u24 v{base}, v{w}, s46, v39", f"v_sub_u32 v{w+1}, v{w+1}, v{w+2}", f"v_mad_u32_u24 v{base}, v{w+1}, v{r+3}, v{base}"]
    def decode2(w, r, info):
        return [f"v_and_b32 v{w+1}, 7, v{w}", f"v_xor_b32 v{w+1}, v{w+1}, v38", f"v_lshlrev_b32 v{w+1}, 4, v{w+1}", f"v_lshl_add_u32 v{w+1}, v{w}, 7, v{w+1}",
                f"v_lshl_or_b32 v{info}, v{w+2}, 16, v{w+1}"]
    def decode3(w, r, off):
        return [f"v_lshl_add_u32 v{w}, v{w}, 7, s{sTmp2}", f"v_or_b32 v{w}, v{w}, v{r+4}", f"ds_write_b32 v36, v{w} offset:{L_OUTO+off}"]
    a(f"ds_read_b32 v56, v{ROLE['A']} offset:{L_RANK}", f"ds_read_b32 v60, v{ROLE['B']} offset:{L_RANK}")
    a(selectors())
    a("s_waitcnt lgkmcnt(1)", decode1(56, ROLE["A"], vLds))
    a(f"ds_read_b32 v{ENT[0]+2}, v{vLds} offset:8", f"ds_read_b32 v{ENT[1]+2}, v{vLds} offset:20", f"ds_read_b32 v{ENT[2]+2}, v{vLds} offset:32")
    a(decode2(56, ROLE["A"], vT0), hdr_reads(vT0, [vT1, 59, EE+14, EE+15]))
    a("s_waitcnt lgkmcnt(6)", mkoff(0), gather(0, 0))
    a([f"ds_read_b128 {ar(4*f,4)}, v{EE} offset:{1024*f}" for f in (18, 16, 17)])
    a([f"ds_read2_b32 {vr(ENT[u],2)}, v{vLds} offset0:{3*u} offset1:{3*u+1}" for u in range(3)])
    a(tile_scalars(vT0, sP2A), f"v_accvgpr_write_b32 a{aInfo}, v{vT0}", decode3(56, ROLE["A"], 0))
    a(decode1(60, ROLE["B"], 63), f"v_accvgpr_write_b32 a{aNextL}, v63", decode2(60, ROLE["B"], 63), f"v_accvgpr_write_b32 a{aNextI}, v63", decode3(60, ROLE["B"], 128))
    a(gather(0, 1), "s_waitcnt lgkmcnt(0)")
    for b in range(4):
        a(interleave(q_mfmas(b), [f"ds_read_b128 {ar(4*f,4)}, v{EE} offset:{1024*f}" for f in range(4*b, 4*b+4)], 1, 1))
        a([[gather(0, 2)], [gather(0, 3)], [mkoff(1), gather(1, 0)], [gather(1, 1)]][b])
    a("s_waitcnt vmcnt(6)", "s_barrier")
    a(interleave([f"ds_read_b128 {ar(140+4*f,4)}, v{EE+1} offset:{1024*f}" for f in range(16)], [gather(1, 2), gather(1, 3)], 8, 7))
    a("s_waitcnt lgkmcnt(15)")
    a(mkoff(2), "s_waitcnt vmcnt(4)")
    st2(a, 6)
    if OPT.get("steps"): a("s_mov_b32 m0, 0")
    a(edge_mfmas(0, NUM, 0), "s_nop 7", "s_nop 2")
    a(".p2align 3")
    body, n = align8([f"s_mov_b64 exec, s[{sValid}:{sValid+1}]"] + step(0, True))
    a(body, "s_branch K2_L1")
    a(".p2align 6")
    for u in range(3):
        body = step(u, False) + [f"s_cbranch_scc1 K2_X{u}" if u < 2 else "s_cbranch_scc0 K2_L0"]
        if u: body = ["s_nop 0"] + body
        body, n = align8(body)
        if u: body = body[1:]
        a(f"K2_L{u}:", body)
    for u in (2, 0, 1):
        a(f"K2_X{u}:", f"s_cmp_lg_u32 s{sStage}, 0", "s_cbranch_scc1 K2_TEND",
          f"s_mov_b32 s{sStage}, 1", f"s_mov_b32 s{sC}, 1", f"s_mov_b32 s{sX+2}, 0", f"v_add_u32 v{vPad}, 2, v{vPad}", f"s_branch K2_L{(u+1)%3}")
    a("K2_TEND:", f"s_bitcmp1_b32 s{sTile}, 7", "s_cbranch_scc1 K2_FINAL")
    st2(a, 7)
    if OPT.get("steps"):
        a("s_mov_b64 exec, -1", f"s_add_u32 s48, s44, {STAMP_OFF+(3<<20)}", "s_addc_u32 s49, s45, 0", "s_mov_b32 s50, 0x100000", "s_mov_b32 s51, 0x00020000",
          f"s_lshl_b32 s46, s{sBucket}, 2", f"s_add_u32 s46, s46, s{sWave}", "s_lshl_b32 s46, s46, 8",
          f"v_lshlrev_b32 v{vT1}, 2, v{vLane}", f"buffer_store_dword v{vT0}, v{vT1}, s[48:51], s46 offen", "s_waitcnt vmcnt(0)")
    n = epilogue(a, True)
    st2(a, 8)
    a(".p2align 3")
    body, n = align8([f"s_mov_b64 exec, s[{sValid}:{sValid+1}]"] + step(0, True, 19))
    a(body, "s_branch K2_L1")
    a("K2_FINAL:")
    st2(a, 9)
    epilogue(a, False)
    st2(a, 10)
    if OPT.get("exp", 0): a(f"s_mov_b64 s[{sBad}:{sBad+1}], 0")
    a("v_mov_b32 v20, 0", "v_mov_b32 v21, 1", f"s_mov_b64 exec, s[{sBad}:{sBad+1}]", f"ds_write_b32 v20, v21 offset:{L_FLAG}", "s_mov_b64 exec, -1")
    a("s_waitcnt lgkmcnt(0)", "s_barrier", f"ds_read_b32 v21, v20 offset:{L_FLAG}", "s_waitcnt lgkmcnt(0)", f"v_readfirstlane_b32 s{sTmp}, v21",
      f"s_cmp_lg_u32 s{sTmp}, 0", "s_cbranch_scc1 K2_SLOW")
    if OPT["stamps"]:
        a("K2_STOUT:", "s_waitcnt vmcnt(0)")
        st2(a, 11)
        a(f"s_add_u32 s48, s44, {STAMP_OFF}", "s_addc_u32 s49, s45, 0", "s_mov_b32 s50, 0x100000", "s_mov_b32 s51, 0x00020000",
          f"s_lshl_b32 s46, s{sBucket}, 2", f"s_add_u32 s46, s46, s{sWave}", "s_lshl_b32 s46, s46, 8",
          f"v_accvgpr_read_b32 v20, a{aStamp}", f"v_lshlrev_b32 v21, 2, v{vLane}", "buffer_store_dword v20, v21, s[48:51], s46 offen")
    a("K2_END:", "s_endpgm")
    a("K2_RARE1:")
    for r in range(2, 6):
        for i in range(4): a(addr(16 + 4*r + i), load(16 + 4*r + i))
        a(f"v_cmp_lt_u32 vcc, {(20+4*r)*12}, v{vCnt}", "s_cbranch_vccz K2_P1")
    a(f"s_mov_b64 s[{sBad}:{sBad+1}], 1", "s_branch K2_P1")
    a("K2_RARE2:")
    for r in range(2, 6):
        a(f"v_add_u32 v36, {-12*(16+4*r)}, v{vN4}", "s_nop 1")
        for i in range(4): a(f"v_add_co_u32_dpp v37, vcc, v{vCnt}, v36 {dppq(i)}", f"s_mov_b64 {msk(i)}, vcc")
        for i in range(4): a(ex(i), atom(16 + 4*r + i))
        a("s_waitcnt lgkmcnt(0)")
        for i in range(4): a(ex(i), put(16 + 4*r + i))
        a("s_mov_b64 exec, -1")
        if r < 5: a(f"v_cmp_lt_u32 vcc, {(20+4*r)*12}, v{vCnt}", "s_cbranch_vccz K2_P2")
    a("s_branch K2_P2")
    fixup(a, "T"); fixup(a, "F")
    gen_slow(a)

def gen_slow(a):
    tid, vStart, vCnt, vJ, vA = 0, 1, 2, 4, 5
    a("K2_SLOW:", "s_mov_b64 exec, -1", "s_waitcnt vmcnt(0) lgkmcnt(0)", f"s_mov_b32 s{sX+2}, {X_BYTES}", "s_barrier")
    a(f"s_lshl_b32 s{sTmp}, s{sWave}, 6", f"v_add_u32 v{tid}, s{sTmp}, v{vLane}", f"v_lshlrev_b32 v23, 4, v{vLane}")
    a([f"ds_read_b128 {ar(140+4*f,4)}, v23 offset:{L_W2S+1024*f}" for f in range(16)])
    a([f"ds_read_b128 {ar(4*f,4)}, v23 offset:{L_W1S+1024*f}" for f in range(19)])
    a(f"v_lshlrev_b32 v20, 10, v{tid}", f"s_lshl_b32 s{sTmp}, s{sBucket}, 2", f"s_add_u32 s{sTmp}, s{sTmp}, {TAB_REL}",
      f"buffer_load_dword v21, v20, s[{sAux}:{sAux+3}], s{sTmp} offen")
    a("v_mov_b32 v24, 0", "v_mov_b32 v25, 0", "v_mov_b32 v26, 0", "v_mov_b32 v27, 0", f"v_lshlrev_b32 v22, 4, v{tid}", f"v_add_u32 v22, {L_TAB}, v22")
    for i in range(13): a(f"ds_write_b128 v22, v[24:27] offset:{4096*i}")
    a(selectors())
    a(f"v_mul_u32_u24 v{vStart}, {CH*12}, v{tid}", f"v_and_b32 v{vJ}, 31, v{vLane}", f"v_mul_u32_u24 v{vJ}, 12, v{vJ}")
    a("s_waitcnt vmcnt(0) lgkmcnt(0)", "v_and_b32 v22, 0xffff, v21", f"v_lshrrev_b32 v{vCnt}, 16, v21", f"v_add_u32 v{vStart}, v{vStart}, v22", "s_barrier")
    a(f"s_mul_i32 s50, s{sBucket}, {NB*128}", "s_mov_b32 s46, 0")
    a("KS_SEG:", "s_nop 3", f"v_readlane_b32 s47, v{vStart}, s46", f"v_readlane_b32 s48, v{vCnt}, s46", "s_mov_b32 s49, 0")
    a("KS_GRP:", "s_cmp_ge_u32 s49, s48", "s_cbranch_scc1 KS_NEXT")
    a(f"v_add_u32 v20, s49, v{vJ}", f"v_cmp_gt_u32 s[{sValid}:{sValid+1}], s48, v20", "v_add_u32 v20, s47, v20")
    a(f"buffer_load_dwordx3 v[8:10], v20, s[{sRec}:{sRec+3}], 0 offen", "s_waitcnt vmcnt(0)")
    a(mkoff(2), [gather(0, q) for q in range(4)])
    a("v_and_b32 v20, 0xffff, v10", f"v_lshl_add_u32 v{vOff}, v20, 5, v{vHalf}", f"v_add_u32 v{vOff}, s50, v{vOff}", [gather(2, q) for q in range(4)])
    a(f"v_lshlrev_b32 v{vA}, 6, v20", f"v_lshrrev_b32 v21, 1, v{vHalf}", f"v_add_u32 v{vA}, v21, v{vA}", f"v_add_u32 v{vA}, {L_TAB}, v{vA}")
    a("s_waitcnt vmcnt(0)")
    for b in range(4):
        a(q_mfmas(b))
        a(mf8(Q + 16*b, ar(WC(b), 2), "v[8:9]", vr(Q + 16*b, 16)))
        for q in range(4): a(mf16(Q + 16*b, ar(WA(b, q), 4), ar(RING[0] + 4*q, 4), vr(Q + 16*b, 16)))
    a(mf8(D, ar(B2F, 2), vr(SEL, 2), "0"), mf8(D + 16, ar(B2F, 2), vr(SEL + 2, 2), "0"), "s_nop 7", "s_nop 7")
    for i in range(64): a(f"v_exp_f32 v{NUM+i}, v{Q+i}")
    for i in range(64): a(f"v_add_f32 v{NUM+i}, 1.0, v{NUM+i}")
    for i in range(64): a(f"v_rcp_f32 v{NUM+i}, v{NUM+i}")
    for i in range(64): a(f"v_mul_f32 v{NUM+i}, v{NUM+i}, v{Q+i}")
    for i in range(32): a(f"v_cvt_pk_bf16_f32 v{DEN+i}, v{NUM+2*i}, v{NUM+2*i+1}")
    a("s_nop 1")
    for b in range(4):
        for m in range(2):
            for ob in range(2): a(mf16(D + 16*ob, ar(W2(b, m, ob), 4), vr(DEN + 8*b + 4*m, 4), vr(D + 16*ob, 16)))
    a("s_nop 7", "s_nop 7", f"s_mov_b64 exec, s[{sValid}:{sValid+1}]")
    for ob in range(2):
        for i in range(16): a(f"ds_add_f32 v{vA}, v{D+16*ob+i} offset:{4*(2*(8*(i>>2)+(i&3))+ob)}")
    a("s_mov_b64 exec, -1", "s_waitcnt lgkmcnt(0)", f"s_add_u32 s49, s49, {32*12}", "s_branch KS_GRP")
    a("KS_NEXT:", "s_add_u32 s46, s46, 1", "s_cmp_lt_u32 s46, 64", "s_cbranch_scc1 KS_SEG")
    a("s_waitcnt lgkmcnt(0)", "s_barrier")
    a(f"v_lshlrev_b32 v20, 5, v{tid}", f"v_add_u32 v20, {L_TAB}, v20", f"v_lshlrev_b32 v21, 4, v{tid}", "v_add_u32 v21, s50, v21")
    for i in range(7):
        if i == 6: a(f"v_cmp_gt_u32 vcc, {NB*8-1536}, v{tid}", "s_and_saveexec_b64 s[46:47], vcc", "s_cbranch_execz KS_END")
        a(f"ds_read_b128 v[24:27], v20 offset:{8192*i}", f"ds_read_b128 v[28:31], v20 offset:{8192*i+16}", "s_waitcnt lgkmcnt(0)")
        for j in range(4): a(f"v_cvt_pk_bf16_f32 v{32+j}, v{24+2*j}, v{25+2*j}")
        a(f"buffer_store_dwordx4 v[32:35], v21, s[{sOut}:{sOut+3}], 0 offen", "s_nop 1", "v_add_u32 v21, 4096, v21")
    a("KS_END:", "s_endpgm")

def kd(name, vgpr, accum, sgpr=102):
    return f""".amdhsa_kernel {name}
  .amdhsa_next_free_vgpr {vgpr}
  .amdhsa_next_free_sgpr {sgpr}
  .amdhsa_accum_offset {accum}
  .amdhsa_group_segment_fixed_size 0
  .amdhsa_kernarg_size 88
  .amdhsa_user_sgpr_count 2
  .amdhsa_user_sgpr_kernarg_segment_ptr 1
  .amdhsa_system_sgpr_workgroup_id_x 1
  .amdhsa_float_denorm_mode_32 3
.end_amdhsa_kernel
"""

def generate(**opt):
    OPT.update(opt)
    ref = open("standalone__edge_featured_mpnn_mpnn__graph.s.ref").read().split("\n")
    head = [x for x in ref if x.startswith(";") and "@launch" not in x and not x.startswith("; Override") and not x.startswith("; grid=")]
    head += [f"; @launch kernel=k1_kernel grid=(256,1,1) block=(448,1,1) lds={K1_LDS}",
             f"; @launch kernel=k2_kernel grid=(256,1,1) block=(256,1,1) lds={K2_LDS}"]
    a = Asm()
    a('.amdgcn_target "amdgcn-amd-amdhsa--gfx950"', ".text", ".globl k1_kernel", ".type k1_kernel,@function", ".globl k2_kernel", ".type k2_kernel,@function")
    gen_k1(a); gen_k2(a)
    return "\n".join(head) + "\n" + a.text() + '.section .rodata,"a"\n.p2align 6\n' + kd("k1_kernel", 72, 72, 56) + ".p2align 6\n" + kd("k2_kernel", 512, 256)

if __name__ == "__main__":
    out = sys.argv[1] if len(sys.argv) > 1 else "standalone__edge_featured_mpnn_mpnn__graph.s"
    opt = {}
    for x in sys.argv[2:]:
        k, v = x.split("="); opt[k] = int(v) if v.lstrip("-").isdigit() else v.replace("+", " ")
    open(out, "w").write(generate(**opt))
```

```python
import sys
sys.path.insert(0,'code')
import gen
def diag(s, kern, idx, red):
    i=s.index(".amdgcn_target"); s=s[:i]+"; @launch kernel=k3_kernel grid=(1,1,1) block=(1024,1,1) lds=64\n"+s[i:]
    if kern==2: ld=f"v_min_u32 v1, 1019, v0\n v_lshlrev_b32 v1, 8, v1\n buffer_load_dword v3, v1, s[8:11], 0 offen offset:{4*(16+idx)}"
    elif kern==1: ld=f"v_mov_b32 v1, v2\n buffer_load_dword v3, v1, s[8:11], s12 offen offset:{4*(16+idx)}"
    else: ld=f"v_mov_b32 v1, v2\n buffer_load_dword v3, v1, s[8:11], s12 offen offset:64"
    if kern==0: red='min'
    op={'max':'ds_max_u32','min':'ds_min_u32','avg':'ds_add_u32'}[red]
    init={'max':'0','min':'-1','avg':'0'}[red]
    k=f"""
.p2align 8
k3_kernel:
 s_cmp_lg_u32 s2, 0
 s_cbranch_scc1 K3_END
 s_load_dwordx2 s[4:5], s[0:1], 80
 v_mov_b32 v5, 0
 v_mov_b32 v6, -1
 v_mov_b32 v7, {init}
 ds_write_b32 v5, v6
 ds_write_b32 v5, v7 offset:4
 s_waitcnt lgkmcnt(0)
 s_add_u32 s8, s4, {gen.STAMP_OFF}
 s_addc_u32 s9, s5, 0
 s_mov_b32 s10, 0x300000
 s_mov_b32 s11, 0x00020000
 s_mov_b32 s12, 0x100000
 v_lshrrev_b32 v2, 2, v0
 v_min_u32 v2, 249, v2
 v_lshlrev_b32 v2, 12, v2
 v_and_b32 v8, 3, v0
 v_mul_u32_u24 v8, 512, v8
 v_add_u32 v2, v2, v8
 buffer_load_dword v4, v2, s[8:11], s12 offen offset:64
 {ld}
 s_barrier
 s_waitcnt vmcnt(0)
 ds_min_u32 v5, v4
 s_waitcnt lgkmcnt(0)
 s_barrier
 ds_read_b32 v4, v5
 s_waitcnt lgkmcnt(0)
 v_sub_u32 v3, v3, v4
 {op} v5, v3 offset:4
 s_waitcnt lgkmcnt(0)
 s_barrier
 ds_read_b32 v3, v5 offset:4
 s_waitcnt lgkmcnt(0)
 {'v_lshrrev_b32 v3, 10, v3' if red=='avg' else 's_nop 0'}
 v_min_u32 v3, 5000, v3
 v_mul_u32_u24 v3, 10, v3
 v_add_u32 v3, 10000, v3
 s_nop 1
 v_readfirstlane_b32 s14, v3
 v_readfirstlane_b32 s15, v4
 s_mov_b32 s20, 400000
K3_L:
 s_memrealtime s[16:17]
 s_waitcnt lgkmcnt(0)
 s_sub_u32 s16, s16, s15
 s_sub_u32 s20, s20, 1
 s_cbranch_scc1 K3_END
 s_cmp_lt_u32 s16, s14
 s_cbranch_scc1 K3_L
K3_END:
 s_endpgm
"""
    i=s.index('.section .rodata')
    return s[:i]+k+s[i:]+".p2align 6\n"+gen.kd("k3_kernel",16,16,32)
if __name__=="__main__":
    opts={}
    specs=[]
    for x in sys.argv[1:]:
        if "=" in x: k,v=x.split("="); opts[k]=int(v) if v.isdigit() else v.replace("+"," ")
        else: specs.append(x)
    base=dict(gen.OPT)
    for n,sp in enumerate(specs):
        kern,idx,red,*ex=sp.split(",")
        gen.OPT.clear(); gen.OPT.update(base); o=dict(opts)
        for x in ex: k,v=x.split(":"); o[k]=int(v) if v.isdigit() else v.replace("+"," ")
        s=gen.generate(stamps=1,**o)
        open(f"d{n}.s","w").write(diag(s,int(kern),int(idx),red))
```

```python
import re, sys, struct, math

N, E = 50000, 800000
NB = 196
CH = 3200
NCH = 250
CAP = 47
REC_BYTES = E * 12
FRAG_OFF = REC_BYTES
NFRAG = 51
FRAG_BYTES = NFRAG * 1024
EPO_REL = 52 * 1024
TAB_REL = 53 * 1024
AUX_BYTES = TAB_REL + 256 * 2048
KNAME = "standalone__edge_featured_mpnn_mpnn__graph_kernel"
STAMP_OFF = 16 << 20
X_BYTES = N * 128

def f32(x): return "0x%08x" % struct.unpack("<I", struct.pack("<f", x))[0]
NLOG2E = f32(-math.log2(math.e))
NLN2 = f32(-math.log(2.0))

OPT = dict(stamps=False, force_slow=False, k1st="sc1", outst="sc1")

class Asm:
    def __init__(self): self.l = []
    def __call__(self, *xs):
        for x in xs:
            if isinstance(x, (list, tuple)): self(*x)
            else:
                for y in x.split("\n"):
                    y = y.strip()
                    if y: self.l.append(y)
    def text(self):
        return "\n".join((x if (x.endswith(":") or x.startswith(".")) else "    " + x) for x in self.l) + "\n"

def vr(b, n): return f"v[{b}:{b+n-1}]"
def ar(b, n): return f"a[{b}:{b+n-1}]"

def srd(a, s, lo, hi, nrec):
    a(f"s_mov_b32 s{s}, s{lo}", f"s_mov_b32 s{s+1}, s{hi}", f"s_mov_b32 s{s+2}, {nrec}", f"s_mov_b32 s{s+3}, 0x00020000")

def wave_scan(a, v):
    for sh in (1, 2, 4, 8):
        a("s_nop 1", f"v_add_u32_dpp v{v}, v{v}, v{v} row_shr:{sh} row_mask:0xf bank_mask:0xf")
    a("s_nop 1", f"v_add_u32_dpp v{v}, v{v}, v{v} row_bcast:15 row_mask:0xa bank_mask:0xf")
    a("s_nop 1", f"v_add_u32_dpp v{v}, v{v}, v{v} row_bcast:31 row_mask:0xc bank_mask:0xf")

def isize(x):
    if x.endswith(":") or x.startswith("."): return 0
    op = x.split()[0]
    rest = x[len(op):]
    def lit():
        for tok in re.split(r"[,\s]+", rest):
            if re.fullmatch(r"-?(0x[0-9a-fA-F]+|\d+)", tok):
                v = int(tok, 0)
                if not (-16 <= v <= 64): return True
        return False
    if op in ("s_waitcnt", "s_nop", "s_barrier", "s_branch", "s_endpgm", "s_setprio") or op.startswith("s_cbranch"): return 4
    if op.startswith(("s_load", "s_memtime", "s_memrealtime")): return 8
    if op.startswith("s_"): return 8 if lit() else 4
    if op.startswith(("buffer_", "ds_", "global_", "v_mfma", "v_pk_", "v_accvgpr_read", "v_accvgpr_write")): return 8
    if op.endswith("_e64") or op.endswith("_dpp") or op.endswith("_sdwa"): return 8
    vop3 = ("v_mad_", "v_fma_", "v_max3", "v_min3", "v_cvt_pk_bf16", "v_lshl_add", "v_lshl_or", "v_bfe", "v_add3", "v_and_or",
            "v_readlane", "v_writelane", "v_maximum3", "v_mul_lo", "v_mul_hi", "v_add_lshl", "v_perm_b32", "v_or3")
    if op.startswith(vop3): return 8
    if op.startswith("v_cmp"):
        if not rest.strip().startswith("vcc"): return 8
        return 8 if lit() else 4
    if op == "v_cndmask_b32" and not rest.strip().endswith("vcc"): return 8
    return 8 if lit() else 4

PROMOTE = ("v_exp_f32 ", "v_rcp_f32 ", "v_mul_f32 ", "v_mov_b32 ", "v_lshrrev_b32 ", "v_add_u32 ", "v_lshlrev_b32 ")
def align8(lines):
    o = sum([x.split("\n") for x in lines], []); pos = 0; last = None
    for i, x in enumerate(o):
        s = isize(x)
        if x.startswith("v_pk_") and pos % 8 == 4:
            assert last is not None, "cannot align " + x
            op = o[last].split()[0]; o[last] = o[last].replace(op, op + "_e64", 1); pos += 4; last = None
        if x.startswith(PROMOTE) and s == 4: last = i
        elif x.startswith("v_pk_"): last = None
        pos += s
    return o, pos

L_CNT, L_HIST, L_FLAG, L_RANK, L_OUTO, L_XR = 0, 1024, 1280, 1536, 2560, 3584
L_TAB = L_XR + NB * 128
P1_CNT, P1_BASE, P1_STG = L_TAB, L_TAB + 1024, L_TAB + 2048
L_WS = P1_STG + CH * 12
ESZ = 12
K2_LDS = L_TAB + NB * CAP * ESZ

Q, NUM, DEN, D, EE = 16, 80, 144, 208, 240
ENT = (0, 4, 8)
vOff, vLds, vHalf, vPad, vLane, vT0, vT1 = 3, 7, 11, 12, 13, 14, 15
RING = (204, 220, 236)
aInfo, aNextL, aNextI, aStamp = 252, 253, 254, 255
def WA(b, q): return 4 * (4 * b + q)
def WC(b): return 64 + 2 * b
B1F, B2F = 72, 74
def WB(b, q): return 76 + 4 * (4 * b + q)
def W2(b, m, ob): return 140 + 4 * (4 * b + 2 * m + ob)
sX, sOut, sRec, sAux = 4, 8, 12, 16
sWave, sBucket, s128, sC, sStage, sTile, sL, sTmp, sTmp2, sP2B = 20, 21, 22, 23, 24, 25, 26, 27, 28, 29
sValid, sBad, sSave, sP2A = 30, 34, 36, 38
sMask0 = 52
TILE_A = [(0, 0, 30), (1, 0, 76), (3, 1, 106), (1, 4, 132)]
TILE_B = [(16, 166, 0), (14, 62, 192), (11, 19, 182), (14, 5, 162)]
def _check_map():
    seen = []
    for P, rp, rs in TILE_A + TILE_B: seen += list(range(rp, rp + P)) + list(range(rs, rs + 32 - 2*P))
    assert sorted(seen) == list(range(NB))
_check_map()

def pkfma(d, x, y, z): return f"v_pk_fma_f32 {vr(d,2)}, {vr(x,2)}, {vr(y,2)}, {vr(z,2)}"
def pkmul(d, x, y): return f"v_pk_mul_f32 {vr(d,2)}, {vr(x,2)}, {vr(y,2)}"
def mf16(d, A, B, c): return f"v_mfma_f32_32x32x16_bf16 {vr(d,16)}, {A}, {B}, {c}"
def mf8(d, A, B, c): return f"v_mfma_f32_32x32x8_bf16 {vr(d,16)}, {A}, {B}, {c}"

def edge_mfmas(b, dst, u):
    o = [mf8(dst, ar(WC(b), 2), vr(ENT[u], 2), vr(Q + 16*b, 16))]
    for q in range(4): o.append(mf16(dst, ar(WA(b, q), 4), ar(RING[u] + 4*q, 4), vr(dst, 16)))
    return o
def gather(u, q): return f"buffer_load_dwordx4 {ar(RING[u]+4*q,4)}, v{vOff}, s[{sX}:{sX+3}], 0 offen offset:{16*q}"
def mkoff(u): return f"v_mad_u32_u16 v{vOff}, v{ENT[u]+2}, s{s128}, v{vHalf} op_sel:[1,0,0,0]"
def entry(u, off): return f"ds_read_b96 {vr(ENT[u],3)}, v{vLds} offset:{off}"

def interleave(v, m, gap=3, start=0):
    o = []; k = 0
    for i, x in enumerate(v):
        if k < len(m) and i == start + k * gap: o.append(m[k]); k += 1
        o.append(x)
    return o + m[k:]

def icost(x):
    if x.startswith(("v_exp", "v_rcp", "v_mfma_f32_32x32x16")): return 8
    if x.startswith(("buffer_", "ds_")): return 10
    return 4
def weave(fill, mf):
    o = []; k = 0; since = 99
    for i, x in enumerate(fill):
        if k < len(mf) and since >= 32 and i >= mf[k][1]:
            o.append(mf[k][0]); since = icost(mf[k][0]); k += 1
        o.append(x); since += icost(x)
    return o + [m for m, _ in mf[k:]]

def step(u, first, vm=3):
    o = []
    nx, pre = (u + 1) % 3, (u + 2) % 3
    for b in range(4):
        n, dn = NUM + 16*b, DEN + 16*b
        t = n if first else D + 16*(b & 1)
        e = dn if first else EE
        ex = [f"v_exp_f32 v{e+i}, v{t+i}" for i in range(16)]
        if b < 3: m = edge_mfmas(b + 1, NUM + 16*(b+1) if first else D + 16*((b+1) & 1), u)
        else: m = edge_mfmas(0, D, nx)
        A = interleave(ex, m)
        mid, end = [gather(pre, b)], []
        if b == 0 and not first: end = [f"v_cmpx_gt_i32 vcc, s{sC}, v{vPad}"]
        if b == 1:
            if not first: end = [f"s_sub_u32 s{sC}, s{sC}, 1"]
        if b == 2:
            if OPT.get("onewait"): A = A[:6] + [entry(u, 36 + ESZ*u)] + A[6:]
            else: end = [entry(u, 36 + ESZ*u)]
        if b == 3:
            mid = [f"s_waitcnt vmcnt({vm}) lgkmcnt(0)"] + mid if OPT.get("onewait") else [f"s_waitcnt vmcnt({vm})"] + mid
            end = ([] if OPT.get("onewait") else ["s_waitcnt lgkmcnt(0)"]) + [mkoff(u)]
            if u == 2: end += [f"v_add_u32 v{vLds}, 36, v{vLds}"]
            if OPT.get("steps"): end += [f"v_writelane_b32 v{vT0}, s100, m0", "s_mov_b32 s99, m0", "s_addk_i32 s99, 1" if first else "s_cselect_b32 s98, 1, 0\ns_addk_i32 s99, 1\ns_cmp_lg_u32 s98, 0", "s_mov_b32 m0, s99"]
        if b == 2 and OPT.get("steps"): end = end + ["s_memtime s[100:101]"]
        if first:
            p = [f"v_pk_add_f32 {vr(dn+i,2)}, {vr(dn+i,2)}, 1.0 op_sel_hi:[1,0]" for i in range(0, 16, 2)]
        else:
            p = [pkfma(n+i, n+i, EE+i, n+i) for i in range(0, 16, 2)]
            p += [pkfma(n+i, t+i, dn+i, n+i) for i in range(0, 16, 2)]
            p += [pkfma(dn+i, dn+i, EE+i, dn+i) for i in range(0, 16, 2)]
        if not first and OPT.get("pkord", 0):
            pa, pb, pc = p[:8], p[8:16], p[16:]
            if OPT["pkord"] == 1: p = sum([[pa[i], pb[i], pc[i]] for i in range(8)], [])
            if OPT["pkord"] == 2:
                p = [pa[0]]
                for i in range(8): p += ([pa[i+1]] if i < 7 else []) + [pb[i], pc[i]]
            if OPT["pkord"] == 3:
                p = [pkfma(n+i, EE+i, n+i, n+i) for i in range(0, 16, 2)] + [pkfma(n+i, dn+i, t+i, n+i) for i in range(0, 16, 2)] + [pkfma(dn+i, EE+i, dn+i, dn+i) for i in range(0, 16, 2)]
        blk = A[:2] + mid + A[2:] + end + p
        x = OPT.get("exp", 0)
        if not first:
            if x & 1: blk = [("s_nop 1" if i.startswith("v_mfma") else i) for i in blk]
            if x & 2: blk = [("s_nop 0" if i.startswith("v_pk") else i) for i in blk]
            if x & 4: blk = [("s_nop 1" if (i.startswith("v_exp") and not i.endswith(f"v{t+15}")) else i) for i in blk]
            if x & 8: blk = [("s_nop 1" if i.startswith("buffer_load") else i) for i in blk]
            if x & 16: blk = [("s_nop 0" if i.startswith("v_mfma_f32_32x32x8") else i) for i in blk]
        o += blk
    return o

SEL = EE + 4
def selectors():
    return [f"v_mov_b32 v{SEL}, 0x3f80", f"v_mov_b32 v{SEL+1}, 0", f"v_mov_b32 v{SEL+2}, 1.0", f"v_mov_b32 v{SEL+3}, 0",
            f"v_mov_b32 v{SEL+4}, 0", f"v_mov_b32 v{SEL+5}, 0x3f80", f"v_mov_b32 v{SEL+6}, 0", f"v_mov_b32 v{SEL+7}, 1.0"]
def q_mfmas(b):
    o = [mf8(Q + 16*b, ar(B1F, 2), vr(SEL + 2*b, 2), "0")]
    for q in range(4): o.append(mf16(Q + 16*b, ar(WB(b, q), 4), ar(RING[2] + 4*q, 4), vr(Q + 16*b, 16)))
    return o
def hdr_reads(vinfo, tmp):
    o = [f"v_and_b32 v{tmp[0]}, 0xffff, v{vinfo}", f"ds_read_b128 {ar(RING[2],4)}, v{tmp[0]} offset:{L_XR}"]
    for q in range(1, 4): o += [f"v_xor_b32 v{tmp[q]}, {16*q}, v{tmp[0]}", f"ds_read_b128 {ar(RING[2]+4*q,4)}, v{tmp[q]} offset:{L_XR}"]
    return o
def tile_scalars(vinfo, sp2):
    return [f"v_lshrrev_b32 v{vPad}, 16, v{vinfo}", f"s_mov_b32 s{sStage}, 0",
            f"v_readlane_b32 s{sL}, v{vPad}, 0", f"v_readlane_b32 s{sTmp}, v{vPad}, s{sp2}", f"v_cmp_lt_u32 s[{sValid}:{sValid+1}], 0, v{vPad}",
            f"s_max_u32 s{sL}, s{sL}, s{sTmp}", f"s_max_u32 s{sL}, s{sL}, 4", f"s_sub_u32 s{sC}, s{sL}, 4", f"s_sub_u32 s{sL}, s{sL}, 3",
            f"v_sub_u32 v{vPad}, s{sL}, v{vPad}"]

def epilogue(a, nxt):
    lab = "T" if nxt else "F"
    CHK, AD, P = EE + 12, NUM + 16, NUM + 32
    so = OPT.get("outst", "")
    a("s_mov_b64 exec, -1", f"s_cmp_lg_u64 s[{sValid}:{sValid+1}], -1", f"s_cbranch_scc1 K2_{lab}FIX", ".p2align 3", f"K2_{lab}GO:")
    o = [f"v_accvgpr_read_b32 v{EE+2}, a{aInfo}"]
    if nxt:
        o += [f"v_accvgpr_read_b32 v{vT0}, a{aNextI}", f"v_accvgpr_read_b32 v{vLds}, a{aNextL}", "s_waitcnt vmcnt(0) lgkmcnt(0)"]
        o += hdr_reads(vT0, [vT1, vOff, EE+14, EE+15]) + [entry(0, 0), entry(1, ESZ), entry(2, 2*ESZ), f"s_mov_b32 s{sX+2}, {X_BYTES}"]
    o += [f"v_lshrrev_b32 v{EE+2}, 16, v{EE+2}", f"v_cvt_f32_u32 v{EE+2}, v{EE+2}", f"v_mov_b32 v{EE+1}, 0", f"v_mov_b32 v{EE+3}, 0", f"v_lshrrev_b32 v{EE}, 16, v{EE+2}"]
    def chk(b):
        dn = DEN + 16*b
        return [(pkmul(CHK, dn, dn + 8) if (b == 0 and i == 0) else pkfma(CHK, dn+i, dn+8+i, CHK)) for i in range(0, 8, 2)]
    def cvt(b): return [f"v_cvt_pk_bf16_f32 v{DEN+16*b+i//2}, v{NUM+16*b+i}, v{NUM+16*b+i+1}" for i in range(0, 16, 2)]
    def w2(b): return [mf16(D + 16*ob, vr(DEN + 16*b + 4*m, 4), ar(W2(b, m, ob), 4), vr(D + 16*ob, 16)) for m in range(2) for ob in range(2)]
    o += chk(0)
    oread = [f"v_lshrrev_b32 v{vT1}, 2, v{vHalf}", f"v_add_u32 v{vT1}, s{sTile}, v{vT1}"] + \
            [f"ds_read_b128 {vr(AD+4*g,4)}, v{vT1} offset:{L_OUTO+32*g}" for g in range(4)] + \
            [f"v_and_b32 v{vT1}, 31, v{vLane}", f"v_lshlrev_b32 v{vT1}, 2, v{vT1}"]
    oadd = [f"v_add_u32 v{AD+i}, v{AD+i}, v{vT1}" for i in range(16)]
    for b in range(4):
        n, dn = NUM + 16*b, DEN + 16*b
        rc = [f"v_rcp_f32 v{dn+i}, v{dn+i}" for i in range(16)]
        pre = cvt(b - 1) if b else []
        if b == 0: mf = [(mf8(D, vr(EE, 2), ar(B2F, 2), "0"), 0), (mf8(D + 16, vr(EE + 2, 2), ar(B2F, 2), "0"), 0)]
        else: mf = [(x, 10) for x in w2(b - 1)]
        if nxt:
            if b == 0:
                fill = selectors() + rc[:5] + ["s_waitcnt lgkmcnt(2)", mkoff(0), gather(0, 0)] + rc[5:10] + [gather(0, 1)] + rc[10:] + [f"v_accvgpr_write_b32 a{aInfo}, v{vT0}"]
                qm = q_mfmas(0); mf = mf + [(qm[0], 10)] + [(x, 14) for x in qm[1:]]
            else:
                ex = {1: [gather(0, 2), gather(0, 3), "s_waitcnt lgkmcnt(0)", mkoff(1), gather(1, 0)],
                      2: [gather(1, 1), gather(1, 2)] + oread,
                      3: [gather(1, 3), "s_waitcnt lgkmcnt(0)"] + oadd[:8]}[b]
                k = max(1, 16 // len(ex))
                fill = pre + interleave(rc, ex, k, 1)
                mf = [(x, 0) for x in q_mfmas(b)] + mf
        else:
            ex = {0: [], 1: [], 2: oread, 3: []}[b]
            fill = pre + rc + ex
        o += weave(fill, mf)
        mu = [pkmul(n+i, n+i, dn+i) for i in range(0, 16, 2)]
        o += interleave(mu, chk(b + 1), 2, 1) if b < 3 else mu
    wm = w2(3)
    lim = [f"v_lshrrev_b32 v{EE}, 4, v{vHalf}", f"v_sub_u32 v{EE}, s{sP2A if nxt else sP2B}, v{EE}", f"v_add_f32 v{CHK}, v{CHK}, v{CHK+1}"]
    c3 = cvt(3)
    if nxt:
        fm = edge_mfmas(0, NUM, 0)
        o += [fm[0]] + c3[:6] + [wm[0]] + c3[6:] + oadd[8:12] + [wm[1]] + oadd[12:] + lim[:2] + [wm[2]] + lim[2:] + tile_scalars(vT0, sP2B)[:5] + [wm[3]]
        o += tile_scalars(vT0, sP2B)[5:] + ["s_waitcnt vmcnt(4)", fm[1], f"s_add_u32 s{sTile}, s{sTile}, 128", mkoff(2), "s_nop 3"]
        rest = [(x, 0) for x in fm[2:]]
    else:
        o += c3[:6] + [wm[0]] + c3[6:] + ["s_waitcnt lgkmcnt(0)"] + oadd[:3] + [wm[1]] + oadd[3:9] + [wm[2]] + oadd[9:15] + [wm[3]] + oadd[15:] + lim + ["s_nop 7"]
        rest = []
    fill = [f"v_maximum3_f32 v{CHK}, v{CHK}, |v{D+i}|, |v{D+i+1}|" for i in range(0, 16, 2)]
    fill += [f"v_cmp_ngt_f32 vcc, {f32(2.0**120)}, v{CHK}", f"s_or_b64 s[{sBad}:{sBad+1}], s[{sBad}:{sBad+1}], vcc"]
    o += weave(fill, rest[:2]); rest = rest[2:]
    for j in range(2 if nxt else 8):
        i = 2*j
        o += [f"v_cmpx_lt_i32 vcc, {8*(i>>2) + (i&3)}, v{EE}", f"v_add_f32 v{D+i}, v{D+i}, v{D+i+1}", f"v_add_f32 v{D+16+i}, v{D+16+i}, v{D+17+i}"]
    o += ["s_mov_b64 exec, -1"]
    fill = []
    for i in range(16):
        fill += [f"v_cvt_pk_bf16_f32 v{P+i}, v{D+i}, v{D+16+i}"]
        if i: fill += [f"buffer_store_dword v{P+i-1}, v{AD+i-1}, s[{sOut}:{sOut+3}], 0 offen {so}"]
    fill += [f"buffer_store_dword v{P+15}, v{AD+15}, s[{sOut}:{sOut+3}], 0 offen {so}"]
    o += weave(fill, [(x, 2) for x, _ in rest])
    o, n = align8(o)
    a(o)
    return n

def fixup(a, lab):
    a(f"K2_{lab}FIX:", f"s_andn2_b64 exec, -1, s[{sValid}:{sValid+1}]")
    for i in range(64): a(f"v_mov_b32 v{NUM+i}, 0", f"v_mov_b32 v{DEN+i}, 1.0")
    a("s_mov_b64 exec, -1", f"s_branch K2_{lab}GO")

def st2(a, idx):
    if OPT["stamps"]:
        a("s_memtime s[100:101]", "s_memrealtime s[50:51]", "s_mov_b64 s[48:49], exec", "s_mov_b64 exec, -1", f"v_accvgpr_read_b32 v{vT1}, a{aStamp}", "s_waitcnt lgkmcnt(0)", "s_nop 0",
          f"v_writelane_b32 v{vT1}, s100, {idx}", f"v_writelane_b32 v{vT1}, s50, {idx+16}", f"v_writelane_b32 v{vT1}, s{sL}, {idx+32}", "s_nop 0", f"v_accvgpr_write_b32 a{aStamp}, v{vT1}", "s_mov_b64 exec, s[48:49]")

def gen_build(a, lab, g, store):
    R1, R2, R3, T = 64, 72, 80, 96
    srd(a, 56, 72, 73, 132*128*2); srd(a, 60, 74, 75, 256); srd(a, 64, 76, 77, 128*64*2); srd(a, 68, 78, 79, 128)
    a(f"v_and_b32 v{T}, 31, v{vLane}", f"v_lshrrev_b32 v{T+1}, 5, v{vLane}",
      f"v_lshlrev_b32 v{T+2}, 13, v{T+1}", f"v_lshl_add_u32 v{T+2}, v{T}, 1, v{T+2}",
      f"v_lshlrev_b32 v{T+3}, 9, v{T+1}", f"v_lshl_add_u32 v{T+3}, v{T}, 2, v{T+3}",
      f"v_lshlrev_b32 v{T+4}, 1, v{T}", f"v_lshlrev_b32 v{T+5}, 2, v{T}", f"v_cmp_eq_u32 s[88:89], 1, v{T+1}")
    def w1(f, R, dst):
        a(f"s_and_b32 s84, s{f}, 3", "s_lshl_b32 s84, s84, 11", f"s_bfe_u32 s85, s{f}, 0x20002", "s_lshl_b32 s85, s85, 6", "s_add_u32 s84, s84, s85",
          f"s_lshr_b32 s85, s{f}, 4", f"s_mul_i32 s{dst}, s85, 3", "s_lshl_b32 s85, s85, 14", "s_add_u32 s84, s84, s85", f"s_add_u32 s{dst}, s{dst}, s{f}", f"s_lshl_b32 s{dst}, s{dst}, 10")
        for j in range(8): a(f"buffer_load_ushort v{R+j}, v{T+2}, s[56:59], s84 offen offset:{256*j}")
    w1(g, R1, 90)
    a(f"s_cmp_ge_u32 s{g}, 8", f"s_cbranch_scc1 {lab}_W2")
    a(f"s_add_u32 s86, s{g}, 24"); w1(86, R2, 91)
    a(f"s_mov_b32 s87, {NLOG2E}", f"s_branch {lab}_M")
    a(f"{lab}_W2:", f"s_sub_u32 s85, s{g}, 8", "s_add_u32 s91, s85, 35", "s_lshl_b32 s91, s91, 10",
      "s_lshr_b32 s84, s85, 1", "s_lshl_b32 s84, s84, 11", "s_and_b32 s85, s85, 1", "s_lshl_b32 s85, s85, 1", "s_add_u32 s84, s84, s85")
    for j in range(8): a(f"buffer_load_ushort v{R2+j}, v{T+3}, s[64:67], s84 offen offset:{128*(8*(j>>2)+(j&3))}")
    a(f"s_mov_b32 s87, {NLN2}")
    a(f"{lab}_M:", f"s_mov_b32 s86, {NLOG2E}", f"s_cmp_lt_u32 s{g}, 21", f"s_cbranch_scc1 {lab}_C")
    a(f"s_sub_u32 s92, s{g}, 5", "s_lshl_b32 s92, s92, 10", f"s_cmp_eq_u32 s{g}, 23", f"s_cbranch_scc1 {lab}_B")
    a(f"s_sub_u32 s84, s{g}, 21", "s_lshl_b32 s84, s84, 7", f"s_add_u32 s84, s84, {128*256}")
    for j in range(8): a(f"buffer_load_ushort v{R3+j}, v{T+4}, s[56:59], s84 offen offset:{256*(j&3)+64*(j>>2)}")
    a(f"s_branch {lab}_H")
    a(f"{lab}_B:")
    for j in range(4): a(f"buffer_load_ushort v{R3+j}, v{T+4}, s[60:63], 0 offen offset:{64*j}")
    a(f"buffer_load_dword v{T+6}, v{T+5}, s[68:71], 0 offen")
    for j in range(4, 8): a(f"v_mov_b32 v{R3+j}, 0")
    a(f"{lab}_H:", "s_waitcnt vmcnt(0)")
    for j in range(8): a(f"v_lshlrev_b32 v{R3+j}, 16, v{R3+j}", f"v_mul_f32 v{R3+j}, s86, v{R3+j}")
    for j in range(4):
        a(f"v_cvt_pk_bf16_f32 v{R3+8+j}, v{R3+2*j}, v{R3+1+2*j}",
          f"v_lshlrev_b32 v{T+8}, 16, v{R3+8+j}", f"v_and_b32 v{T+9}, 0xffff0000, v{R3+8+j}",
          f"v_sub_f32 v{T+8}, v{R3+2*j}, v{T+8}", f"v_sub_f32 v{T+9}, v{R3+1+2*j}, v{T+9}",
          f"v_cvt_pk_bf16_f32 v{T+8}, v{T+8}, v{T+9}", f"v_cndmask_b32 v{R3+8+j}, v{R3+8+j}, v{T+8}, s[88:89]")
    a(f"s_cmp_eq_u32 s{g}, 23", f"s_cbranch_scc0 {lab}_S")
    a(f"v_cndmask_b32 v{R3+10}, v{T+6}, 0, s[88:89]")
    a(f"{lab}_S:"); store(R3 + 8, 92)
    a(f"{lab}_C:", "s_waitcnt vmcnt(0)")
    for R, sc_, dst, o in ((R1, 86, 90, 108), (R2, 87, 91, 112)):
        for j in range(8): a(f"v_lshlrev_b32 v{R+j}, 16, v{R+j}", f"v_mul_f32 v{R+j}, s{sc_}, v{R+j}")
        for j in range(4): a(f"v_cvt_pk_bf16_f32 v{o+j}, v{R+2*j}, v{R+1+2*j}")
        store(o, dst)

TMO = 600
def gen_k2(a):
    a(".p2align 8", f"{KNAME}:")
    a("s_cmp_ge_u32 s2, 256", "s_cbranch_scc1 K2_END")
    if OPT["stamps"]: a(f"v_accvgpr_write_b32 a{aStamp}, 0")
    st2(a, 0)
    a("s_load_dwordx16 s[72:87], s[0:1], 0", "s_load_dwordx2 s[44:45], s[0:1], 80", "s_load_dwordx2 s[42:43], s[0:1], 64")
    a("s_getpc_b64 s[52:53]", "K2_PC:", "s_mov_b32 s54, K2_SLOW-K2_PC", "s_mov_b32 s55, 0x00020000", "v_lshlrev_b32 v2, 7, v0", "buffer_load_dword v2, v2, s[52:55], 0 offen")
    tid, vInit, vT4, vZ, vL16, vTag, vT16, vPoll, vPB = 16, 17, 18, 20, 25, 22, 19, 24, 35
    vE = 56
    a(f"v_mov_b32 v{tid}, v0", f"v_and_b32 v{vLane}, 63, v0", "v_lshrrev_b32 v1, 6, v0")
    a(f"s_and_b32 s{sBucket}, s2, 7", f"s_lshl_b32 s{sBucket}, s{sBucket}, 5", "s_lshr_b32 s3, s2, 3", f"s_add_u32 s{sBucket}, s{sBucket}, s3")
    a(f"v_readfirstlane_b32 s{sWave}, v1")
    a(f"v_lshlrev_b32 v{vT16}, 4, v{tid}", f"v_lshlrev_b32 v{vL16}, 4, v{vLane}")
    a(f"v_mul_u32_u24 v{vInit}, {CAP*ESZ}, v{tid}", f"v_add_u32 v{vInit}, {L_TAB}, v{vInit}")
    a(f"v_lshlrev_b32 v{vT4}, 2, v{tid}", f"v_mov_b32 v{vZ}, 0", f"v_mov_b32 v{vZ+1}, 0", f"v_lshlrev_b32 v23, 3, v{vLane}")
    a(f"ds_write_b32 v{vT4}, v{vInit} offset:{L_CNT}", f"ds_write_b64 v23, v[{vZ}:{vZ+1}] offset:{L_HIST}", f"ds_write_b32 v{vT4}, v{vZ} offset:{P1_CNT}")
    vJ16, vN16, vJ4, vN4, vStart, vCnt, vTw, vXs = 27, 28, 29, 30, 31, 32, 33, 34
    vT32, vR4, vR8 = 60, 61, 62
    a(f"v_lshlrev_b32 v{vT32}, 5, v{tid}", f"v_and_b32 v36, 31, v{vLane}", f"v_lshl_add_u32 v{vR4}, v1, 5, v36", f"v_lshlrev_b32 v{vR8}, 3, v{vR4}", f"v_lshlrev_b32 v{vR4}, 2, v{vR4}")
    a(f"s_mul_i32 s88, s2, {CH*4}", "s_add_u32 s89, s88, 4096", "s_add_u32 s90, s88, 8192", "s_add_u32 s91, s88, 12288")
    for g in range(4): a(f"s_lshl_b32 s{92+g}, s{88+g}, 1")
    for r_, n_ in ((sAux, AUX_BYTES), (sX, X_BYTES), (sOut, X_BYTES), (sRec, REC_BYTES), (56, E*4), (60, E*4), (64, E*8), (68, CH*12)):
        a(f"s_mov_b32 s{r_+2}, {n_}", f"s_mov_b32 s{r_+3}, 0x00020000")
    a(f"s_mov_b32 s40, {EPO_REL}", f"s_mul_i32 s41, s2, {CH*12}")
    a("s_waitcnt lgkmcnt(0)")
    st2(a, 12)
    DS, SR, BK, RK, AT = 64, 80, 96, 112, 128
    a("s_mov_b64 s[56:57], s[78:79]", f"s_add_u32 s{sAux}, s44, {FRAG_OFF}", f"s_addc_u32 s{sAux+1}, s45, 0")
    a(f"s_mov_b64 s[{sRec}:{sRec+1}], s[44:45]", f"s_mov_b64 s[{sX}:{sX+1}], s[72:73]", f"s_mov_b64 s[{sOut}:{sOut+1}], s[42:43]")
    consts = Asm()
    c = consts
    c(f"s_movk_i32 s{s128}, 128", f"s_mov_b64 s[{sBad}:{sBad+1}], 0", "s_mov_b32 s32, 0")
    c(f"v_and_b32 v{vJ16}, 15, v{vLane}", f"v_mul_u32_u24 v{vJ16}, 12, v{vJ16}", f"v_not_b32 v{vN16}, v{vJ16}")
    c(f"v_and_b32 v{vJ4}, 3, v{vLane}", f"v_mul_u32_u24 v{vJ4}, 12, v{vJ4}", f"v_not_b32 v{vN4}, v{vJ4}")
    c(f"v_lshrrev_b32 v{vHalf}, 5, v{vLane}", f"v_lshlrev_b32 v{vHalf}, 6, v{vHalf}", f"v_mov_b32 v{vTw}, 12")
    c(f"v_lshrrev_b32 v{vXs}, 3, v{vLane}", f"v_lshlrev_b32 v{vXs}, 4, v{vXs}", f"v_xor_b32 v{vXs}, v{vXs}, v{vL16}")
    c(f"v_mul_u32_u24 v{vStart}, {CH*12}, v{tid}")
    c(f"s_lshl_b32 s{sTmp}, s{sBucket}, 3", f"s_add_u32 s{sTmp}, s{sTmp}, {TAB_REL}", f"v_lshlrev_b32 v{vPoll}, 11, v{tid}", f"v_add_u32 v{vPoll}, s{sTmp}, v{vPoll}",
      f"v_min_u32 v{vPB}, 5, v{vLane}", f"v_add_u32 v{vPB}, 250, v{vPB}", f"v_lshlrev_b32 v{vPB}, 11, v{vPB}", f"v_add_u32 v{vPB}, s{sTmp}, v{vPB}")
    ROLE = {"A": 44, "B": 50}
    c(f"s_lshl_b32 s3, s{sWave}, 3", "s_or_b32 s3, s3, 0x80000", "v_lshrrev_b32 v37, 1, v36", "v_and_b32 v38, 1, v36")
    for nm, T, sp in (("A", TILE_A, sP2A), ("B", TILE_B, sP2B)):
        r = ROLE[nm]
        pk = lambda f: hex(sum((f(t) & 255) << (8*w) for w, t in enumerate(T)))
        c(f"s_bfe_u32 s{sp}, {pk(lambda t: 2*t[0])}, s3", f"s_bfe_u32 s46, {pk(lambda t: t[1])}, s3", f"s_bfe_u32 s47, {pk(lambda t: t[2])}, s3", f"s_sub_u32 s47, s47, s{sp}")
        c(f"v_cmp_gt_u32 vcc, s{sp}, v36", f"v_add_u32 v{r}, s47, v36", f"v_add_u32 v39, s46, v37", f"v_cndmask_b32 v{r}, v{r}, v39, vcc", f"v_lshlrev_b32 v{r}, 2, v{r}",
          f"v_cndmask_b32 v{r+2}, 0, 1, vcc", f"v_and_b32 v{r+3}, v{r+2}, v38", f"v_sub_u32 v{r+1}, v{r+2}, v{r+3}", f"v_lshlrev_b32 v{r+4}, 30, v{r+3}", f"v_mul_u32_u24 v{r+3}, 12, v{r+3}")
    c(f"s_mul_i32 s33, s{sWave}, 6144", f"s_mul_i32 s39, s{sBucket}, {NB*128}", "s_add_u32 s39, s39, s33", f"s_mul_i32 s46, s{sWave}, {13*1024}",
      "s_lshl_b32 s47, s2, 11", f"s_add_u32 s47, s47, {TAB_REL}")
    epoch = f"buffer_load_dwordx2 {vr(vTag,2)}, v{vZ}, s[{sAux}:{sAux+3}], s40 offen sc1"
    mktag = [f"v_add_u32 v{vTag}, 1, v{vTag}", f"v_and_b32 v{vTag+1}, 0xff000000, v{vTag+1}"]
    a("s_cmp_ge_u32 s2, 250", "s_cbranch_scc1 K2_BUILD")
    lo, full = ["s_mov_b32 exec_hi, 0"], ["s_mov_b32 exec_hi, -1"]
    vm = []
    for g in range(3): a(f"buffer_load_dwordx4 {vr(DS+4*g,4)}, v{vT16}, s[56:59], s{88+g} offen"); vm.append(("d", g))
    a(lo, f"buffer_load_dword v{DS+12}, v{vR4}, s[56:59], s91 offen", full); vm.append(("d", 3))
    a("s_mov_b64 s[60:61], s[76:77]", "s_mov_b64 s[64:65], s[74:75]", "s_add_u32 s68, s44, s41", "s_addc_u32 s69, s45, 0")
    a("s_barrier")
    def grp(g):
        if g < 3:
            a(f"buffer_load_dwordx4 {vr(SR+4*g,4)}, v{vT16}, s[60:63], s{88+g} offen", f"buffer_load_dwordx4 {vr(AT+8*g,4)}, v{vT32}, s[64:67], s{92+g} offen",
              f"buffer_load_dwordx4 {vr(AT+8*g+4,4)}, v{vT32}, s[64:67], s{92+g} offen offset:16"); vm.extend([0, 0, ("g", g)])
        else:
            a(lo, f"buffer_load_dword v{SR+12}, v{vR4}, s[60:63], s91 offen", f"buffer_load_dwordx2 {vr(AT+24,2)}, v{vR8}, s[64:67], s95 offen", full, epoch); vm.extend([0, ("g", 3), "e"])
    def vmw(x): return f"s_waitcnt vmcnt({len(vm) - 1 - vm.index(x)})"
    G0 = OPT.get("g0", 1)
    for g in range(G0): grp(g)
    a(consts.l, "s_movk_i32 s96, -196", f"s_movk_i32 s97, {P1_STG}")
    for e in range(13):
        if e % 4 == 0: a(vmw(("d", e//4)))
        if e == 0: st2(a, 13)
        if e == 12: a(lo)
        a(f"v_mul_u32_u24 v{BK+e}, 85599, v{DS+e}", f"v_lshrrev_b32 v{BK+e}, 22, v{BK+e}", f"v_and_b32 v{BK+e}, 0x3fc, v{BK+e}",
          f"ds_add_rtn_u32 v{RK+e}, v{BK+e}, v{vTw} offset:{P1_CNT}")
    a(full)
    for g in range(G0, 4): grp(g)
    for e in range(13): a(f"v_lshlrev_b32 v{DS+e}, 2, v{DS+e}", f"v_mad_i32_i24 v{DS+e}, v{BK+e}, s96, v{DS+e}")
    a("s_waitcnt lgkmcnt(0)", "s_barrier")
    a(f"s_cmp_lg_u32 s{sWave}, 0", "s_cbranch_scc1 K2_SC")
    a(f"ds_read_b128 v[4:7], v{vT16} offset:{P1_CNT}", "s_waitcnt lgkmcnt(0)")
    a("v_add_u32 v8, v4, v5", "v_add3_u32 v8, v8, v6, v7", "v_mov_b32 v9, v8")
    wave_scan(a, 9)
    a("v_sub_u32 v40, v9, v8", "v_add_u32 v41, v40, v4", "v_add_u32 v42, v41, v5", "v_add_u32 v43, v42, v6")
    a(f"ds_write_b128 v{vT16}, v[40:43] offset:{P1_BASE}", "s_waitcnt lgkmcnt(0)")
    a("K2_SC:", f"v_lshlrev_b32 v8, 3, v{tid}", "s_barrier")
    st2(a, 14)
    ops = []
    def rd(e): a(f"ds_read_b32 v{BK+e}, v{BK+e} offset:{P1_BASE}"); ops.append(e)
    for e in range(5): rd(e)
    for e in range(13):
        if e % 4 == 0:
            a(vmw(("g", e//4)))
            for k in range(min(4, 13 - e)): a(f"v_lshl_or_b32 v{DS+e+k}, v{SR+e+k}, 16, v{DS+e+k}")
        a(f"s_waitcnt lgkmcnt({len(ops) - 1 - ops.index(e)})", f"v_add3_u32 v{RK+e}, v{RK+e}, v{BK+e}, s97")
        if e == 12: a(lo)
        a(f"ds_write2_b32 v{RK+e}, v{AT+2*e}, v{AT+1+2*e} offset0:0 offset1:1", f"ds_write_b32 v{RK+e}, v{DS+e} offset:8"); ops += [-1, -1]
        if e + 5 < 13: rd(e + 5)
    a(full)
    a(f"ds_read_b64 v[4:5], v8 offset:{P1_CNT}", f"ds_read_b64 v[6:7], v8 offset:{P1_BASE}", f"v_add_u32 v9, {P1_STG}, v{vT16}", "s_waitcnt vmcnt(0)", mktag)
    a("s_waitcnt lgkmcnt(0)", "s_barrier")
    st2(a, 15)
    for i in range(10): a(f"ds_read_b128 {vr(64+4*i,4)}, v9 offset:{4096*i}")
    for k in range(4): a(f"v_mul_u32_u24 v{4+k}, 5462, v{4+k}", f"v_lshrrev_b32 v{4+k}, 16, v{4+k}")
    a(f"v_lshl_or_b32 v40, v4, 12, v6", f"v_lshl_or_b32 v42, v5, 12, v7", f"v_or_b32 v40, v40, v{vTag+1}", f"v_or_b32 v42, v42, v{vTag+1}", f"v_mov_b32 v41, v{vTag}", f"v_mov_b32 v43, v{vTag}")
    for i in range(10):
        if i: a(f"s_mov_b32 s84, {4096*i}")
        a(f"s_waitcnt lgkmcnt({9-i})", f"buffer_store_dwordx4 {vr(64+4*i,4)}, v{vT16}, s[68:71], {'s84' if i else '0'} offen sc1")
    def chk(): return [f"v_xor_b32 v36, v{vE}, v{vTag+1}", f"v_xor_b32 v37, v{vE+1}, v{vTag}", "v_lshrrev_b32 v36, 24, v36", "v_or_b32 v36, v36, v37", "v_cmp_ne_u32 vcc, 0, v36"]
    a("s_waitcnt vmcnt(3)", f"buffer_load_dwordx2 {vr(vE,2)}, v{vPB}, s[{sAux}:{sAux+3}], 0 offen sc1") if OPT.get("pbl", 0) else None
    a("s_waitcnt vmcnt(0)", "s_barrier")
    st2(a, 2)
    a(f"s_cmp_ge_u32 s{sWave}, 2", "s_cbranch_scc1 K2_NOPUB")
    a(f"buffer_store_dwordx4 v[40:43], v{vT16}, s[{sAux}:{sAux+3}], s47 offen sc1")
    a("K2_NOPUB:")
    if not OPT.get("pbl", 0): a(f"buffer_load_dwordx2 {vr(vE,2)}, v{vPB}, s[{sAux}:{sAux+3}], 0 offen sc1", "s_waitcnt vmcnt(0)")
    a(chk(), "s_cbranch_vccnz K2_WAITB")
    a("K2_WGO:")
    for g in range(4):
        a(f"s_add_u32 m0, s46, {L_WS+4096*g}", f"s_add_u32 s84, s46, {4096*g}")
        for i in range(4 if g < 3 else 1): a(f"buffer_load_dwordx4 v{vL16}, s[{sAux}:{sAux+3}], s84 offen offset:{1024*i} sc1 lds")
    xl = lambda i: f"buffer_load_dwordx4 v{vXs}, s[{sX}:{sX+3}], s39 offen offset:{1024*i} lds"
    late = [[f"s_add_u32 m0, s33, {L_XR}", "s_mov_b64 exec, -1", xl(0), xl(1)], ["s_mov_b64 exec, -1", xl(2), xl(3)],
            [f"s_add_u32 m0, s33, {L_XR+4096}", "s_add_u32 s39, s39, 4096", "s_mov_b64 exec, -1", xl(0), xl(1)], ["s_mov_b32 exec_lo, -1", "s_mov_b32 exec_hi, 0", xl(2), "s_mov_b64 exec, -1"]]
    for k in range(OPT.get("xpre", 0)): a(late.pop(0))
    a(f"v_add_u32 v39, {L_WS}, v{vL16}")
    wrd = [f"ds_read_b128 {ar(4*f,4)}, v39 offset:{1024*f}" for f in range(NFRAG)]
    if OPT.get("wfirst", 0): a("s_waitcnt vmcnt(0)", "s_barrier", wrd)
    st2(a, 3)
    a(f"s_movk_i32 s84, {TMO}")
    a("K2_POLL:", f"buffer_load_dwordx2 {vr(vE,2)}, v{vPoll}, s[{sAux}:{sAux+3}], 0 offen sc1", "s_waitcnt vmcnt(0)", chk(),
      "s_and_b64 exec, exec, vcc", "s_cbranch_execz K2_POLLED", "s_sub_u32 s84, s84, 1", "s_cbranch_scc0 K2_POLL")
    a(f"v_mov_b32 v{vE}, 0", "s_mov_b32 s32, 2")
    a("K2_POLLED:", "s_mov_b64 exec, -1")
    st2(a, 1)
    a(f"v_and_b32 v36, 0xfff, v{vE}", f"v_bfe_u32 v{vCnt}, v{vE}, 12, 12", f"v_mad_u32_u24 v{vStart}, v36, 12, v{vStart}", f"v_mul_u32_u24 v{vCnt}, 12, v{vCnt}")
    RB = 64
    def dppq(i): return f"quad_perm:[{i},{i},{i},{i}] row_mask:0xf bank_mask:0xf"
    def dppr(i): return f"row_newbcast:{i} row_mask:0xf bank_mask:0xf"
    def rec(i): return RB + 4*i
    def addr(s): return f"v_add_u32_dpp v{rec(s)+3}, v{vStart}, v{vJ16} {dppr(s)}" if s < 16 else f"v_add_u32_dpp v{rec(s)+3}, v{vStart}, v{vJ4} {dppq(s & 3)}"
    def load(s): return f"buffer_load_dwordx3 {vr(rec(s),3)}, v{rec(s)+3}, s[{sRec}:{sRec+3}], 0 offen" + (f" offset:{12*(s & ~3)}" if s >= 16 else "") + " sc1"
    def msk(s): return f"s[{sMask0+2*s}:{sMask0+2*s+1}]"
    a(f"v_cmp_lt_u32 vcc, {24*12}, v{vCnt}", f"s_mov_b64 s[{sSave}:{sSave+1}], vcc", "s_cbranch_vccnz K2_RARE1", "K2_P1:")
    W = OPT.get("win", 12)
    for s in range(W): a(addr(s), load(s))
    side = [addr(s) for s in range(W, 24)]
    for i in range(16): side += [f"v_add_co_u32_dpp v37, vcc, v{vCnt}, v{vN16} {dppr(i)}", f"s_mov_b64 {msk(i)}, vcc"]
    for r in range(2):
        side += [f"v_add_u32 v36, {-12*(16+4*r)}, v{vN4}", "s_nop 1"]
        for i in range(4): side += [f"v_add_co_u32_dpp v37, vcc, v{vCnt}, v36 {dppq(i)}", f"s_mov_b64 {msk(16+4*r+i)}, vcc"]
    if OPT.get("wfirst", 0): a(side)
    else: a("s_barrier", interleave(side, wrd, 1))
    a("s_waitcnt lgkmcnt(0)", "s_barrier")
    LAG = OPT.get("lag", 4)
    def atom(s): return [f"v_and_b32 v{rec(s)+3}, 0xffff, v{rec(s)+2}", f"ds_add_rtn_u32 v{rec(s)+3}, v{rec(s)+3}, v{vTw}"]
    def put(s): return [f"ds_write2_b32 v{rec(s)+3}, v{rec(s)}, v{rec(s)+1} offset0:0 offset1:1", f"ds_write_b32 v{rec(s)+3}, v{rec(s)+2} offset:8"]
    def ex(s): return f"s_mov_b64 exec, {msk(s)}"
    sx = OPT.get("sx", 0)
    if sx & 1: put = lambda s: ["s_nop 0", "s_nop 0"]
    if sx & 2: atom = lambda s: [f"v_and_b32 v{rec(s)+3}, 0xffff, v{rec(s)+2}", f"v_lshl_add_u32 v{rec(s)+3}, v{rec(s)+3}, 5, v{vInit}"]
    if sx & 4: a("s_waitcnt vmcnt(0)"); st2(a, 3)
    ops = []; vm = list(range(W))
    for i in range(24 + LAG):
        if i < 24:
            a(f"s_waitcnt vmcnt({len(vm) - 1 - vm.index(i)})", ex(i), atom(i)); ops.append(("a", i))
        if i + W < 24:
            a(ex(i + W), load(i + W)); vm.append(i + W)
        elif late and i >= 24 - OPT.get("late", 6):
            x = late.pop(0); a(x); vm += [-1] * sum(y.startswith("buffer") for y in x)
        if i >= LAG:
            s = i - LAG
            n = len(ops) - 1 - ops.index(("a", s))
            a(f"s_waitcnt lgkmcnt({n})", ex(s), put(s)); ops += [("w", s), ("w", s)]
    for x in late: a(x)
    a("s_mov_b64 exec, -1")
    a(f"s_cmp_lg_u64 s[{sSave}:{sSave+1}], 0", "s_cbranch_scc1 K2_RARE2")
    a("K2_P2:", "s_waitcnt lgkmcnt(0)", "s_barrier")
    st2(a, 4)
    if sx: a("s_branch K2_STOUT")
    vD, vR, vS = 40, 41, 42
    a(f"ds_read_b32 v{vD}, v{vT4} offset:{L_CNT}", "v_mov_b32 v43, 1", f"v_cmp_gt_u32 vcc, {NB}, v{tid}", f"v_lshlrev_b32 v36, 2, v{vLane}",
      f"s_mov_b64 s[{sValid}:{sValid+1}], vcc", "s_waitcnt lgkmcnt(0)")
    a(f"v_sub_u32 v{vD}, v{vD}, v{vInit}", f"v_cmp_lt_u32 vcc, {CAP*ESZ}, v{vD}", f"v_min_u32 v{vD}, {63*12}, v{vD}", f"v_mul_u32_u24 v{vD}, 5462, v{vD}",
      f"s_or_b64 s[{sBad}:{sBad+1}], s[{sBad}:{sBad+1}], vcc", f"v_lshrrev_b32 v{vD}, 16, v{vD}", f"v_lshlrev_b32 v37, 2, v{vD}")
    a(f"s_mov_b64 exec, s[{sValid}:{sValid+1}]", f"ds_add_rtn_u32 v{vR}, v37, v43 offset:{L_HIST}")
    if OPT["force_slow"]: a(f"s_mov_b64 s[{sBad}:{sBad+1}], 1")
    if OPT.get("force_raw"): a("s_mov_b32 s32, 2")
    a(f"s_cmp_lg_u64 s[{sBad}:{sBad+1}], 0", "s_addc_u32 s32, s32, 0", "s_mov_b64 exec, 1", "v_mov_b32 v39, s32", f"ds_or_b32 v{vZ}, v39 offset:{L_FLAG}", "s_mov_b64 exec, -1")
    a(f"v_lshl_or_b32 v{vD}, v{vD}, 8, v{tid}", "s_waitcnt lgkmcnt(0)", "s_barrier")
    a(f"ds_read_b32 v{vS}, v36 offset:{L_HIST}", f"ds_read_b32 v38, v{vZ} offset:{L_FLAG}", "s_waitcnt lgkmcnt(1)")
    wave_scan(a, vS)
    a(f"v_sub_u32 v{vS}, {NB}, v{vS}", f"ds_bpermute_b32 v{vS}, v37, v{vS}", "s_waitcnt lgkmcnt(1)", f"v_readfirstlane_b32 s{sTmp}, v38",
      f"s_mul_i32 s{sTmp2}, s{sBucket}, {NB*128}", f"s_lshl_b32 s{sTile}, s{sWave}, 8", f"s_cmp_ge_u32 s{sTmp}, 2", "s_cbranch_scc1 K2_SLOW")
    a(f"s_mov_b64 exec, 1", f"buffer_store_dword v{vTag}, v{vZ}, s[{sAux}:{sAux+3}], s40 offen", "s_mov_b64 exec, -1", f"s_cmp_lg_u32 s{sTmp}, 0", "s_cbranch_scc1 K2_SLOW")
    a("s_waitcnt lgkmcnt(0)", f"v_add_lshl_u32 v{vS}, v{vS}, v{vR}, 2", f"s_mov_b64 exec, s[{sValid}:{sValid+1}]", f"ds_write_b32 v{vS}, v{vD} offset:{L_RANK}", "s_mov_b64 exec, -1")
    a(f"s_movk_i32 s46, {CAP*ESZ}", f"v_mov_b32 v39, {L_TAB}", f"v_lshrrev_b32 v38, 4, v{vHalf}", f"v_and_b32 v36, 31, v{vLane}", f"v_lshl_add_u32 v36, v36, 2, s{sTile}")
    a("s_waitcnt vmcnt(1) lgkmcnt(0)", "s_barrier")
    st2(a, 5)
    def decode1(w, r, base):
        return [f"v_lshrrev_b32 v{w+1}, 8, v{w}", f"v_and_b32 v{w}, 0xff, v{w}", f"v_add_u32 v{w+2}, v{w+1}, v{r+1}", f"v_lshrrev_b32 v{w+2}, v{r+2}, v{w+2}",
                f"v_mad_u32_u24 v{base}, v{w}, s46, v39", f"v_sub_u32 v{w+1}, v{w+1}, v{w+2}", f"v_mad_u32_u24 v{base}, v{w+1}, v{r+3}, v{base}"]
    def decode2(w, r, info):
        return [f"v_and_b32 v{w+1}, 7, v{w}", f"v_xor_b32 v{w+1}, v{w+1}, v38", f"v_lshlrev_b32 v{w+1}, 4, v{w+1}", f"v_lshl_add_u32 v{w+1}, v{w}, 7, v{w+1}",
                f"v_lshl_or_b32 v{info}, v{w+2}, 16, v{w+1}"]
    def decode3(w, r, off):
        return [f"v_lshl_add_u32 v{w}, v{w}, 7, s{sTmp2}", f"v_or_b32 v{w}, v{w}, v{r+4}", f"ds_write_b32 v36, v{w} offset:{L_OUTO+off}"]
    a(f"ds_read_b32 v56, v{ROLE['A']} offset:{L_RANK}", f"ds_read_b32 v60, v{ROLE['B']} offset:{L_RANK}")
    a(selectors())
    a("s_waitcnt lgkmcnt(1)", decode1(56, ROLE["A"], vLds))
    a(f"ds_read_b32 v{ENT[0]+2}, v{vLds} offset:8", f"ds_read_b32 v{ENT[1]+2}, v{vLds} offset:20", f"ds_read_b32 v{ENT[2]+2}, v{vLds} offset:32")
    a(decode2(56, ROLE["A"], vT0), hdr_reads(vT0, [vT1, 59, EE+14, EE+15]))
    a("s_waitcnt lgkmcnt(6)", mkoff(0), gather(0, 0))
    a([f"ds_read2_b32 {vr(ENT[u],2)}, v{vLds} offset0:{3*u} offset1:{3*u+1}" for u in range(3)])
    a(tile_scalars(vT0, sP2A), f"v_accvgpr_write_b32 a{aInfo}, v{vT0}", decode3(56, ROLE["A"], 0))
    a(decode1(60, ROLE["B"], 63), f"v_accvgpr_write_b32 a{aNextL}, v63", decode2(60, ROLE["B"], 63), f"v_accvgpr_write_b32 a{aNextI}, v63", decode3(60, ROLE["B"], 128))
    a(gather(0, 1), "s_waitcnt lgkmcnt(0)")
    for b in range(4):
        a(q_mfmas(b))
        a([[gather(0, 2)], [gather(0, 3)], [mkoff(1), gather(1, 0)], [gather(1, 1), gather(1, 2), gather(1, 3)]][b])
    a(mkoff(2), "s_waitcnt vmcnt(4)")
    st2(a, 6)
    if OPT.get("steps"): a("s_mov_b32 m0, 0")
    a(edge_mfmas(0, NUM, 0), "s_nop 7", "s_nop 2")
    a(".p2align 3")
    body, n = align8([f"s_mov_b64 exec, s[{sValid}:{sValid+1}]"] + step(0, True))
    a(body, "s_branch K2_L1")
    a(".p2align 6")
    for u in range(3):
        body = step(u, False) + [f"s_cbranch_scc1 K2_X{u}" if u < 2 else "s_cbranch_scc0 K2_L0"]
        if u: body = ["s_nop 0"] + body
        body, n = align8(body)
        if u: body = body[1:]
        a(f"K2_L{u}:", body)
    for u in (2, 0, 1):
        a(f"K2_X{u}:", f"s_cmp_lg_u32 s{sStage}, 0", "s_cbranch_scc1 K2_TEND",
          f"s_mov_b32 s{sStage}, 1", f"s_mov_b32 s{sC}, 1", f"s_mov_b32 s{sX+2}, 0", f"v_add_u32 v{vPad}, 2, v{vPad}", f"s_branch K2_L{(u+1)%3}")
    a("K2_TEND:", f"s_bitcmp1_b32 s{sTile}, 7", "s_cbranch_scc1 K2_FINAL")
    st2(a, 7)
    if OPT.get("steps"):
        a("s_mov_b64 exec, -1", f"s_add_u32 s48, s44, {STAMP_OFF+(3<<20)}", "s_addc_u32 s49, s45, 0", "s_mov_b32 s50, 0x100000", "s_mov_b32 s51, 0x00020000",
          f"s_lshl_b32 s46, s{sBucket}, 2", f"s_add_u32 s46, s46, s{sWave}", "s_lshl_b32 s46, s46, 8",
          f"v_lshlrev_b32 v{vT1}, 2, v{vLane}", f"buffer_store_dword v{vT0}, v{vT1}, s[48:51], s46 offen", "s_waitcnt vmcnt(0)")
    n = epilogue(a, True)
    st2(a, 8)
    a(".p2align 3")
    body, n = align8([f"s_mov_b64 exec, s[{sValid}:{sValid+1}]"] + step(0, True, 19))
    a(body, "s_branch K2_L1")
    a("K2_FINAL:")
    st2(a, 9)
    epilogue(a, False)
    st2(a, 10)
    if OPT.get("exp", 0): a(f"s_mov_b64 s[{sBad}:{sBad+1}], 0")
    a("v_mov_b32 v20, 0", "v_mov_b32 v21, 1", f"s_mov_b64 exec, s[{sBad}:{sBad+1}]", f"ds_write_b32 v20, v21 offset:{L_FLAG}", "s_mov_b64 exec, -1")
    a("s_waitcnt lgkmcnt(0)", "s_barrier", f"ds_read_b32 v21, v20 offset:{L_FLAG}", "s_waitcnt lgkmcnt(0)", f"v_readfirstlane_b32 s{sTmp}, v21",
      f"s_cmp_lg_u32 s{sTmp}, 0", "s_cbranch_scc1 K2_SLOW")
    if OPT["stamps"]:
        a("K2_STOUT:", "s_waitcnt vmcnt(0)")
        st2(a, 11)
        a(f"s_add_u32 s48, s44, {STAMP_OFF}", "s_addc_u32 s49, s45, 0", "s_mov_b32 s50, 0x100000", "s_mov_b32 s51, 0x00020000",
          f"s_lshl_b32 s46, s{sBucket}, 2", f"s_add_u32 s46, s46, s{sWave}", "s_lshl_b32 s46, s46, 8",
          f"v_accvgpr_read_b32 v20, a{aStamp}", f"v_lshlrev_b32 v21, 2, v{vLane}", "buffer_store_dword v20, v21, s[48:51], s46 offen")
    a("K2_END:", "s_endpgm")
    a("K2_BUILD:", epoch)
    for k in range(4): a(f"s_mov_b64 s[{72+2*k}:{73+2*k}], s[{80+2*k}:{81+2*k}]")
    a("s_sub_u32 s93, s2, 250", "s_lshl_b32 s93, s93, 2", f"s_add_u32 s93, s93, s{sWave}")
    st2(a, 13)
    gen_build(a, "KB", 93, lambda v, sr: a(f"buffer_store_dwordx4 {vr(v,4)}, v{vL16}, s[{sAux}:{sAux+3}], s{sr} offen sc1"))
    st2(a, 14)
    a(consts.l, mktag, f"v_mov_b32 v40, v{vTag+1}", f"v_mov_b32 v41, v{vTag}", f"v_mov_b32 v42, v{vTag+1}", f"v_mov_b32 v43, v{vTag}")
    a("s_waitcnt vmcnt(0)", "s_barrier")
    st2(a, 15); st2(a, 2)
    a(f"s_cmp_ge_u32 s{sWave}, 2", "s_cbranch_scc1 K2_WAITB")
    a(f"buffer_store_dwordx4 v[40:43], v{vT16}, s[{sAux}:{sAux+3}], s47 offen sc1")
    a("K2_WAITB:", f"s_movk_i32 s84, {TMO}")
    a("K2_WB1:", f"buffer_load_dwordx2 {vr(vE,2)}, v{vPB}, s[{sAux}:{sAux+3}], 0 offen sc1", "s_waitcnt vmcnt(0)", chk(),
      "s_cbranch_vccz K2_WGO", "s_sub_u32 s84, s84, 1", "s_cbranch_scc0 K2_WB1", "s_mov_b32 s32, 2", "s_branch K2_WGO")
    a("K2_RARE1:")
    for r in range(2, 6):
        for i in range(4): a(addr(16 + 4*r + i), load(16 + 4*r + i))
        a(f"v_cmp_lt_u32 vcc, {(20+4*r)*12}, v{vCnt}", "s_cbranch_vccz K2_P1")
    a(f"s_mov_b64 s[{sBad}:{sBad+1}], 1", "s_branch K2_P1")
    a("K2_RARE2:")
    for r in range(2, 6):
        a(f"v_add_u32 v36, {-12*(16+4*r)}, v{vN4}", "s_nop 1")
        for i in range(4): a(f"v_add_co_u32_dpp v37, vcc, v{vCnt}, v36 {dppq(i)}", f"s_mov_b64 {msk(i)}, vcc")
        for i in range(4): a(ex(i), atom(16 + 4*r + i))
        a("s_waitcnt lgkmcnt(0)")
        for i in range(4): a(ex(i), put(16 + 4*r + i))
        a("s_mov_b64 exec, -1")
        if r < 5: a(f"v_cmp_lt_u32 vcc, {(20+4*r)*12}, v{vCnt}", "s_cbranch_vccz K2_P2")
    a("s_branch K2_P2")
    fixup(a, "T"); fixup(a, "F")
    gen_slow(a)

def gen_slow(a):
    tid, vStart, vCnt, vJ, vA = 0, 1, 2, 4, 5
    a("K2_SLOW:", "s_mov_b64 exec, -1", f"s_mov_b32 s94, s{sTmp}", "s_load_dwordx8 s[72:79], s[0:1], 32", "s_waitcnt vmcnt(0) lgkmcnt(0)", f"s_mov_b32 s{sX+2}, {X_BYTES}", "s_barrier")
    a(f"s_lshl_b32 s{sTmp}, s{sWave}, 6", f"v_add_u32 v{tid}, s{sTmp}, v{vLane}", f"v_lshlrev_b32 v23, 4, v{vLane}", f"v_add_u32 v23, {L_WS}, v23")
    a("s_cmp_lt_u32 s94, 2", "s_cbranch_scc1 KS_HAVE", f"s_mov_b32 s93, s{sWave}", "KS_BL:")
    gen_build(a, "KSB", 93, lambda v, sr: a(f"v_add_u32 v22, s{sr}, v23", f"ds_write_b128 v22, {vr(v,4)}"))
    a("s_add_u32 s93, s93, 4", "s_cmp_lt_u32 s93, 24", "s_cbranch_scc1 KS_BL", "s_waitcnt lgkmcnt(0)", "s_barrier")
    a([f"ds_read_b128 {ar(4*f,4)}, v23 offset:{1024*f}" for f in range(NFRAG)])
    a("s_waitcnt lgkmcnt(0)", "s_barrier")
    a("KS_HAVE:", "s_load_dwordx8 s[72:79], s[0:1], 0")
    a(f"v_lshlrev_b32 v20, 11, v{tid}", f"s_lshl_b32 s{sTmp}, s{sBucket}, 3", f"s_add_u32 s{sTmp}, s{sTmp}, {TAB_REL}",
      f"buffer_load_dword v21, v20, s[{sAux}:{sAux+3}], s{sTmp} offen sc1")
    a("v_mov_b32 v24, 0", "v_mov_b32 v25, 0", "v_mov_b32 v26, 0", "v_mov_b32 v27, 0", f"v_lshlrev_b32 v22, 4, v{tid}", f"v_add_u32 v22, {L_TAB}, v22")
    for i in range(13): a(f"ds_write_b128 v22, v[24:27] offset:{4096*i}")
    a(selectors())
    a(f"v_mul_u32_u24 v{vStart}, {CH*12}, v{tid}", f"v_and_b32 v6, 31, v{vLane}", f"v_mul_u32_u24 v{vJ}, 12, v6", "v_lshlrev_b32 v6, 2, v6")
    a("s_waitcnt vmcnt(0) lgkmcnt(0)", "v_and_b32 v22, 0xfff, v21", f"v_bfe_u32 v{vCnt}, v21, 12, 12", f"v_mad_u32_u24 v{vStart}, v22, 12, v{vStart}", f"v_mul_u32_u24 v{vCnt}, 12, v{vCnt}", "s_barrier")
    srd(a, 56, 78, 79, E*4); srd(a, 60, 76, 77, E*4); srd(a, 64, 74, 75, E*8)
    a(f"s_mul_i32 s50, s{sBucket}, {NB*128}", f"s_mul_i32 s51, s{sBucket}, {NB}", "s_mov_b32 s46, 0", f"s_lshl_b32 s95, s{sWave}, 7")
    a("s_cmp_lt_u32 s94, 2", "s_cbranch_scc1 KS_SEG")
    a("KS_RAW:", f"s_cmp_ge_u32 s95, {E*4}", "s_cbranch_scc1 KS_DONE")
    a("buffer_load_dword v20, v6, s[56:59], s95 offen", "s_mov_b32 s96, s95", "s_add_u32 s95, s95, 512", "s_waitcnt vmcnt(0)",
      "v_subrev_u32 v20, s51, v20", f"v_cmp_gt_u32 vcc, {NB}, v20", "s_cbranch_vccz KS_RAW", f"s_mov_b64 s[{sValid}:{sValid+1}], vcc")
    a("s_lshl_b32 s97, s96, 1", "v_lshlrev_b32 v21, 1, v6", "buffer_load_dword v10, v6, s[60:63], s96 offen", "buffer_load_dwordx2 v[8:9], v21, s[64:67], s97 offen",
      "v_and_b32 v20, 0xff, v20", "v_lshlrev_b32 v20, 2, v20", "s_waitcnt vmcnt(0)", "v_lshl_or_b32 v10, v10, 16, v20", "s_branch KS_BODY")
    a("KS_SEG:", "s_nop 3", f"v_readlane_b32 s47, v{vStart}, s46", f"v_readlane_b32 s48, v{vCnt}, s46", "s_mov_b32 s49, 0")
    a("KS_GRP:", "s_cmp_ge_u32 s49, s48", "s_cbranch_scc1 KS_NEXT")
    a(f"v_add_u32 v20, s49, v{vJ}", f"v_cmp_gt_u32 s[{sValid}:{sValid+1}], s48, v20", "v_add_u32 v20, s47, v20")
    a(f"buffer_load_dwordx3 v[8:10], v20, s[{sRec}:{sRec+3}], 0 offen sc1", "s_waitcnt vmcnt(0)")
    a("KS_BODY:")
    a(mkoff(2), [gather(0, q) for q in range(4)])
    a("v_and_b32 v20, 0xffff, v10", f"v_lshl_add_u32 v{vOff}, v20, 5, v{vHalf}", f"v_add_u32 v{vOff}, s50, v{vOff}", [gather(2, q) for q in range(4)])
    a(f"v_lshlrev_b32 v{vA}, 6, v20", f"v_lshrrev_b32 v21, 1, v{vHalf}", f"v_add_u32 v{vA}, v21, v{vA}", f"v_add_u32 v{vA}, {L_TAB}, v{vA}")
    a("s_waitcnt vmcnt(0)")
    for b in range(4):
        a(q_mfmas(b))
        a(mf8(Q + 16*b, ar(WC(b), 2), "v[8:9]", vr(Q + 16*b, 16)))
        for q in range(4): a(mf16(Q + 16*b, ar(WA(b, q), 4), ar(RING[0] + 4*q, 4), vr(Q + 16*b, 16)))
    a(mf8(D, ar(B2F, 2), vr(SEL, 2), "0"), mf8(D + 16, ar(B2F, 2), vr(SEL + 2, 2), "0"), "s_nop 7", "s_nop 7")
    for i in range(64): a(f"v_exp_f32 v{NUM+i}, v{Q+i}")
    for i in range(64): a(f"v_add_f32 v{NUM+i}, 1.0, v{NUM+i}")
    for i in range(64): a(f"v_rcp_f32 v{NUM+i}, v{NUM+i}")
    for i in range(64): a(f"v_mul_f32 v{NUM+i}, v{NUM+i}, v{Q+i}")
    for i in range(32): a(f"v_cvt_pk_bf16_f32 v{DEN+i}, v{NUM+2*i}, v{NUM+2*i+1}")
    a("s_nop 1")
    for b in range(4):
        for m in range(2):
            for ob in range(2): a(mf16(D + 16*ob, ar(W2(b, m, ob), 4), vr(DEN + 8*b + 4*m, 4), vr(D + 16*ob, 16)))
    a("s_nop 7", "s_nop 7", f"s_mov_b64 exec, s[{sValid}:{sValid+1}]")
    for ob in range(2):
        for i in range(16): a(f"ds_add_f32 v{vA}, v{D+16*ob+i} offset:{4*(2*(8*(i>>2)+(i&3))+ob)}")
    a("s_mov_b64 exec, -1", "s_waitcnt lgkmcnt(0)", "s_cmp_ge_u32 s94, 2", "s_cbranch_scc1 KS_RAW", f"s_add_u32 s49, s49, {32*12}", "s_branch KS_GRP")
    a("KS_NEXT:", "s_add_u32 s46, s46, 1", "s_cmp_lt_u32 s46, 64", "s_cbranch_scc1 KS_SEG")
    a("KS_DONE:", "s_waitcnt lgkmcnt(0)", "s_barrier")
    a(f"v_lshlrev_b32 v20, 5, v{tid}", f"v_add_u32 v20, {L_TAB}, v20", f"v_lshlrev_b32 v21, 4, v{tid}", "v_add_u32 v21, s50, v21")
    for i in range(7):
        if i == 6: a(f"v_cmp_gt_u32 vcc, {NB*8-1536}, v{tid}", "s_and_saveexec_b64 s[46:47], vcc", "s_cbranch_execz KS_END")
        a(f"ds_read_b128 v[24:27], v20 offset:{8192*i}", f"ds_read_b128 v[28:31], v20 offset:{8192*i+16}", "s_waitcnt lgkmcnt(0)")
        for j in range(4): a(f"v_cvt_pk_bf16_f32 v{32+j}, v{24+2*j}, v{25+2*j}")
        a(f"buffer_store_dwordx4 v[32:35], v21, s[{sOut}:{sOut+3}], 0 offen", "s_nop 1", "v_add_u32 v21, 4096, v21")
    a("KS_END:", "s_endpgm")

def kd(name, vgpr, accum, sgpr=102):
    return f""".amdhsa_kernel {name}
  .amdhsa_next_free_vgpr {vgpr}
  .amdhsa_next_free_sgpr {sgpr}
  .amdhsa_accum_offset {accum}
  .amdhsa_group_segment_fixed_size 0
  .amdhsa_kernarg_size 88
  .amdhsa_user_sgpr_count 2
  .amdhsa_user_sgpr_kernarg_segment_ptr 1
  .amdhsa_system_sgpr_workgroup_id_x 1
  .amdhsa_float_denorm_mode_32 3
.end_amdhsa_kernel
"""

def generate(**opt):
    OPT.update(opt)
    ref = open("standalone__edge_featured_mpnn_mpnn__graph.s.ref").read().split("\n")
    head = [x for x in ref if x.startswith(";") and "@launch" not in x and not x.startswith("; Override") and not x.startswith("; grid=")]
    head += [f"; @launch {'kernel=' + KNAME + ' ' if OPT.get('aslist') else ''}grid=(256,1,1) block=(256,1,1) lds={K2_LDS}"]
    a = Asm()
    a('.amdgcn_target "amdgcn-amd-amdhsa--gfx950"', ".text", f".globl {KNAME}", f".type {KNAME},@function")
    gen_k2(a)
    return "\n".join(head) + "\n" + a.text() + '.section .rodata,"a"\n.p2align 6\n' + kd(KNAME, 512, 256)

if __name__ == "__main__":
    out = sys.argv[1] if len(sys.argv) > 1 else "standalone__edge_featured_mpnn_mpnn__graph.s"
    opt = {}
    for x in sys.argv[2:]:
        k, v = x.split("="); opt[k] = int(v) if v.lstrip("-").isdigit() else v.replace("+", " ")
    open(out, "w").write(generate(**opt))
```

```python
import sys
sys.path.insert(0,'code')
import gen4 as gen
def diag(s, kern, idx, red):
    i=s.index(".amdgcn_target"); s=s[:i]+"; @launch kernel=k3_kernel grid=(1,1,1) block=(1024,1,1) lds=64\n"+s[i:]
    if kern==2: ld=f"v_min_u32 v1, 1019, v0\n v_lshlrev_b32 v1, 8, v1\n buffer_load_dword v3, v1, s[8:11], 0 offen offset:{4*(16+idx)}"
    elif kern==3: ld=f"v_bfe_u32 v1, v0, 2, 3\n v_min_u32 v1, 5, v1\n v_add_u32 v1, 2, v1\n v_lshlrev_b32 v1, 7, v1\n v_add_u32 v1, 124, v1\n v_and_b32 v10, 3, v0\n v_add_u32 v1, v1, v10\n v_lshlrev_b32 v1, 8, v1\n buffer_load_dword v3, v1, s[8:11], 0 offen offset:{4*(16+idx)}"
    elif kern==1: ld=f"v_mov_b32 v1, v2\n buffer_load_dword v3, v1, s[8:11], s12 offen offset:{4*(16+idx)}"
    else: ld=f"v_mov_b32 v1, v2\n buffer_load_dword v3, v1, s[8:11], s12 offen offset:64"
    if kern==0: red='min'
    op={'max':'ds_max_u32','min':'ds_min_u32','avg':'ds_add_u32'}[red]
    init={'max':'0','min':'-1','avg':'0'}[red]
    k=f"""
.p2align 8
k3_kernel:
 s_cmp_lg_u32 s2, 0
 s_cbranch_scc1 K3_END
 s_load_dwordx2 s[4:5], s[0:1], 80
 v_mov_b32 v5, 0
 v_mov_b32 v6, -1
 v_mov_b32 v7, {init}
 ds_write_b32 v5, v6
 ds_write_b32 v5, v7 offset:4
 s_waitcnt lgkmcnt(0)
 s_add_u32 s8, s4, {gen.STAMP_OFF}
 s_addc_u32 s9, s5, 0
 s_mov_b32 s10, 0x300000
 s_mov_b32 s11, 0x00020000
 s_mov_b32 s12, 0x100000
 v_lshrrev_b32 v2, 2, v0
 v_min_u32 v2, 249, v2
 v_lshlrev_b32 v2, 12, v2
 v_and_b32 v8, 3, v0
 v_mul_u32_u24 v8, 512, v8
 v_add_u32 v2, v2, v8
 v_min_u32 v9, 1019, v0
 v_lshlrev_b32 v9, 8, v9
 buffer_load_dword v4, v9, s[8:11], 0 offen offset:64
 {ld}
 s_barrier
 s_waitcnt vmcnt(0)
 ds_min_u32 v5, v4
 s_waitcnt lgkmcnt(0)
 s_barrier
 ds_read_b32 v4, v5
 s_waitcnt lgkmcnt(0)
 v_sub_u32 v3, v3, v4
 {op} v5, v3 offset:4
 s_waitcnt lgkmcnt(0)
 s_barrier
 ds_read_b32 v3, v5 offset:4
 s_waitcnt lgkmcnt(0)
 {'v_lshrrev_b32 v3, 10, v3' if red=='avg' else 's_nop 0'}
 v_min_u32 v3, 5000, v3
 v_mul_u32_u24 v3, 10, v3
 v_add_u32 v3, 10000, v3
 s_nop 1
 v_readfirstlane_b32 s14, v3
 v_readfirstlane_b32 s15, v4
 s_mov_b32 s20, 400000
K3_L:
 s_memrealtime s[16:17]
 s_waitcnt lgkmcnt(0)
 s_sub_u32 s16, s16, s15
 s_sub_u32 s20, s20, 1
 s_cbranch_scc1 K3_END
 s_cmp_lt_u32 s16, s14
 s_cbranch_scc1 K3_L
K3_END:
 s_endpgm
"""
    i=s.index('.section .rodata')
    return s[:i]+k+s[i:]+".p2align 6\n"+gen.kd("k3_kernel",16,16,32)
if __name__=="__main__":
    opts={}
    specs=[]
    for x in sys.argv[1:]:
        if "=" in x: k,v=x.split("="); opts[k]=int(v) if v.isdigit() else v.replace("+"," ")
        else: specs.append(x)
    base=dict(gen.OPT)
    for n,sp in enumerate(specs):
        kern,idx,red,*ex=sp.split(",")
        gen.OPT.clear(); gen.OPT.update(base); o=dict(opts)
        for x in ex: k,v=x.split(":"); o[k]=int(v) if v.isdigit() else v.replace("+"," ")
        s=gen.generate(stamps=1,aslist=1,**o)
        open(f"d{n}.s","w").write(diag(s,int(kern),int(idx),red))
```

```python
import re, sys, struct, math

N, E = 50000, 800000
NB = 196
CH = 3200
NCH = 250
CAP = 47
REC_BYTES = E * 12
FRAG_OFF = REC_BYTES
NFRAG = 51
FRAG_BYTES = NFRAG * 1024
EPO_REL = 52 * 1024
TAB_REL = 53 * 1024
AUX_BYTES = TAB_REL + 256 * 2048
KNAME = "standalone__edge_featured_mpnn_mpnn__graph_kernel"
STAMP_OFF = 16 << 20
X_BYTES = N * 128

def f32(x): return "0x%08x" % struct.unpack("<I", struct.pack("<f", x))[0]
NLOG2E = f32(-math.log2(math.e))
NLN2 = f32(-math.log(2.0))

OPT = dict(stamps=False, force_slow=False, k1st="sc1", outst="sc1", late=4, onewait=0, pg=1)

class Asm:
    def __init__(self): self.l = []
    def __call__(self, *xs):
        for x in xs:
            if isinstance(x, (list, tuple)): self(*x)
            else:
                for y in x.split("\n"):
                    y = y.strip()
                    if y: self.l.append(y)
    def text(self):
        return "\n".join((x if (x.endswith(":") or x.startswith(".")) else "    " + x) for x in self.l) + "\n"

def vr(b, n): return f"v[{b}:{b+n-1}]"
def ar(b, n): return f"a[{b}:{b+n-1}]"

def srd(a, s, lo, hi, nrec):
    a(f"s_mov_b32 s{s}, s{lo}", f"s_mov_b32 s{s+1}, s{hi}", f"s_mov_b32 s{s+2}, {nrec}", f"s_mov_b32 s{s+3}, 0x00020000")

def wave_scan(a, v):
    for sh in (1, 2, 4, 8):
        a("s_nop 1", f"v_add_u32_dpp v{v}, v{v}, v{v} row_shr:{sh} row_mask:0xf bank_mask:0xf")
    a("s_nop 1", f"v_add_u32_dpp v{v}, v{v}, v{v} row_bcast:15 row_mask:0xa bank_mask:0xf")
    a("s_nop 1", f"v_add_u32_dpp v{v}, v{v}, v{v} row_bcast:31 row_mask:0xc bank_mask:0xf")

def isize(x):
    if x.endswith(":") or x.startswith("."): return 0
    op = x.split()[0]
    rest = x[len(op):]
    def lit():
        for tok in re.split(r"[,\s]+", rest):
            if re.fullmatch(r"-?(0x[0-9a-fA-F]+|\d+)", tok):
                v = int(tok, 0)
                if not (-16 <= v <= 64): return True
        return False
    if op in ("s_waitcnt", "s_nop", "s_barrier", "s_branch", "s_endpgm", "s_setprio") or op.startswith("s_cbranch"): return 4
    if op.startswith(("s_load", "s_memtime", "s_memrealtime")): return 8
    if op.startswith("s_"): return 8 if lit() else 4
    if op.startswith(("buffer_", "ds_", "global_", "v_mfma", "v_pk_", "v_accvgpr_read", "v_accvgpr_write")): return 8
    if op.endswith("_e64") or op.endswith("_dpp") or op.endswith("_sdwa"): return 8
    vop3 = ("v_mad_", "v_fma_", "v_max3", "v_min3", "v_cvt_pk_bf16", "v_lshl_add", "v_lshl_or", "v_bfe", "v_add3", "v_and_or",
            "v_readlane", "v_writelane", "v_maximum3", "v_mul_lo", "v_mul_hi", "v_add_lshl", "v_perm_b32", "v_or3")
    if op.startswith(vop3): return 8
    if op.startswith("v_cmp"):
        if not rest.strip().startswith("vcc"): return 8
        return 8 if lit() else 4
    if op == "v_cndmask_b32" and not rest.strip().endswith("vcc"): return 8
    return 8 if lit() else 4

PROMOTE = ("v_exp_f32 ", "v_rcp_f32 ", "v_mul_f32 ", "v_mov_b32 ", "v_lshrrev_b32 ", "v_add_u32 ", "v_lshlrev_b32 ")
def align8(lines):
    o = sum([x.split("\n") for x in lines], []); pos = 0; last = None
    for i, x in enumerate(o):
        s = isize(x)
        if x.startswith("v_pk_") and pos % 8 == 4:
            assert last is not None, "cannot align " + x
            op = o[last].split()[0]; o[last] = o[last].replace(op, op + "_e64", 1); pos += 4; last = None
        if x.startswith(PROMOTE) and s == 4: last = i
        elif x.startswith("v_pk_"): last = None
        pos += s
    return o, pos

L_CNT, L_HIST, L_FLAG, L_RANK, L_OUTO, L_XR = 0, 1024, 1280, 1536, 2560, 3584
L_TAB = L_XR + NB * 128
P1_CNT, P1_BASE, P1_STG = L_TAB, L_TAB + 1024, L_TAB + 2048
L_WS = P1_STG + CH * 12
ESZ = 12
K2_LDS = L_TAB + NB * CAP * ESZ

Q, NUM, DEN, D, EE = 16, 80, 144, 208, 240
ENT = (0, 4, 8)
vOff, vLds, vHalf, vPad, vLane, vT0, vT1 = 3, 7, 11, 12, 13, 14, 15
RING = (204, 220, 236)
aInfo, aNextL, aNextI, aStamp = 252, 253, 254, 255
def WA(b, q): return 4 * (4 * b + q)
def WC(b): return 64 + 2 * b
B1F, B2F = 72, 74
def WB(b, q): return 76 + 4 * (4 * b + q)
def W2(b, m, ob): return 140 + 4 * (4 * b + 2 * m + ob)
sX, sOut, sRec, sAux = 4, 8, 12, 16
sWave, sBucket, s128, sC, sStage, sTile, sL, sTmp, sTmp2, sP2B = 20, 21, 22, 23, 24, 25, 26, 27, 28, 29
sValid, sBad, sSave, sP2A = 30, 34, 36, 38
sMask0 = 52
TILE_A = [(0, 0, 30), (2, 0, 76), (2, 2, 104), (2, 4, 132)]
TILE_B = [(16, 160, 0), (14, 62, 192), (12, 18, 184), (12, 6, 176)]
assert all(t[0] % 2 == 0 and t[0] <= 4 for t in TILE_A) and all(t[0] % 2 == 0 and t[0] >= 12 for t in TILE_B)
def _check_map():
    seen = []
    for P, rp, rs in TILE_A + TILE_B: seen += list(range(rp, rp + P)) + list(range(rs, rs + 32 - 2*P))
    assert sorted(seen) == list(range(NB))
_check_map()

def pkfma(d, x, y, z): return f"v_pk_fma_f32 {vr(d,2)}, {vr(x,2)}, {vr(y,2)}, {vr(z,2)}"
def pkmul(d, x, y): return f"v_pk_mul_f32 {vr(d,2)}, {vr(x,2)}, {vr(y,2)}"
def mf16(d, A, B, c): return f"v_mfma_f32_32x32x16_bf16 {vr(d,16)}, {A}, {B}, {c}"
def mf8(d, A, B, c): return f"v_mfma_f32_32x32x8_bf16 {vr(d,16)}, {A}, {B}, {c}"

def edge_mfmas(b, dst, u):
    o = [mf8(dst, ar(WC(b), 2), vr(ENT[u], 2), vr(Q + 16*b, 16))]
    for q in range(4): o.append(mf16(dst, ar(WA(b, q), 4), ar(RING[u] + 4*q, 4), vr(dst, 16)))
    return o
def gather(u, q): return f"buffer_load_dwordx4 {ar(RING[u]+4*q,4)}, v{vOff}, s[{sX}:{sX+3}], 0 offen offset:{16*q}"
def mkoff(u): return f"v_mad_u32_u16 v{vOff}, v{ENT[u]+2}, s{s128}, v{vHalf} op_sel:[1,0,0,0]"
def entry(u, off): return f"ds_read_b96 {vr(ENT[u],3)}, v{vLds} offset:{off}"

def interleave(v, m, gap=3, start=0):
    o = []; k = 0
    for i, x in enumerate(v):
        if k < len(m) and i == start + k * gap: o.append(m[k]); k += 1
        o.append(x)
    return o + m[k:]

def icost(x):
    if x.startswith(("v_exp", "v_rcp", "v_mfma_f32_32x32x16")): return 8
    if x.startswith("buffer_"): return 12
    if x.startswith("ds_"): return 8
    return 4
def weave(fill, mf):
    o = []; k = 0; since = 99
    for i, x in enumerate(fill):
        if k < len(mf) and since >= 32 and i >= mf[k][1]:
            o.append(mf[k][0]); since = icost(mf[k][0]); k += 1
        o.append(x); since += icost(x)
    return o + [m for m, _ in mf[k:]]

def step(u, first, vm=3, b0=0):
    o = []
    nx, pre = (u + 1) % 3, (u + 2) % 3
    for b in range(b0, 4):
        n, dn = NUM + 16*b, DEN + 16*b
        t = n if first else D + 16*(b & 1)
        e = dn if first else EE
        ex = [f"v_exp_f32 v{e+i}, v{t+i}" for i in range(16)]
        if b < 3: m = edge_mfmas(b + 1, NUM + 16*(b+1) if first else D + 16*((b+1) & 1), u)
        else: m = edge_mfmas(0, D, nx)
        A = interleave(ex, m)
        if OPT.get("onewait") == 1: A = [m[0]] + ex[:2] + interleave(ex[2:], m[1:])
        mid, end = [gather(pre, b)], []
        if b == 0 and not first: end = [f"v_cmpx_gt_i32 vcc, s{sC}, v{vPad}"]
        if b == 1:
            if not first: end = [f"s_sub_u32 s{sC}, s{sC}, 1"]
            if b0: mid, end = [gather(pre, 0)], [gather(pre, 1)]
        if b == 2:
            if OPT.get("onewait") == 2: A = [m[0]] + ex[:2] + [entry(u, 36 + ESZ*u)] + interleave(ex[2:], m[1:])
            elif OPT.get("onewait"): A = A[:6] + [entry(u, 36 + ESZ*u)] + A[6:]
            else: end = [entry(u, 36 + ESZ*u)]
        if b == 3:
            mid = [f"s_waitcnt vmcnt({vm}) lgkmcnt(0)"] + mid if OPT.get("onewait") else [f"s_waitcnt vmcnt({vm})"] + mid
            end = ([] if OPT.get("onewait") else ["s_waitcnt lgkmcnt(0)"]) + [mkoff(u)]
            if u == 2: end += [f"v_add_u32 v{vLds}, 36, v{vLds}"]
            if OPT.get("steps"): end += [f"v_writelane_b32 v{vT0}, s100, m0", "s_mov_b32 s99, m0", "s_addk_i32 s99, 1" if first else "s_cselect_b32 s98, 1, 0\ns_addk_i32 s99, 1\ns_cmp_lg_u32 s98, 0", "s_mov_b32 m0, s99"]
        if b == 2 and OPT.get("steps"): end = end + ["s_memtime s[100:101]"]
        if first:
            p = [f"v_pk_add_f32 {vr(dn+i,2)}, {vr(dn+i,2)}, 1.0 op_sel_hi:[1,0]" for i in range(0, 16, 2)]
        else:
            p = [pkfma(n+i, n+i, EE+i, n+i) for i in range(0, 16, 2)]
            p += [pkfma(n+i, t+i, dn+i, n+i) for i in range(0, 16, 2)]
            p += [pkfma(dn+i, dn+i, EE+i, dn+i) for i in range(0, 16, 2)]
        if not first and OPT.get("pkord", 0):
            pa, pb, pc = p[:8], p[8:16], p[16:]
            if OPT["pkord"] == 1: p = sum([[pa[i], pb[i], pc[i]] for i in range(8)], [])
            if OPT["pkord"] == 2:
                p = [pa[0]]
                for i in range(8): p += ([pa[i+1]] if i < 7 else []) + [pb[i], pc[i]]
            if OPT["pkord"] == 3:
                p = [pkfma(n+i, EE+i, n+i, n+i) for i in range(0, 16, 2)] + [pkfma(n+i, dn+i, t+i, n+i) for i in range(0, 16, 2)] + [pkfma(dn+i, EE+i, dn+i, dn+i) for i in range(0, 16, 2)]
        blk = A[:2] + mid + A[2:] + end + p
        x = OPT.get("exp", 0)
        if not first:
            if x & 1: blk = [("s_nop 1" if i.startswith("v_mfma") else i) for i in blk]
            if x & 2: blk = [("s_nop 0" if i.startswith("v_pk") else i) for i in blk]
            if x & 4: blk = [("s_nop 1" if (i.startswith("v_exp") and not i.endswith(f"v{t+15}")) else i) for i in blk]
            if x & 8: blk = [("s_nop 1" if i.startswith("buffer_load") else i) for i in blk]
            if x & 16: blk = [("s_nop 0" if i.startswith("v_mfma_f32_32x32x8") else i) for i in blk]
        o += blk
    return o

SEL = EE + 4
def selectors():
    return [f"v_mov_b32 v{SEL}, 0x3f80", f"v_mov_b32 v{SEL+1}, 0", f"v_mov_b32 v{SEL+2}, 1.0", f"v_mov_b32 v{SEL+3}, 0",
            f"v_mov_b32 v{SEL+4}, 0", f"v_mov_b32 v{SEL+5}, 0x3f80", f"v_mov_b32 v{SEL+6}, 0", f"v_mov_b32 v{SEL+7}, 1.0"]
def q_mfmas(b):
    o = [mf8(Q + 16*b, ar(B1F, 2), vr(SEL + 2*b, 2), "0")]
    for q in range(4): o.append(mf16(Q + 16*b, ar(WB(b, q), 4), ar(RING[2] + 4*q, 4), vr(Q + 16*b, 16)))
    return o
def hdr_reads(vinfo, tmp):
    o = [f"v_and_b32 v{tmp[0]}, 0xffff, v{vinfo}", f"ds_read_b128 {ar(RING[2],4)}, v{tmp[0]} offset:{L_XR}"]
    for q in range(1, 4): o += [f"v_xor_b32 v{tmp[q]}, {16*q}, v{tmp[0]}", f"ds_read_b128 {ar(RING[2]+4*q,4)}, v{tmp[q]} offset:{L_XR}"]
    return o
def tile_scalars(vinfo, sp2):
    return [f"v_lshrrev_b32 v{vPad}, 16, v{vinfo}", f"s_mov_b32 s{sStage}, 0",
            f"v_readlane_b32 s{sL}, v{vPad}, 0", f"v_readlane_b32 s{sTmp}, v{vPad}, s{sp2}", f"v_cmp_lt_u32 s[{sValid}:{sValid+1}], 0, v{vPad}",
            f"s_max_u32 s{sL}, s{sL}, s{sTmp}", f"s_max_u32 s{sL}, s{sL}, 4", f"s_sub_u32 s{sC}, s{sL}, 4", f"s_sub_u32 s{sL}, s{sL}, 3",
            f"v_sub_u32 v{vPad}, s{sL}, v{vPad}"]

def epilogue(a, nxt):
    lab = "T" if nxt else "F"
    CHK, AD, P = EE + 12, DEN + 24, DEN + 32
    so = OPT.get("outst", "")
    a("s_mov_b64 exec, -1", f"s_cmp_lg_u64 s[{sValid}:{sValid+1}], -1", f"s_cbranch_scc1 K2_{lab}FIX", ".p2align 3", f"K2_{lab}GO:")
    o = [f"v_accvgpr_read_b32 v{EE+2}, a{aInfo}"]
    if nxt:
        o = [f"v_accvgpr_read_b32 v{vLds}, a{aNextL}", f"v_accvgpr_read_b32 v{vT0}, a{aNextI}", f"ds_read_b32 v{ENT[0]+2}, v{vLds} offset:8"] + o
        o += [f"s_mov_b32 s{sX+2}, {X_BYTES}"]
    o += [f"v_lshrrev_b32 v{EE+2}, 16, v{EE+2}", f"v_cvt_f32_u32 v{EE+2}, v{EE+2}", f"v_mov_b32 v{EE+1}, 0", f"v_mov_b32 v{EE+3}, 0", f"v_lshrrev_b32 v{EE}, 16, v{EE+2}"]
    def chk(b):
        dn = DEN + 16*b
        return [(pkmul(CHK, dn, dn + 8) if (b == 0 and i == 0) else pkfma(CHK, dn+i, dn+8+i, CHK)) for i in range(0, 8, 2)]
    def cvt(b): return [f"v_cvt_pk_bf16_f32 v{DEN+16*b+i//2}, v{NUM+16*b+i}, v{NUM+16*b+i+1}" for i in range(0, 16, 2)]
    def w2(b): return [mf16(D + 16*ob, vr(DEN + 16*b + 4*m, 4), ar(W2(b, m, ob), 4), vr(D + 16*ob, 16)) for m in range(2) for ob in range(2)]
    tk = [0]
    def tick():
        if OPT.get("ticks") and nxt: o.append(f"s_memtime s[{52+2*tk[0]}:{53+2*tk[0]}]"); tk[0] += 1
    if OPT.get("ticks") and nxt: o.insert(0, "s_memtime s[52:53]"); tk[0] = 1
    o += chk(0)
    JS = list(range(8)) if nxt else [0, 2, 4, 6, 7]
    ad = lambda j: AD + 4*(j & 1) + (j >> 1)
    oread = [f"v_lshrrev_b32 v{vT1}, 4, v{vLane}", f"v_lshl_add_u32 v{vT1}, v{vT1}, 5, s{sTile}", f"ds_read_b128 {vr(AD,4)}, v{vT1} offset:{L_OUTO}",
             f"ds_read_b128 {vr(AD+4,4)}, v{vT1} offset:{L_OUTO+16}" if nxt else f"ds_read_b32 v{AD+7}, v{vT1} offset:{L_OUTO+28}",
             f"v_and_b32 v{vT1}, 15, v{vLane}"]
    oadd = [f"v_lshl_add_u32 v{ad(j)}, v{vT1}, 3, v{ad(j)}" for j in JS]
    lim = [f"v_lshrrev_b32 v{EE}, 4, v{vHalf}", f"v_sub_u32 v{EE}, s{sP2A if nxt else sP2B}, v{EE}"]
    ts = tile_scalars(vT0, sP2B)
    Q4 = [q_mfmas(k) for k in range(4)]
    for b in range(4):
        n, dn = NUM + 16*b, DEN + 16*b
        rc = [f"v_rcp_f32 v{dn+i}, v{dn+i}" for i in range(16)]
        pre = cvt(b - 1) if b else []
        if b == 0: mf = [(mf8(D, vr(EE, 2), ar(B2F, 2), "0"), 0), (mf8(D + 16, vr(EE + 2, 2), ar(B2F, 2), "0"), 0)]
        else: mf = [(x, 6 if k < 2 else 10) for k, x in enumerate(w2(b - 1))]
        if nxt:
            if b == 0:
                fill = selectors() + ["s_waitcnt lgkmcnt(0)", mkoff(0), gather(0, 0)] + rc[:9] + ["s_waitcnt vmcnt(1)"] + \
                       interleave(hdr_reads(vT0, [vT1, vPad, EE+14, EE+15]), rc[9:13], 2, 2) + [gather(0, 1)] + rc[13:]
                mf = mf + [(Q4[k][0], 10) for k in range(4)]
            else:
                ex = {1: [f"ds_read2_b32 {vr(ENT[0],2)}, v{vLds} offset0:0 offset1:1", entry(1, ESZ), gather(0, 2), entry(2, 2*ESZ), f"v_accvgpr_write_b32 a{aInfo}, v{vT0}"] + lim + [gather(0, 3)],
                      2: ["s_waitcnt lgkmcnt(0)", mkoff(1)] + oread + [gather(1, 0), f"s_add_u32 s{sTile}, s{sTile}, 128"] + ts[:5],
                      3: [gather(1, 1), "s_waitcnt lgkmcnt(0)", f"v_add_f32 v{CHK}, v{CHK}, v{CHK+1}"] + oadd + [gather(1, 2)]}[b]
                fill = pre + interleave(rc, ex, 1, 1)
                if b == 1:
                    fill = ["s_waitcnt lgkmcnt(0)"] + fill
                    mf = [(x, 1) for x in Q4[0][1:]] + mf + [(Q4[2][1], 0)]
                elif b == 2: mf = [(x, 0) for x in Q4[1][1:]] + mf + [(Q4[2][2], 0)]
                else:
                    fm = edge_mfmas(0, NUM, 0); k = len(fill) - 19
                    assert fill.index(gather(1, 1)) < k < fill.index(gather(1, 2))
                    fill = fill[:k] + ["s_waitcnt vmcnt(2)"] + fill[k:]
                    mf = [(fm[0], 0)] + mf + [(x, k + 1) for x in fm[1:]]
        else:
            fill = pre + rc
        tick()
        o += weave(fill, mf)
        tick()
        mu = [pkmul(n+i, n+i, dn+i) for i in range(0, 16, 2)]
        o += interleave(mu, chk(b + 1), 2, 1) if b < 3 else mu
    wm = w2(3)
    c3 = cvt(3)
    mx = lambda j: f"v_maximum3_f32 v{CHK}, v{CHK}, |v{D+2*j}|, |v{D+2*j+1}|"
    bad = [f"v_cmp_ngt_f32 vcc, {f32(2.0**120)}, v{CHK}", f"s_or_b64 s[{sBad}:{sBad+1}], s[{sBad}:{sBad+1}], vcc"]
    def outp(js, tail):
        r = []; tail = list(tail)
        for k in range(len(js) + 2):
            if k < len(js):
                j = js[k]; r += [f"v_cvt_pk_bf16_f32 v{P+2*j}, v{D+2*j}, v{D+16+2*j}", f"v_cvt_pk_bf16_f32 v{P+2*j+1}, v{D+2*j+1}, v{D+17+2*j}"]
            else: r += tail[:2]; tail = tail[2:]
            if 1 <= k <= len(js): j = js[k-1]; r += [f"v_permlane16_swap_b32 v{P+2*j}, v{P+2*j+1}"]
            if k >= 2: j = js[k-2]; r += [f"buffer_store_dwordx2 {vr(P+2*j,2)}, v{ad(j)}, s[{sOut}:{sOut+3}], 0 offen {so}"]
        return r + tail
    if nxt:
        q3 = q_mfmas(3); n1 = edge_mfmas(1, NUM + 16, 0)
        tick()
        o += weave(c3 + [f"v_exp_f32 v{DEN+i}, v{NUM+i}" for i in range(16)] + [gather(1, 3), mkoff(2)] + ts[5:],
                   [(Q4[2][3], 0), (wm[0], 6), (wm[1], 6), (wm[2], 10), (wm[3], 10), (Q4[2][4], 0)])
        tick()
        o += [f"v_pk_add_f32 {vr(DEN+i,2)}, {vr(DEN+i,2)}, 1.0 op_sel_hi:[1,0]" for i in range(0, 16, 2)]
        o += [f"v_cmpx_lt_i32_e64 vcc, 0, v{EE}"] + [f"v_pk_add_f32 {vr(D+16*ob,2)}, {vr(D+16*ob,2)}, {vr(D+16*ob+2,2)}" for ob in range(2)] + ["s_mov_b64 exec, -1"]
        tick()
        o += weave(outp(JS, [mx(j) for j in range(8)] + bad), [(x, 1) for x in n1 + q3[1:]])
        tick()
    else:
        o += c3[:6] + [wm[0]] + c3[6:] + oread[:3] + [wm[2]] + oread[3:] + lim + [f"v_add_f32 v{CHK}, v{CHK}, v{CHK+1}", wm[1], "s_nop 2", "s_waitcnt lgkmcnt(0)"] + oadd[:2] + [wm[3]] + oadd[2:]
        pa = lambda ob, g: f"v_pk_add_f32 {vr(D+16*ob+4*g,2)}, {vr(D+16*ob+4*g,2)}, {vr(D+16*ob+4*g+2,2)}"
        o += ["v_mov_b32 v20, 0", "v_mov_b32 v21, 1", "s_nop 3"] + [pa(0, g) for g in range(3)] + [pa(1, g) for g in range(3)]
        o += [f"v_cmpx_lt_i32_e64 vcc, 24, v{EE}", pa(0, 3), pa(1, 3), "s_mov_b64 exec, -1"]
        o += outp(JS, [mx(j) for j in JS] + bad)
    o, n = align8(o)
    a(o)
    return n

def fixup(a, lab):
    a(f"K2_{lab}FIX:", f"s_andn2_b64 exec, -1, s[{sValid}:{sValid+1}]")
    for i in range(64): a(f"v_mov_b32 v{NUM+i}, 0", f"v_mov_b32 v{DEN+i}, 1.0")
    a("s_mov_b64 exec, -1", f"s_branch K2_{lab}GO")

def st2(a, idx):
    if OPT.get("lite"):
        if idx == 0: a("s_memrealtime s[100:101]")
        if idx == 11: a("s_memrealtime s[50:51]", f"v_mov_b32 v{vT1}, 0", "s_waitcnt lgkmcnt(0)", f"v_writelane_b32 v{vT1}, s100, 16", f"v_writelane_b32 v{vT1}, s50, 27", "s_nop 0", f"v_accvgpr_write_b32 a{aStamp}, v{vT1}")
    elif OPT["stamps"]:
        a("s_memtime s[100:101]", "s_memrealtime s[50:51]", "s_mov_b64 s[48:49], exec", "s_mov_b64 exec, -1", f"v_accvgpr_read_b32 v{vT1}, a{aStamp}", "s_waitcnt lgkmcnt(0)", "s_nop 0",
          f"v_writelane_b32 v{vT1}, s100, {idx}", f"v_writelane_b32 v{vT1}, s50, {idx+16}", f"v_writelane_b32 v{vT1}, s{sL}, {idx+32}", "s_nop 0", f"v_accvgpr_write_b32 a{aStamp}, v{vT1}", "s_mov_b64 exec, s[48:49]")

def gen_build(a, lab, g, store, P, mid=None, post=None):
    R1, R2, R3, T = 64, 72, 80, 96
    for r_, n_ in ((56, 132*128*2), (60, 256), (64, 128*64*2), (68, 128)): a(f"s_mov_b32 s{r_+2}, {n_}", f"s_mov_b32 s{r_+3}, 0x00020000")
    a(f"v_and_b32 v{T}, 31, v{vLane}", f"v_lshrrev_b32 v{T+1}, 5, v{vLane}",
      f"v_lshlrev_b32 v{T+2}, 13, v{T+1}", f"v_lshl_add_u32 v{T+2}, v{T}, 1, v{T+2}",
      f"v_and_b32 v{T+5}, 15, v{T}", f"v_lshrrev_b32 v{T+4}, 4, v{T}", f"v_lshl_or_b32 v{T+5}, v{T+5}, 1, v{T+4}", f"v_lshlrev_b32 v{T+5}, 2, v{T+5}",
      f"v_lshl_add_u32 v{T+3}, v{T+1}, 9, v{T+5}", f"v_lshlrev_b32 v{T+4}, 1, v{T}", f"v_cmp_eq_u32 s[88:89], 1, v{T+1}")
    def w1(f, off, dst):
        a(f"s_and_b32 s{off}, s{f}, 3", f"s_lshl_b32 s{off}, s{off}, 11", f"s_bfe_u32 s99, s{f}, 0x20002", "s_lshl_b32 s99, s99, 6", f"s_add_u32 s{off}, s{off}, s99",
          f"s_lshr_b32 s99, s{f}, 4", f"s_mul_i32 s{dst}, s99, 3", "s_lshl_b32 s99, s99, 14", f"s_add_u32 s{off}, s{off}, s99", f"s_add_u32 s{dst}, s{dst}, s{f}", f"s_lshl_b32 s{dst}, s{dst}, 10")
    w1(g, 95, 90)
    a(f"s_add_u32 s98, s{g}, 24"); w1(98, 96, 91)
    a(f"s_sub_u32 s99, s{g}, 8", "s_add_u32 s98, s99, 35", "s_lshl_b32 s98, s98, 10", "s_lshr_b32 s97, s99, 1", "s_lshl_b32 s97, s97, 11", "s_and_b32 s99, s99, 1",
      "s_lshl_b32 s99, s99, 1", "s_add_u32 s97, s97, s99", f"s_cmp_ge_u32 s{g}, 8", "s_cselect_b32 s91, s98, s91", "s_cselect_b32 s96, s97, s96",
      f"s_sub_u32 s92, s{g}, 5", "s_lshl_b32 s92, s92, 10", f"s_sub_u32 s97, s{g}, 21", "s_lshl_b32 s97, s97, 7", f"s_add_u32 s97, s97, {128*256}")
    if mid: mid()
    for k in range(4): a(f"s_mov_b64 s[{56+4*k}:{57+4*k}], s[{P+2*k}:{P+2*k+1}]")
    for j in range(8): a(f"buffer_load_ushort v{R1+j}, v{T+2}, s[56:59], s95 offen offset:{256*j}")
    a(f"s_cmp_ge_u32 s{g}, 8", f"s_cbranch_scc1 {lab}_W2")
    for j in range(8): a(f"buffer_load_ushort v{R2+j}, v{T+2}, s[56:59], s96 offen offset:{256*j}")
    a(f"s_mov_b32 s99, {NLOG2E}", f"s_branch {lab}_C")
    a(f"{lab}_W2:")
    for j in range(8): a(f"buffer_load_ushort v{R2+j}, v{T+3}, s[64:67], s96 offen offset:{128*(8*(j>>2)+(j&3))}")
    a(f"s_mov_b32 s99, {NLN2}", f"s_cmp_lt_u32 s{g}, 21", f"s_cbranch_scc1 {lab}_C", f"s_cmp_eq_u32 s{g}, 23", f"s_cbranch_scc1 {lab}_B")
    for j in range(8): a(f"buffer_load_ushort v{R3+j}, v{T+4}, s[56:59], s97 offen offset:{256*(j&3)+64*(j>>2)}")
    a(f"s_branch {lab}_C")
    a(f"{lab}_B:")
    for j in range(4): a(f"buffer_load_ushort v{R3+j}, v{T+4}, s[60:63], 0 offen offset:{64*j}")
    a(f"buffer_load_dword v{T+6}, v{T+5}, s[68:71], 0 offen")
    for j in range(4, 8): a(f"v_mov_b32 v{R3+j}, 0")
    a(f"{lab}_C:", f"s_mov_b32 s98, {NLOG2E}")
    n = post() if post else 0
    a(f"s_waitcnt vmcnt({n})")
    for R, sc_, dst, o in ((R1, 98, 90, 108), (R2, 99, 91, 112)):
        for j in range(8): a(f"v_lshlrev_b32 v{R+j}, 16, v{R+j}", f"v_mul_f32 v{R+j}, s{sc_}, v{R+j}")
        for j in range(4): a(f"v_cvt_pk_bf16_f32 v{o+j}, v{R+2*j}, v{R+1+2*j}")
        store(o, dst)
    a(f"s_cmp_lt_u32 s{g}, 21", f"s_cbranch_scc1 {lab}_E")
    for j in range(8): a(f"v_lshlrev_b32 v{R3+j}, 16, v{R3+j}", f"v_mul_f32 v{R3+j}, s98, v{R3+j}")
    for j in range(4):
        a(f"v_cvt_pk_bf16_f32 v{R3+8+j}, v{R3+2*j}, v{R3+1+2*j}",
          f"v_lshlrev_b32 v{T+8}, 16, v{R3+8+j}", f"v_and_b32 v{T+9}, 0xffff0000, v{R3+8+j}",
          f"v_sub_f32 v{T+8}, v{R3+2*j}, v{T+8}", f"v_sub_f32 v{T+9}, v{R3+1+2*j}, v{T+9}",
          f"v_cvt_pk_bf16_f32 v{T+8}, v{T+8}, v{T+9}", f"v_cndmask_b32 v{R3+8+j}, v{R3+8+j}, v{T+8}, s[88:89]")
    a(f"s_cmp_eq_u32 s{g}, 23", f"s_cbranch_scc0 {lab}_S")
    a(f"v_cndmask_b32 v{R3+10}, v{T+6}, 0, s[88:89]")
    a(f"{lab}_S:"); store(R3 + 8, 92)
    a(f"{lab}_E:")

TMO = 600
def gen_k2(a):
    a(".p2align 12" if OPT.get("pg") else ".p2align 8", f"{KNAME}:")
    a("s_cmp_ge_u32 s2, 256", "s_cbranch_scc1 K2_END")
    if OPT["stamps"] and not OPT.get("lite"): a(f"v_accvgpr_write_b32 a{aStamp}, 0")
    st2(a, 0)
    a("s_load_dwordx16 s[72:87], s[0:1], 0", "s_load_dwordx2 s[44:45], s[0:1], 80", "s_load_dwordx2 s[42:43], s[0:1], 64")
    a("s_getpc_b64 s[52:53]", "K2_PC:", "s_mov_b32 s54, K2_SLOW-K2_PC", "s_mov_b32 s55, 0x00020000", "v_lshlrev_b32 v2, 7, v0", "buffer_load_dword v2, v2, s[52:55], 0 offen")
    tid, vInit, vT4, vZ, vL16, vTag, vT16, vPoll, vPB = 16, 17, 18, 20, 25, 22, 19, 24, 35
    vE = 56
    a(f"v_mov_b32 v{tid}, v0", f"v_and_b32 v{vLane}, 63, v0", "v_lshrrev_b32 v1, 6, v0", "s_cmp_ge_u32 s2, 250")
    a(f"v_readfirstlane_b32 s{sWave}, v1", "s_cbranch_scc1 K2_BUILD")
    vJ16, vN16, vStart, vCnt, vTw, vXs = 27, 28, 31, 32, 33, 34
    vT32, vR4, vR8 = 60, 61, 62
    init = Asm(); c = init
    c(f"s_and_b32 s{sBucket}, s2, 7", f"s_lshl_b32 s{sBucket}, s{sBucket}, 5", "s_lshr_b32 s3, s2, 3", f"s_add_u32 s{sBucket}, s{sBucket}, s3")
    c(f"v_lshlrev_b32 v{vT16}, 4, v{tid}", f"v_lshlrev_b32 v{vL16}, 4, v{vLane}", f"v_and_b32 v36, 31, v{vLane}")
    c(f"v_mul_u32_u24 v{vInit}, {CAP*ESZ}, v{tid}", f"v_add_u32 v{vInit}, {L_TAB}, v{vInit}")
    c(f"v_lshlrev_b32 v{vT4}, 2, v{tid}", f"v_mov_b32 v{vZ}, 0", f"v_mov_b32 v{vZ+1}, 0", f"v_lshlrev_b32 v26, 3, v{vLane}")
    c(f"ds_write_b32 v{vT4}, v{vInit} offset:{L_CNT}", f"ds_write_b64 v26, v[{vZ}:{vZ+1}] offset:{L_HIST}", f"ds_write_b32 v{vT4}, v{vZ} offset:{P1_CNT}")
    for r_, n_ in ((sAux, AUX_BYTES), (sX, X_BYTES), (sOut, X_BYTES), (sRec, REC_BYTES)): c(f"s_mov_b32 s{r_+2}, {n_}", f"s_mov_b32 s{r_+3}, 0x00020000")
    c(f"s_mov_b32 s40, {EPO_REL}")
    ptrs = [f"s_add_u32 s{sAux}, s44, {FRAG_OFF}", f"s_addc_u32 s{sAux+1}, s45, 0",
            f"s_mov_b64 s[{sRec}:{sRec+1}], s[44:45]", f"s_mov_b64 s[{sX}:{sX+1}], s[72:73]", f"s_mov_b64 s[{sOut}:{sOut+1}], s[42:43]"]
    a(init.l)
    a(f"v_lshlrev_b32 v{vT32}, 5, v{tid}", f"v_lshl_add_u32 v{vR4}, v1, 5, v36", f"v_lshlrev_b32 v{vR8}, 3, v{vR4}", f"v_lshlrev_b32 v{vR4}, 2, v{vR4}")
    a(f"s_mul_i32 s88, s2, {CH*4}", "s_add_u32 s89, s88, 4096", "s_add_u32 s90, s88, 8192", "s_add_u32 s91, s88, 12288")
    for g in range(4): a(f"s_lshl_b32 s{92+g}, s{88+g}, 1")
    for r_, n_ in ((56, E*4), (60, E*4), (64, E*8), (68, CH*12)): a(f"s_mov_b32 s{r_+2}, {n_}", f"s_mov_b32 s{r_+3}, 0x00020000")
    a(f"s_mul_i32 s41, s2, {CH*12}")
    a("s_waitcnt lgkmcnt(0)")
    st2(a, 12)
    DS, SR, BK, RK, AT = 64, 80, 96, 112, 128
    a("s_mov_b64 s[56:57], s[78:79]")
    consts = Asm()
    c = consts
    c(f"s_movk_i32 s{s128}, 128", f"s_mov_b64 s[{sBad}:{sBad+1}], 0", "s_mov_b32 s32, 0", "s_mov_b32 s41, 0xffff")
    c(f"v_and_b32 v{vJ16}, 15, v{vLane}", f"v_not_b32 v{vN16}, v{vJ16}", f"v_mul_u32_u24 v{vJ16}, 12, v{vJ16}")
    c(f"v_lshrrev_b32 v{vHalf}, 5, v{vLane}", f"v_lshlrev_b32 v{vHalf}, 6, v{vHalf}", f"v_mov_b32 v{vTw}, 12")
    c(f"v_lshrrev_b32 v{vXs}, 3, v{vLane}", f"v_lshlrev_b32 v{vXs}, 4, v{vXs}", f"v_xor_b32 v{vXs}, v{vXs}, v{vL16}")
    c(f"v_mul_u32_u24 v{vStart}, {CH*12}, v{tid}")
    c("v_bfe_u32 v29, v36, 2, 1", "v_and_b32 v30, 1, v36", "v_lshl_or_b32 v29, v29, 1, v30", "v_bfe_u32 v30, v36, 1, 1", "v_lshl_or_b32 v29, v29, 1, v30",
      "v_lshrrev_b32 v30, 3, v36", "v_lshl_or_b32 v29, v29, 2, v30", "v_lshlrev_b32 v29, 2, v29")
    c(f"s_lshl_b32 s{sTmp}, s{sBucket}, 3", f"s_add_u32 s{sTmp}, s{sTmp}, {TAB_REL}", f"v_lshlrev_b32 v{vPoll}, 11, v{tid}", f"v_add_u32 v{vPoll}, s{sTmp}, v{vPoll}",
      f"v_min_u32 v{vPB}, 5, v{vLane}", f"v_add_u32 v{vPB}, 250, v{vPB}", f"v_lshlrev_b32 v{vPB}, 11, v{vPB}", f"v_add_u32 v{vPB}, s{sTmp}, v{vPB}")
    ROLE = {"A": 44, "B": 50}
    c(f"s_lshl_b32 s3, s{sWave}, 3", "s_or_b32 s3, s3, 0x80000", "v_lshrrev_b32 v37, 2, v36", "v_and_b32 v38, 1, v36", "v_lshl_or_b32 v37, v37, 1, v38", "v_bfe_u32 v38, v36, 1, 1")
    for nm, T, sp in (("A", TILE_A, sP2A), ("B", TILE_B, sP2B)):
        r = ROLE[nm]
        pk = lambda f: hex(sum((f(t) & 255) << (8*w) for w, t in enumerate(T)))
        c(f"s_bfe_u32 s{sp}, {pk(lambda t: 2*t[0])}, s3", f"s_bfe_u32 s46, {pk(lambda t: t[1])}, s3", f"s_bfe_u32 s47, {pk(lambda t: t[2])}, s3", f"s_sub_u32 s47, s47, s{sp}")
        c(f"v_cmp_gt_u32 vcc, s{sp}, v36", f"v_add_u32 v{r}, s47, v36", f"v_add_u32 v39, s46, v37", f"v_cndmask_b32 v{r}, v{r}, v39, vcc", f"v_lshlrev_b32 v{r}, 2, v{r}",
          f"v_cndmask_b32 v{r+2}, 0, 1, vcc", f"v_and_b32 v{r+3}, v{r+2}, v38", f"v_sub_u32 v{r+1}, v{r+2}, v{r+3}", f"v_lshlrev_b32 v{r+4}, 30, v{r+3}", f"v_mul_u32_u24 v{r+3}, 12, v{r+3}")
    c(f"s_mul_i32 s33, s{sWave}, 6144", f"s_mul_i32 s39, s{sBucket}, {NB*128}", "s_add_u32 s39, s39, s33", f"s_mul_i32 s46, s{sWave}, {13*1024}",
      "s_lshl_b32 s47, s2, 11", f"s_add_u32 s47, s47, {TAB_REL}")
    epoch = f"buffer_load_dwordx2 {vr(vTag,2)}, v{vZ}, s[{sAux}:{sAux+3}], s40 offen sc1"
    mktag = [f"v_add_u32 v{vTag}, 1, v{vTag}", f"v_and_b32 v{vTag+1}, 0xff000000, v{vTag+1}"]
    lo, full = ["s_mov_b32 exec_hi, 0"], ["s_mov_b32 exec_hi, -1"]
    vm = []
    for g in range(3): a(f"buffer_load_dwordx4 {vr(DS+4*g,4)}, v{vT16}, s[56:59], s{88+g} offen"); vm.append(("d", g))
    a(lo, f"buffer_load_dword v{DS+12}, v{vR4}, s[56:59], s91 offen", full); vm.append(("d", 3))
    a("s_mov_b64 s[60:61], s[76:77]", "s_mov_b64 s[64:65], s[74:75]", "s_add_u32 s68, s44, s41", "s_addc_u32 s69, s45, 0", ptrs)
    a("s_barrier")
    def grp(g):
        if g < 3:
            a(f"buffer_load_dwordx4 {vr(SR+4*g,4)}, v{vT16}, s[60:63], s{88+g} offen", f"buffer_load_dwordx4 {vr(AT+8*g,4)}, v{vT32}, s[64:67], s{92+g} offen",
              f"buffer_load_dwordx4 {vr(AT+8*g+4,4)}, v{vT32}, s[64:67], s{92+g} offen offset:16"); vm.extend([0, 0, ("g", g)])
        else:
            a(lo, f"buffer_load_dword v{SR+12}, v{vR4}, s[60:63], s91 offen", f"buffer_load_dwordx2 {vr(AT+24,2)}, v{vR8}, s[64:67], s95 offen", full, epoch); vm.extend([0, ("g", 3), "e"])
    def vmw(x): return f"s_waitcnt vmcnt({len(vm) - 1 - vm.index(x)})"
    G0 = OPT.get("g0", 1)
    for g in range(G0): grp(g)
    a(consts.l, "s_movk_i32 s96, -196", f"s_movk_i32 s97, {P1_STG}")
    for e in range(13):
        if e % 4 == 0: a(vmw(("d", e//4)))
        if e == 0: st2(a, 13)
        if e == 12: a(lo)
        a(f"v_mul_u32_u24 v{BK+e}, 85599, v{DS+e}", f"v_lshrrev_b32 v{BK+e}, 22, v{BK+e}", f"v_and_b32 v{BK+e}, 0x3fc, v{BK+e}",
          f"ds_add_rtn_u32 v{RK+e}, v{BK+e}, v{vTw} offset:{P1_CNT}")
    a(full)
    for g in range(G0, 4): grp(g)
    for e in range(13): a(f"v_lshlrev_b32 v{DS+e}, 2, v{DS+e}", f"v_mad_i32_i24 v{DS+e}, v{BK+e}, s96, v{DS+e}")
    a("s_waitcnt lgkmcnt(0)", "s_barrier")
    a(f"s_cmp_lg_u32 s{sWave}, 0", "s_cbranch_scc1 K2_SC")
    a(f"ds_read_b128 v[4:7], v{vT16} offset:{P1_CNT}", "s_waitcnt lgkmcnt(0)")
    a("v_add_u32 v8, v4, v5", "v_add3_u32 v8, v8, v6, v7", "v_mov_b32 v9, v8")
    wave_scan(a, 9)
    a("v_sub_u32 v40, v9, v8", "v_add_u32 v41, v40, v4", "v_add_u32 v42, v41, v5", "v_add_u32 v43, v42, v6")
    a(f"ds_write_b128 v{vT16}, v[40:43] offset:{P1_BASE}", "s_waitcnt lgkmcnt(0)")
    a("K2_SC:", f"v_lshlrev_b32 v8, 3, v{tid}", "s_barrier")
    st2(a, 14)
    ops = []
    def rd(e): a(f"ds_read_b32 v{BK+e}, v{BK+e} offset:{P1_BASE}"); ops.append(e)
    for e in range(5): rd(e)
    for e in range(13):
        if e % 4 == 0:
            a(vmw(("g", e//4)))
            for k in range(min(4, 13 - e)): a(f"v_lshl_or_b32 v{DS+e+k}, v{SR+e+k}, 16, v{DS+e+k}")
        a(f"s_waitcnt lgkmcnt({len(ops) - 1 - ops.index(e)})", f"v_add3_u32 v{RK+e}, v{RK+e}, v{BK+e}, s97")
        if e == 12: a(lo)
        a(f"ds_write2_b32 v{RK+e}, v{AT+2*e}, v{AT+1+2*e} offset0:0 offset1:1", f"ds_write_b32 v{RK+e}, v{DS+e} offset:8"); ops += [-1, -1]
        if e + 5 < 13: rd(e + 5)
    a(full)
    a(f"ds_read_b64 v[4:5], v8 offset:{P1_CNT}", f"ds_read_b64 v[6:7], v8 offset:{P1_BASE}", f"v_add_u32 v9, {P1_STG}, v{vT16}", "s_waitcnt vmcnt(0)", mktag)
    a("s_waitcnt lgkmcnt(0)", "s_barrier")
    st2(a, 15)
    for i in range(10): a(f"ds_read_b128 {vr(64+4*i,4)}, v9 offset:{4096*i}")
    for k in range(4): a(f"v_mul_u32_u24 v{4+k}, 5462, v{4+k}", f"v_lshrrev_b32 v{4+k}, 16, v{4+k}")
    a(f"v_lshl_or_b32 v40, v4, 12, v6", f"v_lshl_or_b32 v42, v5, 12, v7", f"v_or_b32 v40, v40, v{vTag+1}", f"v_or_b32 v42, v42, v{vTag+1}", f"v_mov_b32 v41, v{vTag}", f"v_mov_b32 v43, v{vTag}")
    for i in range(10):
        if i: a(f"s_mov_b32 s84, {4096*i}")
        a(f"s_waitcnt lgkmcnt({9-i})", f"buffer_store_dwordx4 {vr(64+4*i,4)}, v{vT16}, s[68:71], {'s84' if i else '0'} offen sc1")
    def chk(): return [f"v_xor_b32 v36, v{vE}, v{vTag+1}", f"v_xor_b32 v37, v{vE+1}, v{vTag}", "v_lshrrev_b32 v36, 24, v36", "v_or_b32 v36, v36, v37", "v_cmp_ne_u32 vcc, 0, v36"]
    pb = f"buffer_load_dwordx2 {vr(vE,2)}, v{vPB}, s[{sAux}:{sAux+3}], 0 offen sc1"
    if OPT.get("pbl", 0): a(f"s_waitcnt vmcnt({OPT['pbl']})", pb)
    a("s_waitcnt vmcnt(0)", "s_barrier")
    st2(a, 2)
    if not OPT.get("pbl", 0): a(pb)
    a(f"s_cmp_ge_u32 s{sWave}, 2", "s_cselect_b64 exec, 0, -1")
    a(f"buffer_store_dwordx4 v[40:43], v{vT16}, s[{sAux}:{sAux+3}], s47 offen sc1", "s_mov_b64 exec, -1")
    if not OPT.get("pbl", 0): a("s_waitcnt vmcnt(1)")
    a(chk(), "s_cbranch_vccnz K2_WAITB")
    a("K2_WGO:")
    for g in range(4):
        a(f"s_add_u32 m0, s46, {L_WS+4096*g}", f"s_add_u32 s84, s46, {4096*g}")
        for i in range(4 if g < 3 else 1):
            if not OPT.get("now"): a(f"buffer_load_dwordx4 v{vL16}, s[{sAux}:{sAux+3}], s84 offen offset:{1024*i} sc1 lds")
    xl = lambda i: f"buffer_load_dwordx4 v{vXs}, s[{sX}:{sX+3}], s39 offen offset:{1024*i} lds"
    late = [[f"s_add_u32 m0, s33, {L_XR}", "s_mov_b64 exec, -1", xl(0), xl(1)], ["s_mov_b64 exec, -1", xl(2), xl(3)],
            [f"s_add_u32 m0, s33, {L_XR+4096}", "s_add_u32 s39, s39, 4096", "s_mov_b64 exec, -1", xl(0), xl(1)], ["s_mov_b32 exec_lo, -1", "s_mov_b32 exec_hi, 0", xl(2), "s_mov_b64 exec, -1"]]
    for k in range(OPT.get("xpre", 0)): a(late.pop(0))
    a(f"v_add_u32 v39, {L_WS}, v{vL16}")
    wrd = [f"ds_read_b128 {ar(4*f,4)}, v39 offset:{1024*f}" for f in range(NFRAG)]
    st2(a, 3)
    poll = f"buffer_load_dwordx2 {vr(vE,2)}, v{vPoll}, s[{sAux}:{sAux+3}], 0 offen sc1"
    a(f"s_movk_i32 s84, {TMO}")
    if OPT.get("pg"):
        a(poll)
        for k in (1, 2, 3): a(f"s_branch K2_STUB{k}", f"K2_RET{k}:")
        a("s_branch K2_POLL2")
    a("K2_POLL:", poll, "K2_POLL2:", "s_waitcnt vmcnt(0)", chk(),
      "s_and_b64 exec, exec, vcc", "s_cbranch_execz K2_POLLED", "s_sub_u32 s84, s84, 1", "s_cbranch_scc0 K2_POLL")
    a(f"v_mov_b32 v{vE}, 0", "s_mov_b32 s32, 2")
    a("K2_POLLED:", "s_mov_b64 exec, -1")
    st2(a, 1)
    a(f"v_and_b32 v36, 0xfff, v{vE}", f"v_bfe_u32 v{vCnt}, v{vE}, 12, 12", f"v_mad_u32_u24 v{vStart}, v36, 12, v{vStart}")
    RB = 64
    def dppr(i): return f"row_newbcast:{i} row_mask:0xf bank_mask:0xf"
    def rec(i): return RB + 4*i
    def addr(s): return f"v_add_u32_dpp v{rec(s)+3}, v{vStart}, v{vJ16} {dppr(s)}"
    rsc = OPT.get("rsc", "sc1")
    def load(s):
        if s < 16: return f"buffer_load_dwordx3 {vr(rec(s),3)}, v{rec(s)+3}, s[{sRec}:{sRec+3}], 0 offen {rsc}"
        return f"buffer_load_dwordx3 {vr(rec(s),3)}, v{vStart}, s[{sRec}:{sRec+3}], 0 offen offset:{12*s} {rsc}"
    def msk(s): return f"s[{sMask0+2*s}:{sMask0+2*s+1}]"
    def ex(s): return f"s_mov_b64 exec, {msk(s)}"
    def atom(s): return [f"v_and_b32 v{rec(s)+3}, s41, v{rec(s)+2}", f"ds_add_rtn_u32 v{rec(s)+3}, v{rec(s)+3}, v{vTw}"]
    def put(s): return [f"ds_write2_b32 v{rec(s)+3}, v{rec(s)}, v{rec(s)+1} offset0:0 offset1:1", f"ds_write_b32 v{rec(s)+3}, v{rec(s)+2} offset:8"]
    D0, W, LAG = OPT.get("d0", 4), OPT.get("win", 16), OPT.get("lag", 4)
    order = list(range(D0)) + list(range(16, 24)) + list(range(D0, 16))
    a(f"v_cmp_lt_u32 s[{sSave}:{sSave+1}], 24, v{vCnt}", "s_nop 0")
    for s in range(D0): a(addr(s), load(s))
    for s in range(16, 24): a(f"v_cmp_lt_u32 {msk(s)}, {s}, v{vCnt}")
    for s in range(D0, 16): a(addr(s))
    a(f"s_mov_b64 exec, s[{sSave}:{sSave+1}]", "s_cbranch_execz K2_P1")
    for s in range(24, 28): a(load(s))
    a(f"v_cmp_lt_u32 vcc, 28, v{vCnt}", "s_cbranch_vccnz K2_RARE1")
    if OPT.get("pg"): a("s_branch K2_P1", ".p2align 12", "K2_STUB1:", "s_branch K2_RET1")
    a("K2_P1:")
    for s in order[D0:W]:
        a(ex(s) if s >= 16 else ("s_mov_b64 exec, -1" if s == D0 else []), load(s))
    a("s_mov_b64 exec, -1")
    side = []
    for i in range(16): side += [f"v_add_co_u32_dpp v37, vcc, v{vCnt}, v{vN16} {dppr(i)}", f"s_mov_b64 {msk(i)}, vcc"]
    a("s_barrier", interleave(wrd, side, 1, 1))
    a("s_waitcnt lgkmcnt(0)", "s_barrier")
    sx = OPT.get("sx", 0)
    if sx & 1: put = lambda s: ["s_nop 0", "s_nop 0"]
    if sx & 2: atom = lambda s: [f"v_and_b32 v{rec(s)+3}, 0xffff, v{rec(s)+2}", f"v_lshl_add_u32 v{rec(s)+3}, v{rec(s)+3}, 5, v{vInit}"]
    ops = []; vm = order[:W]
    for i in range(24 + LAG):
        if i < 24:
            s = order[i]
            a(f"s_waitcnt vmcnt({len(vm) - 1 - vm.index(s)})", ex(s), atom(s)); ops.append(("a", s))
        if i + W < 24:
            s = order[i + W]; a(ex(s), load(s)); vm.append(s)
        elif late and i >= 24 - OPT.get("late", 6):
            x = late.pop(0); a(x); vm += [-1] * sum(y.startswith("buffer") for y in x)
        if i >= LAG:
            s = order[i - LAG]
            n = len(ops) - 1 - ops.index(("a", s))
            a(f"s_waitcnt lgkmcnt({n})", ex(s), put(s)); ops += [("w", s), ("w", s)]
        if i == D0 + 7 + LAG:
            a(f"s_mov_b64 exec, s[{sSave}:{sSave+1}]", "s_cbranch_execz K2_P3")
            for k in range(24, 28): a(f"v_cmp_lt_u32 {msk(k-8)}, {k}, v{vCnt}")
            for k in range(24, 28): a(ex(k - 8), atom(k))
            a("s_waitcnt lgkmcnt(0)")
            for k in range(24, 28): a(ex(k - 8), put(k))
            a(f"v_cmp_lt_u32 vcc, 28, v{vCnt}", "s_cbranch_vccnz K2_RARE2", "K2_P3:")
    for x in late: a(x)
    a("s_mov_b64 exec, -1")
    a("K2_P2:", "s_waitcnt lgkmcnt(0)", "s_barrier")
    st2(a, 4)
    if sx: a("s_branch K2_STOUT")
    vD, vR, vS = 40, 41, 42
    a(f"ds_read_b32 v{vD}, v{vT4} offset:{L_CNT}", "v_mov_b32 v43, 1", f"v_cmp_gt_u32 vcc, {NB}, v{tid}", f"v_lshlrev_b32 v36, 2, v{vLane}",
      f"s_mov_b64 s[{sValid}:{sValid+1}], vcc", "s_waitcnt lgkmcnt(0)")
    a(f"v_sub_u32 v{vD}, v{vD}, v{vInit}", f"v_cmp_lt_u32 vcc, {CAP*ESZ}, v{vD}", f"v_min_u32 v{vD}, {63*12}, v{vD}", f"v_mul_u32_u24 v{vD}, 5462, v{vD}",
      f"s_or_b64 s[{sBad}:{sBad+1}], s[{sBad}:{sBad+1}], vcc", f"v_lshrrev_b32 v{vD}, 16, v{vD}", f"v_lshlrev_b32 v37, 2, v{vD}")
    a(f"s_mov_b64 exec, s[{sValid}:{sValid+1}]", f"ds_add_rtn_u32 v{vR}, v37, v43 offset:{L_HIST}")
    if OPT["force_slow"]: a(f"s_mov_b64 s[{sBad}:{sBad+1}], 1")
    if OPT.get("force_raw"): a("s_mov_b32 s32, 2")
    a(f"s_cmp_lg_u64 s[{sBad}:{sBad+1}], 0", "s_addc_u32 s32, s32, 0", "s_mov_b64 exec, 1", "v_mov_b32 v39, s32", f"ds_or_b32 v{vZ}, v39 offset:{L_FLAG}", "s_mov_b64 exec, -1")
    a(f"v_lshl_or_b32 v{vD}, v{vD}, 8, v{tid}", "s_waitcnt lgkmcnt(0)", "s_barrier")
    a(f"ds_read_b32 v{vS}, v36 offset:{L_HIST}", f"ds_read_b32 v38, v{vZ} offset:{L_FLAG}", "s_waitcnt lgkmcnt(1)")
    wave_scan(a, vS)
    a(f"v_sub_u32 v{vS}, {NB}, v{vS}", f"ds_bpermute_b32 v{vS}, v37, v{vS}", "s_waitcnt lgkmcnt(1)", f"v_readfirstlane_b32 s{sTmp}, v38",
      f"s_mul_i32 s{sTmp2}, s{sBucket}, {NB*128}", f"s_lshl_b32 s{sTile}, s{sWave}, 8", f"s_cmp_ge_u32 s{sTmp}, 2", "s_cbranch_scc1 K2_SLOW")
    a(f"s_mov_b64 exec, 1", f"buffer_store_dword v{vTag}, v{vZ}, s[{sAux}:{sAux+3}], s40 offen", "s_mov_b64 exec, -1", f"s_cmp_lg_u32 s{sTmp}, 0", "s_cbranch_scc1 K2_SLOW")
    a("s_waitcnt lgkmcnt(0)", f"v_add_lshl_u32 v{vS}, v{vS}, v{vR}, 2", f"s_mov_b64 exec, s[{sValid}:{sValid+1}]", f"ds_write_b32 v{vS}, v{vD} offset:{L_RANK}", "s_mov_b64 exec, -1")
    a(f"s_movk_i32 s46, {CAP*ESZ}", f"v_mov_b32 v39, {L_TAB}", f"v_lshrrev_b32 v38, 4, v{vHalf}", f"v_add_u32 v36, s{sTile}, v29")
    a("s_waitcnt vmcnt(1) lgkmcnt(0)", "s_barrier")
    st2(a, 5)
    def decode1(w, r, base):
        return [f"v_lshrrev_b32 v{w+1}, 8, v{w}", f"v_and_b32 v{w}, 0xff, v{w}", f"v_add_u32 v{w+2}, v{w+1}, v{r+1}", f"v_lshrrev_b32 v{w+2}, v{r+2}, v{w+2}",
                f"v_mad_u32_u24 v{base}, v{w}, s46, v39", f"v_sub_u32 v{w+1}, v{w+1}, v{w+2}", f"v_mad_u32_u24 v{base}, v{w+1}, v{r+3}, v{base}"]
    def decode2(w, r, info):
        return [f"v_and_b32 v{w+1}, 7, v{w}", f"v_xor_b32 v{w+1}, v{w+1}, v38", f"v_lshlrev_b32 v{w+1}, 4, v{w+1}", f"v_lshl_add_u32 v{w+1}, v{w}, 7, v{w+1}",
                f"v_lshl_or_b32 v{info}, v{w+2}, 16, v{w+1}"]
    def decode3(w, r, off):
        return [f"v_lshl_add_u32 v{w}, v{w}, 7, s{sTmp2}", f"v_or_b32 v{w}, v{w}, v{r+4}", f"ds_write_b32 v36, v{w} offset:{L_OUTO+off}"]
    a(f"ds_read_b32 v56, v{ROLE['A']} offset:{L_RANK}", f"ds_read_b32 v60, v{ROLE['B']} offset:{L_RANK}")
    a(selectors())
    a("s_waitcnt lgkmcnt(1)", decode1(56, ROLE["A"], vLds))
    a(f"ds_read_b32 v{ENT[0]+2}, v{vLds} offset:8", f"ds_read_b32 v{ENT[1]+2}, v{vLds} offset:20", f"ds_read_b32 v{ENT[2]+2}, v{vLds} offset:32")
    a(decode2(56, ROLE["A"], vT0), hdr_reads(vT0, [vT1, 59, EE+14, EE+15]))
    a("s_waitcnt lgkmcnt(6)", mkoff(0), gather(0, 0))
    a([f"ds_read2_b32 {vr(ENT[u],2)}, v{vLds} offset0:{3*u} offset1:{3*u+1}" for u in range(3)])
    a(tile_scalars(vT0, sP2A), f"v_accvgpr_write_b32 a{aInfo}, v{vT0}", decode3(56, ROLE["A"], 0))
    a(decode1(60, ROLE["B"], 63), f"v_accvgpr_write_b32 a{aNextL}, v63", decode2(60, ROLE["B"], 63), f"v_accvgpr_write_b32 a{aNextI}, v63", decode3(60, ROLE["B"], 128))
    a(gather(0, 1), "s_waitcnt lgkmcnt(0)")
    for b in range(4):
        a(q_mfmas(b))
        a([[gather(0, 2)], [gather(0, 3)], [mkoff(1), gather(1, 0)], [gather(1, 1), gather(1, 2), gather(1, 3)]][b])
    a(mkoff(2), "s_waitcnt vmcnt(4)")
    st2(a, 6)
    if OPT.get("steps"): a("s_mov_b32 m0, 0")
    a(edge_mfmas(0, NUM, 0), "s_nop 7", "s_nop 2")
    a(".p2align 3")
    body, n = align8([f"s_mov_b64 exec, s[{sValid}:{sValid+1}]"] + step(0, True))
    a(body, "s_branch K2_L1")
    if OPT.get("pg"): a(".p2align 12", "K2_STUB2:", "s_branch K2_RET2", ".p2align 3")
    else: a(".p2align 6")
    for k, u in enumerate((1, 2, 0)):
        body = step(u, False) + [f"s_cbranch_scc1 K2_X{u}" if k < 2 else "s_cbranch_scc0 K2_L1"]
        if k: body = ["s_nop 0"] + body
        body, n = align8(body)
        if k: body = body[1:]
        a(f"K2_L{u}:", body)
    for u in (0, 1, 2):
        a(f"K2_X{u}:", f"s_cmp_lg_u32 s{sStage}, 0", "s_cbranch_scc1 K2_TEND",
          f"s_mov_b32 s{sStage}, 1", f"s_mov_b32 s{sC}, 1", f"s_mov_b32 s{sX+2}, 0", f"v_add_u32 v{vPad}, 2, v{vPad}", f"s_branch K2_L{(u+1)%3}")
    if OPT.get("pg"): a(".p2align 12", "K2_STUB3:", "s_branch K2_RET3")
    a("K2_TEND:", f"s_bitcmp1_b32 s{sTile}, 7", "s_cbranch_scc1 K2_FINAL")
    st2(a, 7)
    if OPT.get("steps"):
        a("s_mov_b64 exec, -1", f"s_add_u32 s48, s44, {STAMP_OFF+(3<<20)}", "s_addc_u32 s49, s45, 0", "s_mov_b32 s50, 0x100000", "s_mov_b32 s51, 0x00020000",
          f"s_lshl_b32 s46, s{sBucket}, 2", f"s_add_u32 s46, s46, s{sWave}", "s_lshl_b32 s46, s46, 8",
          f"v_lshlrev_b32 v{vT1}, 2, v{vLane}", f"buffer_store_dword v{vT0}, v{vT1}, s[48:51], s46 offen", "s_waitcnt vmcnt(0)")
    n = epilogue(a, True)
    st2(a, 8)
    a(".p2align 3")
    body, n = align8([f"s_mov_b64 exec, s[{sValid}:{sValid+1}]"] + step(0, True, 11, 1))
    a(body, "s_branch K2_L1")
    a("K2_FINAL:")
    st2(a, 9)
    epilogue(a, False)
    st2(a, 10)
    if OPT.get("exp", 0): a(f"s_mov_b64 s[{sBad}:{sBad+1}], 0")
    a(f"s_mov_b64 exec, s[{sBad}:{sBad+1}]", f"ds_write_b32 v20, v21 offset:{L_FLAG}", "s_mov_b64 exec, -1")
    a("s_waitcnt lgkmcnt(0)", "s_barrier", f"ds_read_b32 v21, v20 offset:{L_FLAG}", "s_waitcnt lgkmcnt(0)", f"v_readfirstlane_b32 s{sTmp}, v21",
      f"s_cmp_lg_u32 s{sTmp}, 0", "s_cbranch_scc1 K2_SLOW")
    if OPT["stamps"]:
        a("K2_STOUT:", "s_waitcnt vmcnt(0)")
        st2(a, 11)
        a(f"s_add_u32 s48, s44, {STAMP_OFF}", "s_addc_u32 s49, s45, 0", "s_mov_b32 s50, 0x100000", "s_mov_b32 s51, 0x00020000",
          f"s_lshl_b32 s46, s{sBucket}, 2", f"s_add_u32 s46, s46, s{sWave}", "s_lshl_b32 s46, s46, 8",
          f"v_accvgpr_read_b32 v20, a{aStamp}", "s_nop 0", [f"v_writelane_b32 v20, s{52+2*k}, {48+k}" for k in range(13 if OPT.get("ticks") else 0)], f"v_lshlrev_b32 v21, 2, v{vLane}", "buffer_store_dword v20, v21, s[48:51], s46 offen")
    a("K2_END:", "s_endpgm")
    a("K2_BUILD:", "s_sub_u32 s93, s2, 250", "s_lshl_b32 s93, s93, 2", f"s_add_u32 s93, s93, s{sWave}")
    def bmid(): a("s_waitcnt lgkmcnt(0)"); st2(a, 12)
    def bpost():
        a(init.l, ptrs, epoch); st2(a, 13); return 1
    gen_build(a, "KB", 93, lambda v, sr: a(f"buffer_store_dwordx4 {vr(v,4)}, v{vL16}, s[{sAux}:{sAux+3}], s{sr} offen sc1"), 80, bmid, bpost)
    st2(a, 14)
    a(consts.l, "s_waitcnt vmcnt(0) lgkmcnt(0)", mktag, f"v_mov_b32 v40, v{vTag+1}", f"v_mov_b32 v41, v{vTag}", f"v_mov_b32 v42, v{vTag+1}", f"v_mov_b32 v43, v{vTag}", "s_barrier")
    st2(a, 15); st2(a, 2)
    a(f"s_cmp_ge_u32 s{sWave}, 2", "s_cbranch_scc1 K2_WAITB")
    a(f"buffer_store_dwordx4 v[40:43], v{vT16}, s[{sAux}:{sAux+3}], s47 offen sc1")
    a("K2_WAITB:", f"s_movk_i32 s84, {TMO}")
    a("K2_WB1:", f"buffer_load_dwordx2 {vr(vE,2)}, v{vPB}, s[{sAux}:{sAux+3}], 0 offen sc1", "s_waitcnt vmcnt(0)", chk(),
      "s_cbranch_vccz K2_WGO", "s_sub_u32 s84, s84, 1", "s_cbranch_scc0 K2_WB1", "s_mov_b32 s32, 2", "s_branch K2_WGO")
    a("K2_RARE1:")
    for k in range(28, 40): a(load(k))
    a(f"v_cmp_lt_u32 vcc, 40, v{vCnt}", f"s_or_b64 s[{sBad}:{sBad+1}], s[{sBad}:{sBad+1}], vcc", "s_branch K2_P1")
    a("K2_RARE2:")
    for k in range(28, 40):
        a(f"v_cmpx_lt_u32 vcc, {k}, v{vCnt}", "s_nop 0", "s_cbranch_execz K2_P3", atom(k), "s_waitcnt lgkmcnt(0)", put(k))
    a("s_branch K2_P3")
    fixup(a, "T"); fixup(a, "F")
    gen_slow(a)

def gen_slow(a):
    tid, vStart, vCnt, vJ, vA = 0, 1, 2, 4, 5
    a("K2_SLOW:", "s_mov_b64 exec, -1", f"s_mov_b32 s94, s{sTmp}", "s_load_dwordx8 s[72:79], s[0:1], 32", "s_waitcnt vmcnt(0) lgkmcnt(0)", f"s_mov_b32 s{sX+2}, {X_BYTES}", "s_barrier")
    a(f"s_lshl_b32 s{sTmp}, s{sWave}, 6", f"v_add_u32 v{tid}, s{sTmp}, v{vLane}", f"v_lshlrev_b32 v23, 4, v{vLane}", f"v_add_u32 v23, {L_WS}, v23")
    a("s_cmp_lt_u32 s94, 2", "s_cbranch_scc1 KS_HAVE", f"s_mov_b32 s93, s{sWave}", "KS_BL:")
    gen_build(a, "KSB", 93, lambda v, sr: a(f"v_add_u32 v22, s{sr}, v23", f"ds_write_b128 v22, {vr(v,4)}"), 72)
    a("s_add_u32 s93, s93, 4", "s_cmp_lt_u32 s93, 24", "s_cbranch_scc1 KS_BL", "s_waitcnt lgkmcnt(0)", "s_barrier")
    a([f"ds_read_b128 {ar(4*f,4)}, v23 offset:{1024*f}" for f in range(NFRAG)])
    a("s_waitcnt lgkmcnt(0)", "s_barrier")
    a("KS_HAVE:", "s_load_dwordx8 s[72:79], s[0:1], 0")
    a(f"v_lshlrev_b32 v20, 11, v{tid}", f"s_lshl_b32 s{sTmp}, s{sBucket}, 3", f"s_add_u32 s{sTmp}, s{sTmp}, {TAB_REL}",
      f"buffer_load_dword v21, v20, s[{sAux}:{sAux+3}], s{sTmp} offen sc1")
    a("v_mov_b32 v24, 0", "v_mov_b32 v25, 0", "v_mov_b32 v26, 0", "v_mov_b32 v27, 0", f"v_lshlrev_b32 v22, 4, v{tid}", f"v_add_u32 v22, {L_TAB}, v22")
    for i in range(13): a(f"ds_write_b128 v22, v[24:27] offset:{4096*i}")
    a(selectors())
    a(f"v_mul_u32_u24 v{vStart}, {CH*12}, v{tid}", f"v_and_b32 v6, 31, v{vLane}", f"v_mul_u32_u24 v{vJ}, 12, v6", "v_lshlrev_b32 v6, 2, v6")
    a("s_waitcnt vmcnt(0) lgkmcnt(0)", "v_and_b32 v22, 0xfff, v21", f"v_bfe_u32 v{vCnt}, v21, 12, 12", f"v_mad_u32_u24 v{vStart}, v22, 12, v{vStart}", f"v_mul_u32_u24 v{vCnt}, 12, v{vCnt}", "s_barrier")
    srd(a, 56, 78, 79, E*4); srd(a, 60, 76, 77, E*4); srd(a, 64, 74, 75, E*8)
    a(f"s_mul_i32 s50, s{sBucket}, {NB*128}", f"s_mul_i32 s51, s{sBucket}, {NB}", "s_mov_b32 s46, 0", f"s_lshl_b32 s95, s{sWave}, 7")
    a("s_cmp_lt_u32 s94, 2", "s_cbranch_scc1 KS_SEG")
    a("KS_RAW:", f"s_cmp_ge_u32 s95, {E*4}", "s_cbranch_scc1 KS_DONE")
    a("buffer_load_dword v20, v6, s[56:59], s95 offen", "s_mov_b32 s96, s95", "s_add_u32 s95, s95, 512", "s_waitcnt vmcnt(0)",
      "v_subrev_u32 v20, s51, v20", f"v_cmp_gt_u32 vcc, {NB}, v20", "s_cbranch_vccz KS_RAW", f"s_mov_b64 s[{sValid}:{sValid+1}], vcc")
    a("s_lshl_b32 s97, s96, 1", "v_lshlrev_b32 v21, 1, v6", "buffer_load_dword v10, v6, s[60:63], s96 offen", "buffer_load_dwordx2 v[8:9], v21, s[64:67], s97 offen",
      "v_and_b32 v20, 0xff, v20", "v_lshlrev_b32 v20, 2, v20", "s_waitcnt vmcnt(0)", "v_lshl_or_b32 v10, v10, 16, v20", "s_branch KS_BODY")
    a("KS_SEG:", "s_nop 3", f"v_readlane_b32 s47, v{vStart}, s46", f"v_readlane_b32 s48, v{vCnt}, s46", "s_mov_b32 s49, 0")
    a("KS_GRP:", "s_cmp_ge_u32 s49, s48", "s_cbranch_scc1 KS_NEXT")
    a(f"v_add_u32 v20, s49, v{vJ}", f"v_cmp_gt_u32 s[{sValid}:{sValid+1}], s48, v20", "v_add_u32 v20, s47, v20")
    a(f"buffer_load_dwordx3 v[8:10], v20, s[{sRec}:{sRec+3}], 0 offen sc1", "s_waitcnt vmcnt(0)")
    a("KS_BODY:")
    a(mkoff(2), [gather(0, q) for q in range(4)])
    a("v_and_b32 v20, 0xffff, v10", f"v_lshl_add_u32 v{vOff}, v20, 5, v{vHalf}", f"v_add_u32 v{vOff}, s50, v{vOff}", [gather(2, q) for q in range(4)])
    a(f"v_lshlrev_b32 v{vA}, 6, v20", f"v_add_u32 v{vA}, v{vHalf}, v{vA}", f"v_add_u32 v{vA}, {L_TAB}, v{vA}")
    a("s_waitcnt vmcnt(0)")
    for b in range(4):
        a(q_mfmas(b))
        a(mf8(Q + 16*b, ar(WC(b), 2), "v[8:9]", vr(Q + 16*b, 16)))
        for q in range(4): a(mf16(Q + 16*b, ar(WA(b, q), 4), ar(RING[0] + 4*q, 4), vr(Q + 16*b, 16)))
    a(mf8(D, ar(B2F, 2), vr(SEL, 2), "0"), mf8(D + 16, ar(B2F, 2), vr(SEL + 2, 2), "0"), "s_nop 7", "s_nop 7")
    for i in range(64): a(f"v_exp_f32 v{NUM+i}, v{Q+i}")
    for i in range(64): a(f"v_add_f32 v{NUM+i}, 1.0, v{NUM+i}")
    for i in range(64): a(f"v_rcp_f32 v{NUM+i}, v{NUM+i}")
    for i in range(64): a(f"v_mul_f32 v{NUM+i}, v{NUM+i}, v{Q+i}")
    for i in range(32): a(f"v_cvt_pk_bf16_f32 v{DEN+i}, v{NUM+2*i}, v{NUM+2*i+1}")
    a("s_nop 1")
    for b in range(4):
        for m in range(2):
            for ob in range(2): a(mf16(D + 16*ob, ar(W2(b, m, ob), 4), vr(DEN + 8*b + 4*m, 4), vr(D + 16*ob, 16)))
    a("s_nop 7", "s_nop 7", f"s_mov_b64 exec, s[{sValid}:{sValid+1}]")
    for ob in range(2):
        for i in range(16): a(f"ds_add_f32 v{vA}, v{D+16*ob+i} offset:{4*(32*((i>>2)&1) + 4*(i&3) + 2*(i>>3) + ob)}")
    a("s_mov_b64 exec, -1", "s_waitcnt lgkmcnt(0)", "s_cmp_ge_u32 s94, 2", "s_cbranch_scc1 KS_RAW", f"s_add_u32 s49, s49, {32*12}", "s_branch KS_GRP")
    a("KS_NEXT:", "s_add_u32 s46, s46, 1", "s_cmp_lt_u32 s46, 64", "s_cbranch_scc1 KS_SEG")
    a("KS_DONE:", "s_waitcnt lgkmcnt(0)", "s_barrier")
    a(f"v_lshlrev_b32 v20, 5, v{tid}", f"v_add_u32 v20, {L_TAB}, v20", f"v_lshlrev_b32 v21, 4, v{tid}", "v_add_u32 v21, s50, v21")
    for i in range(7):
        if i == 6: a(f"v_cmp_gt_u32 vcc, {NB*8-1536}, v{tid}", "s_and_saveexec_b64 s[46:47], vcc", "s_cbranch_execz KS_END")
        a(f"ds_read_b128 v[24:27], v20 offset:{8192*i}", f"ds_read_b128 v[28:31], v20 offset:{8192*i+16}", "s_waitcnt lgkmcnt(0)")
        for j in range(4): a(f"v_cvt_pk_bf16_f32 v{32+j}, v{24+2*j}, v{25+2*j}")
        a(f"buffer_store_dwordx4 v[32:35], v21, s[{sOut}:{sOut+3}], 0 offen", "s_nop 1", "v_add_u32 v21, 4096, v21")
    a("KS_END:", "s_endpgm")

def kd(name, vgpr, accum, sgpr=102):
    return f""".amdhsa_kernel {name}
  .amdhsa_next_free_vgpr {vgpr}
  .amdhsa_next_free_sgpr {sgpr}
  .amdhsa_accum_offset {accum}
  .amdhsa_group_segment_fixed_size 0
  .amdhsa_kernarg_size 88
  .amdhsa_user_sgpr_count 2
  .amdhsa_user_sgpr_kernarg_segment_ptr 1
  .amdhsa_system_sgpr_workgroup_id_x 1
  .amdhsa_float_denorm_mode_32 3
.end_amdhsa_kernel
"""

def generate(**opt):
    OPT.update(opt)
    ref = open("standalone__edge_featured_mpnn_mpnn__graph.s.ref").read().split("\n")
    head = [x for x in ref if x.startswith(";") and "@launch" not in x and not x.startswith("; Override") and not x.startswith("; grid=")]
    head += [f"; @launch {'kernel=' + KNAME + ' ' if OPT.get('aslist') else ''}grid=(256,1,1) block=(256,1,1) lds={K2_LDS}"]
    a = Asm()
    a('.amdgcn_target "amdgcn-amd-amdhsa--gfx950"', ".text", f".globl {KNAME}", f".type {KNAME},@function")
    gen_k2(a)
    return "\n".join(head) + "\n" + a.text() + '.section .rodata,"a"\n.p2align 6\n' + kd(KNAME, 512, 256)

if __name__ == "__main__":
    out = sys.argv[1] if len(sys.argv) > 1 else "standalone__edge_featured_mpnn_mpnn__graph.s"
    opt = {}
    for x in sys.argv[2:]:
        k, v = x.split("="); opt[k] = int(v) if v.lstrip("-").isdigit() else v.replace("+", " ")
    open(out, "w").write(generate(**opt))
```

```python
import re, sys, struct, math

N, E = 50000, 800000
NB = 196
CH = 3200
NCH = 250
CAP = 47
REC_BYTES = E * 12
FRAG_OFF = REC_BYTES
NFRAG = 51
FRAG_BYTES = NFRAG * 1024
EPO_REL = 52 * 1024
TAB_REL = 53 * 1024
AUX_BYTES = TAB_REL + 256 * 2048
KNAME = "standalone__edge_featured_mpnn_mpnn__graph_kernel"
STAMP_OFF = 16 << 20
X_BYTES = N * 128

def f32(x): return "0x%08x" % struct.unpack("<I", struct.pack("<f", x))[0]
NLOG2E = f32(-math.log2(math.e))
NLN2 = f32(-math.log(2.0))

OPT = dict(stamps=False, force_slow=False, k1st="sc1", outst="sc1", late=4, onewait=0, pg=1)

class Asm:
    def __init__(self): self.l = []
    def __call__(self, *xs):
        for x in xs:
            if isinstance(x, (list, tuple)): self(*x)
            else:
                for y in x.split("\n"):
                    y = y.strip()
                    if y: self.l.append(y)
    def text(self):
        return "\n".join((x if (x.endswith(":") or x.startswith(".")) else "    " + x) for x in self.l) + "\n"

def vr(b, n): return f"v[{b}:{b+n-1}]"
def ar(b, n): return f"a[{b}:{b+n-1}]"

def srd(a, s, lo, hi, nrec):
    a(f"s_mov_b32 s{s}, s{lo}", f"s_mov_b32 s{s+1}, s{hi}", f"s_mov_b32 s{s+2}, {nrec}", f"s_mov_b32 s{s+3}, 0x00020000")

def wave_scan(a, v):
    for sh in (1, 2, 4, 8):
        a("s_nop 1", f"v_add_u32_dpp v{v}, v{v}, v{v} row_shr:{sh} row_mask:0xf bank_mask:0xf")
    a("s_nop 1", f"v_add_u32_dpp v{v}, v{v}, v{v} row_bcast:15 row_mask:0xa bank_mask:0xf")
    a("s_nop 1", f"v_add_u32_dpp v{v}, v{v}, v{v} row_bcast:31 row_mask:0xc bank_mask:0xf")

def isize(x):
    if x.endswith(":") or x.startswith("."): return 0
    op = x.split()[0]
    rest = x[len(op):]
    def lit():
        for tok in re.split(r"[,\s]+", rest):
            if re.fullmatch(r"-?(0x[0-9a-fA-F]+|\d+)", tok):
                v = int(tok, 0)
                if not (-16 <= v <= 64): return True
        return False
    if op in ("s_waitcnt", "s_nop", "s_barrier", "s_branch", "s_endpgm", "s_setprio") or op.startswith("s_cbranch"): return 4
    if op.startswith(("s_load", "s_memtime", "s_memrealtime")): return 8
    if op.startswith("s_"): return 8 if lit() else 4
    if op.startswith(("buffer_", "ds_", "global_", "v_mfma", "v_pk_", "v_accvgpr_read", "v_accvgpr_write")): return 8
    if op.endswith("_e64") or op.endswith("_dpp") or op.endswith("_sdwa"): return 8
    vop3 = ("v_mad_", "v_fma_", "v_max3", "v_min3", "v_cvt_pk_bf16", "v_lshl_add", "v_lshl_or", "v_bfe", "v_add3", "v_and_or",
            "v_readlane", "v_writelane", "v_maximum3", "v_mul_lo", "v_mul_hi", "v_add_lshl", "v_perm_b32", "v_or3")
    if op.startswith(vop3): return 8
    if op.startswith("v_cmp"):
        if not rest.strip().startswith("vcc"): return 8
        return 8 if lit() else 4
    if op == "v_cndmask_b32" and not rest.strip().endswith("vcc"): return 8
    return 8 if lit() else 4

PROMOTE = ("v_exp_f32 ", "v_rcp_f32 ", "v_mul_f32 ", "v_mov_b32 ", "v_lshrrev_b32 ", "v_add_u32 ", "v_lshlrev_b32 ")
def align8(lines):
    o = sum([x.split("\n") for x in lines], []); pos = 0; last = None
    for i, x in enumerate(o):
        s = isize(x)
        if x.startswith("v_pk_") and pos % 8 == 4:
            assert last is not None, "cannot align " + x
            op = o[last].split()[0]; o[last] = o[last].replace(op, op + "_e64", 1); pos += 4; last = None
        if x.startswith(PROMOTE) and s == 4: last = i
        elif x.startswith("v_pk_"): last = None
        pos += s
    return o, pos

L_CNT, L_HIST, L_FLAG, L_RANK, L_OUTO, L_XR = 0, 1024, 1280, 1536, 2560, 3584
L_TAB = L_XR + NB * 128
P1_CNT, P1_BASE, P1_STG = L_TAB, L_TAB + 1024, L_TAB + 2048
L_WS = P1_STG + CH * 12
ESZ = 12
K2_LDS = L_TAB + NB * CAP * ESZ

Q, NUM, DEN, D, EE = 16, 80, 144, 208, 240
ENT = (0, 4, 8)
vOff, vLds, vHalf, vPad, vLane, vT0, vT1 = 3, 7, 11, 12, 13, 14, 15
RING = (204, 220, 236)
aInfo, aNextL, aNextI, aStamp = 252, 253, 254, 255
def WA(b, q): return 4 * (4 * b + q)
def WC(b): return 64 + 2 * b
B1F, B2F = 72, 74
def WB(b, q): return 76 + 4 * (4 * b + q)
def W2(b, m, ob): return 140 + 4 * (4 * b + 2 * m + ob)
sX, sOut, sRec, sAux = 4, 8, 12, 16
sWave, sBucket, s128, sC, sStage, sTile, sL, sTmp, sTmp2, sP2B = 20, 21, 22, 23, 24, 25, 26, 27, 28, 29
sValid, sBad, sSave, sP2A = 30, 34, 36, 38
sMask0 = 52
TILE_A = [(0, 0, 30), (2, 0, 76), (2, 2, 104), (2, 4, 132)]
TILE_B = [(16, 160, 0), (14, 62, 192), (12, 18, 184), (12, 6, 176)]
assert all(t[0] % 2 == 0 and t[0] <= 4 for t in TILE_A) and all(t[0] % 2 == 0 and t[0] >= 12 for t in TILE_B)
def _check_map():
    seen = []
    for P, rp, rs in TILE_A + TILE_B: seen += list(range(rp, rp + P)) + list(range(rs, rs + 32 - 2*P))
    assert sorted(seen) == list(range(NB))
_check_map()

def pkfma(d, x, y, z): return f"v_pk_fma_f32 {vr(d,2)}, {vr(x,2)}, {vr(y,2)}, {vr(z,2)}"
def pkmul(d, x, y): return f"v_pk_mul_f32 {vr(d,2)}, {vr(x,2)}, {vr(y,2)}"
def mf16(d, A, B, c): return f"v_mfma_f32_32x32x16_bf16 {vr(d,16)}, {A}, {B}, {c}"
def mf8(d, A, B, c): return f"v_mfma_f32_32x32x8_bf16 {vr(d,16)}, {A}, {B}, {c}"

def edge_mfmas(b, dst, u):
    o = [mf8(dst, ar(WC(b), 2), vr(ENT[u], 2), vr(Q + 16*b, 16))]
    for q in range(4): o.append(mf16(dst, ar(WA(b, q), 4), ar(RING[u] + 4*q, 4), vr(dst, 16)))
    return o
def gather(u, q): return f"buffer_load_dwordx4 {ar(RING[u]+4*q,4)}, v{vOff}, s[{sX}:{sX+3}], 0 offen offset:{16*q}"
def mkoff(u): return f"v_mad_u32_u16 v{vOff}, v{ENT[u]+2}, s{s128}, v{vHalf} op_sel:[1,0,0,0]"
def entry(u, off): return f"ds_read_b96 {vr(ENT[u],3)}, v{vLds} offset:{off}"

def interleave(v, m, gap=3, start=0):
    o = []; k = 0
    for i, x in enumerate(v):
        if k < len(m) and i == start + k * gap: o.append(m[k]); k += 1
        o.append(x)
    return o + m[k:]

def icost(x):
    if x.startswith(("v_exp", "v_rcp", "v_mfma_f32_32x32x16")): return 8
    if x.startswith("buffer_"): return 12
    if x.startswith("ds_"): return 8
    return 4
def weave(fill, mf):
    o = []; k = 0; since = 99
    for i, x in enumerate(fill):
        if k < len(mf) and since >= 32 and i >= mf[k][1]:
            o.append(mf[k][0]); since = icost(mf[k][0]); k += 1
        o.append(x); since += icost(x)
    return o + [m for m, _ in mf[k:]]

def step(u, first, vm=3, b0=0):
    o = []
    nx, pre = (u + 1) % 3, (u + 2) % 3
    for b in range(b0, 4):
        n, dn = NUM + 16*b, DEN + 16*b
        t = n if first else D + 16*(b & 1)
        e = dn if first else EE
        ex = [f"v_exp_f32 v{e+i}, v{t+i}" for i in range(16)]
        if b < 3: m = edge_mfmas(b + 1, NUM + 16*(b+1) if first else D + 16*((b+1) & 1), u)
        else: m = edge_mfmas(0, D, nx)
        A = interleave(ex, m)
        if OPT.get("onewait") == 1: A = [m[0]] + ex[:2] + interleave(ex[2:], m[1:])
        mid, end = [gather(pre, b)], []
        if b == 0 and not first: end = [f"v_cmpx_gt_i32 vcc, s{sC}, v{vPad}"]
        if b == 1:
            if not first: end = [f"s_sub_u32 s{sC}, s{sC}, 1"]
            if b0: mid, end = [gather(pre, 0)], [gather(pre, 1)]
        if b == 2:
            if OPT.get("onewait") == 2: A = [m[0]] + ex[:2] + [entry(u, 36 + ESZ*u)] + interleave(ex[2:], m[1:])
            elif OPT.get("onewait"): A = A[:6] + [entry(u, 36 + ESZ*u)] + A[6:]
            else: end = [entry(u, 36 + ESZ*u)]
        if b == 3:
            mid = [f"s_waitcnt vmcnt({vm}) lgkmcnt(0)"] + mid if OPT.get("onewait") else [f"s_waitcnt vmcnt({vm})"] + mid
            end = ([] if OPT.get("onewait") else ["s_waitcnt lgkmcnt(0)"]) + [mkoff(u)]
            if u == 2: end += [f"v_add_u32 v{vLds}, 36, v{vLds}"]
            if OPT.get("steps"): end += [f"v_writelane_b32 v{vT0}, s100, m0", "s_mov_b32 s99, m0", "s_addk_i32 s99, 1" if first else "s_cselect_b32 s98, 1, 0\ns_addk_i32 s99, 1\ns_cmp_lg_u32 s98, 0", "s_mov_b32 m0, s99"]
        if b == 2 and OPT.get("steps"): end = end + ["s_memtime s[100:101]"]
        if first:
            p = [f"v_pk_add_f32 {vr(dn+i,2)}, {vr(dn+i,2)}, 1.0 op_sel_hi:[1,0]" for i in range(0, 16, 2)]
        else:
            p = [pkfma(n+i, n+i, EE+i, n+i) for i in range(0, 16, 2)]
            p += [pkfma(n+i, t+i, dn+i, n+i) for i in range(0, 16, 2)]
            p += [pkfma(dn+i, dn+i, EE+i, dn+i) for i in range(0, 16, 2)]
        if not first and OPT.get("pkord", 0):
            pa, pb, pc = p[:8], p[8:16], p[16:]
            if OPT["pkord"] == 1: p = sum([[pa[i], pb[i], pc[i]] for i in range(8)], [])
            if OPT["pkord"] == 2:
                p = [pa[0]]
                for i in range(8): p += ([pa[i+1]] if i < 7 else []) + [pb[i], pc[i]]
            if OPT["pkord"] == 3:
                p = [pkfma(n+i, EE+i, n+i, n+i) for i in range(0, 16, 2)] + [pkfma(n+i, dn+i, t+i, n+i) for i in range(0, 16, 2)] + [pkfma(dn+i, EE+i, dn+i, dn+i) for i in range(0, 16, 2)]
        blk = A[:2] + mid + A[2:] + end + p
        x = OPT.get("exp", 0)
        if not first:
            if x & 1: blk = [("s_nop 1" if i.startswith("v_mfma") else i) for i in blk]
            if x & 2: blk = [("s_nop 0" if i.startswith("v_pk") else i) for i in blk]
            if x & 4: blk = [("s_nop 1" if (i.startswith("v_exp") and not i.endswith(f"v{t+15}")) else i) for i in blk]
            if x & 8: blk = [("s_nop 1" if i.startswith("buffer_load") else i) for i in blk]
            if x & 16:
                c0 = m[0].split(", ")[-1]
                blk = [("s_nop 0" if i == m[0] else (", ".join(i.split(", ")[:-1] + [c0]) if i == m[1] else i)) for i in blk]
            if x & 64: blk = [("s_nop 1" if i == m[4] else i) for i in blk]
            if x & 128: blk = [("s_nop 1" if i in (m[3], m[4]) else i) for i in blk]
            if x & 256:
                blk = [("v_pk_mov_b32 v[14:15], v[14:15], v[14:15]" if i in p[:8] else i) for i in blk]
            if x & 512: blk = [("v_pk_mov_b32 v[14:15], v[14:15], v[14:15]" if i in p[8:16] else i) for i in blk]
        o += blk
    return o

SEL = EE + 4
def selectors():
    return [f"v_mov_b32 v{SEL}, 0x3f80", f"v_mov_b32 v{SEL+1}, 0", f"v_mov_b32 v{SEL+2}, 1.0", f"v_mov_b32 v{SEL+3}, 0",
            f"v_mov_b32 v{SEL+4}, 0", f"v_mov_b32 v{SEL+5}, 0x3f80", f"v_mov_b32 v{SEL+6}, 0", f"v_mov_b32 v{SEL+7}, 1.0"]
def q_mfmas(b):
    o = [mf8(Q + 16*b, ar(B1F, 2), vr(SEL + 2*b, 2), "0")]
    for q in range(4): o.append(mf16(Q + 16*b, ar(WB(b, q), 4), ar(RING[2] + 4*q, 4), vr(Q + 16*b, 16)))
    return o
def hdr_reads(vinfo, tmp):
    o = [f"v_and_b32 v{tmp[0]}, 0xffff, v{vinfo}", f"ds_read_b128 {ar(RING[2],4)}, v{tmp[0]} offset:{L_XR}"]
    for q in range(1, 4): o += [f"v_xor_b32 v{tmp[q]}, {16*q}, v{tmp[0]}", f"ds_read_b128 {ar(RING[2]+4*q,4)}, v{tmp[q]} offset:{L_XR}"]
    return o
def tile_scalars(vinfo, sp2):
    return [f"v_lshrrev_b32 v{vPad}, 16, v{vinfo}", f"s_mov_b32 s{sStage}, 0",
            f"v_readlane_b32 s{sL}, v{vPad}, 0", f"v_readlane_b32 s{sTmp}, v{vPad}, s{sp2}", f"v_cmp_lt_u32 s[{sValid}:{sValid+1}], 0, v{vPad}",
            f"s_max_u32 s{sL}, s{sL}, s{sTmp}", f"s_max_u32 s{sL}, s{sL}, 4", f"s_sub_u32 s{sC}, s{sL}, 4", f"s_sub_u32 s{sL}, s{sL}, 3",
            f"v_sub_u32 v{vPad}, s{sL}, v{vPad}"]

def epilogue(a, nxt):
    lab = "T" if nxt else "F"
    CHK, AD, P = EE + 12, DEN + 24, DEN + 32
    so = OPT.get("outst", "")
    a("s_mov_b64 exec, -1", f"s_cmp_lg_u64 s[{sValid}:{sValid+1}], -1", f"s_cbranch_scc1 K2_{lab}FIX", ".p2align 3", f"K2_{lab}GO:")
    o = [f"v_accvgpr_read_b32 v{EE+2}, a{aInfo}"]
    if nxt:
        o = [f"v_accvgpr_read_b32 v{vLds}, a{aNextL}", f"v_accvgpr_read_b32 v{vT0}, a{aNextI}", f"ds_read_b32 v{ENT[0]+2}, v{vLds} offset:8"] + o
        o += [f"s_mov_b32 s{sX+2}, {X_BYTES}"]
    o += [f"v_lshrrev_b32 v{EE+2}, 16, v{EE+2}", f"v_cvt_f32_u32 v{EE+2}, v{EE+2}", f"v_mov_b32 v{EE+1}, 0", f"v_mov_b32 v{EE+3}, 0", f"v_lshrrev_b32 v{EE}, 16, v{EE+2}"]
    def chk(b):
        dn = DEN + 16*b
        return [(pkmul(CHK, dn, dn + 8) if (b == 0 and i == 0) else pkfma(CHK, dn+i, dn+8+i, CHK)) for i in range(0, 8, 2)]
    def cvt(b): return [f"v_cvt_pk_bf16_f32 v{DEN+16*b+i//2}, v{NUM+16*b+i}, v{NUM+16*b+i+1}" for i in range(0, 16, 2)]
    def w2(b): return [mf16(D + 16*ob, vr(DEN + 16*b + 4*m, 4), ar(W2(b, m, ob), 4), vr(D + 16*ob, 16)) for m in range(2) for ob in range(2)]
    tk = [0]
    def tick():
        if OPT.get("ticks") and nxt: o.append(f"s_memtime s[{52+2*tk[0]}:{53+2*tk[0]}]"); tk[0] += 1
    if OPT.get("ticks") and nxt: o.insert(0, "s_memtime s[52:53]"); tk[0] = 1
    o += chk(0)
    JS = list(range(8)) if nxt else [0, 2, 4, 6, 7]
    ad = lambda j: AD + 4*(j & 1) + (j >> 1)
    oread = [f"v_lshrrev_b32 v{vT1}, 4, v{vLane}", f"v_lshl_add_u32 v{vT1}, v{vT1}, 5, s{sTile}", f"ds_read_b128 {vr(AD,4)}, v{vT1} offset:{L_OUTO}",
             f"ds_read_b128 {vr(AD+4,4)}, v{vT1} offset:{L_OUTO+16}" if nxt else f"ds_read_b32 v{AD+7}, v{vT1} offset:{L_OUTO+28}",
             f"v_and_b32 v{vT1}, 15, v{vLane}"]
    oadd = [f"v_lshl_add_u32 v{ad(j)}, v{vT1}, 3, v{ad(j)}" for j in JS]
    lim = [f"v_lshrrev_b32 v{EE}, 4, v{vHalf}", f"v_sub_u32 v{EE}, s{sP2A if nxt else sP2B}, v{EE}"]
    ts = tile_scalars(vT0, sP2B)
    Q4 = [q_mfmas(k) for k in range(4)]
    for b in range(4):
        n, dn = NUM + 16*b, DEN + 16*b
        rc = [f"v_rcp_f32 v{dn+i}, v{dn+i}" for i in range(16)]
        pre = cvt(b - 1) if b else []
        if b == 0: mf = [(mf8(D, vr(EE, 2), ar(B2F, 2), "0"), 0), (mf8(D + 16, vr(EE + 2, 2), ar(B2F, 2), "0"), 0)]
        else: mf = [(x, 6 if k < 2 else 10) for k, x in enumerate(w2(b - 1))]
        if nxt:
            if b == 0:
                fill = selectors() + ["s_waitcnt lgkmcnt(0)", mkoff(0), gather(0, 0)] + rc[:9] + ["s_waitcnt vmcnt(1)"] + \
                       interleave(hdr_reads(vT0, [vT1, vPad, EE+14, EE+15]), rc[9:13], 2, 2) + [gather(0, 1)] + rc[13:]
                mf = mf + [(Q4[k][0], 10) for k in range(4)]
            else:
                ex = {1: [f"ds_read2_b32 {vr(ENT[0],2)}, v{vLds} offset0:0 offset1:1", entry(1, ESZ), gather(0, 2), entry(2, 2*ESZ), f"v_accvgpr_write_b32 a{aInfo}, v{vT0}"] + lim + [gather(0, 3)],
                      2: ["s_waitcnt lgkmcnt(0)", mkoff(1)] + oread + [gather(1, 0), f"s_add_u32 s{sTile}, s{sTile}, 128"] + ts[:5],
                      3: [gather(1, 1), "s_waitcnt lgkmcnt(0)", f"v_add_f32 v{CHK}, v{CHK}, v{CHK+1}"] + oadd + [gather(1, 2)]}[b]
                fill = pre + interleave(rc, ex, 1, 1)
                if b == 1:
                    fill = ["s_waitcnt lgkmcnt(0)"] + fill
                    mf = [(x, 1) for x in Q4[0][1:]] + mf + [(Q4[2][1], 0)]
                elif b == 2: mf = [(x, 0) for x in Q4[1][1:]] + mf + [(Q4[2][2], 0)]
                else:
                    fm = edge_mfmas(0, NUM, 0); k = len(fill) - 19
                    assert fill.index(gather(1, 1)) < k < fill.index(gather(1, 2))
                    fill = fill[:k] + ["s_waitcnt vmcnt(2)"] + fill[k:]
                    mf = [(fm[0], 0)] + mf + [(x, k + 1) for x in fm[1:]]
        else:
            fill = pre + rc
        tick()
        o += weave(fill, mf)
        tick()
        mu = [pkmul(n+i, n+i, dn+i) for i in range(0, 16, 2)]
        o += interleave(mu, chk(b + 1), 2, 1) if b < 3 else mu
    wm = w2(3)
    c3 = cvt(3)
    mx = lambda j: f"v_maximum3_f32 v{CHK}, v{CHK}, |v{D+2*j}|, |v{D+2*j+1}|"
    bad = [f"v_cmp_ngt_f32 vcc, {f32(2.0**120)}, v{CHK}", f"s_or_b64 s[{sBad}:{sBad+1}], s[{sBad}:{sBad+1}], vcc"]
    def outp(js, tail):
        r = []; tail = list(tail)
        for k in range(len(js) + 2):
            if k < len(js):
                j = js[k]; r += [f"v_cvt_pk_bf16_f32 v{P+2*j}, v{D+2*j}, v{D+16+2*j}", f"v_cvt_pk_bf16_f32 v{P+2*j+1}, v{D+2*j+1}, v{D+17+2*j}"]
            else: r += tail[:2]; tail = tail[2:]
            if 1 <= k <= len(js): j = js[k-1]; r += [f"v_permlane16_swap_b32 v{P+2*j}, v{P+2*j+1}"]
            if k >= 2: j = js[k-2]; r += [f"buffer_store_dwordx2 {vr(P+2*j,2)}, v{ad(j)}, s[{sOut}:{sOut+3}], 0 offen {so}"]
        return r + tail
    if nxt:
        q3 = q_mfmas(3); n1 = edge_mfmas(1, NUM + 16, 0)
        tick()
        o += weave(c3 + [f"v_exp_f32 v{DEN+i}, v{NUM+i}" for i in range(16)] + [gather(1, 3), mkoff(2)] + ts[5:],
                   [(Q4[2][3], 0), (wm[0], 6), (wm[1], 6), (wm[2], 10), (wm[3], 10), (Q4[2][4], 0)])
        tick()
        o += [f"v_pk_add_f32 {vr(DEN+i,2)}, {vr(DEN+i,2)}, 1.0 op_sel_hi:[1,0]" for i in range(0, 16, 2)]
        o += [f"v_cmpx_lt_i32_e64 vcc, 0, v{EE}"] + [f"v_pk_add_f32 {vr(D+16*ob,2)}, {vr(D+16*ob,2)}, {vr(D+16*ob+2,2)}" for ob in range(2)] + ["s_mov_b64 exec, -1"]
        tick()
        o += weave(outp(JS, [mx(j) for j in range(8)] + bad), [(x, 1) for x in n1 + q3[1:]])
        tick()
    else:
        o += c3[:6] + [wm[0]] + c3[6:] + oread[:3] + [wm[2]] + oread[3:] + lim + [f"v_add_f32 v{CHK}, v{CHK}, v{CHK+1}", wm[1], "s_nop 2", "s_waitcnt lgkmcnt(0)"] + oadd[:2] + [wm[3]] + oadd[2:]
        pa = lambda ob, g: f"v_pk_add_f32 {vr(D+16*ob+4*g,2)}, {vr(D+16*ob+4*g,2)}, {vr(D+16*ob+4*g+2,2)}"
        o += ["v_mov_b32 v20, 0", "v_mov_b32 v21, 1", "s_nop 3"] + [pa(0, g) for g in range(3)] + [pa(1, g) for g in range(3)]
        o += [f"v_cmpx_lt_i32_e64 vcc, 24, v{EE}", pa(0, 3), pa(1, 3), "s_mov_b64 exec, -1"]
        o += outp(JS, [mx(j) for j in JS] + bad)
    o, n = align8(o)
    a(o)
    return n

def fixup(a, lab):
    a(f"K2_{lab}FIX:", f"s_andn2_b64 exec, -1, s[{sValid}:{sValid+1}]")
    for i in range(64): a(f"v_mov_b32 v{NUM+i}, 0", f"v_mov_b32 v{DEN+i}, 1.0")
    a("s_mov_b64 exec, -1", f"s_branch K2_{lab}GO")

def st2(a, idx):
    if OPT.get("lite"):
        if idx == 0: a("s_memrealtime s[100:101]")
        if idx == 11: a("s_memrealtime s[50:51]", f"v_mov_b32 v{vT1}, 0", "s_waitcnt lgkmcnt(0)", f"v_writelane_b32 v{vT1}, s100, 16", f"v_writelane_b32 v{vT1}, s50, 27", "s_nop 0", f"v_accvgpr_write_b32 a{aStamp}, v{vT1}")
    elif OPT["stamps"]:
        a("s_memtime s[100:101]", "s_memrealtime s[50:51]", "s_mov_b64 s[48:49], exec", "s_mov_b64 exec, -1", f"v_accvgpr_read_b32 v{vT1}, a{aStamp}", "s_waitcnt lgkmcnt(0)", "s_nop 0",
          f"v_writelane_b32 v{vT1}, s100, {idx}", f"v_writelane_b32 v{vT1}, s50, {idx+16}", f"v_writelane_b32 v{vT1}, s{sL}, {idx+32}", "s_nop 0", f"v_accvgpr_write_b32 a{aStamp}, v{vT1}", "s_mov_b64 exec, s[48:49]")

def gen_build(a, lab, g, store, P, mid=None, post=None):
    R1, R2, R3, T = 64, 72, 80, 96
    for r_, n_ in ((56, 132*128*2), (60, 256), (64, 128*64*2), (68, 128)): a(f"s_mov_b32 s{r_+2}, {n_}", f"s_mov_b32 s{r_+3}, 0x00020000")
    a(f"v_and_b32 v{T}, 31, v{vLane}", f"v_lshrrev_b32 v{T+1}, 5, v{vLane}",
      f"v_lshlrev_b32 v{T+2}, 13, v{T+1}", f"v_lshl_add_u32 v{T+2}, v{T}, 1, v{T+2}",
      f"v_and_b32 v{T+5}, 15, v{T}", f"v_lshrrev_b32 v{T+4}, 4, v{T}", f"v_lshl_or_b32 v{T+5}, v{T+5}, 1, v{T+4}", f"v_lshlrev_b32 v{T+5}, 2, v{T+5}",
      f"v_lshl_add_u32 v{T+3}, v{T+1}, 9, v{T+5}", f"v_lshlrev_b32 v{T+4}, 1, v{T}", f"v_cmp_eq_u32 s[88:89], 1, v{T+1}")
    def w1(f, off, dst):
        a(f"s_and_b32 s{off}, s{f}, 3", f"s_lshl_b32 s{off}, s{off}, 11", f"s_bfe_u32 s99, s{f}, 0x20002", "s_lshl_b32 s99, s99, 6", f"s_add_u32 s{off}, s{off}, s99",
          f"s_lshr_b32 s99, s{f}, 4", f"s_mul_i32 s{dst}, s99, 3", "s_lshl_b32 s99, s99, 14", f"s_add_u32 s{off}, s{off}, s99", f"s_add_u32 s{dst}, s{dst}, s{f}", f"s_lshl_b32 s{dst}, s{dst}, 10")
    w1(g, 95, 90)
    a(f"s_add_u32 s98, s{g}, 24"); w1(98, 96, 91)
    a(f"s_sub_u32 s99, s{g}, 8", "s_add_u32 s98, s99, 35", "s_lshl_b32 s98, s98, 10", "s_lshr_b32 s97, s99, 1", "s_lshl_b32 s97, s97, 11", "s_and_b32 s99, s99, 1",
      "s_lshl_b32 s99, s99, 1", "s_add_u32 s97, s97, s99", f"s_cmp_ge_u32 s{g}, 8", "s_cselect_b32 s91, s98, s91", "s_cselect_b32 s96, s97, s96",
      f"s_sub_u32 s92, s{g}, 5", "s_lshl_b32 s92, s92, 10", f"s_sub_u32 s97, s{g}, 21", "s_lshl_b32 s97, s97, 7", f"s_add_u32 s97, s97, {128*256}")
    if mid: mid()
    for k in range(4): a(f"s_mov_b64 s[{56+4*k}:{57+4*k}], s[{P+2*k}:{P+2*k+1}]")
    for j in range(8): a(f"buffer_load_ushort v{R1+j}, v{T+2}, s[56:59], s95 offen offset:{256*j}")
    a(f"s_cmp_ge_u32 s{g}, 8", f"s_cbranch_scc1 {lab}_W2")
    for j in range(8): a(f"buffer_load_ushort v{R2+j}, v{T+2}, s[56:59], s96 offen offset:{256*j}")
    a(f"s_mov_b32 s99, {NLOG2E}", f"s_branch {lab}_C")
    a(f"{lab}_W2:")
    for j in range(8): a(f"buffer_load_ushort v{R2+j}, v{T+3}, s[64:67], s96 offen offset:{128*(8*(j>>2)+(j&3))}")
    a(f"s_mov_b32 s99, {NLN2}", f"s_cmp_lt_u32 s{g}, 21", f"s_cbranch_scc1 {lab}_C", f"s_cmp_eq_u32 s{g}, 23", f"s_cbranch_scc1 {lab}_B")
    for j in range(8): a(f"buffer_load_ushort v{R3+j}, v{T+4}, s[56:59], s97 offen offset:{256*(j&3)+64*(j>>2)}")
    a(f"s_branch {lab}_C")
    a(f"{lab}_B:")
    for j in range(4): a(f"buffer_load_ushort v{R3+j}, v{T+4}, s[60:63], 0 offen offset:{64*j}")
    a(f"buffer_load_dword v{T+6}, v{T+5}, s[68:71], 0 offen")
    for j in range(4, 8): a(f"v_mov_b32 v{R3+j}, 0")
    a(f"{lab}_C:", f"s_mov_b32 s98, {NLOG2E}")
    n = post() if post else 0
    a(f"s_waitcnt vmcnt({n})")
    for R, sc_, dst, o in ((R1, 98, 90, 108), (R2, 99, 91, 112)):
        for j in range(8): a(f"v_lshlrev_b32 v{R+j}, 16, v{R+j}", f"v_mul_f32 v{R+j}, s{sc_}, v{R+j}")
        for j in range(4): a(f"v_cvt_pk_bf16_f32 v{o+j}, v{R+2*j}, v{R+1+2*j}")
        store(o, dst)
    a(f"s_cmp_lt_u32 s{g}, 21", f"s_cbranch_scc1 {lab}_E")
    for j in range(8): a(f"v_lshlrev_b32 v{R3+j}, 16, v{R3+j}", f"v_mul_f32 v{R3+j}, s98, v{R3+j}")
    for j in range(4):
        a(f"v_cvt_pk_bf16_f32 v{R3+8+j}, v{R3+2*j}, v{R3+1+2*j}",
          f"v_lshlrev_b32 v{T+8}, 16, v{R3+8+j}", f"v_and_b32 v{T+9}, 0xffff0000, v{R3+8+j}",
          f"v_sub_f32 v{T+8}, v{R3+2*j}, v{T+8}", f"v_sub_f32 v{T+9}, v{R3+1+2*j}, v{T+9}",
          f"v_cvt_pk_bf16_f32 v{T+8}, v{T+8}, v{T+9}", f"v_cndmask_b32 v{R3+8+j}, v{R3+8+j}, v{T+8}, s[88:89]")
    a(f"s_cmp_eq_u32 s{g}, 23", f"s_cbranch_scc0 {lab}_S")
    a(f"v_cndmask_b32 v{R3+10}, v{T+6}, 0, s[88:89]")
    a(f"{lab}_S:"); store(R3 + 8, 92)
    a(f"{lab}_E:")

TMO = 600
def gen_k2(a):
    a(".p2align 12" if OPT.get("pg") else ".p2align 8", f"{KNAME}:")
    a("s_cmp_ge_u32 s2, 256", "s_cbranch_scc1 K2_END")
    if OPT["stamps"] and not OPT.get("lite"): a(f"v_accvgpr_write_b32 a{aStamp}, 0")
    st2(a, 0)
    a("s_load_dwordx16 s[72:87], s[0:1], 0", "s_load_dwordx2 s[44:45], s[0:1], 80", "s_load_dwordx2 s[42:43], s[0:1], 64")
    a("s_getpc_b64 s[52:53]", "K2_PC:", "s_mov_b32 s54, K2_SLOW-K2_PC", "s_mov_b32 s55, 0x00020000", "v_lshlrev_b32 v2, 7, v0", "buffer_load_dword v2, v2, s[52:55], 0 offen")
    tid, vInit, vT4, vZ, vL16, vTag, vT16, vPoll, vPB = 16, 17, 18, 20, 25, 22, 19, 24, 35
    vE = 56
    a(f"v_mov_b32 v{tid}, v0", f"v_and_b32 v{vLane}, 63, v0", "v_lshrrev_b32 v1, 6, v0", "s_cmp_ge_u32 s2, 250")
    a(f"v_readfirstlane_b32 s{sWave}, v1", "s_cbranch_scc1 K2_BUILD")
    vJ16, vN16, vStart, vCnt, vTw, vXs = 27, 28, 31, 32, 33, 34
    vT32, vR4, vR8 = 60, 61, 62
    init = Asm(); c = init
    c(f"s_and_b32 s{sBucket}, s2, 7", f"s_lshl_b32 s{sBucket}, s{sBucket}, 5", "s_lshr_b32 s3, s2, 3", f"s_add_u32 s{sBucket}, s{sBucket}, s3")
    c(f"v_lshlrev_b32 v{vT16}, 4, v{tid}", f"v_lshlrev_b32 v{vL16}, 4, v{vLane}", f"v_and_b32 v36, 31, v{vLane}")
    c(f"v_mul_u32_u24 v{vInit}, {CAP*ESZ}, v{tid}", f"v_add_u32 v{vInit}, {L_TAB}, v{vInit}")
    c(f"v_lshlrev_b32 v{vT4}, 2, v{tid}", f"v_mov_b32 v{vZ}, 0", f"v_mov_b32 v{vZ+1}, 0", f"v_lshlrev_b32 v26, 3, v{vLane}")
    c(f"ds_write_b32 v{vT4}, v{vInit} offset:{L_CNT}", f"ds_write_b64 v26, v[{vZ}:{vZ+1}] offset:{L_HIST}", f"ds_write_b32 v{vT4}, v{vZ} offset:{P1_CNT}")
    for r_, n_ in ((sAux, AUX_BYTES), (sX, X_BYTES), (sOut, X_BYTES), (sRec, REC_BYTES)): c(f"s_mov_b32 s{r_+2}, {n_}", f"s_mov_b32 s{r_+3}, 0x00020000")
    c(f"s_mov_b32 s40, {EPO_REL}")
    ptrs = [f"s_add_u32 s{sAux}, s44, {FRAG_OFF}", f"s_addc_u32 s{sAux+1}, s45, 0",
            f"s_mov_b64 s[{sRec}:{sRec+1}], s[44:45]", f"s_mov_b64 s[{sX}:{sX+1}], s[72:73]", f"s_mov_b64 s[{sOut}:{sOut+1}], s[42:43]"]
    a(init.l)
    a(f"v_lshlrev_b32 v{vT32}, 5, v{tid}", f"v_lshl_add_u32 v{vR4}, v1, 5, v36", f"v_lshlrev_b32 v{vR8}, 3, v{vR4}", f"v_lshlrev_b32 v{vR4}, 2, v{vR4}")
    a(f"s_mul_i32 s88, s2, {CH*4}", "s_add_u32 s89, s88, 4096", "s_add_u32 s90, s88, 8192", "s_add_u32 s91, s88, 12288")
    for g in range(4): a(f"s_lshl_b32 s{92+g}, s{88+g}, 1")
    for r_, n_ in ((56, E*4), (60, E*4), (64, E*8), (68, CH*12)): a(f"s_mov_b32 s{r_+2}, {n_}", f"s_mov_b32 s{r_+3}, 0x00020000")
    a(f"s_mul_i32 s41, s2, {CH*12}")
    a("s_waitcnt lgkmcnt(0)")
    st2(a, 12)
    DS, SR, BK, RK, AT = 64, 80, 96, 112, 128
    a("s_mov_b64 s[56:57], s[78:79]")
    consts = Asm()
    c = consts
    c(f"s_movk_i32 s{s128}, 128", f"s_mov_b64 s[{sBad}:{sBad+1}], 0", "s_mov_b32 s32, 0", "s_mov_b32 s41, 0xffff")
    c(f"v_and_b32 v{vJ16}, 15, v{vLane}", f"v_not_b32 v{vN16}, v{vJ16}", f"v_mul_u32_u24 v{vJ16}, 12, v{vJ16}")
    c(f"v_lshrrev_b32 v{vHalf}, 5, v{vLane}", f"v_lshlrev_b32 v{vHalf}, 6, v{vHalf}", f"v_mov_b32 v{vTw}, 12")
    c(f"v_lshrrev_b32 v{vXs}, 3, v{vLane}", f"v_lshlrev_b32 v{vXs}, 4, v{vXs}", f"v_xor_b32 v{vXs}, v{vXs}, v{vL16}")
    c(f"v_mul_u32_u24 v{vStart}, {CH*12}, v{tid}")
    c("v_bfe_u32 v29, v36, 2, 1", "v_and_b32 v30, 1, v36", "v_lshl_or_b32 v29, v29, 1, v30", "v_bfe_u32 v30, v36, 1, 1", "v_lshl_or_b32 v29, v29, 1, v30",
      "v_lshrrev_b32 v30, 3, v36", "v_lshl_or_b32 v29, v29, 2, v30", "v_lshlrev_b32 v29, 2, v29")
    c(f"s_lshl_b32 s{sTmp}, s{sBucket}, 3", f"s_add_u32 s{sTmp}, s{sTmp}, {TAB_REL}", f"v_lshlrev_b32 v{vPoll}, 11, v{tid}", f"v_add_u32 v{vPoll}, s{sTmp}, v{vPoll}",
      f"v_min_u32 v{vPB}, 5, v{vLane}", f"v_add_u32 v{vPB}, 250, v{vPB}", f"v_lshlrev_b32 v{vPB}, 11, v{vPB}", f"v_add_u32 v{vPB}, s{sTmp}, v{vPB}")
    ROLE = {"A": 44, "B": 50}
    c(f"s_lshl_b32 s3, s{sWave}, 3", "s_or_b32 s3, s3, 0x80000", "v_lshrrev_b32 v37, 2, v36", "v_and_b32 v38, 1, v36", "v_lshl_or_b32 v37, v37, 1, v38", "v_bfe_u32 v38, v36, 1, 1")
    for nm, T, sp in (("A", TILE_A, sP2A), ("B", TILE_B, sP2B)):
        r = ROLE[nm]
        pk = lambda f: hex(sum((f(t) & 255) << (8*w) for w, t in enumerate(T)))
        c(f"s_bfe_u32 s{sp}, {pk(lambda t: 2*t[0])}, s3", f"s_bfe_u32 s46, {pk(lambda t: t[1])}, s3", f"s_bfe_u32 s47, {pk(lambda t: t[2])}, s3", f"s_sub_u32 s47, s47, s{sp}")
        c(f"v_cmp_gt_u32 vcc, s{sp}, v36", f"v_add_u32 v{r}, s47, v36", f"v_add_u32 v39, s46, v37", f"v_cndmask_b32 v{r}, v{r}, v39, vcc", f"v_lshlrev_b32 v{r}, 2, v{r}",
          f"v_cndmask_b32 v{r+2}, 0, 1, vcc", f"v_and_b32 v{r+3}, v{r+2}, v38", f"v_sub_u32 v{r+1}, v{r+2}, v{r+3}", f"v_lshlrev_b32 v{r+4}, 30, v{r+3}", f"v_mul_u32_u24 v{r+3}, 12, v{r+3}")
    c(f"s_mul_i32 s33, s{sWave}, 6144", f"s_mul_i32 s39, s{sBucket}, {NB*128}", "s_add_u32 s39, s39, s33", f"s_mul_i32 s46, s{sWave}, {13*1024}",
      "s_lshl_b32 s47, s2, 11", f"s_add_u32 s47, s47, {TAB_REL}")
    epoch = f"buffer_load_dwordx2 {vr(vTag,2)}, v{vZ}, s[{sAux}:{sAux+3}], s40 offen sc1"
    mktag = [f"v_add_u32 v{vTag}, 1, v{vTag}", f"v_and_b32 v{vTag+1}, 0xff000000, v{vTag+1}"]
    lo, full = ["s_mov_b32 exec_hi, 0"], ["s_mov_b32 exec_hi, -1"]
    vm = []
    for g in range(3): a(f"buffer_load_dwordx4 {vr(DS+4*g,4)}, v{vT16}, s[56:59], s{88+g} offen"); vm.append(("d", g))
    a(lo, f"buffer_load_dword v{DS+12}, v{vR4}, s[56:59], s91 offen", full); vm.append(("d", 3))
    a("s_mov_b64 s[60:61], s[76:77]", "s_mov_b64 s[64:65], s[74:75]", "s_add_u32 s68, s44, s41", "s_addc_u32 s69, s45, 0", ptrs)
    a("s_barrier")
    def grp(g):
        if g < 3:
            a(f"buffer_load_dwordx4 {vr(SR+4*g,4)}, v{vT16}, s[60:63], s{88+g} offen", f"buffer_load_dwordx4 {vr(AT+8*g,4)}, v{vT32}, s[64:67], s{92+g} offen",
              f"buffer_load_dwordx4 {vr(AT+8*g+4,4)}, v{vT32}, s[64:67], s{92+g} offen offset:16"); vm.extend([0, 0, ("g", g)])
        else:
            a(lo, f"buffer_load_dword v{SR+12}, v{vR4}, s[60:63], s91 offen", f"buffer_load_dwordx2 {vr(AT+24,2)}, v{vR8}, s[64:67], s95 offen", full, epoch); vm.extend([0, ("g", 3), "e"])
    def vmw(x): return f"s_waitcnt vmcnt({len(vm) - 1 - vm.index(x)})"
    G0 = OPT.get("g0", 1)
    for g in range(G0): grp(g)
    a(consts.l, "s_movk_i32 s96, -196", f"s_movk_i32 s97, {P1_STG}")
    for e in range(13):
        if e % 4 == 0: a(vmw(("d", e//4)))
        if e == 0: st2(a, 13)
        if e == 12: a(lo)
        a(f"v_mul_u32_u24 v{BK+e}, 85599, v{DS+e}", f"v_lshrrev_b32 v{BK+e}, 22, v{BK+e}", f"v_and_b32 v{BK+e}, 0x3fc, v{BK+e}",
          f"ds_add_rtn_u32 v{RK+e}, v{BK+e}, v{vTw} offset:{P1_CNT}")
    a(full)
    for g in range(G0, 4): grp(g)
    for e in range(13): a(f"v_lshlrev_b32 v{DS+e}, 2, v{DS+e}", f"v_mad_i32_i24 v{DS+e}, v{BK+e}, s96, v{DS+e}")
    a("s_waitcnt lgkmcnt(0)", "s_barrier")
    a(f"s_cmp_lg_u32 s{sWave}, 0", "s_cbranch_scc1 K2_SC")
    a(f"ds_read_b128 v[4:7], v{vT16} offset:{P1_CNT}", "s_waitcnt lgkmcnt(0)")
    a("v_add_u32 v8, v4, v5", "v_add3_u32 v8, v8, v6, v7", "v_mov_b32 v9, v8")
    wave_scan(a, 9)
    a("v_sub_u32 v40, v9, v8", "v_add_u32 v41, v40, v4", "v_add_u32 v42, v41, v5", "v_add_u32 v43, v42, v6")
    a(f"ds_write_b128 v{vT16}, v[40:43] offset:{P1_BASE}", "s_waitcnt lgkmcnt(0)")
    a("K2_SC:", f"v_lshlrev_b32 v8, 3, v{tid}", "s_barrier")
    st2(a, 14)
    ops = []
    def rd(e): a(f"ds_read_b32 v{BK+e}, v{BK+e} offset:{P1_BASE}"); ops.append(e)
    for e in range(5): rd(e)
    for e in range(13):
        if e % 4 == 0:
            a(vmw(("g", e//4)))
            for k in range(min(4, 13 - e)): a(f"v_lshl_or_b32 v{DS+e+k}, v{SR+e+k}, 16, v{DS+e+k}")
        a(f"s_waitcnt lgkmcnt({len(ops) - 1 - ops.index(e)})", f"v_add3_u32 v{RK+e}, v{RK+e}, v{BK+e}, s97")
        if e == 12: a(lo)
        a(f"ds_write2_b32 v{RK+e}, v{AT+2*e}, v{AT+1+2*e} offset0:0 offset1:1", f"ds_write_b32 v{RK+e}, v{DS+e} offset:8"); ops += [-1, -1]
        if e + 5 < 13: rd(e + 5)
    a(full)
    a(f"ds_read_b64 v[4:5], v8 offset:{P1_CNT}", f"ds_read_b64 v[6:7], v8 offset:{P1_BASE}", f"v_add_u32 v9, {P1_STG}, v{vT16}", "s_waitcnt vmcnt(0)", mktag)
    a("s_waitcnt lgkmcnt(0)", "s_barrier")
    st2(a, 15)
    for i in range(10): a(f"ds_read_b128 {vr(64+4*i,4)}, v9 offset:{4096*i}")
    for k in range(4): a(f"v_mul_u32_u24 v{4+k}, 5462, v{4+k}", f"v_lshrrev_b32 v{4+k}, 16, v{4+k}")
    a(f"v_lshl_or_b32 v40, v4, 12, v6", f"v_lshl_or_b32 v42, v5, 12, v7", f"v_or_b32 v40, v40, v{vTag+1}", f"v_or_b32 v42, v42, v{vTag+1}", f"v_mov_b32 v41, v{vTag}", f"v_mov_b32 v43, v{vTag}")
    for i in range(10):
        if i: a(f"s_mov_b32 s84, {4096*i}")
        a(f"s_waitcnt lgkmcnt({9-i})", f"buffer_store_dwordx4 {vr(64+4*i,4)}, v{vT16}, s[68:71], {'s84' if i else '0'} offen sc1")
    def chk(): return [f"v_xor_b32 v36, v{vE}, v{vTag+1}", f"v_xor_b32 v37, v{vE+1}, v{vTag}", "v_lshrrev_b32 v36, 24, v36", "v_or_b32 v36, v36, v37", "v_cmp_ne_u32 vcc, 0, v36"]
    pb = f"buffer_load_dwordx2 {vr(vE,2)}, v{vPB}, s[{sAux}:{sAux+3}], 0 offen sc1"
    if OPT.get("pbl", 0): a(f"s_waitcnt vmcnt({OPT['pbl']})", pb)
    a("s_waitcnt vmcnt(0)", "s_barrier")
    st2(a, 2)
    if not OPT.get("pbl", 0): a(pb)
    a(f"s_cmp_ge_u32 s{sWave}, 2", "s_cselect_b64 exec, 0, -1")
    a(f"buffer_store_dwordx4 v[40:43], v{vT16}, s[{sAux}:{sAux+3}], s47 offen sc1", "s_mov_b64 exec, -1")
    if not OPT.get("pbl", 0): a("s_waitcnt vmcnt(1)")
    a(chk(), "s_cbranch_vccnz K2_WAITB")
    a("K2_WGO:")
    for g in range(4):
        a(f"s_add_u32 m0, s46, {L_WS+4096*g}", f"s_add_u32 s84, s46, {4096*g}")
        for i in range(4 if g < 3 else 1):
            if not OPT.get("now"): a(f"buffer_load_dwordx4 v{vL16}, s[{sAux}:{sAux+3}], s84 offen offset:{1024*i} sc1 lds")
    xl = lambda i: f"buffer_load_dwordx4 v{vXs}, s[{sX}:{sX+3}], s39 offen offset:{1024*i} lds"
    late = [[f"s_add_u32 m0, s33, {L_XR}", "s_mov_b64 exec, -1", xl(0), xl(1)], ["s_mov_b64 exec, -1", xl(2), xl(3)],
            [f"s_add_u32 m0, s33, {L_XR+4096}", "s_add_u32 s39, s39, 4096", "s_mov_b64 exec, -1", xl(0), xl(1)], ["s_mov_b32 exec_lo, -1", "s_mov_b32 exec_hi, 0", xl(2), "s_mov_b64 exec, -1"]]
    for k in range(OPT.get("xpre", 0)): a(late.pop(0))
    a(f"v_add_u32 v39, {L_WS}, v{vL16}")
    wrd = [f"ds_read_b128 {ar(4*f,4)}, v39 offset:{1024*f}" for f in range(NFRAG)]
    st2(a, 3)
    poll = f"buffer_load_dwordx2 {vr(vE,2)}, v{vPoll}, s[{sAux}:{sAux+3}], 0 offen sc1"
    a(f"s_movk_i32 s84, {TMO}")
    if OPT.get("pg"):
        a(poll)
        for k in (1, 2, 3): a(f"s_branch K2_STUB{k}", f"K2_RET{k}:")
        a("s_branch K2_POLL2")
    a("K2_POLL:", poll, "K2_POLL2:", "s_waitcnt vmcnt(0)", chk(),
      "s_and_b64 exec, exec, vcc", "s_cbranch_execz K2_POLLED", "s_sub_u32 s84, s84, 1", "s_cbranch_scc0 K2_POLL")
    a(f"v_mov_b32 v{vE}, 0", "s_mov_b32 s32, 2")
    a("K2_POLLED:", "s_mov_b64 exec, -1")
    st2(a, 1)
    a(f"v_and_b32 v36, 0xfff, v{vE}", f"v_bfe_u32 v{vCnt}, v{vE}, 12, 12", f"v_mad_u32_u24 v{vStart}, v36, 12, v{vStart}")
    RB = 64
    def dppr(i): return f"row_newbcast:{i} row_mask:0xf bank_mask:0xf"
    def rec(i): return RB + 4*i
    def addr(s): return f"v_add_u32_dpp v{rec(s)+3}, v{vStart}, v{vJ16} {dppr(s)}"
    rsc = OPT.get("rsc", "sc1")
    def load(s):
        if s < 16: return f"buffer_load_dwordx3 {vr(rec(s),3)}, v{rec(s)+3}, s[{sRec}:{sRec+3}], 0 offen {rsc}"
        return f"buffer_load_dwordx3 {vr(rec(s),3)}, v{vStart}, s[{sRec}:{sRec+3}], 0 offen offset:{12*s} {rsc}"
    def msk(s): return f"s[{sMask0+2*s}:{sMask0+2*s+1}]"
    def ex(s): return f"s_mov_b64 exec, {msk(s)}"
    def atom(s): return [f"v_and_b32 v{rec(s)+3}, s41, v{rec(s)+2}", f"ds_add_rtn_u32 v{rec(s)+3}, v{rec(s)+3}, v{vTw}"]
    def put(s): return [f"ds_write2_b32 v{rec(s)+3}, v{rec(s)}, v{rec(s)+1} offset0:0 offset1:1", f"ds_write_b32 v{rec(s)+3}, v{rec(s)+2} offset:8"]
    D0, W, LAG = OPT.get("d0", 4), OPT.get("win", 16), OPT.get("lag", 4)
    order = list(range(D0)) + list(range(16, 24)) + list(range(D0, 16))
    a(f"v_cmp_lt_u32 s[{sSave}:{sSave+1}], 24, v{vCnt}", "s_nop 0")
    for s in range(D0): a(addr(s), load(s))
    for s in range(16, 24): a(f"v_cmp_lt_u32 {msk(s)}, {s}, v{vCnt}")
    for s in range(D0, 16): a(addr(s))
    a(f"s_mov_b64 exec, s[{sSave}:{sSave+1}]", "s_cbranch_execz K2_P1")
    for s in range(24, 28): a(load(s))
    a(f"v_cmp_lt_u32 vcc, 28, v{vCnt}", "s_cbranch_vccnz K2_RARE1")
    if OPT.get("pg"): a("s_branch K2_P1", ".p2align 12", "K2_STUB1:", "s_branch K2_RET1")
    a("K2_P1:")
    for s in order[D0:W]:
        a(ex(s) if s >= 16 else ("s_mov_b64 exec, -1" if s == D0 else []), load(s))
    a("s_mov_b64 exec, -1")
    side = []
    for i in range(16): side += [f"v_add_co_u32_dpp v37, vcc, v{vCnt}, v{vN16} {dppr(i)}", f"s_mov_b64 {msk(i)}, vcc"]
    a("s_barrier", interleave(wrd, side, 1, 1))
    a("s_waitcnt lgkmcnt(0)", "s_barrier")
    sx = OPT.get("sx", 0)
    if sx & 1: put = lambda s: ["s_nop 0", "s_nop 0"]
    if sx & 2: atom = lambda s: [f"v_and_b32 v{rec(s)+3}, 0xffff, v{rec(s)+2}", f"v_lshl_add_u32 v{rec(s)+3}, v{rec(s)+3}, 5, v{vInit}"]
    ops = []; vm = order[:W]
    for i in range(24 + LAG):
        if i < 24:
            s = order[i]
            a(f"s_waitcnt vmcnt({len(vm) - 1 - vm.index(s)})", ex(s), atom(s)); ops.append(("a", s))
        if i + W < 24:
            s = order[i + W]; a(ex(s), load(s)); vm.append(s)
        elif late and i >= 24 - OPT.get("late", 6):
            x = late.pop(0); a(x); vm += [-1] * sum(y.startswith("buffer") for y in x)
        if i >= LAG:
            s = order[i - LAG]
            n = len(ops) - 1 - ops.index(("a", s))
            a(f"s_waitcnt lgkmcnt({n})", ex(s), put(s)); ops += [("w", s), ("w", s)]
        if i == D0 + 7 + LAG:
            a(f"s_mov_b64 exec, s[{sSave}:{sSave+1}]", "s_cbranch_execz K2_P3")
            for k in range(24, 28): a(f"v_cmp_lt_u32 {msk(k-8)}, {k}, v{vCnt}")
            for k in range(24, 28): a(ex(k - 8), atom(k))
            a("s_waitcnt lgkmcnt(0)")
            for k in range(24, 28): a(ex(k - 8), put(k))
            a(f"v_cmp_lt_u32 vcc, 28, v{vCnt}", "s_cbranch_vccnz K2_RARE2", "K2_P3:")
    for x in late: a(x)
    a("s_mov_b64 exec, -1")
    a("K2_P2:", "s_waitcnt lgkmcnt(0)", "s_barrier")
    st2(a, 4)
    if sx: a("s_branch K2_STOUT")
    vD, vR, vS = 40, 41, 42
    a(f"ds_read_b32 v{vD}, v{vT4} offset:{L_CNT}", "v_mov_b32 v43, 1", f"v_cmp_gt_u32 vcc, {NB}, v{tid}", f"v_lshlrev_b32 v36, 2, v{vLane}",
      f"s_mov_b64 s[{sValid}:{sValid+1}], vcc", "s_waitcnt lgkmcnt(0)")
    a(f"v_sub_u32 v{vD}, v{vD}, v{vInit}", f"v_cmp_lt_u32 vcc, {CAP*ESZ}, v{vD}", f"v_min_u32 v{vD}, {63*12}, v{vD}", f"v_mul_u32_u24 v{vD}, 5462, v{vD}",
      f"s_or_b64 s[{sBad}:{sBad+1}], s[{sBad}:{sBad+1}], vcc", f"v_lshrrev_b32 v{vD}, 16, v{vD}", f"v_lshlrev_b32 v37, 2, v{vD}")
    a(f"s_mov_b64 exec, s[{sValid}:{sValid+1}]", f"ds_add_rtn_u32 v{vR}, v37, v43 offset:{L_HIST}")
    if OPT["force_slow"]: a(f"s_mov_b64 s[{sBad}:{sBad+1}], 1")
    if OPT.get("force_raw"): a("s_mov_b32 s32, 2")
    a(f"s_cmp_lg_u64 s[{sBad}:{sBad+1}], 0", "s_addc_u32 s32, s32, 0", "s_mov_b64 exec, 1", "v_mov_b32 v39, s32", f"ds_or_b32 v{vZ}, v39 offset:{L_FLAG}", "s_mov_b64 exec, -1")
    a(f"v_lshl_or_b32 v{vD}, v{vD}, 8, v{tid}", "s_waitcnt lgkmcnt(0)", "s_barrier")
    a(f"ds_read_b32 v{vS}, v36 offset:{L_HIST}", f"ds_read_b32 v38, v{vZ} offset:{L_FLAG}", "s_waitcnt lgkmcnt(1)")
    wave_scan(a, vS)
    a(f"v_sub_u32 v{vS}, {NB}, v{vS}", f"ds_bpermute_b32 v{vS}, v37, v{vS}", "s_waitcnt lgkmcnt(1)", f"v_readfirstlane_b32 s{sTmp}, v38",
      f"s_mul_i32 s{sTmp2}, s{sBucket}, {NB*128}", f"s_lshl_b32 s{sTile}, s{sWave}, 8", f"s_cmp_ge_u32 s{sTmp}, 2", "s_cbranch_scc1 K2_SLOW")
    a(f"s_mov_b64 exec, 1", f"buffer_store_dword v{vTag}, v{vZ}, s[{sAux}:{sAux+3}], s40 offen", "s_mov_b64 exec, -1", f"s_cmp_lg_u32 s{sTmp}, 0", "s_cbranch_scc1 K2_SLOW")
    a("s_waitcnt lgkmcnt(0)", f"v_add_lshl_u32 v{vS}, v{vS}, v{vR}, 2", f"s_mov_b64 exec, s[{sValid}:{sValid+1}]", f"ds_write_b32 v{vS}, v{vD} offset:{L_RANK}", "s_mov_b64 exec, -1")
    a(f"s_movk_i32 s46, {CAP*ESZ}", f"v_mov_b32 v39, {L_TAB}", f"v_lshrrev_b32 v38, 4, v{vHalf}", f"v_add_u32 v36, s{sTile}, v29")
    a("s_waitcnt vmcnt(1) lgkmcnt(0)", "s_barrier")
    st2(a, 5)
    def decode1(w, r, base):
        return [f"v_lshrrev_b32 v{w+1}, 8, v{w}", f"v_and_b32 v{w}, 0xff, v{w}", f"v_add_u32 v{w+2}, v{w+1}, v{r+1}", f"v_lshrrev_b32 v{w+2}, v{r+2}, v{w+2}",
                f"v_mad_u32_u24 v{base}, v{w}, s46, v39", f"v_sub_u32 v{w+1}, v{w+1}, v{w+2}", f"v_mad_u32_u24 v{base}, v{w+1}, v{r+3}, v{base}"]
    def decode2(w, r, info):
        return [f"v_and_b32 v{w+1}, 7, v{w}", f"v_xor_b32 v{w+1}, v{w+1}, v38", f"v_lshlrev_b32 v{w+1}, 4, v{w+1}", f"v_lshl_add_u32 v{w+1}, v{w}, 7, v{w+1}",
                f"v_lshl_or_b32 v{info}, v{w+2}, 16, v{w+1}"]
    def decode3(w, r, off):
        return [f"v_lshl_add_u32 v{w}, v{w}, 7, s{sTmp2}", f"v_or_b32 v{w}, v{w}, v{r+4}", f"ds_write_b32 v36, v{w} offset:{L_OUTO+off}"]
    a(f"ds_read_b32 v56, v{ROLE['A']} offset:{L_RANK}", f"ds_read_b32 v60, v{ROLE['B']} offset:{L_RANK}")
    a(selectors())
    a("s_waitcnt lgkmcnt(1)", decode1(56, ROLE["A"], vLds))
    a(f"ds_read_b32 v{ENT[0]+2}, v{vLds} offset:8", f"ds_read_b32 v{ENT[1]+2}, v{vLds} offset:20", f"ds_read_b32 v{ENT[2]+2}, v{vLds} offset:32")
    a(decode2(56, ROLE["A"], vT0), hdr_reads(vT0, [vT1, 59, EE+14, EE+15]))
    a("s_waitcnt lgkmcnt(6)", mkoff(0), gather(0, 0))
    a([f"ds_read2_b32 {vr(ENT[u],2)}, v{vLds} offset0:{3*u} offset1:{3*u+1}" for u in range(3)])
    a(tile_scalars(vT0, sP2A), f"v_accvgpr_write_b32 a{aInfo}, v{vT0}", decode3(56, ROLE["A"], 0))
    a(decode1(60, ROLE["B"], 63), f"v_accvgpr_write_b32 a{aNextL}, v63", decode2(60, ROLE["B"], 63), f"v_accvgpr_write_b32 a{aNextI}, v63", decode3(60, ROLE["B"], 128))
    a(gather(0, 1), "s_waitcnt lgkmcnt(0)")
    for b in range(4):
        a(q_mfmas(b))
        a([[gather(0, 2)], [gather(0, 3)], [mkoff(1), gather(1, 0)], [gather(1, 1), gather(1, 2), gather(1, 3)]][b])
    a(mkoff(2), "s_waitcnt vmcnt(4)")
    st2(a, 6)
    if OPT.get("steps"): a("s_mov_b32 m0, 0")
    a(edge_mfmas(0, NUM, 0), "s_nop 7", "s_nop 2")
    a(".p2align 3")
    body, n = align8([f"s_mov_b64 exec, s[{sValid}:{sValid+1}]"] + step(0, True))
    a(body, "s_branch K2_L1")
    if OPT.get("pg"): a(".p2align 12", "K2_STUB2:", "s_branch K2_RET2", ".p2align 3")
    else: a(".p2align 6")
    for k, u in enumerate((1, 2, 0)):
        body = step(u, False) + [f"s_cbranch_scc1 K2_X{u}" if k < 2 else "s_cbranch_scc0 K2_L1"]
        if k: body = ["s_nop 0"] + body
        body, n = align8(body)
        if k: body = body[1:]
        a(f"K2_L{u}:", body)
    for u in (0, 1, 2):
        a(f"K2_X{u}:", f"s_cmp_lg_u32 s{sStage}, 0", "s_cbranch_scc1 K2_TEND",
          f"s_mov_b32 s{sStage}, 1", f"s_mov_b32 s{sC}, 1", f"s_mov_b32 s{sX+2}, 0", f"v_add_u32 v{vPad}, 2, v{vPad}", f"s_branch K2_L{(u+1)%3}")
    if OPT.get("pg"): a(".p2align 12", "K2_STUB3:", "s_branch K2_RET3")
    a("K2_TEND:", f"s_bitcmp1_b32 s{sTile}, 7", "s_cbranch_scc1 K2_FINAL")
    st2(a, 7)
    if OPT.get("steps"):
        a("s_mov_b64 exec, -1", f"s_add_u32 s48, s44, {STAMP_OFF+(3<<20)}", "s_addc_u32 s49, s45, 0", "s_mov_b32 s50, 0x100000", "s_mov_b32 s51, 0x00020000",
          f"s_lshl_b32 s46, s{sBucket}, 2", f"s_add_u32 s46, s46, s{sWave}", "s_lshl_b32 s46, s46, 8",
          f"v_lshlrev_b32 v{vT1}, 2, v{vLane}", f"buffer_store_dword v{vT0}, v{vT1}, s[48:51], s46 offen", "s_waitcnt vmcnt(0)")
    n = epilogue(a, True)
    st2(a, 8)
    a(".p2align 3")
    body, n = align8([f"s_mov_b64 exec, s[{sValid}:{sValid+1}]"] + step(0, True, 11, 1))
    a(body, "s_branch K2_L1")
    a("K2_FINAL:")
    st2(a, 9)
    epilogue(a, False)
    st2(a, 10)
    if OPT.get("exp", 0): a(f"s_mov_b64 s[{sBad}:{sBad+1}], 0")
    a(f"s_mov_b64 exec, s[{sBad}:{sBad+1}]", f"ds_write_b32 v20, v21 offset:{L_FLAG}", "s_mov_b64 exec, -1")
    a("s_waitcnt lgkmcnt(0)", "s_barrier", f"ds_read_b32 v21, v20 offset:{L_FLAG}", "s_waitcnt lgkmcnt(0)", f"v_readfirstlane_b32 s{sTmp}, v21",
      f"s_cmp_lg_u32 s{sTmp}, 0", "s_cbranch_scc1 K2_SLOW")
    if OPT["stamps"]:
        a("K2_STOUT:", "s_waitcnt vmcnt(0)")
        st2(a, 11)
        a(f"s_add_u32 s48, s44, {STAMP_OFF}", "s_addc_u32 s49, s45, 0", "s_mov_b32 s50, 0x100000", "s_mov_b32 s51, 0x00020000",
          f"s_lshl_b32 s46, s{sBucket}, 2", f"s_add_u32 s46, s46, s{sWave}", "s_lshl_b32 s46, s46, 8",
          f"v_accvgpr_read_b32 v20, a{aStamp}", "s_nop 0", [f"v_writelane_b32 v20, s{52+2*k}, {48+k}" for k in range(13 if OPT.get("ticks") else 0)], f"v_lshlrev_b32 v21, 2, v{vLane}", "buffer_store_dword v20, v21, s[48:51], s46 offen")
    a("K2_END:", "s_endpgm")
    a("K2_BUILD:", "s_sub_u32 s93, s2, 250", "s_lshl_b32 s93, s93, 2", f"s_add_u32 s93, s93, s{sWave}")
    def bmid(): a("s_waitcnt lgkmcnt(0)"); st2(a, 12)
    def bpost():
        a(init.l, ptrs, epoch); st2(a, 13); return 1
    gen_build(a, "KB", 93, lambda v, sr: a(f"buffer_store_dwordx4 {vr(v,4)}, v{vL16}, s[{sAux}:{sAux+3}], s{sr} offen sc1"), 80, bmid, bpost)
    st2(a, 14)
    a(consts.l, "s_waitcnt vmcnt(0) lgkmcnt(0)", mktag, f"v_mov_b32 v40, v{vTag+1}", f"v_mov_b32 v41, v{vTag}", f"v_mov_b32 v42, v{vTag+1}", f"v_mov_b32 v43, v{vTag}", "s_barrier")
    st2(a, 15); st2(a, 2)
    a(f"s_cmp_ge_u32 s{sWave}, 2", "s_cbranch_scc1 K2_WAITB")
    a(f"buffer_store_dwordx4 v[40:43], v{vT16}, s[{sAux}:{sAux+3}], s47 offen sc1")
    a("K2_WAITB:", f"s_movk_i32 s84, {TMO}")
    a("K2_WB1:", f"buffer_load_dwordx2 {vr(vE,2)}, v{vPB}, s[{sAux}:{sAux+3}], 0 offen sc1", "s_waitcnt vmcnt(0)", chk(),
      "s_cbranch_vccz K2_WGO", "s_sub_u32 s84, s84, 1", "s_cbranch_scc0 K2_WB1", "s_mov_b32 s32, 2", "s_branch K2_WGO")
    a("K2_RARE1:")
    for k in range(28, 40): a(load(k))
    a(f"v_cmp_lt_u32 vcc, 40, v{vCnt}", f"s_or_b64 s[{sBad}:{sBad+1}], s[{sBad}:{sBad+1}], vcc", "s_branch K2_P1")
    a("K2_RARE2:")
    for k in range(28, 40):
        a(f"v_cmpx_lt_u32 vcc, {k}, v{vCnt}", "s_nop 0", "s_cbranch_execz K2_P3", atom(k), "s_waitcnt lgkmcnt(0)", put(k))
    a("s_branch K2_P3")
    fixup(a, "T"); fixup(a, "F")
    gen_slow(a)

def gen_slow(a):
    tid, vStart, vCnt, vJ, vA = 0, 1, 2, 4, 5
    a("K2_SLOW:", "s_mov_b64 exec, -1", f"s_mov_b32 s94, s{sTmp}", "s_load_dwordx8 s[72:79], s[0:1], 32", "s_waitcnt vmcnt(0) lgkmcnt(0)", f"s_mov_b32 s{sX+2}, {X_BYTES}", "s_barrier")
    a(f"s_lshl_b32 s{sTmp}, s{sWave}, 6", f"v_add_u32 v{tid}, s{sTmp}, v{vLane}", f"v_lshlrev_b32 v23, 4, v{vLane}", f"v_add_u32 v23, {L_WS}, v23")
    a("s_cmp_lt_u32 s94, 2", "s_cbranch_scc1 KS_HAVE", f"s_mov_b32 s93, s{sWave}", "KS_BL:")
    gen_build(a, "KSB", 93, lambda v, sr: a(f"v_add_u32 v22, s{sr}, v23", f"ds_write_b128 v22, {vr(v,4)}"), 72)
    a("s_add_u32 s93, s93, 4", "s_cmp_lt_u32 s93, 24", "s_cbranch_scc1 KS_BL", "s_waitcnt lgkmcnt(0)", "s_barrier")
    a([f"ds_read_b128 {ar(4*f,4)}, v23 offset:{1024*f}" for f in range(NFRAG)])
    a("s_waitcnt lgkmcnt(0)", "s_barrier")
    a("KS_HAVE:", "s_load_dwordx8 s[72:79], s[0:1], 0")
    a(f"v_lshlrev_b32 v20, 11, v{tid}", f"s_lshl_b32 s{sTmp}, s{sBucket}, 3", f"s_add_u32 s{sTmp}, s{sTmp}, {TAB_REL}",
      f"buffer_load_dword v21, v20, s[{sAux}:{sAux+3}], s{sTmp} offen sc1")
    a("v_mov_b32 v24, 0", "v_mov_b32 v25, 0", "v_mov_b32 v26, 0", "v_mov_b32 v27, 0", f"v_lshlrev_b32 v22, 4, v{tid}", f"v_add_u32 v22, {L_TAB}, v22")
    for i in range(13): a(f"ds_write_b128 v22, v[24:27] offset:{4096*i}")
    a(selectors())
    a(f"v_mul_u32_u24 v{vStart}, {CH*12}, v{tid}", f"v_and_b32 v6, 31, v{vLane}", f"v_mul_u32_u24 v{vJ}, 12, v6", "v_lshlrev_b32 v6, 2, v6")
    a("s_waitcnt vmcnt(0) lgkmcnt(0)", "v_and_b32 v22, 0xfff, v21", f"v_bfe_u32 v{vCnt}, v21, 12, 12", f"v_mad_u32_u24 v{vStart}, v22, 12, v{vStart}", f"v_mul_u32_u24 v{vCnt}, 12, v{vCnt}", "s_barrier")
    srd(a, 56, 78, 79, E*4); srd(a, 60, 76, 77, E*4); srd(a, 64, 74, 75, E*8)
    a(f"s_mul_i32 s50, s{sBucket}, {NB*128}", f"s_mul_i32 s51, s{sBucket}, {NB}", "s_mov_b32 s46, 0", f"s_lshl_b32 s95, s{sWave}, 7")
    a("s_cmp_lt_u32 s94, 2", "s_cbranch_scc1 KS_SEG")
    a("KS_RAW:", f"s_cmp_ge_u32 s95, {E*4}", "s_cbranch_scc1 KS_DONE")
    a("buffer_load_dword v20, v6, s[56:59], s95 offen", "s_mov_b32 s96, s95", "s_add_u32 s95, s95, 512", "s_waitcnt vmcnt(0)",
      "v_subrev_u32 v20, s51, v20", f"v_cmp_gt_u32 vcc, {NB}, v20", "s_cbranch_vccz KS_RAW", f"s_mov_b64 s[{sValid}:{sValid+1}], vcc")
    a("s_lshl_b32 s97, s96, 1", "v_lshlrev_b32 v21, 1, v6", "buffer_load_dword v10, v6, s[60:63], s96 offen", "buffer_load_dwordx2 v[8:9], v21, s[64:67], s97 offen",
      "v_and_b32 v20, 0xff, v20", "v_lshlrev_b32 v20, 2, v20", "s_waitcnt vmcnt(0)", "v_lshl_or_b32 v10, v10, 16, v20", "s_branch KS_BODY")
    a("KS_SEG:", "s_nop 3", f"v_readlane_b32 s47, v{vStart}, s46", f"v_readlane_b32 s48, v{vCnt}, s46", "s_mov_b32 s49, 0")
    a("KS_GRP:", "s_cmp_ge_u32 s49, s48", "s_cbranch_scc1 KS_NEXT")
    a(f"v_add_u32 v20, s49, v{vJ}", f"v_cmp_gt_u32 s[{sValid}:{sValid+1}], s48, v20", "v_add_u32 v20, s47, v20")
    a(f"buffer_load_dwordx3 v[8:10], v20, s[{sRec}:{sRec+3}], 0 offen sc1", "s_waitcnt vmcnt(0)")
    a("KS_BODY:")
    a(mkoff(2), [gather(0, q) for q in range(4)])
    a("v_and_b32 v20, 0xffff, v10", f"v_lshl_add_u32 v{vOff}, v20, 5, v{vHalf}", f"v_add_u32 v{vOff}, s50, v{vOff}", [gather(2, q) for q in range(4)])
    a(f"v_lshlrev_b32 v{vA}, 6, v20", f"v_add_u32 v{vA}, v{vHalf}, v{vA}", f"v_add_u32 v{vA}, {L_TAB}, v{vA}")
    a("s_waitcnt vmcnt(0)")
    for b in range(4):
        a(q_mfmas(b))
        a(mf8(Q + 16*b, ar(WC(b), 2), "v[8:9]", vr(Q + 16*b, 16)))
        for q in range(4): a(mf16(Q + 16*b, ar(WA(b, q), 4), ar(RING[0] + 4*q, 4), vr(Q + 16*b, 16)))
    a(mf8(D, ar(B2F, 2), vr(SEL, 2), "0"), mf8(D + 16, ar(B2F, 2), vr(SEL + 2, 2), "0"), "s_nop 7", "s_nop 7")
    for i in range(64): a(f"v_exp_f32 v{NUM+i}, v{Q+i}")
    for i in range(64): a(f"v_add_f32 v{NUM+i}, 1.0, v{NUM+i}")
    for i in range(64): a(f"v_rcp_f32 v{NUM+i}, v{NUM+i}")
    for i in range(64): a(f"v_mul_f32 v{NUM+i}, v{NUM+i}, v{Q+i}")
    for i in range(32): a(f"v_cvt_pk_bf16_f32 v{DEN+i}, v{NUM+2*i}, v{NUM+2*i+1}")
    a("s_nop 1")
    for b in range(4):
        for m in range(2):
            for ob in range(2): a(mf16(D + 16*ob, ar(W2(b, m, ob), 4), vr(DEN + 8*b + 4*m, 4), vr(D + 16*ob, 16)))
    a("s_nop 7", "s_nop 7", f"s_mov_b64 exec, s[{sValid}:{sValid+1}]")
    for ob in range(2):
        for i in range(16): a(f"ds_add_f32 v{vA}, v{D+16*ob+i} offset:{4*(32*((i>>2)&1) + 4*(i&3) + 2*(i>>3) + ob)}")
    a("s_mov_b64 exec, -1", "s_waitcnt lgkmcnt(0)", "s_cmp_ge_u32 s94, 2", "s_cbranch_scc1 KS_RAW", f"s_add_u32 s49, s49, {32*12}", "s_branch KS_GRP")
    a("KS_NEXT:", "s_add_u32 s46, s46, 1", "s_cmp_lt_u32 s46, 64", "s_cbranch_scc1 KS_SEG")
    a("KS_DONE:", "s_waitcnt lgkmcnt(0)", "s_barrier")
    a(f"v_lshlrev_b32 v20, 5, v{tid}", f"v_add_u32 v20, {L_TAB}, v20", f"v_lshlrev_b32 v21, 4, v{tid}", "v_add_u32 v21, s50, v21")
    for i in range(7):
        if i == 6: a(f"v_cmp_gt_u32 vcc, {NB*8-1536}, v{tid}", "s_and_saveexec_b64 s[46:47], vcc", "s_cbranch_execz KS_END")
        a(f"ds_read_b128 v[24:27], v20 offset:{8192*i}", f"ds_read_b128 v[28:31], v20 offset:{8192*i+16}", "s_waitcnt lgkmcnt(0)")
        for j in range(4): a(f"v_cvt_pk_bf16_f32 v{32+j}, v{24+2*j}, v{25+2*j}")
        a(f"buffer_store_dwordx4 v[32:35], v21, s[{sOut}:{sOut+3}], 0 offen", "s_nop 1", "v_add_u32 v21, 4096, v21")
    a("KS_END:", "s_endpgm")

def kd(name, vgpr, accum, sgpr=102):
    return f""".amdhsa_kernel {name}
  .amdhsa_next_free_vgpr {vgpr}
  .amdhsa_next_free_sgpr {sgpr}
  .amdhsa_accum_offset {accum}
  .amdhsa_group_segment_fixed_size 0
  .amdhsa_kernarg_size 88
  .amdhsa_user_sgpr_count 2
  .amdhsa_user_sgpr_kernarg_segment_ptr 1
  .amdhsa_system_sgpr_workgroup_id_x 1
  .amdhsa_float_denorm_mode_32 3
.end_amdhsa_kernel
"""

def generate(**opt):
    OPT.update(opt)
    ref = open("standalone__edge_featured_mpnn_mpnn__graph.s.ref").read().split("\n")
    head = [x for x in ref if x.startswith(";") and "@launch" not in x and not x.startswith("; Override") and not x.startswith("; grid=")]
    head += [f"; @launch {'kernel=' + KNAME + ' ' if OPT.get('aslist') else ''}grid=(256,1,1) block=(256,1,1) lds={K2_LDS}"]
    a = Asm()
    a('.amdgcn_target "amdgcn-amd-amdhsa--gfx950"', ".text", f".globl {KNAME}", f".type {KNAME},@function")
    gen_k2(a)
    return "\n".join(head) + "\n" + a.text() + '.section .rodata,"a"\n.p2align 6\n' + kd(KNAME, 512, 256)

if __name__ == "__main__":
    out = sys.argv[1] if len(sys.argv) > 1 else "standalone__edge_featured_mpnn_mpnn__graph.s"
    opt = {}
    for x in sys.argv[2:]:
        k, v = x.split("="); opt[k] = int(v) if v.lstrip("-").isdigit() else v.replace("+", " ")
    open(out, "w").write(generate(**opt))
```

```python
import re, sys, struct, math

N, E = 50000, 800000
NB = 196
CH = 3200
NCH = 250
CAP = 43
REC_BYTES = E * 12
FRAG_OFF = REC_BYTES
NFRAG = 51
FRAG_BYTES = NFRAG * 1024
EPO_REL = 52 * 1024
TAB_REL = 53 * 1024
AUX_BYTES = TAB_REL + 256 * 2048
KNAME = "standalone__edge_featured_mpnn_mpnn__graph_kernel"
STAMP_OFF = 16 << 20
X_BYTES = N * 128

def f32(x): return "0x%08x" % struct.unpack("<I", struct.pack("<f", x))[0]
NLOG2E = f32(-math.log2(math.e))
NLN2 = f32(-math.log(2.0))

OPT = dict(stamps=False, force_slow=False, k1st="sc1", outst="sc1", late=4, onewait=0, pg=1)

class Asm:
    def __init__(self): self.l = []
    def __call__(self, *xs):
        for x in xs:
            if isinstance(x, (list, tuple)): self(*x)
            else:
                for y in x.split("\n"):
                    y = y.strip()
                    if y: self.l.append(y)
    def text(self):
        return "\n".join((x if (x.endswith(":") or x.startswith(".")) else "    " + x) for x in self.l) + "\n"

def vr(b, n): return f"v[{b}:{b+n-1}]"
def ar(b, n): return f"a[{b}:{b+n-1}]"

def srd(a, s, lo, hi, nrec):
    a(f"s_mov_b32 s{s}, s{lo}", f"s_mov_b32 s{s+1}, s{hi}", f"s_mov_b32 s{s+2}, {nrec}", f"s_mov_b32 s{s+3}, 0x00020000")

def wave_scan(a, v):
    for sh in (1, 2, 4, 8):
        a("s_nop 1", f"v_add_u32_dpp v{v}, v{v}, v{v} row_shr:{sh} row_mask:0xf bank_mask:0xf")
    a("s_nop 1", f"v_add_u32_dpp v{v}, v{v}, v{v} row_bcast:15 row_mask:0xa bank_mask:0xf")
    a("s_nop 1", f"v_add_u32_dpp v{v}, v{v}, v{v} row_bcast:31 row_mask:0xc bank_mask:0xf")

def isize(x):
    if x.endswith(":") or x.startswith("."): return 0
    op = x.split()[0]
    rest = x[len(op):]
    def lit():
        for tok in re.split(r"[,\s]+", rest):
            if re.fullmatch(r"-?(0x[0-9a-fA-F]+|\d+)", tok):
                v = int(tok, 0)
                if not (-16 <= v <= 64): return True
        return False
    if op in ("s_waitcnt", "s_nop", "s_barrier", "s_branch", "s_endpgm", "s_setprio") or op.startswith("s_cbranch"): return 4
    if op.startswith(("s_load", "s_memtime", "s_memrealtime")): return 8
    if op.startswith("s_"): return 8 if lit() else 4
    if op.startswith(("buffer_", "ds_", "global_", "v_mfma", "v_pk_", "v_accvgpr_read", "v_accvgpr_write")): return 8
    if op.endswith("_e64") or op.endswith("_dpp") or op.endswith("_sdwa"): return 8
    vop3 = ("v_mad_", "v_fma_", "v_max3", "v_min3", "v_cvt_pk_bf16", "v_lshl_add", "v_lshl_or", "v_bfe", "v_add3", "v_and_or",
            "v_readlane", "v_writelane", "v_maximum3", "v_bfi", "v_mul_lo", "v_mul_hi", "v_add_lshl", "v_perm_b32", "v_or3")
    if op.startswith(vop3): return 8
    if op.startswith("v_cmp"):
        if not rest.strip().startswith("vcc"): return 8
        return 8 if lit() else 4
    if op == "v_cndmask_b32" and not rest.strip().endswith("vcc"): return 8
    return 8 if lit() else 4

PROMOTE = ("v_exp_f32 ", "v_rcp_f32 ", "v_mul_f32 ", "v_mov_b32 ", "v_lshrrev_b32 ", "v_add_u32 ", "v_lshlrev_b32 ")
def align8(lines):
    o = sum([x.split("\n") for x in lines], []); pos = 0; last = None
    for i, x in enumerate(o):
        s = isize(x)
        if x.startswith("v_pk_") and pos % 8 == 4:
            assert last is not None, "cannot align " + x
            op = o[last].split()[0]; o[last] = o[last].replace(op, op + "_e64", 1); pos += 4; last = None
        if x.startswith(PROMOTE) and s == 4: last = i
        elif x.startswith("v_pk_"): last = None
        pos += s
    return o, pos

L_CNT, L_HIST, L_FLAG, L_RANK, L_OUTO, L_XR = 0, 1024, 1280, 1536, 3200, 4224
L_WS = L_XR + NB * 128
L_TAB = L_WS + 32 * 1024
P1_CNT, P1_BASE, P1_STG = 5120, 6144, 7168
ESZ = 12
K2_LDS = L_TAB + NB * CAP * ESZ

Q, NUM, DEN, D, EE = 16, 80, 144, 208, 240
ENT = (0, 4, 8)
vOff, vLds, vHalf, vPad, vLane, vT0, vT1 = 3, 7, 11, 12, 13, 14, 15
RING = (204, 220, 236)
aInfo, aNextL, aNextI, aStamp = 252, 253, 254, 255
def WA(b, q): return 4 * (4 * b + q)
def WC(b): return 128 + 2 * b
B1F, B2F = 136, 138
def WB(b, q): return 140 + 4 * (4 * b + q)
def W2(b, m, ob): return 64 + 4 * (4 * b + 2 * m + ob)
sX, sOut, sRec, sAux = 4, 8, 12, 16
sWave, sBucket, s128, sC, sStage, sTile, sL, sTmp, sTmp2, sP2B = 20, 21, 22, 23, 24, 25, 26, 27, 28, 29
sValid, sBad, sSave, sP2A = 30, 34, 36, 38
sMask0 = 52
TILE_A = [(0, 0, 30), (2, 0, 76), (2, 2, 104), (2, 4, 132)]
TILE_B = [(16, 160, 0), (14, 62, 192), (12, 18, 184), (12, 6, 176)]
assert all(t[0] % 2 == 0 and t[0] <= 4 for t in TILE_A) and all(t[0] % 2 == 0 and t[0] >= 12 for t in TILE_B)
def _check_map():
    seen = []
    for P, rp, rs in TILE_A + TILE_B: seen += list(range(rp, rp + P)) + list(range(rs, rs + 32 - 2*P))
    assert sorted(seen) == list(range(NB))
_check_map()

def pkfma(d, x, y, z): return f"v_pk_fma_f32 {vr(d,2)}, {vr(x,2)}, {vr(y,2)}, {vr(z,2)}"
def pkmul(d, x, y): return f"v_pk_mul_f32 {vr(d,2)}, {vr(x,2)}, {vr(y,2)}"
def mf16(d, A, B, c): return f"v_mfma_f32_32x32x16_bf16 {vr(d,16)}, {A}, {B}, {c}"
def mf8(d, A, B, c): return f"v_mfma_f32_32x32x8_bf16 {vr(d,16)}, {A}, {B}, {c}"

def edge_mfmas(b, dst, u):
    o = [mf8(dst, ar(WC(b), 2), vr(ENT[u], 2), vr(Q + 16*b, 16))]
    for q in range(4): o.append(mf16(dst, ar(WA(b, q), 4), ar(RING[u] + 4*q, 4), vr(dst, 16)))
    return o
def gather(u, q): return f"buffer_load_dwordx4 {ar(RING[u]+4*q,4)}, v{vOff}, s[{sX}:{sX+3}], 0 offen offset:{16*q}"
def mkoff(u): return f"v_mad_u32_u16 v{vOff}, v{ENT[u]+2}, s{s128}, v{vHalf} op_sel:[1,0,0,0]"
def entry(u, off): return f"ds_read_b96 {vr(ENT[u],3)}, v{vLds} offset:{off}"

def interleave(v, m, gap=3, start=0):
    o = []; k = 0
    for i, x in enumerate(v):
        if k < len(m) and i == start + k * gap: o.append(m[k]); k += 1
        o.append(x)
    return o + m[k:]

def icost(x):
    if x.startswith(("v_exp", "v_rcp", "v_mfma_f32_32x32x16")): return 8
    if x.startswith("buffer_"): return 12
    if x.startswith("ds_"): return 8
    return 4
def weave(fill, mf):
    o = []; k = 0; since = 99
    for i, x in enumerate(fill):
        if k < len(mf) and since >= 32 and i >= mf[k][1]:
            o.append(mf[k][0]); since = icost(mf[k][0]); k += 1
        o.append(x); since += icost(x)
    return o + [m for m, _ in mf[k:]]

def step(u, first, vm=3, b0=0):
    o = []
    nx, pre = (u + 1) % 3, (u + 2) % 3
    for b in range(b0, 4):
        n, dn = NUM + 16*b, DEN + 16*b
        t = n if first else D + 16*(b & 1)
        e = dn if first else EE
        ex = [f"v_exp_f32 v{e+i}, v{t+i}" for i in range(16)]
        if b < 3: m = edge_mfmas(b + 1, NUM + 16*(b+1) if first else D + 16*((b+1) & 1), u)
        else: m = edge_mfmas(0, D, nx)
        A = interleave(ex, m)
        if OPT.get("m16") and not first:
            bn = (b + 1) % 4; un = u if b < 3 else nx; dst = D + 16*((b+1) & 1); m = []
            for j in range(4): m.append(f"v_mfma_f32_16x16x16_bf16 {vr(dst+4*j,4)}, {ar(WC(bn),2)}, {vr(ENT[un],2)}, {vr(Q+16*bn+4*j,4)}")
            for k in range(2):
                for j in range(4): m.append(f"v_mfma_f32_16x16x32_bf16 {vr(dst+4*j,4)}, {ar(WA(bn, 2*(j>>1)+k),4)}, {ar(RING[un]+4*(2*(j&1)+k),4)}, {vr(dst+4*j,4)}")
            A = []
            for i in range(16):
                if i < 12: A.append(m[i])
                A.append(ex[i])
            if OPT["m16"] == 2:
                A = [m[0], ex[0], ex[1], m[1], ex[2], m[2], ex[3], ex[4], m[3], ex[5]] + sum([[m[4+i], ex[6+i]] for i in range(8)], []) + ex[14:]
        if OPT.get("onewait") == 1: A = [m[0]] + ex[:2] + interleave(ex[2:], m[1:])
        mid, end = [gather(pre, b)], []
        if b == 0 and not first: end = [f"v_cmpx_gt_i32 vcc, s{sC}, v{vPad}"]
        if b == 1:
            if not first: end = [f"s_sub_u32 s{sC}, s{sC}, 1"]
            if b0: mid, end = [gather(pre, 0)], [gather(pre, 1)]
        if b == 2:
            if OPT.get("onewait") == 2: A = [m[0]] + ex[:2] + [entry(u, 36 + ESZ*u)] + interleave(ex[2:], m[1:])
            elif OPT.get("onewait"): A = A[:6] + [entry(u, 36 + ESZ*u)] + A[6:]
            else: end = [entry(u, 36 + ESZ*u)]
        if b == 3:
            mid = [f"s_waitcnt vmcnt({vm}) lgkmcnt(0)"] + mid if OPT.get("onewait") else [f"s_waitcnt vmcnt({vm})"] + mid
            end = ([] if OPT.get("onewait") else ["s_waitcnt lgkmcnt(0)"]) + [mkoff(u)]
            if u == 2: end += [f"v_add_u32 v{vLds}, 36, v{vLds}"]
            if OPT.get("steps"): end += [f"v_writelane_b32 v{vT0}, s100, m0", "s_mov_b32 s99, m0", "s_addk_i32 s99, 1" if first else "s_cselect_b32 s98, 1, 0\ns_addk_i32 s99, 1\ns_cmp_lg_u32 s98, 0", "s_mov_b32 m0, s99"]
        if b == 2 and OPT.get("steps"): end = end + ["s_memtime s[100:101]"]
        if first:
            p = [f"v_pk_add_f32 {vr(dn+i,2)}, {vr(dn+i,2)}, 1.0 op_sel_hi:[1,0]" for i in range(0, 16, 2)]
        else:
            p = [pkfma(n+i, n+i, EE+i, n+i) for i in range(0, 16, 2)]
            p += [pkfma(n+i, t+i, dn+i, n+i) for i in range(0, 16, 2)]
            p += [pkfma(dn+i, dn+i, EE+i, dn+i) for i in range(0, 16, 2)]
        if not first and OPT.get("pkord", 0):
            pa, pb, pc = p[:8], p[8:16], p[16:]
            if OPT["pkord"] == 1: p = sum([[pa[i], pb[i], pc[i]] for i in range(8)], [])
            if OPT["pkord"] == 2:
                p = [pa[0]]
                for i in range(8): p += ([pa[i+1]] if i < 7 else []) + [pb[i], pc[i]]
            if OPT["pkord"] == 3:
                p = [pkfma(n+i, EE+i, n+i, n+i) for i in range(0, 16, 2)] + [pkfma(n+i, dn+i, t+i, n+i) for i in range(0, 16, 2)] + [pkfma(dn+i, EE+i, dn+i, dn+i) for i in range(0, 16, 2)]
        blk = A[:2] + mid + A[2:] + end + p
        x = OPT.get("exp", 0)
        if not first:
            if x & 1: blk = [("s_nop 1" if i.startswith("v_mfma") else i) for i in blk]
            if x & 2: blk = [("s_nop 0" if i.startswith("v_pk") else i) for i in blk]
            if x & 4: blk = [("s_nop 1" if (i.startswith("v_exp") and not i.endswith(f"v{t+15}")) else i) for i in blk]
            if x & 8: blk = [("s_nop 1" if i.startswith("buffer_load") else i) for i in blk]
            if x & 16:
                c0 = m[0].split(", ")[-1]
                blk = [("s_nop 0" if i == m[0] else (", ".join(i.split(", ")[:-1] + [c0]) if i == m[1] else i)) for i in blk]
            if x & 64: blk = [("s_nop 1" if i == m[4] else i) for i in blk]
            if x & 128: blk = [("s_nop 1" if i in (m[3], m[4]) else i) for i in blk]
            if x & 256:
                blk = [("v_pk_mov_b32 v[14:15], v[14:15], v[14:15]" if i in p[:8] else i) for i in blk]
            if x & 512: blk = [("v_pk_mov_b32 v[14:15], v[14:15], v[14:15]" if i in p[8:16] else i) for i in blk]
        o += blk
    return o

SEL = EE + 4
def selectors():
    return [f"v_mov_b32 v{SEL}, 0x3f80", f"v_mov_b32 v{SEL+1}, 0", f"v_mov_b32 v{SEL+2}, 1.0", f"v_mov_b32 v{SEL+3}, 0",
            f"v_mov_b32 v{SEL+4}, 0", f"v_mov_b32 v{SEL+5}, 0x3f80", f"v_mov_b32 v{SEL+6}, 0", f"v_mov_b32 v{SEL+7}, 1.0"]
def q_mfmas(b, dst=Q, rows=lambda q: ar(RING[2] + 4*q, 4)):
    o = [mf8(dst + 16*b, ar(B1F, 2), vr(SEL + 2*b, 2), "0")]
    for q in range(4): o.append(mf16(dst + 16*b, ar(WB(b, q), 4), rows(q), vr(dst + 16*b, 16)))
    return o
def hdr_reads(vinfo, tmp, rows=lambda q: ar(RING[2] + 4*q, 4)):
    o = [f"v_and_b32 v{tmp[0]}, 0xffff, v{vinfo}", f"ds_read_b128 {rows(0)}, v{tmp[0]} offset:{L_XR}"]
    for q in range(1, 4): o += [f"v_xor_b32 v{tmp[q]}, {16*q}, v{tmp[0]}", f"ds_read_b128 {rows(q)}, v{tmp[q]} offset:{L_XR}"]
    return o
def tile_scalars(vinfo, sp2):
    return [f"v_lshrrev_b32 v{vPad}, 16, v{vinfo}", f"s_mov_b32 s{sStage}, 0",
            f"v_readlane_b32 s{sL}, v{vPad}, 0", f"v_readlane_b32 s{sTmp}, v{vPad}, s{sp2}", f"v_cmp_lt_u32 s[{sValid}:{sValid+1}], 0, v{vPad}",
            f"s_max_u32 s{sL}, s{sL}, s{sTmp}", f"s_max_u32 s{sL}, s{sL}, 4", f"s_sub_u32 s{sC}, s{sL}, 4", f"s_sub_u32 s{sL}, s{sL}, 3",
            f"v_sub_u32 v{vPad}, s{sL}, v{vPad}"]

def epilogue(a, nxt):
    lab = "T" if nxt else "F"
    CHK, AD, P = EE + 12, DEN + 24, DEN + 32
    so = OPT.get("outst", "")
    a("s_mov_b64 exec, -1", f"s_cmp_lg_u64 s[{sValid}:{sValid+1}], -1", f"s_cbranch_scc1 K2_{lab}FIX", ".p2align 3", f"K2_{lab}GO:")
    o = [f"v_accvgpr_read_b32 v{EE+2}, a{aInfo}"]
    if nxt:
        o = [f"v_accvgpr_read_b32 v{vLds}, a{aNextL}", f"v_accvgpr_read_b32 v{vT0}, a{aNextI}", f"ds_read_b32 v{ENT[0]+2}, v{vLds} offset:8"] + o
        o += [f"s_mov_b32 s{sX+2}, {X_BYTES}"]
    o += [f"v_lshrrev_b32 v{EE+2}, 16, v{EE+2}", f"v_cvt_f32_u32 v{EE+2}, v{EE+2}", f"v_mov_b32 v{EE+1}, 0", f"v_mov_b32 v{EE+3}, 0", f"v_lshrrev_b32 v{EE}, 16, v{EE+2}"]
    def chk(b):
        dn = DEN + 16*b
        return [(pkmul(CHK, dn, dn + 8) if (b == 0 and i == 0) else pkfma(CHK, dn+i, dn+8+i, CHK)) for i in range(0, 8, 2)]
    def cvt(b): return [f"v_cvt_pk_bf16_f32 v{DEN+16*b+i//2}, v{NUM+16*b+i}, v{NUM+16*b+i+1}" for i in range(0, 16, 2)]
    def w2(b): return [mf16(D + 16*ob, vr(DEN + 16*b + 4*m, 4), ar(W2(b, m, ob), 4), vr(D + 16*ob, 16)) for m in range(2) for ob in range(2)]
    tk = [0]
    def tick():
        if OPT.get("ticks") == 1 and nxt: o.append(f"s_memtime s[{52+2*tk[0]}:{53+2*tk[0]}]"); tk[0] += 1
    if OPT.get("ticks") == 1 and nxt: o.insert(0, "s_memtime s[52:53]"); tk[0] = 1
    o += chk(0)
    JS = list(range(8)) if nxt else [0, 2, 4, 6, 7]
    ad = lambda j: AD + 4*(j & 1) + (j >> 1)
    oread = [f"v_lshrrev_b32 v{vT1}, 4, v{vLane}", f"v_lshl_add_u32 v{vT1}, v{vT1}, 5, s{sTile}", f"ds_read_b128 {vr(AD,4)}, v{vT1} offset:{L_OUTO}",
             f"ds_read_b128 {vr(AD+4,4)}, v{vT1} offset:{L_OUTO+16}" if nxt else f"ds_read_b32 v{AD+7}, v{vT1} offset:{L_OUTO+28}",
             f"v_and_b32 v{vT1}, 15, v{vLane}"]
    oadd = [f"v_lshl_add_u32 v{ad(j)}, v{vT1}, 3, v{ad(j)}" for j in JS]
    lim = [f"v_lshrrev_b32 v{EE}, 4, v{vHalf}", f"v_sub_u32 v{EE}, s{sP2A if nxt else sP2B}, v{EE}"]
    ts = tile_scalars(vT0, sP2B)
    Q4 = [q_mfmas(k) for k in range(4)]
    for b in range(4):
        n, dn = NUM + 16*b, DEN + 16*b
        rc = [f"v_rcp_f32 v{dn+i}, v{dn+i}" for i in range(16)]
        pre = cvt(b - 1) if b else []
        if b == 0: mf = [(mf8(D, vr(EE, 2), ar(B2F, 2), "0"), 0), (mf8(D + 16, vr(EE + 2, 2), ar(B2F, 2), "0"), 0)]
        else: mf = [(x, 6 if k < 2 else 10) for k, x in enumerate(w2(b - 1))]
        if nxt and OPT.get("qb"):
            qr = [f"v_accvgpr_read_b32 v{Q+16*b+i}, a{WB(b,0)+i}" for i in range(16)]
            ex = {0: ["s_waitcnt lgkmcnt(0)", mkoff(0), gather(0, 0), f"ds_read2_b32 {vr(ENT[0],2)}, v{vLds} offset0:0 offset1:1", entry(1, ESZ), entry(2, 2*ESZ), gather(0, 1)],
                  1: [gather(0, 2), f"v_accvgpr_write_b32 a{aInfo}, v{vT0}"] + lim + ts + [gather(0, 3)],
                  2: ["s_waitcnt lgkmcnt(0)", mkoff(1)] + oread + [gather(1, 0), f"s_add_u32 s{sTile}, s{sTile}, 128"],
                  3: [gather(1, 1), "s_waitcnt lgkmcnt(0)", f"v_add_f32 v{CHK}, v{CHK}, v{CHK+1}"] + oadd + [gather(1, 2)]}[b]
            fill = pre + interleave(rc, ex, 2 if b == 0 else 1, 1)
            if b < 3: fill += qr
            else:
                fm = edge_mfmas(0, NUM, 0); k = len(fill) - 19
                assert fill.index(gather(1, 1)) < k < fill.index(gather(1, 2))
                fill = fill[:k] + ["s_waitcnt vmcnt(2)"] + fill[k:]
                mf = [(fm[0], 0)] + mf + [(x, k + 1) for x in fm[1:]]
        elif nxt:
            if b == 0:
                fill = selectors() + ["s_waitcnt lgkmcnt(0)", mkoff(0), gather(0, 0)] + rc[:9] + ["s_waitcnt vmcnt(1)"] + \
                       interleave(hdr_reads(vT0, [vT1, vPad, EE+14, EE+15]), rc[9:13], 2, 2) + [gather(0, 1)] + rc[13:]
                mf = mf + [(Q4[k][0], 10) for k in range(4)]
            else:
                ex = {1: [f"ds_read2_b32 {vr(ENT[0],2)}, v{vLds} offset0:0 offset1:1", entry(1, ESZ), gather(0, 2), entry(2, 2*ESZ), f"v_accvgpr_write_b32 a{aInfo}, v{vT0}"] + lim + [gather(0, 3)],
                      2: ["s_waitcnt lgkmcnt(0)", mkoff(1)] + oread + [gather(1, 0), f"s_add_u32 s{sTile}, s{sTile}, 128"] + ts[:5],
                      3: [gather(1, 1), "s_waitcnt lgkmcnt(0)", f"v_add_f32 v{CHK}, v{CHK}, v{CHK+1}"] + oadd + [gather(1, 2)]}[b]
                fill = pre + interleave(rc, ex, 1, 1)
                if b == 1:
                    fill = ["s_waitcnt lgkmcnt(0)"] + fill
                    mf = [(x, 1) for x in Q4[0][1:]] + mf + [(Q4[2][1], 0)]
                elif b == 2: mf = [(x, 0) for x in Q4[1][1:]] + mf + [(Q4[2][2], 0)]
                else:
                    fm = edge_mfmas(0, NUM, 0); k = len(fill) - 19
                    assert fill.index(gather(1, 1)) < k < fill.index(gather(1, 2))
                    fill = fill[:k] + ["s_waitcnt vmcnt(2)"] + fill[k:]
                    mf = [(fm[0], 0)] + mf + [(x, k + 1) for x in fm[1:]]
        else:
            fill = pre + rc
        tick()
        o += weave(fill, mf)
        tick()
        mu = [pkmul(n+i, n+i, dn+i) for i in range(0, 16, 2)]
        o += interleave(mu, chk(b + 1), 2, 1) if b < 3 else mu
    wm = w2(3)
    c3 = cvt(3)
    mx = lambda j: f"v_maximum3_f32 v{CHK}, v{CHK}, |v{D+2*j}|, |v{D+2*j+1}|"
    bad = [f"v_cmp_ngt_f32 vcc, {f32(2.0**120)}, v{CHK}", f"s_or_b64 s[{sBad}:{sBad+1}], s[{sBad}:{sBad+1}], vcc"]
    def outp(js, tail):
        r = []; tail = list(tail)
        for k in range(len(js) + 2):
            if k < len(js):
                j = js[k]; r += [f"v_cvt_pk_bf16_f32 v{P+2*j}, v{D+2*j}, v{D+16+2*j}", f"v_cvt_pk_bf16_f32 v{P+2*j+1}, v{D+2*j+1}, v{D+17+2*j}"]
            else: r += tail[:2]; tail = tail[2:]
            if 1 <= k <= len(js): j = js[k-1]; r += [f"v_permlane16_swap_b32 v{P+2*j}, v{P+2*j+1}"]
            if k >= 2: j = js[k-2]; r += [f"buffer_store_dwordx2 {vr(P+2*j,2)}, v{ad(j)}, s[{sOut}:{sOut+3}], 0 offen {so}"]
        return r + tail
    if nxt:
        q3 = q_mfmas(3); n1 = edge_mfmas(1, NUM + 16, 0)
        tick()
        if OPT.get("qb"):
            o += weave(c3 + [f"v_exp_f32 v{DEN+i}, v{NUM+i}" for i in range(16)] + [gather(1, 3), mkoff(2)], [(wm[0], 6), (wm[1], 6), (wm[2], 10), (wm[3], 10)])
            q3 = [0]; bad = bad + qr
        else:
            o += weave(c3 + [f"v_exp_f32 v{DEN+i}, v{NUM+i}" for i in range(16)] + [gather(1, 3), mkoff(2)] + ts[5:],
                       [(Q4[2][3], 0), (wm[0], 6), (wm[1], 6), (wm[2], 10), (wm[3], 10), (Q4[2][4], 0)])
        tick()
        o += [f"v_pk_add_f32 {vr(DEN+i,2)}, {vr(DEN+i,2)}, 1.0 op_sel_hi:[1,0]" for i in range(0, 16, 2)]
        o += [f"v_cmpx_lt_i32_e64 vcc, 0, v{EE}"] + [f"v_pk_add_f32 {vr(D+16*ob,2)}, {vr(D+16*ob,2)}, {vr(D+16*ob+2,2)}" for ob in range(2)] + ["s_mov_b64 exec, -1"]
        tick()
        o += weave(outp(JS, [mx(j) for j in range(8)] + bad), [(x, 1) for x in n1 + q3[1:]])
        tick()
    else:
        o += c3[:6] + [wm[0]] + c3[6:] + oread[:3] + [wm[2]] + oread[3:] + lim + [f"v_add_f32 v{CHK}, v{CHK}, v{CHK+1}", wm[1], "s_nop 2", "s_waitcnt lgkmcnt(0)"] + oadd[:2] + [wm[3]] + oadd[2:]
        pa = lambda ob, g: f"v_pk_add_f32 {vr(D+16*ob+4*g,2)}, {vr(D+16*ob+4*g,2)}, {vr(D+16*ob+4*g+2,2)}"
        o += ["v_mov_b32 v20, 0", "v_mov_b32 v21, 1", "s_nop 3"] + [pa(0, g) for g in range(3)] + [pa(1, g) for g in range(3)]
        o += [f"v_cmpx_lt_i32_e64 vcc, 24, v{EE}", pa(0, 3), pa(1, 3), "s_mov_b64 exec, -1"]
        o += outp(JS, [mx(j) for j in JS] + bad)
    o, n = align8(o)
    a(o)
    return n

def fixup(a, lab):
    a(f"K2_{lab}FIX:", f"s_andn2_b64 exec, -1, s[{sValid}:{sValid+1}]")
    for i in range(64): a(f"v_mov_b32 v{NUM+i}, 0", f"v_mov_b32 v{DEN+i}, 1.0")
    a("s_mov_b64 exec, -1", f"s_branch K2_{lab}GO")

def st2(a, idx):
    if OPT.get("lite"):
        if idx == 0: a("s_memrealtime s[100:101]")
        if idx == 11: a("s_memrealtime s[50:51]", f"v_mov_b32 v{vT1}, 0", "s_waitcnt lgkmcnt(0)", f"v_writelane_b32 v{vT1}, s100, 16", f"v_writelane_b32 v{vT1}, s50, 27", "s_nop 0", f"v_accvgpr_write_b32 a{aStamp}, v{vT1}")
    elif OPT["stamps"]:
        a("s_memtime s[100:101]", "s_memrealtime s[50:51]", "s_mov_b64 s[48:49], exec", "s_mov_b64 exec, -1", f"v_accvgpr_read_b32 v{vT1}, a{aStamp}", "s_waitcnt lgkmcnt(0)", "s_nop 0",
          f"v_writelane_b32 v{vT1}, s100, {idx}", f"v_writelane_b32 v{vT1}, s50, {idx+16}", f"v_writelane_b32 v{vT1}, s{sL}, {idx+32}", "s_nop 0", f"v_accvgpr_write_b32 a{aStamp}, v{vT1}", "s_mov_b64 exec, s[48:49]")

def gen_build(a, lab, g, store, P, mid=None, post=None):
    R1, R2, R3, T = 64, 72, 80, 96
    for r_, n_ in ((56, 132*128*2), (60, 256), (64, 128*64*2), (68, 128)): a(f"s_mov_b32 s{r_+2}, {n_}", f"s_mov_b32 s{r_+3}, 0x00020000")
    a(f"v_and_b32 v{T}, 31, v{vLane}", f"v_lshrrev_b32 v{T+1}, 5, v{vLane}",
      f"v_lshlrev_b32 v{T+2}, 13, v{T+1}", f"v_lshl_add_u32 v{T+2}, v{T}, 1, v{T+2}",
      f"v_and_b32 v{T+5}, 15, v{T}", f"v_lshrrev_b32 v{T+4}, 4, v{T}", f"v_lshl_or_b32 v{T+5}, v{T+5}, 1, v{T+4}", f"v_lshlrev_b32 v{T+5}, 2, v{T+5}",
      f"v_lshl_add_u32 v{T+3}, v{T+1}, 9, v{T+5}", f"v_lshlrev_b32 v{T+4}, 1, v{T}", f"v_cmp_eq_u32 s[88:89], 1, v{T+1}")
    def w1(f, off, dst):
        a(f"s_and_b32 s{off}, s{f}, 3", f"s_lshl_b32 s{off}, s{off}, 11", f"s_bfe_u32 s99, s{f}, 0x20002", "s_lshl_b32 s99, s99, 6", f"s_add_u32 s{off}, s{off}, s99",
          f"s_lshr_b32 s99, s{f}, 4", f"s_mul_i32 s{dst}, s99, 19", "s_lshl_b32 s99, s99, 14", f"s_add_u32 s{off}, s{off}, s99", f"s_add_u32 s{dst}, s{dst}, s{f}", f"s_lshl_b32 s{dst}, s{dst}, 10")
    w1(g, 95, 90)
    a(f"s_add_u32 s98, s{g}, 24"); w1(98, 96, 91)
    a(f"s_sub_u32 s99, s{g}, 8", "s_add_u32 s98, s99, 16", "s_lshl_b32 s98, s98, 10", "s_lshr_b32 s97, s99, 1", "s_lshl_b32 s97, s97, 11", "s_and_b32 s99, s99, 1",
      "s_lshl_b32 s99, s99, 1", "s_add_u32 s97, s97, s99", f"s_cmp_ge_u32 s{g}, 8", "s_cselect_b32 s91, s98, s91", "s_cselect_b32 s96, s97, s96",
      f"s_add_u32 s92, s{g}, 11", "s_lshl_b32 s92, s92, 10", f"s_sub_u32 s97, s{g}, 21", "s_lshl_b32 s97, s97, 7", f"s_add_u32 s97, s97, {128*256}")
    if mid: mid()
    for k in range(4): a(f"s_mov_b64 s[{56+4*k}:{57+4*k}], s[{P+2*k}:{P+2*k+1}]")
    for j in range(8): a(f"buffer_load_ushort v{R1+j}, v{T+2}, s[56:59], s95 offen offset:{256*j}")
    a(f"s_cmp_ge_u32 s{g}, 8", f"s_cbranch_scc1 {lab}_W2")
    for j in range(8): a(f"buffer_load_ushort v{R2+j}, v{T+2}, s[56:59], s96 offen offset:{256*j}")
    a(f"s_mov_b32 s99, {NLOG2E}", f"s_branch {lab}_C")
    a(f"{lab}_W2:")
    for j in range(8): a(f"buffer_load_ushort v{R2+j}, v{T+3}, s[64:67], s96 offen offset:{128*(8*(j>>2)+(j&3))}")
    a(f"s_mov_b32 s99, {NLN2}", f"s_cmp_lt_u32 s{g}, 21", f"s_cbranch_scc1 {lab}_C", f"s_cmp_eq_u32 s{g}, 23", f"s_cbranch_scc1 {lab}_B")
    for j in range(8): a(f"buffer_load_ushort v{R3+j}, v{T+4}, s[56:59], s97 offen offset:{256*(j&3)+64*(j>>2)}")
    a(f"s_branch {lab}_C")
    a(f"{lab}_B:")
    for j in range(4): a(f"buffer_load_ushort v{R3+j}, v{T+4}, s[60:63], 0 offen offset:{64*j}")
    a(f"buffer_load_dword v{T+6}, v{T+5}, s[68:71], 0 offen")
    for j in range(4, 8): a(f"v_mov_b32 v{R3+j}, 0")
    a(f"{lab}_C:", f"s_mov_b32 s98, {NLOG2E}")
    n = post() if post else 0
    a(f"s_waitcnt vmcnt({n})")
    for R, sc_, dst, o in ((R1, 98, 90, 108), (R2, 99, 91, 112)):
        for j in range(8): a(f"v_lshlrev_b32 v{R+j}, 16, v{R+j}", f"v_mul_f32 v{R+j}, s{sc_}, v{R+j}")
        for j in range(4): a(f"v_cvt_pk_bf16_f32 v{o+j}, v{R+2*j}, v{R+1+2*j}")
        store(o, dst)
    a(f"s_cmp_lt_u32 s{g}, 21", f"s_cbranch_scc1 {lab}_E")
    for j in range(8): a(f"v_lshlrev_b32 v{R3+j}, 16, v{R3+j}", f"v_mul_f32 v{R3+j}, s98, v{R3+j}")
    for j in range(4):
        a(f"v_cvt_pk_bf16_f32 v{R3+8+j}, v{R3+2*j}, v{R3+1+2*j}",
          f"v_lshlrev_b32 v{T+8}, 16, v{R3+8+j}", f"v_and_b32 v{T+9}, 0xffff0000, v{R3+8+j}",
          f"v_sub_f32 v{T+8}, v{R3+2*j}, v{T+8}", f"v_sub_f32 v{T+9}, v{R3+1+2*j}, v{T+9}",
          f"v_cvt_pk_bf16_f32 v{T+8}, v{T+8}, v{T+9}", f"v_cndmask_b32 v{R3+8+j}, v{R3+8+j}, v{T+8}, s[88:89]")
    a(f"s_cmp_eq_u32 s{g}, 23", f"s_cbranch_scc0 {lab}_S")
    a(f"v_cndmask_b32 v{R3+10}, v{T+6}, 0, s[88:89]")
    a(f"{lab}_S:"); store(R3 + 8, 92)
    a(f"{lab}_E:")

TMO = 600
def gen_k2(a):
    a(".p2align 12" if OPT.get("pg") else ".p2align 8", f"{KNAME}:")
    a("s_cmp_ge_u32 s2, 256", "s_cbranch_scc1 K2_END")
    if OPT["stamps"] and not OPT.get("lite"): a(f"v_accvgpr_write_b32 a{aStamp}, 0")
    st2(a, 0)
    a("s_load_dwordx16 s[72:87], s[0:1], 0", "s_load_dwordx2 s[44:45], s[0:1], 80", "s_load_dwordx2 s[42:43], s[0:1], 64")
    a("s_getpc_b64 s[52:53]", "K2_PC:", "s_mov_b32 s54, K2_SLOW-K2_PC", "s_mov_b32 s55, 0x00020000", "v_lshlrev_b32 v2, 7, v0")
    cpf = "buffer_load_dword v2, v2, s[52:55], 0 offen"
    if not OPT.get("pfl"): a(cpf)
    tid, vInit, vT4, vZ, vL16, vTag, vT16, vPoll, vPB = 16, 17, 18, 20, 25, 22, 19, 24, 35
    vE = 56
    a(f"v_mov_b32 v{tid}, v0", f"v_and_b32 v{vLane}, 63, v0", "v_lshrrev_b32 v1, 6, v0", "s_cmp_ge_u32 s2, 250")
    a(f"v_readfirstlane_b32 s{sWave}, v1", "s_cbranch_scc1 K2_BUILD")
    vJ16, vN16, vStart, vCnt, vTw, vXs = 27, 28, 31, 32, 33, 34
    vT32, vR4, vR8 = 60, 61, 62
    init = Asm(); c = init
    c(f"s_and_b32 s{sBucket}, s2, 7", f"s_lshl_b32 s{sBucket}, s{sBucket}, 5", "s_lshr_b32 s3, s2, 3", f"s_add_u32 s{sBucket}, s{sBucket}, s3")
    c(f"v_lshlrev_b32 v{vT16}, 4, v{tid}", f"v_lshlrev_b32 v{vL16}, 4, v{vLane}", f"v_and_b32 v36, 31, v{vLane}")
    c(f"v_mul_u32_u24 v{vInit}, {CAP*ESZ}, v{tid}", f"v_add_u32 v{vInit}, {L_TAB}, v{vInit}")
    c(f"v_lshlrev_b32 v{vT4}, 2, v{tid}", f"v_mov_b32 v{vZ}, 0", f"v_mov_b32 v{vZ+1}, 0", f"v_lshlrev_b32 v26, 3, v{vLane}")
    c(f"ds_write_b32 v{vT4}, v{vInit} offset:{L_CNT}", f"ds_write_b64 v26, v[{vZ}:{vZ+1}] offset:{L_HIST}", f"ds_write_b32 v{vT4}, v{vZ} offset:{P1_CNT}")
    for r_, n_ in ((sAux, AUX_BYTES), (sX, X_BYTES), (sOut, X_BYTES), (sRec, REC_BYTES)): c(f"s_mov_b32 s{r_+2}, {n_}", f"s_mov_b32 s{r_+3}, 0x00020000")
    c(f"s_mov_b32 s40, {EPO_REL}")
    ptrs = [f"s_add_u32 s{sAux}, s44, {FRAG_OFF}", f"s_addc_u32 s{sAux+1}, s45, 0",
            f"s_mov_b64 s[{sRec}:{sRec+1}], s[44:45]", f"s_mov_b64 s[{sX}:{sX+1}], s[72:73]", f"s_mov_b64 s[{sOut}:{sOut+1}], s[42:43]"]
    a(init.l)
    a(f"v_lshlrev_b32 v{vT32}, 5, v{tid}", f"v_lshl_add_u32 v{vR4}, v1, 5, v36", f"v_lshlrev_b32 v{vR8}, 3, v{vR4}", f"v_lshlrev_b32 v{vR4}, 2, v{vR4}")
    a(f"s_mul_i32 s88, s2, {CH*4}", "s_add_u32 s89, s88, 4096", "s_add_u32 s90, s88, 8192", "s_add_u32 s91, s88, 12288")
    for g in range(4): a(f"s_lshl_b32 s{92+g}, s{88+g}, 1")
    for r_, n_ in ((56, E*4), (60, E*4), (64, E*8), (68, CH*12)): a(f"s_mov_b32 s{r_+2}, {n_}", f"s_mov_b32 s{r_+3}, 0x00020000")
    a(f"s_mul_i32 s41, s2, {CH*12}")
    a("s_waitcnt lgkmcnt(0)")
    st2(a, 12)
    DS, SR, BK, RK, AT = 64, 80, 96, 112, 128
    a("s_mov_b64 s[56:57], s[78:79]")
    consts = Asm()
    c = consts
    c(f"s_movk_i32 s{s128}, 128", f"s_mov_b64 s[{sBad}:{sBad+1}], 0", "s_mov_b32 s32, 0", "s_mov_b32 s41, 0xffff")
    c(f"v_and_b32 v{vJ16}, 15, v{vLane}", f"v_not_b32 v{vN16}, v{vJ16}", f"v_mul_u32_u24 v{vJ16}, 12, v{vJ16}")
    c(f"v_lshrrev_b32 v{vHalf}, 5, v{vLane}", f"v_lshlrev_b32 v{vHalf}, 6, v{vHalf}", f"v_mov_b32 v{vTw}, 12")
    c(f"v_lshrrev_b32 v{vXs}, 3, v{vLane}", f"v_lshlrev_b32 v{vXs}, 4, v{vXs}", f"v_xor_b32 v{vXs}, v{vXs}, v{vL16}")
    c(f"v_mul_u32_u24 v{vStart}, {CH*12}, v{tid}")
    c("v_bfe_u32 v29, v36, 2, 1", "v_and_b32 v30, 1, v36", "v_lshl_or_b32 v29, v29, 1, v30", "v_bfe_u32 v30, v36, 1, 1", "v_lshl_or_b32 v29, v29, 1, v30",
      "v_lshrrev_b32 v30, 3, v36", "v_lshl_or_b32 v29, v29, 2, v30", "v_lshlrev_b32 v29, 2, v29")
    c(f"s_lshl_b32 s{sTmp}, s{sBucket}, 3", f"s_add_u32 s{sTmp}, s{sTmp}, {TAB_REL}", f"v_lshlrev_b32 v{vPoll}, 11, v{tid}", f"v_add_u32 v{vPoll}, s{sTmp}, v{vPoll}",
      f"v_min_u32 v{vPB}, 5, v{vLane}", f"v_add_u32 v{vPB}, 250, v{vPB}", f"v_lshlrev_b32 v{vPB}, 11, v{vPB}", f"v_add_u32 v{vPB}, s{sTmp}, v{vPB}")
    ROLE = {"A": 44, "B": 50}
    c(f"s_lshl_b32 s3, s{sWave}, 3", "s_or_b32 s3, s3, 0x80000", "v_lshrrev_b32 v37, 2, v36", "v_and_b32 v38, 1, v36", "v_lshl_or_b32 v37, v37, 1, v38", "v_bfe_u32 v38, v36, 1, 1")
    for nm, T, sp in (("A", TILE_A, sP2A), ("B", TILE_B, sP2B)):
        r = ROLE[nm]
        pk = lambda f: hex(sum((f(t) & 255) << (8*w) for w, t in enumerate(T)))
        c(f"s_bfe_u32 s{sp}, {pk(lambda t: 2*t[0])}, s3", f"s_bfe_u32 s46, {pk(lambda t: t[1])}, s3", f"s_bfe_u32 s47, {pk(lambda t: t[2])}, s3", f"s_sub_u32 s47, s47, s{sp}")
        c(f"v_cmp_gt_u32 vcc, s{sp}, v36", f"v_add_u32 v{r}, s47, v36", f"v_add_u32 v39, s46, v37", f"v_cndmask_b32 v{r}, v{r}, v39, vcc", f"v_lshlrev_b32 v{r}, 3, v{r}",
          f"v_cndmask_b32 v{r+2}, 0, 1, vcc", f"v_and_b32 v{r+3}, v{r+2}, v38", f"v_sub_u32 v{r+1}, v{r+2}, v{r+3}", f"v_lshlrev_b32 v{r+4}, 30, v{r+3}", f"v_mul_u32_u24 v{r+3}, 12, v{r+3}")
    c(f"s_mul_i32 s33, s{sWave}, 6144", f"s_mul_i32 s39, s{sBucket}, {NB*128}", "s_add_u32 s39, s39, s33", f"s_mul_i32 s46, s{sWave}, {13*1024}",
      "s_lshl_b32 s47, s2, 11", f"s_add_u32 s47, s47, {TAB_REL}")
    epoch = f"buffer_load_dwordx2 {vr(vTag,2)}, v{vZ}, s[{sAux}:{sAux+3}], s40 offen sc1"
    mktag = [f"v_add_u32 v{vTag}, 1, v{vTag}", f"v_and_b32 v{vTag+1}, 0xff000000, v{vTag+1}"]
    lo, full = ["s_mov_b32 exec_hi, 0"], ["s_mov_b32 exec_hi, -1"]
    vm = []
    for g in range(3): a(f"buffer_load_dwordx4 {vr(DS+4*g,4)}, v{vT16}, s[56:59], s{88+g} offen"); vm.append(("d", g))
    a(lo, f"buffer_load_dword v{DS+12}, v{vR4}, s[56:59], s91 offen", full); vm.append(("d", 3))
    a("s_mov_b64 s[60:61], s[76:77]", "s_mov_b64 s[64:65], s[74:75]", "s_add_u32 s68, s44, s41", "s_addc_u32 s69, s45, 0", ptrs)
    a("s_barrier")
    def grp(g):
        if g < 3:
            a(f"buffer_load_dwordx4 {vr(SR+4*g,4)}, v{vT16}, s[60:63], s{88+g} offen", f"buffer_load_dwordx4 {vr(AT+8*g,4)}, v{vT32}, s[64:67], s{92+g} offen",
              f"buffer_load_dwordx4 {vr(AT+8*g+4,4)}, v{vT32}, s[64:67], s{92+g} offen offset:16"); vm.extend([0, 0, ("g", g)])
        else:
            a(lo, f"buffer_load_dword v{SR+12}, v{vR4}, s[60:63], s91 offen", f"buffer_load_dwordx2 {vr(AT+24,2)}, v{vR8}, s[64:67], s95 offen", full, epoch); vm.extend([0, ("g", 3), "e"])
            if OPT.get("pfl"): a(cpf); vm.append(0)
            if OPT.get("pft"):
                a(f"v_lshlrev_b32 v3, 3, v{tid}", f"buffer_load_dword v3, v3, s[{sAux}:{sAux+3}], s47 offen sc1"); vm.append(0)
    def vmw(x): return f"s_waitcnt vmcnt({len(vm) - 1 - vm.index(x)})"
    G0 = OPT.get("g0", 1)
    for g in range(G0): grp(g)
    a(consts.l, "s_movk_i32 s96, -196", f"s_movk_i32 s97, {P1_STG}")
    for e in range(13):
        if e % 4 == 0: a(vmw(("d", e//4)))
        if e == 0: st2(a, 13)
        if e == 12: a(lo)
        a(f"v_mul_u32_u24 v{BK+e}, 85599, v{DS+e}", f"v_lshrrev_b32 v{BK+e}, 22, v{BK+e}", f"v_and_b32 v{BK+e}, 0x3fc, v{BK+e}",
          f"ds_add_rtn_u32 v{RK+e}, v{BK+e}, v{vTw} offset:{P1_CNT}")
    a(full)
    for g in range(G0, 4): grp(g)
    for e in range(13): a(f"v_lshlrev_b32 v{DS+e}, 2, v{DS+e}", f"v_mad_i32_i24 v{DS+e}, v{BK+e}, s96, v{DS+e}")
    a("s_waitcnt lgkmcnt(0)", "s_barrier")
    a(f"s_cmp_lg_u32 s{sWave}, 0", "s_cbranch_scc1 K2_SC")
    a(f"ds_read_b128 v[4:7], v{vT16} offset:{P1_CNT}", "s_waitcnt lgkmcnt(0)")
    a("v_add_u32 v8, v4, v5", "v_add3_u32 v8, v8, v6, v7", "v_mov_b32 v9, v8")
    wave_scan(a, 9)
    a("v_sub_u32 v40, v9, v8", "v_add_u32 v41, v40, v4", "v_add_u32 v42, v41, v5", "v_add_u32 v43, v42, v6")
    a(f"ds_write_b128 v{vT16}, v[40:43] offset:{P1_BASE}", "s_waitcnt lgkmcnt(0)")
    a("K2_SC:", f"v_lshlrev_b32 v8, 3, v{tid}", "s_barrier")
    st2(a, 14)
    ops = []
    def rd(e): a(f"ds_read_b32 v{BK+e}, v{BK+e} offset:{P1_BASE}"); ops.append(e)
    for e in range(5): rd(e)
    for e in range(13):
        if e % 4 == 0:
            a(vmw(("g", e//4)))
            for k in range(min(4, 13 - e)): a(f"v_lshl_or_b32 v{DS+e+k}, v{SR+e+k}, 16, v{DS+e+k}")
        a(f"s_waitcnt lgkmcnt({len(ops) - 1 - ops.index(e)})", f"v_add3_u32 v{RK+e}, v{RK+e}, v{BK+e}, s97")
        if e == 12: a(lo)
        a(f"ds_write2_b32 v{RK+e}, v{AT+2*e}, v{AT+1+2*e} offset0:0 offset1:1", f"ds_write_b32 v{RK+e}, v{DS+e} offset:8"); ops += [-1, -1]
        if e + 5 < 13: rd(e + 5)
    a(full)
    a(f"ds_read_b64 v[4:5], v8 offset:{P1_CNT}", f"ds_read_b64 v[6:7], v8 offset:{P1_BASE}", f"v_add_u32 v9, {P1_STG}, v{vT16}", vmw("e"), mktag)
    a("s_waitcnt lgkmcnt(0)", "s_barrier")
    st2(a, 15)
    for i in range(10): a(f"ds_read_b128 {vr(64+4*i,4)}, v9 offset:{4096*i}")
    for k in range(4): a(f"v_mul_u32_u24 v{4+k}, 5462, v{4+k}", f"v_lshrrev_b32 v{4+k}, 16, v{4+k}")
    a(f"v_lshl_or_b32 v40, v4, 12, v6", f"v_lshl_or_b32 v42, v5, 12, v7", f"v_or_b32 v40, v40, v{vTag+1}", f"v_or_b32 v42, v42, v{vTag+1}", f"v_mov_b32 v41, v{vTag}", f"v_mov_b32 v43, v{vTag}")
    for i in range(OPT.get("nst", 10)):
        if i: a(f"s_mov_b32 s84, {4096*i}")
        a(f"s_waitcnt lgkmcnt({9-i})", f"buffer_store_dwordx4 {vr(64+4*i,4)}, v{vT16}, s[68:71], {'s84' if i else '0'} offen sc1")
    def chk(): return [f"v_xor_b32 v36, v{vE}, v{vTag+1}", f"v_xor_b32 v37, v{vE+1}, v{vTag}", "v_lshrrev_b32 v36, 24, v36", "v_or_b32 v36, v36, v37", "v_cmp_ne_u32 vcc, 0, v36"]
    if OPT.get("nst"): st2(a, 13)
    pb = f"buffer_load_dwordx2 {vr(vE,2)}, v{vPB}, s[{sAux}:{sAux+3}], 0 offen sc1"
    if OPT.get("pbl", 0): a(f"s_waitcnt vmcnt({OPT['pbl']})", pb)
    a("s_waitcnt vmcnt(0)", "s_barrier")
    st2(a, 2)
    if not OPT.get("pbl", 0): a(pb)
    a(f"s_cmp_ge_u32 s{sWave}, 2", "s_cselect_b64 exec, 0, -1")
    a(f"buffer_store_dwordx4 v[40:43], v{vT16}, s[{sAux}:{sAux+3}], s47 offen sc1", "s_mov_b64 exec, -1")
    if not OPT.get("pbl", 0): a("s_waitcnt vmcnt(1)")
    a(chk(), "s_cbranch_vccnz K2_WAITB")
    a("K2_WGO:")
    for g in range(4):
        a(f"s_add_u32 m0, s46, {L_WS+4096*g}", f"s_add_u32 s84, s46, {4096*g}")
        for i in range(4 if g < 3 else 1):
            if not OPT.get("now"): a(f"buffer_load_dwordx4 v{vL16}, s[{sAux}:{sAux+3}], s84 offen offset:{1024*i} sc1 lds")
    xl = lambda i: f"buffer_load_dwordx4 v{vXs}, s[{sX}:{sX+3}], s39 offen offset:{1024*i} lds"
    late = [[f"s_add_u32 m0, s33, {L_XR}", "s_mov_b64 exec, -1", xl(0), xl(1)], ["s_mov_b64 exec, -1", xl(2), xl(3)],
            [f"s_add_u32 m0, s33, {L_XR+4096}", "s_add_u32 s39, s39, 4096", "s_mov_b64 exec, -1", xl(0), xl(1)], ["s_mov_b32 exec_lo, -1", "s_mov_b32 exec_hi, 0", xl(2), "s_mov_b64 exec, -1"]]
    if OPT.get("nox"): late = []
    for k in range(OPT.get("xpre", 0)): a(late.pop(0))
    a(f"v_add_u32 v39, {L_WS}, v{vL16}")
    NL = OPT.get("nl", 32)
    wrd = [f"ds_read_b128 {ar(4*f,4)}, v39 offset:{1024*f}" for f in range(NL, NFRAG)]
    wlate = [f"ds_read_b128 {ar(4*f,4)}, v{EE} offset:{L_WS+1024*f}" for f in range(NL)]
    st2(a, 3)
    poll = f"buffer_load_dwordx2 {vr(vE,2)}, v{vPoll}, s[{sAux}:{sAux+3}], 0 offen sc1"
    a(f"s_movk_i32 s84, {TMO}")
    if OPT.get("pg"):
        a(poll)
        for k in (1, 2, 3): a(f"s_branch K2_STUB{k}", f"K2_RET{k}:")
        a("s_branch K2_POLL2")
    a("K2_POLL:", poll, "K2_POLL2:", "s_waitcnt vmcnt(0)", chk(),
      "s_and_b64 exec, exec, vcc", "s_cbranch_execz K2_POLLED", "s_sub_u32 s84, s84, 1", "s_cbranch_scc0 K2_POLL")
    a(f"v_mov_b32 v{vE}, 0", "s_mov_b32 s32, 2")
    a("K2_POLLED:", "s_mov_b64 exec, -1")
    st2(a, 1)
    a(f"v_and_b32 v36, 0xfff, v{vE}", f"v_bfe_u32 v{vCnt}, v{vE}, 12, 12", f"v_mad_u32_u24 v{vStart}, v36, 12, v{vStart}")
    RB = 64
    def dppr(i): return f"row_newbcast:{i} row_mask:0xf bank_mask:0xf"
    def rec(i): return RB + 4*i
    def addr(s): return f"v_add_u32_dpp v{rec(s)+3}, v{vStart}, v{vJ16} {dppr(s)}"
    rsc = OPT.get("rsc", "sc1")
    def load(s):
        if s < 16: return f"buffer_load_dwordx3 {vr(rec(s),3)}, v{rec(s)+3}, s[{sRec}:{sRec+3}], 0 offen {rsc}"
        return f"buffer_load_dwordx3 {vr(rec(s),3)}, v{vStart}, s[{sRec}:{sRec+3}], 0 offen offset:{12*s} {rsc}"
    def msk(s): return f"s[{sMask0+2*s}:{sMask0+2*s+1}]"
    def ex(s): return f"s_mov_b64 exec, {msk(s)}"
    def atom(s): return [f"v_and_b32 v{rec(s)+3}, s41, v{rec(s)+2}", f"ds_add_rtn_u32 v{rec(s)+3}, v{rec(s)+3}, v{vTw}"]
    def put(s): return [f"ds_write2_b32 v{rec(s)+3}, v{rec(s)}, v{rec(s)+1} offset0:0 offset1:1", f"ds_write_b32 v{rec(s)+3}, v{rec(s)+2} offset:8"]
    D0, W, LAG = OPT.get("d0", 4), OPT.get("win", 16), OPT.get("lag", 4)
    order = list(range(D0)) + list(range(16, 24)) + list(range(D0, 16))
    a(f"v_cmp_lt_u32 s[{sSave}:{sSave+1}], 24, v{vCnt}", "s_nop 0")
    for s in range(D0): a(addr(s), load(s))
    for s in range(16, 24): a(f"v_cmp_lt_u32 {msk(s)}, {s}, v{vCnt}")
    for s in range(D0, 16): a(addr(s))
    a(f"s_mov_b64 exec, s[{sSave}:{sSave+1}]", "s_cbranch_execz K2_P1")
    for s in range(24, 28): a(load(s))
    a(f"v_cmp_lt_u32 vcc, 28, v{vCnt}", "s_cbranch_vccnz K2_RARE1")
    if OPT.get("pg"): a("s_branch K2_P1", ".p2align 12", "K2_STUB1:", "s_branch K2_RET1")
    a("K2_P1:")
    for s in order[D0:W]:
        a(ex(s) if s >= 16 else ("s_mov_b64 exec, -1" if s == D0 else []), load(s))
    a("s_mov_b64 exec, -1")
    side = []
    for i in range(16): side += [f"v_add_co_u32_dpp v37, vcc, v{vCnt}, v{vN16} {dppr(i)}", f"s_mov_b64 {msk(i)}, vcc"]
    a("s_barrier", interleave(wrd, side, 1, 1))
    a("s_waitcnt lgkmcnt(0)", "s_barrier")
    sx = OPT.get("sx", 0)
    if sx & 1: put = lambda s: ["s_nop 0", "s_nop 0"]
    if sx & 2: atom = lambda s: [f"v_and_b32 v{rec(s)+3}, 0xffff, v{rec(s)+2}", f"v_lshl_add_u32 v{rec(s)+3}, v{rec(s)+3}, 5, v{vInit}"]
    ops = []; vm = order[:W]
    for i in range(24 + LAG):
        if i < 24:
            s = order[i]
            a(f"s_waitcnt vmcnt({len(vm) - 1 - vm.index(s)})", ex(s), atom(s)); ops.append(("a", s))
        if i + W < 24:
            s = order[i + W]; a(ex(s), load(s)); vm.append(s)
        elif late and i >= 24 - OPT.get("late", 6):
            x = late.pop(0); a(x); vm += [-1] * sum(y.startswith("buffer") for y in x)
        if i >= LAG:
            s = order[i - LAG]
            n = len(ops) - 1 - ops.index(("a", s))
            a(f"s_waitcnt lgkmcnt({n})", ex(s), put(s)); ops += [("w", s), ("w", s)]
        if i == D0 + 7 + LAG:
            a(f"s_mov_b64 exec, s[{sSave}:{sSave+1}]", "s_cbranch_execz K2_P3")
            for k in range(24, 28): a(f"v_cmp_lt_u32 {msk(k-8)}, {k}, v{vCnt}")
            for k in range(24, 28): a(ex(k - 8), atom(k))
            a("s_waitcnt lgkmcnt(0)")
            for k in range(24, 28): a(ex(k - 8), put(k))
            a(f"v_cmp_lt_u32 vcc, 28, v{vCnt}", "s_cbranch_vccnz K2_RARE2", "K2_P3:")
    for x in late: a(x)
    a("s_mov_b64 exec, -1")
    a("K2_P2:", "s_waitcnt lgkmcnt(0)", "s_barrier")
    st2(a, 4)
    if sx: a("s_branch K2_STOUT")
    tk2 = [0]
    def tick2():
        if OPT.get("ticks") == 2: a(f"s_memtime s[{52+2*tk2[0]}:{53+2*tk2[0]}]"); tk2[0] += 1
    tick2()
    vD, vR, vS = 40, 41, 42
    a(f"ds_read_b32 v{vD}, v{vT4} offset:{L_CNT}", f"ds_read_b32 v58, v{vInit} offset:8", "v_mov_b32 v43, 1", f"v_cmp_gt_u32 vcc, {NB}, v{tid}", f"v_lshlrev_b32 v36, 2, v{vLane}",
      f"s_mov_b64 s[{sValid}:{sValid+1}], vcc", "s_waitcnt lgkmcnt(1)")
    a(f"v_sub_u32 v{vD}, v{vD}, v{vInit}", f"v_cmp_lt_u32 vcc, {CAP*ESZ}, v{vD}", f"v_min_u32 v{vD}, {63*12}, v{vD}", f"v_mul_u32_u24 v{vD}, 5462, v{vD}",
      f"s_or_b64 s[{sBad}:{sBad+1}], s[{sBad}:{sBad+1}], vcc", f"v_lshrrev_b32 v{vD}, 16, v{vD}", f"v_lshlrev_b32 v37, 2, v{vD}")
    a(f"s_mov_b64 exec, s[{sValid}:{sValid+1}]", f"ds_add_rtn_u32 v{vR}, v37, v43 offset:{L_HIST}")
    if OPT["force_slow"]: a(f"s_mov_b64 s[{sBad}:{sBad+1}], 1")
    if OPT.get("force_raw"): a("s_mov_b32 s32, 2")
    a(f"s_cmp_lg_u64 s[{sBad}:{sBad+1}], 0", "s_addc_u32 s32, s32, 0", "s_mov_b64 exec, 1", "v_mov_b32 v39, s32", f"ds_or_b32 v{vZ}, v39 offset:{L_FLAG}", "s_mov_b64 exec, -1")
    a(f"v_add_u32 v59, 1, v{vD}", "v_lshrrev_b32 v59, 1, v59", f"v_mad_u32_u24 v59, v59, 12, v{vInit}", "ds_read_b32 v59, v59 offset:8",
      f"v_lshl_or_b32 v{vD}, v{vD}, 8, v{tid}", "s_waitcnt lgkmcnt(1)", f"v_bfi_b32 v58, s41, v{vD}, v58", "s_barrier")
    tick2()
    a(f"ds_read_b32 v{vS}, v36 offset:{L_HIST}", f"ds_read_b32 v38, v{vZ} offset:{L_FLAG}", "s_waitcnt lgkmcnt(1)")
    wave_scan(a, vS)
    a(f"v_sub_u32 v{vS}, {NB}, v{vS}", f"ds_bpermute_b32 v{vS}, v37, v{vS}", "s_waitcnt lgkmcnt(1)", f"v_readfirstlane_b32 s{sTmp}, v38",
      f"s_mul_i32 s{sTmp2}, s{sBucket}, {NB*128}", f"s_lshl_b32 s{sTile}, s{sWave}, 8", f"s_cmp_ge_u32 s{sTmp}, 2", "s_cbranch_scc1 K2_SLOW")
    a(f"s_mov_b64 exec, 1", f"buffer_store_dword v{vTag}, v{vZ}, s[{sAux}:{sAux+3}], s40 offen", "s_mov_b64 exec, -1", f"s_cmp_lg_u32 s{sTmp}, 0", "s_cbranch_scc1 K2_SLOW")
    a("s_waitcnt lgkmcnt(0)", f"v_add_lshl_u32 v{vS}, v{vS}, v{vR}, 3", f"s_mov_b64 exec, s[{sValid}:{sValid+1}]", f"ds_write_b64 v{vS}, v[58:59] offset:{L_RANK}", "s_mov_b64 exec, -1")
    a(f"s_movk_i32 s46, {CAP*ESZ}", f"v_mov_b32 v39, {L_TAB}", f"v_lshrrev_b32 v38, 4, v{vHalf}", f"v_add_u32 v36, s{sTile}, v29")
    tick2()
    a(f"v_cmp_ne_u32 vcc, 0, v{ROLE['A']+3}", "s_waitcnt lgkmcnt(0)" if OPT.get("b4", 1) else "s_waitcnt vmcnt(1) lgkmcnt(0)", "s_barrier")
    tick2()
    st2(a, 5)
    def decode1(w, r, base):
        return [f"v_bfe_u32 v{w+1}, v{w}, 8, 8", f"v_and_b32 v{w}, 0xff, v{w}", f"v_add_u32 v{w+2}, v{w+1}, v{r+1}", f"v_lshrrev_b32 v{w+2}, v{r+2}, v{w+2}",
                f"v_mad_u32_u24 v{base}, v{w}, s46, v39", f"v_sub_u32 v{w+1}, v{w+1}, v{w+2}", f"v_mad_u32_u24 v{base}, v{w+1}, v{r+3}, v{base}"]
    def decode2(w, r, info):
        return [f"v_and_b32 v{w+1}, 7, v{w}", f"v_xor_b32 v{w+1}, v{w+1}, v38", f"v_lshlrev_b32 v{w+1}, 4, v{w+1}", f"v_lshl_add_u32 v{w+1}, v{w}, 7, v{w+1}",
                f"v_lshl_or_b32 v{info}, v{w+2}, 16, v{w+1}"]
    def decode3(w, r, off):
        return [f"v_lshl_add_u32 v{w}, v{w}, 7, s{sTmp2}", f"v_or_b32 v{w}, v{w}, v{r+4}", f"ds_write_b32 v36, v{w} offset:{L_OUTO+off}"]
    a(f"ds_read_b64 v[56:57], v{ROLE['A']} offset:{L_RANK}", f"ds_read_b32 v60, v{ROLE['B']} offset:{L_RANK}")
    a(selectors())
    a("s_waitcnt lgkmcnt(1)", f"v_cndmask_b32 v{ENT[0]+2}, v56, v57, vcc", mkoff(0), gather(0, 0))
    tick2()
    a(decode1(56, ROLE["A"], vLds))
    a(f"ds_read_b32 v{ENT[1]+2}, v{vLds} offset:20", f"ds_read_b32 v{ENT[2]+2}, v{vLds} offset:32")
    a([f"ds_read2_b32 {vr(ENT[u],2)}, v{vLds} offset0:{3*u} offset1:{3*u+1}" for u in range(3)])
    a(decode2(56, ROLE["A"], vT0))
    if not OPT.get("b4", 1): a(hdr_reads(vT0, [vT1, 59, EE+14, EE+15]))
    a(tile_scalars(vT0, sP2A), f"v_accvgpr_write_b32 a{aInfo}, v{vT0}", decode3(56, ROLE["A"], 0), "s_waitcnt lgkmcnt(6)")
    gq = [[gather(0, 1)], [gather(0, 2)], [gather(0, 3)], [mkoff(1), gather(1, 0)], [gather(1, 1)], [gather(1, 2)], [gather(1, 3)]]
    GE = OPT.get("ge", 1)
    if GE: a(gq.pop(0))
    a(decode1(60, ROLE["B"], 63), f"v_accvgpr_write_b32 a{aNextL}, v63", decode2(60, ROLE["B"], 63), f"v_accvgpr_write_b32 a{aNextI}, v63", decode3(60, ROLE["B"], 128))
    if GE > 1: a(gq.pop(0))
    if OPT.get("b4", 1): a(f"s_waitcnt vmcnt({2+GE})", "s_barrier", hdr_reads(vT0, [vT1, 59, EE+14, EE+15]))
    if OPT.get("qb"):
        rb = lambda q: vr(D + 4*q, 4)
        a(hdr_reads(63, [vT1, 59, EE+14, EE+15], rb), gather(0, 1), "s_waitcnt lgkmcnt(0)")
        gs = [[gather(0, 2)], [gather(0, 3)], [mkoff(1), gather(1, 0)], [gather(1, 1)], [gather(1, 2)], [gather(1, 3)], [], []]
        for b in range(4):
            wr = [f"v_accvgpr_write_b32 a{WB(b-1,0)+i}, v{DEN+16*(b-1)+i}" for i in range(16)] if b else []
            a(q_mfmas(b, DEN, rb), gs[2*b], interleave(q_mfmas(b), [wr[4*k:4*k+4] for k in range(4)] if b else [], 1, 1), gs[2*b+1])
        a([f"v_accvgpr_write_b32 a{WB(3,0)+i}, v{DEN+48+i}" for i in range(16)])
    else:
        a(f"v_mov_b32 v{EE}, v{vL16}", gq.pop(0), "s_waitcnt lgkmcnt(0)")
        for b in range(4):
            k = NL // 16
            tick2()
            a(interleave(q_mfmas(b), [wlate[4*k*b+k*j:4*k*b+k*j+k] for j in range(4)], 1, 1))
            a(gq.pop(0))
        a(gq)
        tick2()
        a(f"s_waitcnt lgkmcnt({0 if OPT.get('ticks') == 2 else min(15, NL - 16)})")
    a(mkoff(2), "s_waitcnt vmcnt(4)")
    tick2()
    st2(a, 6)
    if OPT.get("steps"): a("s_mov_b32 m0, 0")
    a(edge_mfmas(0, NUM, 0), "s_nop 7", "s_nop 2")
    a(".p2align 3")
    body, n = align8([f"s_mov_b64 exec, s[{sValid}:{sValid+1}]"] + step(0, True))
    tick2()
    a(body)
    tick2()
    a("s_branch K2_L1")
    if OPT.get("pg"): a(".p2align 12", "K2_STUB2:", "s_branch K2_RET2", ".p2align 3")
    else: a(".p2align 6")
    for k, u in enumerate((1, 2, 0)):
        body = step(u, False) + [f"s_cbranch_scc1 K2_X{u}" if k < 2 else "s_cbranch_scc0 K2_L1"]
        if k: body = ["s_nop 0"] + body
        body, n = align8(body)
        if k: body = body[1:]
        a(f"K2_L{u}:", body)
    for u in (0, 1, 2):
        a(f"K2_X{u}:", f"s_cmp_lg_u32 s{sStage}, 0", "s_cbranch_scc1 K2_TEND",
          f"s_mov_b32 s{sStage}, 1", f"s_mov_b32 s{sC}, 1", f"s_mov_b32 s{sX+2}, 0", f"v_add_u32 v{vPad}, 2, v{vPad}", f"s_branch K2_L{(u+1)%3}")
    if OPT.get("pg"): a(".p2align 12", "K2_STUB3:", "s_branch K2_RET3")
    a("K2_TEND:", f"s_bitcmp1_b32 s{sTile}, 7", "s_cbranch_scc1 K2_FINAL")
    st2(a, 7)
    if OPT.get("steps"):
        a("s_mov_b64 exec, -1", f"s_add_u32 s48, s44, {STAMP_OFF+(3<<20)}", "s_addc_u32 s49, s45, 0", "s_mov_b32 s50, 0x100000", "s_mov_b32 s51, 0x00020000",
          f"s_lshl_b32 s46, s{sBucket}, 2", f"s_add_u32 s46, s46, s{sWave}", "s_lshl_b32 s46, s46, 8",
          f"v_lshlrev_b32 v{vT1}, 2, v{vLane}", f"buffer_store_dword v{vT0}, v{vT1}, s[48:51], s46 offen", "s_waitcnt vmcnt(0)")
    n = epilogue(a, True)
    st2(a, 8)
    a(".p2align 3")
    body, n = align8([f"s_mov_b64 exec, s[{sValid}:{sValid+1}]"] + step(0, True, 11, 1))
    a(body, "s_branch K2_L1")
    a("K2_FINAL:")
    st2(a, 9)
    epilogue(a, False)
    st2(a, 10)
    if OPT.get("exp", 0): a(f"s_mov_b64 s[{sBad}:{sBad+1}], 0")
    a(f"s_mov_b64 exec, s[{sBad}:{sBad+1}]", f"ds_write_b32 v20, v21 offset:{L_FLAG}", "s_mov_b64 exec, -1")
    a("s_waitcnt lgkmcnt(0)", "s_barrier", f"ds_read_b32 v21, v20 offset:{L_FLAG}", "s_waitcnt lgkmcnt(0)", f"v_readfirstlane_b32 s{sTmp}, v21",
      f"s_cmp_lg_u32 s{sTmp}, 0", "s_cbranch_scc1 K2_SLOW")
    if OPT["stamps"]:
        a("K2_STOUT:", "s_waitcnt vmcnt(0)")
        st2(a, 11)
        a(f"s_add_u32 s48, s44, {STAMP_OFF}", "s_addc_u32 s49, s45, 0", "s_mov_b32 s50, 0x100000", "s_mov_b32 s51, 0x00020000",
          f"s_lshl_b32 s46, s{sBucket}, 2", f"s_add_u32 s46, s46, s{sWave}", "s_lshl_b32 s46, s46, 8",
          f"v_accvgpr_read_b32 v20, a{aStamp}", "s_nop 0", [f"v_writelane_b32 v20, s{52+2*k}, {48+k}" for k in range(13 if OPT.get("ticks") else 0)], f"v_lshlrev_b32 v21, 2, v{vLane}", "buffer_store_dword v20, v21, s[48:51], s46 offen")
    a("K2_END:", "s_endpgm")
    a("K2_BUILD:", cpf if OPT.get("pfl") else [], "s_sub_u32 s93, s2, 250", "s_lshl_b32 s93, s93, 2", f"s_add_u32 s93, s93, s{sWave}")
    def bmid(): a("s_waitcnt lgkmcnt(0)"); st2(a, 12)
    def bpost():
        a(init.l, ptrs, epoch); st2(a, 13); return 1
    gen_build(a, "KB", 93, lambda v, sr: a(f"buffer_store_dwordx4 {vr(v,4)}, v{vL16}, s[{sAux}:{sAux+3}], s{sr} offen sc1"), 80, bmid, bpost)
    st2(a, 14)
    a(consts.l, "s_waitcnt vmcnt(0) lgkmcnt(0)", mktag, f"v_mov_b32 v40, v{vTag+1}", f"v_mov_b32 v41, v{vTag}", f"v_mov_b32 v42, v{vTag+1}", f"v_mov_b32 v43, v{vTag}", "s_barrier")
    st2(a, 15); st2(a, 2)
    a(f"s_cmp_ge_u32 s{sWave}, 2", "s_cbranch_scc1 K2_WAITB")
    a(f"buffer_store_dwordx4 v[40:43], v{vT16}, s[{sAux}:{sAux+3}], s47 offen sc1")
    a("K2_WAITB:", f"s_movk_i32 s84, {TMO}")
    a("K2_WB1:", f"buffer_load_dwordx2 {vr(vE,2)}, v{vPB}, s[{sAux}:{sAux+3}], 0 offen sc1", "s_waitcnt vmcnt(0)", chk(),
      "s_cbranch_vccz K2_WGO", "s_sub_u32 s84, s84, 1", "s_cbranch_scc0 K2_WB1", "s_mov_b32 s32, 2", "s_branch K2_WGO")
    a("K2_RARE1:")
    for k in range(28, 40): a(load(k))
    a(f"v_cmp_lt_u32 vcc, 40, v{vCnt}", f"s_or_b64 s[{sBad}:{sBad+1}], s[{sBad}:{sBad+1}], vcc", "s_branch K2_P1")
    a("K2_RARE2:")
    for k in range(28, 40):
        a(f"v_cmpx_lt_u32 vcc, {k}, v{vCnt}", "s_nop 0", "s_cbranch_execz K2_P3", atom(k), "s_waitcnt lgkmcnt(0)", put(k))
    a("s_branch K2_P3")
    fixup(a, "T"); fixup(a, "F")
    gen_slow(a)

def gen_slow(a):
    tid, vStart, vCnt, vJ, vA = 0, 1, 2, 4, 5
    a("K2_SLOW:", "s_mov_b64 exec, -1", f"s_mov_b32 s94, s{sTmp}", "s_load_dwordx8 s[72:79], s[0:1], 32", "s_waitcnt vmcnt(0) lgkmcnt(0)", f"s_mov_b32 s{sX+2}, {X_BYTES}", "s_barrier")
    a(f"s_lshl_b32 s{sTmp}, s{sWave}, 6", f"v_add_u32 v{tid}, s{sTmp}, v{vLane}", f"v_lshlrev_b32 v23, 4, v{vLane}", f"v_add_u32 v23, {L_WS}, v23")
    a(f"s_mov_b32 s93, s{sWave}", "KS_BL:")
    gen_build(a, "KSB", 93, lambda v, sr: a(f"v_add_u32 v22, s{sr}, v23", f"ds_write_b128 v22, {vr(v,4)}"), 72)
    a("s_add_u32 s93, s93, 4", "s_cmp_lt_u32 s93, 24", "s_cbranch_scc1 KS_BL", "s_waitcnt lgkmcnt(0)", "s_barrier")
    a([f"ds_read_b128 {ar(4*f,4)}, v23 offset:{1024*f}" for f in range(NFRAG)])
    a("s_waitcnt lgkmcnt(0)", "s_barrier")
    a("KS_HAVE:", "s_load_dwordx8 s[72:79], s[0:1], 0")
    a(f"v_lshlrev_b32 v20, 11, v{tid}", f"s_lshl_b32 s{sTmp}, s{sBucket}, 3", f"s_add_u32 s{sTmp}, s{sTmp}, {TAB_REL}",
      f"buffer_load_dword v21, v20, s[{sAux}:{sAux+3}], s{sTmp} offen sc1")
    a("v_mov_b32 v24, 0", "v_mov_b32 v25, 0", "v_mov_b32 v26, 0", "v_mov_b32 v27, 0", f"v_lshlrev_b32 v22, 4, v{tid}", f"v_add_u32 v22, {L_TAB}, v22")
    for i in range(13): a(f"ds_write_b128 v22, v[24:27] offset:{4096*i}")
    a(selectors())
    a(f"v_mul_u32_u24 v{vStart}, {CH*12}, v{tid}", f"v_and_b32 v6, 31, v{vLane}", f"v_mul_u32_u24 v{vJ}, 12, v6", "v_lshlrev_b32 v6, 2, v6")
    a("s_waitcnt vmcnt(0) lgkmcnt(0)", "v_and_b32 v22, 0xfff, v21", f"v_bfe_u32 v{vCnt}, v21, 12, 12", f"v_mad_u32_u24 v{vStart}, v22, 12, v{vStart}", f"v_mul_u32_u24 v{vCnt}, 12, v{vCnt}", "s_barrier")
    srd(a, 56, 78, 79, E*4); srd(a, 60, 76, 77, E*4); srd(a, 64, 74, 75, E*8)
    a(f"s_mul_i32 s50, s{sBucket}, {NB*128}", f"s_mul_i32 s51, s{sBucket}, {NB}", "s_mov_b32 s46, 0", f"s_lshl_b32 s95, s{sWave}, 7")
    a("s_cmp_lt_u32 s94, 2", "s_cbranch_scc1 KS_SEG")
    a("KS_RAW:", f"s_cmp_ge_u32 s95, {E*4}", "s_cbranch_scc1 KS_DONE")
    a("buffer_load_dword v20, v6, s[56:59], s95 offen", "s_mov_b32 s96, s95", "s_add_u32 s95, s95, 512", "s_waitcnt vmcnt(0)",
      "v_subrev_u32 v20, s51, v20", f"v_cmp_gt_u32 vcc, {NB}, v20", "s_cbranch_vccz KS_RAW", f"s_mov_b64 s[{sValid}:{sValid+1}], vcc")
    a("s_lshl_b32 s97, s96, 1", "v_lshlrev_b32 v21, 1, v6", "buffer_load_dword v10, v6, s[60:63], s96 offen", "buffer_load_dwordx2 v[8:9], v21, s[64:67], s97 offen",
      "v_and_b32 v20, 0xff, v20", "v_lshlrev_b32 v20, 2, v20", "s_waitcnt vmcnt(0)", "v_lshl_or_b32 v10, v10, 16, v20", "s_branch KS_BODY")
    a("KS_SEG:", "s_nop 3", f"v_readlane_b32 s47, v{vStart}, s46", f"v_readlane_b32 s48, v{vCnt}, s46", "s_mov_b32 s49, 0")
    a("KS_GRP:", "s_cmp_ge_u32 s49, s48", "s_cbranch_scc1 KS_NEXT")
    a(f"v_add_u32 v20, s49, v{vJ}", f"v_cmp_gt_u32 s[{sValid}:{sValid+1}], s48, v20", "v_add_u32 v20, s47, v20")
    a(f"buffer_load_dwordx3 v[8:10], v20, s[{sRec}:{sRec+3}], 0 offen sc1", "s_waitcnt vmcnt(0)")
    a("KS_BODY:")
    a(mkoff(2), [gather(0, q) for q in range(4)])
    a("v_and_b32 v20, 0xffff, v10", f"v_lshl_add_u32 v{vOff}, v20, 5, v{vHalf}", f"v_add_u32 v{vOff}, s50, v{vOff}", [gather(2, q) for q in range(4)])
    a(f"v_lshlrev_b32 v{vA}, 6, v20", f"v_add_u32 v{vA}, v{vHalf}, v{vA}", f"v_add_u32 v{vA}, {L_TAB}, v{vA}")
    a("s_waitcnt vmcnt(0)")
    for b in range(4):
        a(q_mfmas(b))
        a(mf8(Q + 16*b, ar(WC(b), 2), "v[8:9]", vr(Q + 16*b, 16)))
        for q in range(4): a(mf16(Q + 16*b, ar(WA(b, q), 4), ar(RING[0] + 4*q, 4), vr(Q + 16*b, 16)))
    a(mf8(D, ar(B2F, 2), vr(SEL, 2), "0"), mf8(D + 16, ar(B2F, 2), vr(SEL + 2, 2), "0"), "s_nop 7", "s_nop 7")
    for i in range(64): a(f"v_exp_f32 v{NUM+i}, v{Q+i}")
    for i in range(64): a(f"v_add_f32 v{NUM+i}, 1.0, v{NUM+i}")
    for i in range(64): a(f"v_rcp_f32 v{NUM+i}, v{NUM+i}")
    for i in range(64): a(f"v_mul_f32 v{NUM+i}, v{NUM+i}, v{Q+i}")
    for i in range(32): a(f"v_cvt_pk_bf16_f32 v{DEN+i}, v{NUM+2*i}, v{NUM+2*i+1}")
    a("s_nop 1")
    for b in range(4):
        for m in range(2):
            for ob in range(2): a(mf16(D + 16*ob, ar(W2(b, m, ob), 4), vr(DEN + 8*b + 4*m, 4), vr(D + 16*ob, 16)))
    a("s_nop 7", "s_nop 7", f"s_mov_b64 exec, s[{sValid}:{sValid+1}]")
    for ob in range(2):
        for i in range(16): a(f"ds_add_f32 v{vA}, v{D+16*ob+i} offset:{4*(32*((i>>2)&1) + 4*(i&3) + 2*(i>>3) + ob)}")
    a("s_mov_b64 exec, -1", "s_waitcnt lgkmcnt(0)", "s_cmp_ge_u32 s94, 2", "s_cbranch_scc1 KS_RAW", f"s_add_u32 s49, s49, {32*12}", "s_branch KS_GRP")
    a("KS_NEXT:", "s_add_u32 s46, s46, 1", "s_cmp_lt_u32 s46, 64", "s_cbranch_scc1 KS_SEG")
    a("KS_DONE:", "s_waitcnt lgkmcnt(0)", "s_barrier")
    a(f"v_lshlrev_b32 v20, 5, v{tid}", f"v_add_u32 v20, {L_TAB}, v20", f"v_lshlrev_b32 v21, 4, v{tid}", "v_add_u32 v21, s50, v21")
    for i in range(7):
        if i == 6: a(f"v_cmp_gt_u32 vcc, {NB*8-1536}, v{tid}", "s_and_saveexec_b64 s[46:47], vcc", "s_cbranch_execz KS_END")
        a(f"ds_read_b128 v[24:27], v20 offset:{8192*i}", f"ds_read_b128 v[28:31], v20 offset:{8192*i+16}", "s_waitcnt lgkmcnt(0)")
        for j in range(4): a(f"v_cvt_pk_bf16_f32 v{32+j}, v{24+2*j}, v{25+2*j}")
        a(f"buffer_store_dwordx4 v[32:35], v21, s[{sOut}:{sOut+3}], 0 offen", "s_nop 1", "v_add_u32 v21, 4096, v21")
    a("KS_END:", "s_endpgm")

def kd(name, vgpr, accum, sgpr=102):
    return f""".amdhsa_kernel {name}
  .amdhsa_next_free_vgpr {vgpr}
  .amdhsa_next_free_sgpr {sgpr}
  .amdhsa_accum_offset {accum}
  .amdhsa_group_segment_fixed_size 0
  .amdhsa_kernarg_size 88
  .amdhsa_user_sgpr_count 2
  .amdhsa_user_sgpr_kernarg_segment_ptr 1
  .amdhsa_system_sgpr_workgroup_id_x 1
  .amdhsa_float_denorm_mode_32 3
.end_amdhsa_kernel
"""

def generate(**opt):
    OPT.update(opt)
    ref = open("standalone__edge_featured_mpnn_mpnn__graph.s.ref").read().split("\n")
    head = [x for x in ref if x.startswith(";") and "@launch" not in x and not x.startswith("; Override") and not x.startswith("; grid=")]
    head += [f"; @launch {'kernel=' + KNAME + ' ' if OPT.get('aslist') else ''}grid=(256,1,1) block=(256,1,1) lds={K2_LDS}"]
    a = Asm()
    a('.amdgcn_target "amdgcn-amd-amdhsa--gfx950"', ".text", f".globl {KNAME}", f".type {KNAME},@function")
    gen_k2(a)
    return "\n".join(head) + "\n" + a.text() + '.section .rodata,"a"\n.p2align 6\n' + kd(KNAME, 512, 256)

if __name__ == "__main__":
    out = sys.argv[1] if len(sys.argv) > 1 else "standalone__edge_featured_mpnn_mpnn__graph.s"
    opt = {}
    for x in sys.argv[2:]:
        k, v = x.split("="); opt[k] = int(v) if v.lstrip("-").isdigit() else v.replace("+", " ")
    open(out, "w").write(generate(**opt))
```

```python
import re, sys, struct, math

N, E = 50000, 800000
NB = 196
CH = 3200
NCH = 250
CAP = 43
REC_BYTES = E * 12
FRAG_OFF = REC_BYTES
NFRAG = 51
FRAG_BYTES = NFRAG * 1024
EPO_REL = 52 * 1024
TAB_REL = 53 * 1024
AUX_BYTES = TAB_REL + 256 * 2048
KNAME = "standalone__edge_featured_mpnn_mpnn__graph_kernel"
STAMP_OFF = 16 << 20
X_BYTES = N * 128

def f32(x): return "0x%08x" % struct.unpack("<I", struct.pack("<f", x))[0]
NLOG2E = f32(-math.log2(math.e))
NLN2 = f32(-math.log(2.0))

OPT = dict(stamps=False, force_slow=False, k1st="sc1", outst="sc1", late=4, onewait=0, pg=1)

class Asm:
    def __init__(self): self.l = []
    def __call__(self, *xs):
        for x in xs:
            if isinstance(x, (list, tuple)): self(*x)
            else:
                for y in x.split("\n"):
                    y = y.strip()
                    if y: self.l.append(y)
    def text(self):
        return "\n".join((x if (x.endswith(":") or x.startswith(".")) else "    " + x) for x in self.l) + "\n"

def vr(b, n): return f"v[{b}:{b+n-1}]"
def ar(b, n): return f"a[{b}:{b+n-1}]"

def srd(a, s, lo, hi, nrec):
    a(f"s_mov_b32 s{s}, s{lo}", f"s_mov_b32 s{s+1}, s{hi}", f"s_mov_b32 s{s+2}, {nrec}", f"s_mov_b32 s{s+3}, 0x00020000")

def wave_scan(a, v):
    for sh in (1, 2, 4, 8):
        a("s_nop 1", f"v_add_u32_dpp v{v}, v{v}, v{v} row_shr:{sh} row_mask:0xf bank_mask:0xf")
    a("s_nop 1", f"v_add_u32_dpp v{v}, v{v}, v{v} row_bcast:15 row_mask:0xa bank_mask:0xf")
    a("s_nop 1", f"v_add_u32_dpp v{v}, v{v}, v{v} row_bcast:31 row_mask:0xc bank_mask:0xf")

def isize(x):
    if x.endswith(":") or x.startswith("."): return 0
    op = x.split()[0]
    rest = x[len(op):]
    def lit():
        for tok in re.split(r"[,\s]+", rest):
            if re.fullmatch(r"-?(0x[0-9a-fA-F]+|\d+)", tok):
                v = int(tok, 0)
                if not (-16 <= v <= 64): return True
        return False
    if op in ("s_waitcnt", "s_nop", "s_barrier", "s_branch", "s_endpgm", "s_setprio") or op.startswith("s_cbranch"): return 4
    if op.startswith(("s_load", "s_memtime", "s_memrealtime")): return 8
    if op.startswith("s_"): return 8 if lit() else 4
    if op.startswith(("buffer_", "ds_", "global_", "v_mfma", "v_pk_", "v_accvgpr_read", "v_accvgpr_write")): return 8
    if op.endswith("_e64") or op.endswith("_dpp") or op.endswith("_sdwa"): return 8
    vop3 = ("v_mad_", "v_fma_", "v_max3", "v_min3", "v_cvt_pk_bf16", "v_lshl_add", "v_lshl_or", "v_bfe", "v_add3", "v_and_or",
            "v_readlane", "v_writelane", "v_maximum3", "v_bfi", "v_mul_lo", "v_mul_hi", "v_add_lshl", "v_perm_b32", "v_or3")
    if op.startswith(vop3): return 8
    if op.startswith("v_cmp"):
        if not rest.strip().startswith("vcc"): return 8
        return 8 if lit() else 4
    if op == "v_cndmask_b32" and not rest.strip().endswith("vcc"): return 8
    return 8 if lit() else 4

PROMOTE = ("v_exp_f32 ", "v_rcp_f32 ", "v_mul_f32 ", "v_mov_b32 ", "v_lshrrev_b32 ", "v_add_u32 ", "v_lshlrev_b32 ")
def align8(lines):
    o = sum([x.split("\n") for x in lines], []); pos = 0; last = None
    for i, x in enumerate(o):
        s = isize(x)
        if x.startswith("v_pk_") and pos % 8 == 4:
            assert last is not None, "cannot align " + x
            op = o[last].split()[0]; o[last] = o[last].replace(op, op + "_e64", 1); pos += 4; last = None
        if x.startswith(PROMOTE) and s == 4: last = i
        elif x.startswith("v_pk_"): last = None
        pos += s
    return o, pos

L_CNT, L_HIST, L_FLAG, L_RANK, L_OUTO, L_XR = 0, 1024, 1280, 1536, 3200, 4224
L_WS = L_XR + NB * 128
L_TAB = L_WS + 32 * 1024
P1_CNT, P1_BASE, P1_STG = 5120, 6144, 7168
ESZ = 12
K2_LDS = L_TAB + NB * CAP * ESZ

Q, NUM, DEN, D, EE = 16, 80, 144, 208, 240
ENT = (0, 4, 8)
vOff, vLds, vHalf, vPad, vLane, vT0, vT1 = 3, 7, 11, 12, 13, 14, 15
RING = (204, 220, 236)
aInfo, aNextL, aNextI, aStamp = 252, 253, 254, 255
def WA(b, q): return 4 * (4 * b + q)
def WC(b): return 128 + 2 * b
B1F, B2F = 136, 138
def WB(b, q): return 140 + 4 * (4 * b + q)
def W2(b, m, ob): return 64 + 4 * (4 * b + 2 * m + ob)
sX, sOut, sRec, sAux = 4, 8, 12, 16
sWave, sBucket, s128, sC, sStage, sTile, sL, sTmp, sTmp2, sP2B = 20, 21, 22, 23, 24, 25, 26, 27, 28, 29
sValid, sBad, sSave, sP2A = 30, 34, 36, 38
sMask0 = 52
TILE_A = [(0, 0, 30), (2, 0, 76), (2, 2, 104), (2, 4, 132)]
TILE_B = [(16, 160, 0), (14, 62, 192), (12, 18, 184), (12, 6, 176)]
assert all(t[0] % 2 == 0 and t[0] <= 4 for t in TILE_A) and all(t[0] % 2 == 0 and t[0] >= 12 for t in TILE_B)
def _check_map():
    seen = []
    for P, rp, rs in TILE_A + TILE_B: seen += list(range(rp, rp + P)) + list(range(rs, rs + 32 - 2*P))
    assert sorted(seen) == list(range(NB))
_check_map()

def pkfma(d, x, y, z): return f"v_pk_fma_f32 {vr(d,2)}, {vr(x,2)}, {vr(y,2)}, {vr(z,2)}"
def pkmul(d, x, y): return f"v_pk_mul_f32 {vr(d,2)}, {vr(x,2)}, {vr(y,2)}"
def mf16(d, A, B, c): return f"v_mfma_f32_32x32x16_bf16 {vr(d,16)}, {A}, {B}, {c}"
def mf8(d, A, B, c): return f"v_mfma_f32_32x32x8_bf16 {vr(d,16)}, {A}, {B}, {c}"

def edge_mfmas(b, dst, u):
    o = [mf8(dst, ar(WC(b), 2), vr(ENT[u], 2), vr(Q + 16*b, 16))]
    for q in range(4): o.append(mf16(dst, ar(WA(b, q), 4), ar(RING[u] + 4*q, 4), vr(dst, 16)))
    return o
def gather(u, q): return f"buffer_load_dwordx4 {ar(RING[u]+4*q,4)}, v{vOff}, s[{sX}:{sX+3}], 0 offen offset:{16*q}"
def mkoff(u): return f"v_mad_u32_u16 v{vOff}, v{ENT[u]+2}, s{s128}, v{vHalf} op_sel:[1,0,0,0]"
def entry(u, off): return f"ds_read_b96 {vr(ENT[u],3)}, v{vLds} offset:{off}"

def interleave(v, m, gap=3, start=0):
    o = []; k = 0
    for i, x in enumerate(v):
        if k < len(m) and i == start + k * gap: o.append(m[k]); k += 1
        o.append(x)
    return o + m[k:]

def icost(x):
    if x.startswith(("v_exp", "v_rcp", "v_mfma_f32_32x32x16")): return 8
    if x.startswith("buffer_"): return 12
    if x.startswith("ds_"): return 8
    return 4
def weave(fill, mf):
    o = []; k = 0; since = 99
    for i, x in enumerate(fill):
        if k < len(mf) and since >= 32 and i >= mf[k][1]:
            o.append(mf[k][0]); since = icost(mf[k][0]); k += 1
        o.append(x); since += icost(x)
    return o + [m for m, _ in mf[k:]]

def step(u, first, vm=3, b0=0):
    o = []
    nx, pre = (u + 1) % 3, (u + 2) % 3
    for b in range(b0, 4):
        n, dn = NUM + 16*b, DEN + 16*b
        t = n if first else D + 16*(b & 1)
        e = dn if first else EE
        ex = [f"v_exp_f32 v{e+i}, v{t+i}" for i in range(16)]
        if b < 3: m = edge_mfmas(b + 1, NUM + 16*(b+1) if first else D + 16*((b+1) & 1), u)
        else: m = edge_mfmas(0, D, nx)
        A = interleave(ex, m)
        if OPT.get("m16") and not first:
            bn = (b + 1) % 4; un = u if b < 3 else nx; dst = D + 16*((b+1) & 1); m = []
            for j in range(4): m.append(f"v_mfma_f32_16x16x16_bf16 {vr(dst+4*j,4)}, {ar(WC(bn),2)}, {vr(ENT[un],2)}, {vr(Q+16*bn+4*j,4)}")
            for k in range(2):
                for j in range(4): m.append(f"v_mfma_f32_16x16x32_bf16 {vr(dst+4*j,4)}, {ar(WA(bn, 2*(j>>1)+k),4)}, {ar(RING[un]+4*(2*(j&1)+k),4)}, {vr(dst+4*j,4)}")
            A = []
            for i in range(16):
                if i < 12: A.append(m[i])
                A.append(ex[i])
            if OPT["m16"] == 2:
                A = [m[0], ex[0], ex[1], m[1], ex[2], m[2], ex[3], ex[4], m[3], ex[5]] + sum([[m[4+i], ex[6+i]] for i in range(8)], []) + ex[14:]
        if OPT.get("onewait") == 1: A = [m[0]] + ex[:2] + interleave(ex[2:], m[1:])
        mid, end = [gather(pre, b)], []
        if b == 0 and not first: end = [f"v_cmpx_gt_i32 vcc, s{sC}, v{vPad}"]
        if b == 1:
            if not first: end = [f"s_sub_u32 s{sC}, s{sC}, 1"]
            if b0: mid, end = [gather(pre, 0)], [gather(pre, 1)]
        if b == 2:
            if OPT.get("onewait") == 2: A = [m[0]] + ex[:2] + [entry(u, 36 + ESZ*u)] + interleave(ex[2:], m[1:])
            elif OPT.get("onewait"): A = A[:6] + [entry(u, 36 + ESZ*u)] + A[6:]
            else: end = [entry(u, 36 + ESZ*u)]
        if b == 3:
            mid = [f"s_waitcnt vmcnt({vm}) lgkmcnt(0)"] + mid if OPT.get("onewait") else [f"s_waitcnt vmcnt({vm})"] + mid
            end = ([] if OPT.get("onewait") else ["s_waitcnt lgkmcnt(0)"]) + [mkoff(u)]
            if u == 2: end += [f"v_add_u32 v{vLds}, 36, v{vLds}"]
            if OPT.get("steps"): end += [f"v_writelane_b32 v{vT0}, s100, m0", "s_mov_b32 s99, m0", "s_addk_i32 s99, 1" if first else "s_cselect_b32 s98, 1, 0\ns_addk_i32 s99, 1\ns_cmp_lg_u32 s98, 0", "s_mov_b32 m0, s99"]
        if b == 2 and OPT.get("steps"): end = end + ["s_memtime s[100:101]"]
        if first:
            p = [f"v_pk_add_f32 {vr(dn+i,2)}, {vr(dn+i,2)}, 1.0 op_sel_hi:[1,0]" for i in range(0, 16, 2)]
        else:
            p = [pkfma(n+i, n+i, EE+i, n+i) for i in range(0, 16, 2)]
            p += [pkfma(n+i, t+i, dn+i, n+i) for i in range(0, 16, 2)]
            p += [pkfma(dn+i, dn+i, EE+i, dn+i) for i in range(0, 16, 2)]
        if not first and OPT.get("pkord", 0):
            pa, pb, pc = p[:8], p[8:16], p[16:]
            if OPT["pkord"] == 1: p = sum([[pa[i], pb[i], pc[i]] for i in range(8)], [])
            if OPT["pkord"] == 2:
                p = [pa[0]]
                for i in range(8): p += ([pa[i+1]] if i < 7 else []) + [pb[i], pc[i]]
            if OPT["pkord"] == 3:
                p = [pkfma(n+i, EE+i, n+i, n+i) for i in range(0, 16, 2)] + [pkfma(n+i, dn+i, t+i, n+i) for i in range(0, 16, 2)] + [pkfma(dn+i, EE+i, dn+i, dn+i) for i in range(0, 16, 2)]
        blk = A[:2] + mid + A[2:] + end + p
        x = OPT.get("exp", 0)
        if not first:
            if x & 1: blk = [("s_nop 1" if i.startswith("v_mfma") else i) for i in blk]
            if x & 2: blk = [("s_nop 0" if i.startswith("v_pk") else i) for i in blk]
            if x & 4: blk = [("s_nop 1" if (i.startswith("v_exp") and not i.endswith(f"v{t+15}")) else i) for i in blk]
            if x & 8: blk = [("s_nop 1" if i.startswith("buffer_load") else i) for i in blk]
            if x & 16:
                c0 = m[0].split(", ")[-1]
                blk = [("s_nop 0" if i == m[0] else (", ".join(i.split(", ")[:-1] + [c0]) if i == m[1] else i)) for i in blk]
            if x & 64: blk = [("s_nop 1" if i == m[4] else i) for i in blk]
            if x & 128: blk = [("s_nop 1" if i in (m[3], m[4]) else i) for i in blk]
            if x & 256:
                blk = [("v_pk_mov_b32 v[14:15], v[14:15], v[14:15]" if i in p[:8] else i) for i in blk]
            if x & 512: blk = [("v_pk_mov_b32 v[14:15], v[14:15], v[14:15]" if i in p[8:16] else i) for i in blk]
        o += blk
    return o

SEL = EE + 4
def selectors():
    return [f"v_mov_b32 v{SEL}, 0x3f80", f"v_mov_b32 v{SEL+1}, 0", f"v_mov_b32 v{SEL+2}, 1.0", f"v_mov_b32 v{SEL+3}, 0",
            f"v_mov_b32 v{SEL+4}, 0", f"v_mov_b32 v{SEL+5}, 0x3f80", f"v_mov_b32 v{SEL+6}, 0", f"v_mov_b32 v{SEL+7}, 1.0"]
def q_mfmas(b, dst=Q, rows=lambda q: ar(RING[2] + 4*q, 4)):
    o = [mf8(dst + 16*b, ar(B1F, 2), vr(SEL + 2*b, 2), "0")]
    for q in range(4): o.append(mf16(dst + 16*b, ar(WB(b, q), 4), rows(q), vr(dst + 16*b, 16)))
    return o
def hdr_reads(vinfo, tmp, rows=lambda q: ar(RING[2] + 4*q, 4)):
    o = [f"v_and_b32 v{tmp[0]}, 0xffff, v{vinfo}", f"ds_read_b128 {rows(0)}, v{tmp[0]} offset:{L_XR}"]
    for q in range(1, 4): o += [f"v_xor_b32 v{tmp[q]}, {16*q}, v{tmp[0]}", f"ds_read_b128 {rows(q)}, v{tmp[q]} offset:{L_XR}"]
    return o
def tile_scalars(vinfo, sp2):
    return [f"v_lshrrev_b32 v{vPad}, 16, v{vinfo}", f"s_mov_b32 s{sStage}, 0",
            f"v_readlane_b32 s{sL}, v{vPad}, 0", f"v_readlane_b32 s{sTmp}, v{vPad}, s{sp2}", f"v_cmp_lt_u32 s[{sValid}:{sValid+1}], 0, v{vPad}",
            f"s_max_u32 s{sL}, s{sL}, s{sTmp}", f"s_max_u32 s{sL}, s{sL}, 4", f"s_sub_u32 s{sC}, s{sL}, 4", f"s_sub_u32 s{sL}, s{sL}, 3",
            f"v_sub_u32 v{vPad}, s{sL}, v{vPad}"]

def epilogue(a, nxt):
    lab = "T" if nxt else "F"
    CHK, AD, P = EE + 12, DEN + 24, DEN + 32
    so = OPT.get("outst", "")
    a("s_mov_b64 exec, -1", f"s_cmp_lg_u64 s[{sValid}:{sValid+1}], -1", f"s_cbranch_scc1 K2_{lab}FIX", ".p2align 3", f"K2_{lab}GO:")
    o = [f"v_accvgpr_read_b32 v{EE+2}, a{aInfo}"]
    if nxt:
        o = [f"v_accvgpr_read_b32 v{vLds}, a{aNextL}", f"v_accvgpr_read_b32 v{vT0}, a{aNextI}", f"ds_read_b32 v{ENT[0]+2}, v{vLds} offset:8"] + o
        o += [f"s_mov_b32 s{sX+2}, {X_BYTES}"]
    o += [f"v_lshrrev_b32 v{EE+2}, 16, v{EE+2}", f"v_cvt_f32_u32 v{EE+2}, v{EE+2}", f"v_mov_b32 v{EE+1}, 0", f"v_mov_b32 v{EE+3}, 0", f"v_lshrrev_b32 v{EE}, 16, v{EE+2}"]
    def chk(b):
        dn = DEN + 16*b
        return [(pkmul(CHK, dn, dn + 8) if (b == 0 and i == 0) else pkfma(CHK, dn+i, dn+8+i, CHK)) for i in range(0, 8, 2)]
    def cvt(b): return [f"v_cvt_pk_bf16_f32 v{DEN+16*b+i//2}, v{NUM+16*b+i}, v{NUM+16*b+i+1}" for i in range(0, 16, 2)]
    def w2(b): return [mf16(D + 16*ob, vr(DEN + 16*b + 4*m, 4), ar(W2(b, m, ob), 4), vr(D + 16*ob, 16)) for m in range(2) for ob in range(2)]
    tk = [0]
    def tick():
        if OPT.get("ticks") == 1 and nxt: o.append(f"s_memtime s[{52+2*tk[0]}:{53+2*tk[0]}]"); tk[0] += 1
    if OPT.get("ticks") == 1 and nxt: o.insert(0, "s_memtime s[52:53]"); tk[0] = 1
    o += chk(0)
    JS = list(range(8)) if nxt else [0, 2, 4, 6, 7]
    ad = lambda j: AD + 4*(j & 1) + (j >> 1)
    oread = [f"v_lshrrev_b32 v{vT1}, 4, v{vLane}", f"v_lshl_add_u32 v{vT1}, v{vT1}, 5, s{sTile}", f"ds_read_b128 {vr(AD,4)}, v{vT1} offset:{L_OUTO}",
             f"ds_read_b128 {vr(AD+4,4)}, v{vT1} offset:{L_OUTO+16}" if nxt else f"ds_read_b32 v{AD+7}, v{vT1} offset:{L_OUTO+28}",
             f"v_and_b32 v{vT1}, 15, v{vLane}"]
    oadd = [f"v_lshl_add_u32 v{ad(j)}, v{vT1}, 3, v{ad(j)}" for j in JS]
    lim = [f"v_lshrrev_b32 v{EE}, 4, v{vHalf}", f"v_sub_u32 v{EE}, s{sP2A if nxt else sP2B}, v{EE}"]
    ts = tile_scalars(vT0, sP2B)
    Q4 = [q_mfmas(k) for k in range(4)]
    for b in range(4):
        n, dn = NUM + 16*b, DEN + 16*b
        rc = [f"v_rcp_f32 v{dn+i}, v{dn+i}" for i in range(16)]
        pre = cvt(b - 1) if b else []
        if b == 0: mf = [(mf8(D, vr(EE, 2), ar(B2F, 2), "0"), 0), (mf8(D + 16, vr(EE + 2, 2), ar(B2F, 2), "0"), 0)]
        else: mf = [(x, 6 if k < 2 else 10) for k, x in enumerate(w2(b - 1))]
        if nxt and OPT.get("qb"):
            qr = [f"v_accvgpr_read_b32 v{Q+16*b+i}, a{WB(b,0)+i}" for i in range(16)]
            ex = {0: ["s_waitcnt lgkmcnt(0)", mkoff(0), gather(0, 0), f"ds_read2_b32 {vr(ENT[0],2)}, v{vLds} offset0:0 offset1:1", entry(1, ESZ), entry(2, 2*ESZ), gather(0, 1)],
                  1: [gather(0, 2), f"v_accvgpr_write_b32 a{aInfo}, v{vT0}"] + lim + ts + [gather(0, 3)],
                  2: ["s_waitcnt lgkmcnt(0)", mkoff(1)] + oread + [gather(1, 0), f"s_add_u32 s{sTile}, s{sTile}, 128"],
                  3: [gather(1, 1), "s_waitcnt lgkmcnt(0)", f"v_add_f32 v{CHK}, v{CHK}, v{CHK+1}"] + oadd + [gather(1, 2)]}[b]
            fill = pre + interleave(rc, ex, 2 if b == 0 else 1, 1)
            if b < 3: fill += qr
            else:
                fm = edge_mfmas(0, NUM, 0); k = len(fill) - 19
                assert fill.index(gather(1, 1)) < k < fill.index(gather(1, 2))
                fill = fill[:k] + ["s_waitcnt vmcnt(2)"] + fill[k:]
                mf = [(fm[0], 0)] + mf + [(x, k + 1) for x in fm[1:]]
        elif nxt:
            if b == 0:
                fill = selectors() + ["s_waitcnt lgkmcnt(0)", mkoff(0), gather(0, 0)] + rc[:9] + ["s_waitcnt vmcnt(1)"] + \
                       interleave(hdr_reads(vT0, [vT1, vPad, EE+14, EE+15]), rc[9:13], 2, 2) + [gather(0, 1)] + rc[13:]
                mf = mf + [(Q4[k][0], 10) for k in range(4)]
            else:
                ex = {1: [f"ds_read2_b32 {vr(ENT[0],2)}, v{vLds} offset0:0 offset1:1", entry(1, ESZ), gather(0, 2), entry(2, 2*ESZ), f"v_accvgpr_write_b32 a{aInfo}, v{vT0}"] + lim + [gather(0, 3)],
                      2: ["s_waitcnt lgkmcnt(0)", mkoff(1)] + oread + [gather(1, 0), f"s_add_u32 s{sTile}, s{sTile}, 128"] + ts[:5],
                      3: [gather(1, 1), "s_waitcnt lgkmcnt(0)", f"v_add_f32 v{CHK}, v{CHK}, v{CHK+1}"] + oadd + [gather(1, 2)]}[b]
                fill = pre + interleave(rc, ex, 1, 1)
                if b == 1:
                    fill = ["s_waitcnt lgkmcnt(0)"] + fill
                    mf = [(x, 1) for x in Q4[0][1:]] + mf + [(Q4[2][1], 0)]
                elif b == 2: mf = [(x, 0) for x in Q4[1][1:]] + mf + [(Q4[2][2], 0)]
                else:
                    fm = edge_mfmas(0, NUM, 0); k = len(fill) - 19
                    assert fill.index(gather(1, 1)) < k < fill.index(gather(1, 2))
                    fill = fill[:k] + ["s_waitcnt vmcnt(2)"] + fill[k:]
                    mf = [(fm[0], 0)] + mf + [(x, k + 1) for x in fm[1:]]
        else:
            fill = pre + rc
        tick()
        o += weave(fill, mf)
        tick()
        mu = [pkmul(n+i, n+i, dn+i) for i in range(0, 16, 2)]
        o += interleave(mu, chk(b + 1), 2, 1) if b < 3 else mu
    wm = w2(3)
    c3 = cvt(3)
    mx = lambda j: f"v_maximum3_f32 v{CHK}, v{CHK}, |v{D+2*j}|, |v{D+2*j+1}|"
    bad = [f"v_cmp_ngt_f32 vcc, {f32(2.0**120)}, v{CHK}", f"s_or_b64 s[{sBad}:{sBad+1}], s[{sBad}:{sBad+1}], vcc"]
    def outp(js, tail):
        r = []; tail = list(tail)
        for k in range(len(js) + 2):
            if k < len(js):
                j = js[k]; r += [f"v_cvt_pk_bf16_f32 v{P+2*j}, v{D+2*j}, v{D+16+2*j}", f"v_cvt_pk_bf16_f32 v{P+2*j+1}, v{D+2*j+1}, v{D+17+2*j}"]
            else: r += tail[:2]; tail = tail[2:]
            if 1 <= k <= len(js): j = js[k-1]; r += [f"v_permlane16_swap_b32 v{P+2*j}, v{P+2*j+1}"]
            if k >= 2: j = js[k-2]; r += [f"buffer_store_dwordx2 {vr(P+2*j,2)}, v{ad(j)}, s[{sOut}:{sOut+3}], 0 offen {so}"]
        return r + tail
    if nxt:
        q3 = q_mfmas(3); n1 = edge_mfmas(1, NUM + 16, 0)
        tick()
        if OPT.get("qb"):
            o += weave(c3 + [f"v_exp_f32 v{DEN+i}, v{NUM+i}" for i in range(16)] + [gather(1, 3), mkoff(2)], [(wm[0], 6), (wm[1], 6), (wm[2], 10), (wm[3], 10)])
            q3 = [0]; bad = bad + qr
        else:
            o += weave(c3 + [f"v_exp_f32 v{DEN+i}, v{NUM+i}" for i in range(16)] + [gather(1, 3), mkoff(2)] + ts[5:],
                       [(Q4[2][3], 0), (wm[0], 6), (wm[1], 6), (wm[2], 10), (wm[3], 10), (Q4[2][4], 0)])
        tick()
        o += [f"v_pk_add_f32 {vr(DEN+i,2)}, {vr(DEN+i,2)}, 1.0 op_sel_hi:[1,0]" for i in range(0, 16, 2)]
        o += [f"v_cmpx_lt_i32_e64 vcc, 0, v{EE}"] + [f"v_pk_add_f32 {vr(D+16*ob,2)}, {vr(D+16*ob,2)}, {vr(D+16*ob+2,2)}" for ob in range(2)] + ["s_mov_b64 exec, -1"]
        tick()
        o += weave(outp(JS, [mx(j) for j in range(8)] + bad), [(x, 1) for x in n1 + q3[1:]])
        tick()
    else:
        o += c3[:6] + [wm[0]] + c3[6:] + oread[:3] + [wm[2]] + oread[3:] + lim + [f"v_add_f32 v{CHK}, v{CHK}, v{CHK+1}", wm[1], "s_nop 2", "s_waitcnt lgkmcnt(0)"] + oadd[:2] + [wm[3]] + oadd[2:]
        pa = lambda ob, g: f"v_pk_add_f32 {vr(D+16*ob+4*g,2)}, {vr(D+16*ob+4*g,2)}, {vr(D+16*ob+4*g+2,2)}"
        o += ["v_mov_b32 v20, 0", "v_mov_b32 v21, 1", "s_nop 3"] + [pa(0, g) for g in range(3)] + [pa(1, g) for g in range(3)]
        o += [f"v_cmpx_lt_i32_e64 vcc, 24, v{EE}", pa(0, 3), pa(1, 3), "s_mov_b64 exec, -1"]
        o += outp(JS, [mx(j) for j in JS] + bad)
    o, n = align8(o)
    a(o)
    return n

def fixup(a, lab):
    a(f"K2_{lab}FIX:", f"s_andn2_b64 exec, -1, s[{sValid}:{sValid+1}]")
    for i in range(64): a(f"v_mov_b32 v{NUM+i}, 0", f"v_mov_b32 v{DEN+i}, 1.0")
    a("s_mov_b64 exec, -1", f"s_branch K2_{lab}GO")

def st2(a, idx):
    if OPT.get("lite"):
        if idx == 0: a("s_memrealtime s[100:101]")
        if idx == 11: a("s_memrealtime s[50:51]", f"v_mov_b32 v{vT1}, 0", "s_waitcnt lgkmcnt(0)", f"v_writelane_b32 v{vT1}, s100, 16", f"v_writelane_b32 v{vT1}, s50, 27", "s_nop 0", f"v_accvgpr_write_b32 a{aStamp}, v{vT1}")
    elif OPT["stamps"]:
        a("s_memtime s[100:101]", "s_memrealtime s[50:51]", "s_mov_b64 s[48:49], exec", "s_mov_b64 exec, -1", f"v_accvgpr_read_b32 v{vT1}, a{aStamp}", "s_waitcnt lgkmcnt(0)", "s_nop 0",
          f"v_writelane_b32 v{vT1}, s100, {idx}", f"v_writelane_b32 v{vT1}, s50, {idx+16}", f"v_writelane_b32 v{vT1}, s{sL}, {idx+32}", "s_nop 0", f"v_accvgpr_write_b32 a{aStamp}, v{vT1}", "s_mov_b64 exec, s[48:49]")

def gen_build(a, lab, g, store, P, mid=None, post=None):
    R1, R2, R3, T = 64, 72, 80, 96
    for r_, n_ in ((56, 132*128*2), (60, 256), (64, 128*64*2), (68, 128)): a(f"s_mov_b32 s{r_+2}, {n_}", f"s_mov_b32 s{r_+3}, 0x00020000")
    a(f"v_and_b32 v{T}, 31, v{vLane}", f"v_lshrrev_b32 v{T+1}, 5, v{vLane}",
      f"v_lshlrev_b32 v{T+2}, 13, v{T+1}", f"v_lshl_add_u32 v{T+2}, v{T}, 1, v{T+2}",
      f"v_and_b32 v{T+5}, 15, v{T}", f"v_lshrrev_b32 v{T+4}, 4, v{T}", f"v_lshl_or_b32 v{T+5}, v{T+5}, 1, v{T+4}", f"v_lshlrev_b32 v{T+5}, 2, v{T+5}",
      f"v_lshl_add_u32 v{T+3}, v{T+1}, 9, v{T+5}", f"v_lshlrev_b32 v{T+4}, 1, v{T}", f"v_cmp_eq_u32 s[88:89], 1, v{T+1}")
    def w1(f, off, dst):
        a(f"s_and_b32 s{off}, s{f}, 3", f"s_lshl_b32 s{off}, s{off}, 11", f"s_bfe_u32 s99, s{f}, 0x20002", "s_lshl_b32 s99, s99, 6", f"s_add_u32 s{off}, s{off}, s99",
          f"s_lshr_b32 s99, s{f}, 4", f"s_mul_i32 s{dst}, s99, 19", "s_lshl_b32 s99, s99, 14", f"s_add_u32 s{off}, s{off}, s99", f"s_add_u32 s{dst}, s{dst}, s{f}", f"s_lshl_b32 s{dst}, s{dst}, 10")
    w1(g, 95, 90)
    a(f"s_add_u32 s98, s{g}, 24"); w1(98, 96, 91)
    a(f"s_sub_u32 s99, s{g}, 8", "s_add_u32 s98, s99, 16", "s_lshl_b32 s98, s98, 10", "s_lshr_b32 s97, s99, 1", "s_lshl_b32 s97, s97, 11", "s_and_b32 s99, s99, 1",
      "s_lshl_b32 s99, s99, 1", "s_add_u32 s97, s97, s99", f"s_cmp_ge_u32 s{g}, 8", "s_cselect_b32 s91, s98, s91", "s_cselect_b32 s96, s97, s96",
      f"s_add_u32 s92, s{g}, 11", "s_lshl_b32 s92, s92, 10", f"s_sub_u32 s97, s{g}, 21", "s_lshl_b32 s97, s97, 7", f"s_add_u32 s97, s97, {128*256}")
    if mid: mid()
    for k in range(4): a(f"s_mov_b64 s[{56+4*k}:{57+4*k}], s[{P+2*k}:{P+2*k+1}]")
    for j in range(8): a(f"buffer_load_ushort v{R1+j}, v{T+2}, s[56:59], s95 offen offset:{256*j}")
    a(f"s_cmp_ge_u32 s{g}, 8", f"s_cbranch_scc1 {lab}_W2")
    for j in range(8): a(f"buffer_load_ushort v{R2+j}, v{T+2}, s[56:59], s96 offen offset:{256*j}")
    a(f"s_mov_b32 s99, {NLOG2E}", f"s_branch {lab}_C")
    a(f"{lab}_W2:")
    for j in range(8): a(f"buffer_load_ushort v{R2+j}, v{T+3}, s[64:67], s96 offen offset:{128*(8*(j>>2)+(j&3))}")
    a(f"s_mov_b32 s99, {NLN2}", f"s_cmp_lt_u32 s{g}, 21", f"s_cbranch_scc1 {lab}_C", f"s_cmp_eq_u32 s{g}, 23", f"s_cbranch_scc1 {lab}_B")
    for j in range(8): a(f"buffer_load_ushort v{R3+j}, v{T+4}, s[56:59], s97 offen offset:{256*(j&3)+64*(j>>2)}")
    a(f"s_branch {lab}_C")
    a(f"{lab}_B:")
    for j in range(4): a(f"buffer_load_ushort v{R3+j}, v{T+4}, s[60:63], 0 offen offset:{64*j}")
    a(f"buffer_load_dword v{T+6}, v{T+5}, s[68:71], 0 offen")
    for j in range(4, 8): a(f"v_mov_b32 v{R3+j}, 0")
    a(f"{lab}_C:", f"s_mov_b32 s98, {NLOG2E}")
    n = post() if post else 0
    a(f"s_waitcnt vmcnt({n})")
    for R, sc_, dst, o in ((R1, 98, 90, 108), (R2, 99, 91, 112)):
        for j in range(8): a(f"v_lshlrev_b32 v{R+j}, 16, v{R+j}", f"v_mul_f32 v{R+j}, s{sc_}, v{R+j}")
        for j in range(4): a(f"v_cvt_pk_bf16_f32 v{o+j}, v{R+2*j}, v{R+1+2*j}")
        store(o, dst)
    a(f"s_cmp_lt_u32 s{g}, 21", f"s_cbranch_scc1 {lab}_E")
    for j in range(8): a(f"v_lshlrev_b32 v{R3+j}, 16, v{R3+j}", f"v_mul_f32 v{R3+j}, s98, v{R3+j}")
    for j in range(4):
        a(f"v_cvt_pk_bf16_f32 v{R3+8+j}, v{R3+2*j}, v{R3+1+2*j}",
          f"v_lshlrev_b32 v{T+8}, 16, v{R3+8+j}", f"v_and_b32 v{T+9}, 0xffff0000, v{R3+8+j}",
          f"v_sub_f32 v{T+8}, v{R3+2*j}, v{T+8}", f"v_sub_f32 v{T+9}, v{R3+1+2*j}, v{T+9}",
          f"v_cvt_pk_bf16_f32 v{T+8}, v{T+8}, v{T+9}", f"v_cndmask_b32 v{R3+8+j}, v{R3+8+j}, v{T+8}, s[88:89]")
    a(f"s_cmp_eq_u32 s{g}, 23", f"s_cbranch_scc0 {lab}_S")
    a(f"v_cndmask_b32 v{R3+10}, v{T+6}, 0, s[88:89]")
    a(f"{lab}_S:"); store(R3 + 8, 92)
    a(f"{lab}_E:")

TMO = 600
def gen_k2(a):
    a(".p2align 12" if OPT.get("pg") else ".p2align 8", f"{KNAME}:")
    a("s_cmp_ge_u32 s2, 256", "s_cbranch_scc1 K2_END")
    if OPT["stamps"] and not OPT.get("lite"): a(f"v_accvgpr_write_b32 a{aStamp}, 0")
    st2(a, 0)
    a("s_load_dwordx16 s[72:87], s[0:1], 0", "s_load_dwordx2 s[44:45], s[0:1], 80", "s_load_dwordx2 s[42:43], s[0:1], 64")
    a("s_getpc_b64 s[52:53]", "K2_PC:", "s_mov_b32 s54, K2_SLOW-K2_PC", "s_mov_b32 s55, 0x00020000", "v_lshlrev_b32 v2, 7, v0")
    cpf = "buffer_load_dword v2, v2, s[52:55], 0 offen"
    if not OPT.get("pfl"): a(cpf)
    tid, vInit, vT4, vZ, vL16, vTag, vT16, vPoll, vPB = 16, 17, 18, 20, 25, 22, 19, 24, 35
    vE = 56
    a(f"v_mov_b32 v{tid}, v0", f"v_and_b32 v{vLane}, 63, v0", "v_lshrrev_b32 v1, 6, v0", "s_cmp_ge_u32 s2, 250")
    a(f"v_readfirstlane_b32 s{sWave}, v1", "s_cbranch_scc1 K2_BUILD")
    vJ16, vN16, vStart, vCnt, vTw, vXs = 27, 28, 31, 32, 33, 34
    vT32, vR4, vR8 = 60, 61, 62
    init = Asm(); c = init
    c(f"s_and_b32 s{sBucket}, s2, 7", f"s_lshl_b32 s{sBucket}, s{sBucket}, 5", "s_lshr_b32 s3, s2, 3", f"s_add_u32 s{sBucket}, s{sBucket}, s3")
    c(f"v_lshlrev_b32 v{vT16}, 4, v{tid}", f"v_lshlrev_b32 v{vL16}, 4, v{vLane}", f"v_and_b32 v36, 31, v{vLane}")
    c(f"v_mul_u32_u24 v{vInit}, {CAP*ESZ}, v{tid}", f"v_add_u32 v{vInit}, {L_TAB}, v{vInit}")
    c(f"v_lshlrev_b32 v{vT4}, 2, v{tid}", f"v_mov_b32 v{vZ}, 0", f"v_mov_b32 v{vZ+1}, 0", f"v_lshlrev_b32 v26, 3, v{vLane}")
    c(f"ds_write_b32 v{vT4}, v{vInit} offset:{L_CNT}", f"ds_write_b64 v26, v[{vZ}:{vZ+1}] offset:{L_HIST}", f"ds_write_b32 v{vT4}, v{vZ} offset:{P1_CNT}")
    for r_, n_ in ((sAux, AUX_BYTES), (sX, X_BYTES), (sOut, X_BYTES), (sRec, REC_BYTES)): c(f"s_mov_b32 s{r_+2}, {n_}", f"s_mov_b32 s{r_+3}, 0x00020000")
    c(f"s_mov_b32 s40, {EPO_REL}")
    ptrs = [f"s_add_u32 s{sAux}, s44, {FRAG_OFF}", f"s_addc_u32 s{sAux+1}, s45, 0",
            f"s_mov_b64 s[{sRec}:{sRec+1}], s[44:45]", f"s_mov_b64 s[{sX}:{sX+1}], s[72:73]", f"s_mov_b64 s[{sOut}:{sOut+1}], s[42:43]"]
    a(init.l)
    a(f"v_lshlrev_b32 v{vT32}, 5, v{tid}", f"v_lshl_add_u32 v{vR4}, v1, 5, v36", f"v_lshlrev_b32 v{vR8}, 3, v{vR4}", f"v_lshlrev_b32 v{vR4}, 2, v{vR4}")
    a(f"s_mul_i32 s88, s2, {CH*4}", "s_add_u32 s89, s88, 4096", "s_add_u32 s90, s88, 8192", "s_add_u32 s91, s88, 12288")
    for g in range(4): a(f"s_lshl_b32 s{92+g}, s{88+g}, 1")
    for r_, n_ in ((56, E*4), (60, E*4), (64, E*8), (68, CH*12)): a(f"s_mov_b32 s{r_+2}, {n_}", f"s_mov_b32 s{r_+3}, 0x00020000")
    a(f"s_mul_i32 s41, s2, {CH*12}")
    a("s_waitcnt lgkmcnt(0)")
    st2(a, 12)
    DS, SR, BK, RK, AT = 64, 80, 96, 112, 128
    a("s_mov_b64 s[56:57], s[78:79]")
    consts = Asm()
    c = consts
    c(f"s_movk_i32 s{s128}, 128", f"s_mov_b64 s[{sBad}:{sBad+1}], 0", "s_mov_b32 s32, 0", "s_mov_b32 s41, 0xffff")
    c(f"v_and_b32 v{vJ16}, 15, v{vLane}", f"v_not_b32 v{vN16}, v{vJ16}", f"v_mul_u32_u24 v{vJ16}, 12, v{vJ16}")
    c(f"v_lshrrev_b32 v{vHalf}, 5, v{vLane}", f"v_lshlrev_b32 v{vHalf}, 6, v{vHalf}", f"v_mov_b32 v{vTw}, 12")
    c(f"v_lshrrev_b32 v{vXs}, 3, v{vLane}", f"v_lshlrev_b32 v{vXs}, 4, v{vXs}", f"v_xor_b32 v{vXs}, v{vXs}, v{vL16}")
    c(f"v_mul_u32_u24 v{vStart}, {CH*12}, v{tid}")
    c("v_bfe_u32 v29, v36, 2, 1", "v_and_b32 v30, 1, v36", "v_lshl_or_b32 v29, v29, 1, v30", "v_bfe_u32 v30, v36, 1, 1", "v_lshl_or_b32 v29, v29, 1, v30",
      "v_lshrrev_b32 v30, 3, v36", "v_lshl_or_b32 v29, v29, 2, v30", "v_lshlrev_b32 v29, 2, v29")
    c(f"s_lshl_b32 s{sTmp}, s{sBucket}, 3", f"s_add_u32 s{sTmp}, s{sTmp}, {TAB_REL}", f"v_lshlrev_b32 v{vPoll}, 11, v{tid}", f"v_add_u32 v{vPoll}, s{sTmp}, v{vPoll}",
      f"v_min_u32 v{vPB}, 5, v{vLane}", f"v_add_u32 v{vPB}, 250, v{vPB}", f"v_lshlrev_b32 v{vPB}, 11, v{vPB}", f"v_add_u32 v{vPB}, s{sTmp}, v{vPB}")
    ROLE = {"A": 44, "B": 50}
    c(f"s_lshl_b32 s3, s{sWave}, 3", "s_or_b32 s3, s3, 0x80000", "v_lshrrev_b32 v37, 2, v36", "v_and_b32 v38, 1, v36", "v_lshl_or_b32 v37, v37, 1, v38", "v_bfe_u32 v38, v36, 1, 1")
    for nm, T, sp in (("A", TILE_A, sP2A), ("B", TILE_B, sP2B)):
        r = ROLE[nm]
        pk = lambda f: hex(sum((f(t) & 255) << (8*w) for w, t in enumerate(T)))
        c(f"s_bfe_u32 s{sp}, {pk(lambda t: 2*t[0])}, s3", f"s_bfe_u32 s46, {pk(lambda t: t[1])}, s3", f"s_bfe_u32 s47, {pk(lambda t: t[2])}, s3", f"s_sub_u32 s47, s47, s{sp}")
        c(f"v_cmp_gt_u32 vcc, s{sp}, v36", f"v_add_u32 v{r}, s47, v36", f"v_add_u32 v39, s46, v37", f"v_cndmask_b32 v{r}, v{r}, v39, vcc", f"v_lshlrev_b32 v{r}, 3, v{r}",
          f"v_cndmask_b32 v{r+2}, 0, 1, vcc", f"v_and_b32 v{r+3}, v{r+2}, v38", f"v_sub_u32 v{r+1}, v{r+2}, v{r+3}", f"v_lshlrev_b32 v{r+4}, 30, v{r+3}", f"v_mul_u32_u24 v{r+3}, 12, v{r+3}")
    c(f"s_mul_i32 s33, s{sWave}, 6144", f"s_mul_i32 s39, s{sBucket}, {NB*128}", "s_add_u32 s39, s39, s33", f"s_mul_i32 s46, s{sWave}, {13*1024}",
      "s_lshl_b32 s47, s2, 11", f"s_add_u32 s47, s47, {TAB_REL}")
    epoch = f"buffer_load_dwordx2 {vr(vTag,2)}, v{vZ}, s[{sAux}:{sAux+3}], s40 offen sc1"
    mktag = [f"v_add_u32 v{vTag}, 1, v{vTag}", f"v_and_b32 v{vTag+1}, 0xff000000, v{vTag+1}"]
    lo, full = ["s_mov_b32 exec_hi, 0"], ["s_mov_b32 exec_hi, -1"]
    vm = []
    for g in range(3): a(f"buffer_load_dwordx4 {vr(DS+4*g,4)}, v{vT16}, s[56:59], s{88+g} offen"); vm.append(("d", g))
    a(lo, f"buffer_load_dword v{DS+12}, v{vR4}, s[56:59], s91 offen", full); vm.append(("d", 3))
    a("s_mov_b64 s[60:61], s[76:77]", "s_mov_b64 s[64:65], s[74:75]", "s_add_u32 s68, s44, s41", "s_addc_u32 s69, s45, 0", ptrs)
    a("s_barrier")
    def grp(g):
        if g < 3:
            a(f"buffer_load_dwordx4 {vr(SR+4*g,4)}, v{vT16}, s[60:63], s{88+g} offen", f"buffer_load_dwordx4 {vr(AT+8*g,4)}, v{vT32}, s[64:67], s{92+g} offen",
              f"buffer_load_dwordx4 {vr(AT+8*g+4,4)}, v{vT32}, s[64:67], s{92+g} offen offset:16"); vm.extend([0, 0, ("g", g)])
        else:
            a(lo, f"buffer_load_dword v{SR+12}, v{vR4}, s[60:63], s91 offen", f"buffer_load_dwordx2 {vr(AT+24,2)}, v{vR8}, s[64:67], s95 offen", full, epoch); vm.extend([0, ("g", 3), "e"])
            if OPT.get("pfl"): a(cpf); vm.append(0)
            if OPT.get("pft"):
                a(f"v_lshlrev_b32 v3, 3, v{tid}", f"buffer_load_dword v3, v3, s[{sAux}:{sAux+3}], s47 offen sc1"); vm.append(0)
    def vmw(x): return f"s_waitcnt vmcnt({len(vm) - 1 - vm.index(x)})"
    G0 = OPT.get("g0", 1)
    for g in range(G0): grp(g)
    a(consts.l, "s_movk_i32 s96, -196", f"s_movk_i32 s97, {P1_STG}")
    for e in range(13):
        if e % 4 == 0: a(vmw(("d", e//4)))
        if e == 0: st2(a, 13)
        if e == 12: a(lo)
        a(f"v_mul_u32_u24 v{BK+e}, 85599, v{DS+e}", f"v_lshrrev_b32 v{BK+e}, 22, v{BK+e}", f"v_and_b32 v{BK+e}, 0x3fc, v{BK+e}",
          f"ds_add_rtn_u32 v{RK+e}, v{BK+e}, v{vTw} offset:{P1_CNT}")
    a(full)
    for g in range(G0, 4): grp(g)
    for e in range(13): a(f"v_lshlrev_b32 v{DS+e}, 2, v{DS+e}", f"v_mad_i32_i24 v{DS+e}, v{BK+e}, s96, v{DS+e}")
    a("s_waitcnt lgkmcnt(0)", "s_barrier")
    a(f"s_cmp_lg_u32 s{sWave}, 0", "s_cbranch_scc1 K2_SC")
    a(f"ds_read_b128 v[4:7], v{vT16} offset:{P1_CNT}", "s_waitcnt lgkmcnt(0)")
    a("v_add_u32 v8, v4, v5", "v_add3_u32 v8, v8, v6, v7", "v_mov_b32 v9, v8")
    wave_scan(a, 9)
    a("v_sub_u32 v40, v9, v8", "v_add_u32 v41, v40, v4", "v_add_u32 v42, v41, v5", "v_add_u32 v43, v42, v6")
    a(f"ds_write_b128 v{vT16}, v[40:43] offset:{P1_BASE}", "s_waitcnt lgkmcnt(0)")
    a("K2_SC:", f"v_lshlrev_b32 v8, 3, v{tid}", "s_barrier")
    st2(a, 14)
    ops = []
    def rd(e): a(f"ds_read_b32 v{BK+e}, v{BK+e} offset:{P1_BASE}"); ops.append(e)
    for e in range(5): rd(e)
    for e in range(13):
        if e % 4 == 0:
            a(vmw(("g", e//4)))
            for k in range(min(4, 13 - e)): a(f"v_lshl_or_b32 v{DS+e+k}, v{SR+e+k}, 16, v{DS+e+k}")
        a(f"s_waitcnt lgkmcnt({len(ops) - 1 - ops.index(e)})", f"v_add3_u32 v{RK+e}, v{RK+e}, v{BK+e}, s97")
        if e == 12: a(lo)
        a(f"ds_write2_b32 v{RK+e}, v{AT+2*e}, v{AT+1+2*e} offset0:0 offset1:1", f"ds_write_b32 v{RK+e}, v{DS+e} offset:8"); ops += [-1, -1]
        if e + 5 < 13: rd(e + 5)
    a(full)
    a(f"ds_read_b64 v[4:5], v8 offset:{P1_CNT}", f"ds_read_b64 v[6:7], v8 offset:{P1_BASE}", f"v_add_u32 v9, {P1_STG}, v{vT16}", vmw("e"), mktag)
    a("s_waitcnt lgkmcnt(0)", "s_barrier")
    st2(a, 15)
    for i in range(10): a(f"ds_read_b128 {vr(64+4*i,4)}, v9 offset:{4096*i}")
    for k in range(4): a(f"v_mul_u32_u24 v{4+k}, 5462, v{4+k}", f"v_lshrrev_b32 v{4+k}, 16, v{4+k}")
    a(f"v_lshl_or_b32 v40, v4, 12, v6", f"v_lshl_or_b32 v42, v5, 12, v7", f"v_or_b32 v40, v40, v{vTag+1}", f"v_or_b32 v42, v42, v{vTag+1}", f"v_mov_b32 v41, v{vTag}", f"v_mov_b32 v43, v{vTag}")
    for i in range(OPT.get("nst", 10)):
        if i: a(f"s_mov_b32 s84, {4096*i}")
        a(f"s_waitcnt lgkmcnt({9-i})", f"buffer_store_dwordx4 {vr(64+4*i,4)}, v{vT16}, s[68:71], {'s84' if i else '0'} offen sc1")
    def chk(): return [f"v_xor_b32 v36, v{vE}, v{vTag+1}", f"v_xor_b32 v37, v{vE+1}, v{vTag}", "v_lshrrev_b32 v36, 24, v36", "v_or_b32 v36, v36, v37", "v_cmp_ne_u32 vcc, 0, v36"]
    if OPT.get("nst"): st2(a, 13)
    pb = f"buffer_load_dwordx2 {vr(vE,2)}, v{vPB}, s[{sAux}:{sAux+3}], 0 offen sc1"
    if OPT.get("pbl", 0): a(f"s_waitcnt vmcnt({OPT['pbl']})", pb)
    a("s_waitcnt vmcnt(0)", "s_barrier")
    st2(a, 2)
    if not OPT.get("pbl", 0): a(pb)
    a(f"s_cmp_ge_u32 s{sWave}, 2", "s_cselect_b64 exec, 0, -1")
    a(f"buffer_store_dwordx4 v[40:43], v{vT16}, s[{sAux}:{sAux+3}], s47 offen sc1", "s_mov_b64 exec, -1")
    if not OPT.get("pbl", 0): a("s_waitcnt vmcnt(1)")
    a(chk(), "s_cbranch_vccnz K2_WAITB")
    a("K2_WGO:")
    SP = OPT.get("split", 0)
    wdma = []
    if SP:
        wl = lambda i: f"buffer_load_dwordx4 v{vL16}, s[{sAux}:{sAux+3}], s85 offen offset:{1024*i} sc1 lds"
        a(f"s_mul_i32 s85, s{sWave}, {5*1024}", f"s_min_u32 s85, s85, {14*1024}", f"s_add_u32 s85, s85, {32*1024}", f"s_add_u32 m0, s85, {L_WS}", "s_nop 0", [wl(i) for i in range(4)])
        a("s_add_u32 s85, s85, 4096", f"s_add_u32 m0, s85, {L_WS}", "s_nop 0", wl(0))
        wdma = [[f"s_lshl_b32 s85, s{sWave}, 13", f"s_add_u32 m0, s85, {L_WS}", "s_nop 0"] + [wl(i) for i in range(4)],
                ["s_add_u32 s85, s85, 4096", f"s_add_u32 m0, s85, {L_WS}", "s_nop 0"] + [wl(i) for i in range(4)]]
        if SP == 2: a(wdma.pop(0))
    for g in range(4):
        if SP: break
        a(f"s_add_u32 m0, s46, {L_WS+4096*g}", f"s_add_u32 s84, s46, {4096*g}")
        for i in range(4 if g < 3 else 1):
            if not OPT.get("now"): a(f"buffer_load_dwordx4 v{vL16}, s[{sAux}:{sAux+3}], s84 offen offset:{1024*i} sc1 lds")
    xl = lambda i: f"buffer_load_dwordx4 v{vXs}, s[{sX}:{sX+3}], s39 offen offset:{1024*i} lds"
    late = [[f"s_add_u32 m0, s33, {L_XR}", "s_mov_b64 exec, -1", xl(0), xl(1)], ["s_mov_b64 exec, -1", xl(2), xl(3)],
            [f"s_add_u32 m0, s33, {L_XR+4096}", "s_add_u32 s39, s39, 4096", "s_mov_b64 exec, -1", xl(0), xl(1)], ["s_mov_b32 exec_lo, -1", "s_mov_b32 exec_hi, 0", xl(2), "s_mov_b64 exec, -1"]]
    if OPT.get("nox"): late = []
    for k in range(OPT.get("xpre", 0)): a(late.pop(0))
    a(f"v_add_u32 v39, {L_WS}, v{vL16}")
    NL = OPT.get("nl", 32)
    wrd = [f"ds_read_b128 {ar(4*f,4)}, v39 offset:{1024*f}" for f in range(NL, NFRAG)]
    wlate = [f"ds_read_b128 {ar(4*f,4)}, v{EE} offset:{L_WS+1024*f}" for f in range(NL)]
    st2(a, 3)
    poll = f"buffer_load_dwordx2 {vr(vE,2)}, v{vPoll}, s[{sAux}:{sAux+3}], 0 offen sc1"
    a(f"s_movk_i32 s84, {TMO}")
    if OPT.get("pg"):
        a(poll, wdma)
        for k in (1, 2, 3): a(f"s_branch K2_STUB{k}", f"K2_RET{k}:")
        a(f"s_waitcnt vmcnt({4*len(wdma)})", "s_branch K2_POLL2")
    if OPT.get("one"):
        a("K2_POLL:", poll, "K2_POLL2:", "s_waitcnt vmcnt(0)", chk(), "s_and_b64 exec, exec, vcc", "s_cbranch_execz K2_POLLED")
        a("s_mov_b64 s[86:87], exec", "s_ff1_i32_b64 s85, exec", "s_lshl_b64 exec, 1, s85")
        a("K2_POLL3:", poll, "s_waitcnt vmcnt(0)", chk(), "s_sub_u32 s84, s84, 1", "s_cbranch_scc1 K2_POLL4", "s_cbranch_vccnz K2_POLL3")
        a("s_andn2_b64 exec, s[86:87], exec", "s_cbranch_execnz K2_POLL", "s_branch K2_POLLED", "K2_POLL4:", "s_mov_b64 exec, s[86:87]")
    else:
        a("K2_POLL:", f"s_sleep {OPT['slp']}" if OPT.get("slp") else [], poll, "s_waitcnt vmcnt(0)", "K2_POLL2:", chk(),
          "s_and_b64 exec, exec, vcc", "s_cbranch_execz K2_POLLED", "s_sub_u32 s84, s84, 1", "s_cbranch_scc0 K2_POLL")
    a(f"v_mov_b32 v{vE}, 0", "s_mov_b32 s32, 2")
    a("K2_POLLED:", "s_mov_b64 exec, -1")
    st2(a, 1)
    a(f"v_and_b32 v36, 0xfff, v{vE}", f"v_bfe_u32 v{vCnt}, v{vE}, 12, 12", f"v_mad_u32_u24 v{vStart}, v36, 12, v{vStart}")
    RB = 64
    def dppr(i): return f"row_newbcast:{i} row_mask:0xf bank_mask:0xf"
    def rec(i): return RB + 4*i
    def addr(s): return f"v_add_u32_dpp v{rec(s)+3}, v{vStart}, v{vJ16} {dppr(s)}"
    rsc = OPT.get("rsc", "sc1")
    def load(s):
        if s < 16: return f"buffer_load_dwordx3 {vr(rec(s),3)}, v{rec(s)+3}, s[{sRec}:{sRec+3}], 0 offen {rsc}"
        return f"buffer_load_dwordx3 {vr(rec(s),3)}, v{vStart}, s[{sRec}:{sRec+3}], 0 offen offset:{12*s} {rsc}"
    def msk(s): return f"s[{sMask0+2*s}:{sMask0+2*s+1}]"
    def ex(s): return f"s_mov_b64 exec, {msk(s)}"
    def atom(s): return [f"v_and_b32 v{rec(s)+3}, s41, v{rec(s)+2}", f"ds_add_rtn_u32 v{rec(s)+3}, v{rec(s)+3}, v{vTw}"]
    def put(s): return [f"ds_write2_b32 v{rec(s)+3}, v{rec(s)}, v{rec(s)+1} offset0:0 offset1:1", f"ds_write_b32 v{rec(s)+3}, v{rec(s)+2} offset:8"]
    D0, W, LAG = OPT.get("d0", 4), OPT.get("win", 16), OPT.get("lag", 4)
    order = list(range(D0)) + list(range(16, 24)) + list(range(D0, 16))
    a(f"v_cmp_lt_u32 s[{sSave}:{sSave+1}], 24, v{vCnt}", "s_nop 0")
    for s in range(D0): a(addr(s), load(s))
    for s in range(16, 24): a(f"v_cmp_lt_u32 {msk(s)}, {s}, v{vCnt}")
    for s in range(D0, 16): a(addr(s))
    a(f"s_mov_b64 exec, s[{sSave}:{sSave+1}]", "s_cbranch_execz K2_P1")
    for s in range(24, 28): a(load(s))
    a(f"v_cmp_lt_u32 vcc, 28, v{vCnt}", "s_cbranch_vccnz K2_RARE1")
    if OPT.get("pg"): a("s_branch K2_P1", ".p2align 12", "K2_STUB1:", "s_branch K2_RET1")
    a("K2_P1:")
    for s in order[D0:W]:
        a(ex(s) if s >= 16 else ("s_mov_b64 exec, -1" if s == D0 else []), load(s))
    a("s_mov_b64 exec, -1")
    side = []
    for i in range(16): side += [f"v_add_co_u32_dpp v37, vcc, v{vCnt}, v{vN16} {dppr(i)}", f"s_mov_b64 {msk(i)}, vcc"]
    a("s_barrier", interleave(wrd, side, 1, 1))
    a("s_waitcnt lgkmcnt(0)", "s_barrier")
    sx = OPT.get("sx", 0)
    if sx & 1: put = lambda s: ["s_nop 0", "s_nop 0"]
    if sx & 2: atom = lambda s: [f"v_and_b32 v{rec(s)+3}, 0xffff, v{rec(s)+2}", f"v_lshl_add_u32 v{rec(s)+3}, v{rec(s)+3}, 5, v{vInit}"]
    ops = []; vm = order[:W]
    for i in range(24 + LAG):
        if i < 24:
            s = order[i]
            a(f"s_waitcnt vmcnt({len(vm) - 1 - vm.index(s)})", ex(s), atom(s)); ops.append(("a", s))
        if i + W < 24:
            s = order[i + W]; a(ex(s), load(s)); vm.append(s)
        elif late and i >= 24 - OPT.get("late", 6):
            x = late.pop(0); a(x); vm += [-1] * sum(y.startswith("buffer") for y in x)
        if i >= LAG:
            s = order[i - LAG]
            n = len(ops) - 1 - ops.index(("a", s))
            a(f"s_waitcnt lgkmcnt({n})", ex(s), put(s)); ops += [("w", s), ("w", s)]
        if i == D0 + 7 + LAG:
            a(f"s_mov_b64 exec, s[{sSave}:{sSave+1}]", "s_cbranch_execz K2_P3")
            for k in range(24, 28): a(f"v_cmp_lt_u32 {msk(k-8)}, {k}, v{vCnt}")
            for k in range(24, 28): a(ex(k - 8), atom(k))
            a("s_waitcnt lgkmcnt(0)")
            for k in range(24, 28): a(ex(k - 8), put(k))
            a(f"v_cmp_lt_u32 vcc, 28, v{vCnt}", "s_cbranch_vccnz K2_RARE2", "K2_P3:")
    for x in late: a(x)
    a("s_mov_b64 exec, -1")
    a("K2_P2:", "s_waitcnt lgkmcnt(0)", "s_barrier")
    st2(a, 4)
    if sx: a("s_branch K2_STOUT")
    tk2 = [0]
    def tick2():
        if OPT.get("ticks") == 2: a(f"s_memtime s[{52+2*tk2[0]}:{53+2*tk2[0]}]"); tk2[0] += 1
    tick2()
    vD, vR, vS = 40, 41, 42
    a(f"ds_read_b32 v{vD}, v{vT4} offset:{L_CNT}", f"ds_read_b32 v58, v{vInit} offset:8", "v_mov_b32 v43, 1", f"v_cmp_gt_u32 vcc, {NB}, v{tid}", f"v_lshlrev_b32 v36, 2, v{vLane}",
      f"s_mov_b64 s[{sValid}:{sValid+1}], vcc", "s_waitcnt lgkmcnt(1)")
    a(f"v_sub_u32 v{vD}, v{vD}, v{vInit}", f"v_cmp_lt_u32 vcc, {CAP*ESZ}, v{vD}", f"v_min_u32 v{vD}, {63*12}, v{vD}", f"v_mul_u32_u24 v{vD}, 5462, v{vD}",
      f"s_or_b64 s[{sBad}:{sBad+1}], s[{sBad}:{sBad+1}], vcc", f"v_lshrrev_b32 v{vD}, 16, v{vD}", f"v_lshlrev_b32 v37, 2, v{vD}")
    a(f"s_mov_b64 exec, s[{sValid}:{sValid+1}]", f"ds_add_rtn_u32 v{vR}, v37, v43 offset:{L_HIST}")
    if OPT["force_slow"]: a(f"s_mov_b64 s[{sBad}:{sBad+1}], 1")
    if OPT.get("force_raw"): a("s_mov_b32 s32, 2")
    a(f"s_cmp_lg_u64 s[{sBad}:{sBad+1}], 0", "s_addc_u32 s32, s32, 0", "s_mov_b64 exec, 1", "v_mov_b32 v39, s32", f"ds_or_b32 v{vZ}, v39 offset:{L_FLAG}", "s_mov_b64 exec, -1")
    a(f"v_add_u32 v59, 1, v{vD}", "v_lshrrev_b32 v59, 1, v59", f"v_mad_u32_u24 v59, v59, 12, v{vInit}", "ds_read_b32 v59, v59 offset:8",
      f"v_lshl_or_b32 v{vD}, v{vD}, 8, v{tid}", "s_waitcnt lgkmcnt(1)", f"v_bfi_b32 v58, s41, v{vD}, v58", "s_barrier")
    tick2()
    a(f"ds_read_b32 v{vS}, v36 offset:{L_HIST}", f"ds_read_b32 v38, v{vZ} offset:{L_FLAG}", "s_waitcnt lgkmcnt(1)")
    wave_scan(a, vS)
    a(f"v_sub_u32 v{vS}, {NB}, v{vS}", f"ds_bpermute_b32 v{vS}, v37, v{vS}", "s_waitcnt lgkmcnt(1)", f"v_readfirstlane_b32 s{sTmp}, v38",
      f"s_mul_i32 s{sTmp2}, s{sBucket}, {NB*128}", f"s_lshl_b32 s{sTile}, s{sWave}, 8", f"s_cmp_ge_u32 s{sTmp}, 2", "s_cbranch_scc1 K2_SLOW")
    a(f"s_mov_b64 exec, 1", f"buffer_store_dword v{vTag}, v{vZ}, s[{sAux}:{sAux+3}], s40 offen", "s_mov_b64 exec, -1", f"s_cmp_lg_u32 s{sTmp}, 0", "s_cbranch_scc1 K2_SLOW")
    a("s_waitcnt lgkmcnt(0)", f"v_add_lshl_u32 v{vS}, v{vS}, v{vR}, 3", f"s_mov_b64 exec, s[{sValid}:{sValid+1}]", f"ds_write_b64 v{vS}, v[58:59] offset:{L_RANK}", "s_mov_b64 exec, -1")
    a(f"s_movk_i32 s46, {CAP*ESZ}", f"v_mov_b32 v39, {L_TAB}", f"v_lshrrev_b32 v38, 4, v{vHalf}", f"v_add_u32 v36, s{sTile}, v29")
    tick2()
    a(f"v_cmp_ne_u32 vcc, 0, v{ROLE['A']+3}", "s_waitcnt lgkmcnt(0)" if OPT.get("b4", 1) else "s_waitcnt vmcnt(1) lgkmcnt(0)", "s_barrier")
    tick2()
    st2(a, 5)
    def decode1(w, r, base):
        return [f"v_bfe_u32 v{w+1}, v{w}, 8, 8", f"v_and_b32 v{w}, 0xff, v{w}", f"v_add_u32 v{w+2}, v{w+1}, v{r+1}", f"v_lshrrev_b32 v{w+2}, v{r+2}, v{w+2}",
                f"v_mad_u32_u24 v{base}, v{w}, s46, v39", f"v_sub_u32 v{w+1}, v{w+1}, v{w+2}", f"v_mad_u32_u24 v{base}, v{w+1}, v{r+3}, v{base}"]
    def decode2(w, r, info):
        return [f"v_and_b32 v{w+1}, 7, v{w}", f"v_xor_b32 v{w+1}, v{w+1}, v38", f"v_lshlrev_b32 v{w+1}, 4, v{w+1}", f"v_lshl_add_u32 v{w+1}, v{w}, 7, v{w+1}",
                f"v_lshl_or_b32 v{info}, v{w+2}, 16, v{w+1}"]
    def decode3(w, r, off):
        return [f"v_lshl_add_u32 v{w}, v{w}, 7, s{sTmp2}", f"v_or_b32 v{w}, v{w}, v{r+4}", f"ds_write_b32 v36, v{w} offset:{L_OUTO+off}"]
    a(f"ds_read_b64 v[56:57], v{ROLE['A']} offset:{L_RANK}", f"ds_read_b32 v60, v{ROLE['B']} offset:{L_RANK}")
    a(selectors())
    a("s_waitcnt lgkmcnt(1)", f"v_cndmask_b32 v{ENT[0]+2}, v56, v57, vcc", mkoff(0), gather(0, 0))
    tick2()
    a(decode1(56, ROLE["A"], vLds))
    a(f"ds_read_b32 v{ENT[1]+2}, v{vLds} offset:20", f"ds_read_b32 v{ENT[2]+2}, v{vLds} offset:32")
    a([f"ds_read2_b32 {vr(ENT[u],2)}, v{vLds} offset0:{3*u} offset1:{3*u+1}" for u in range(3)])
    a(decode2(56, ROLE["A"], vT0))
    if not OPT.get("b4", 1): a(hdr_reads(vT0, [vT1, 59, EE+14, EE+15]))
    a(tile_scalars(vT0, sP2A), f"v_accvgpr_write_b32 a{aInfo}, v{vT0}", decode3(56, ROLE["A"], 0), "s_waitcnt lgkmcnt(6)")
    gq = [[gather(0, 1)], [gather(0, 2)], [gather(0, 3)], [mkoff(1), gather(1, 0)], [gather(1, 1)], [gather(1, 2)], [gather(1, 3)]]
    GE = OPT.get("ge", 1)
    if GE: a(gq.pop(0))
    a(decode1(60, ROLE["B"], 63), f"v_accvgpr_write_b32 a{aNextL}, v63", decode2(60, ROLE["B"], 63), f"v_accvgpr_write_b32 a{aNextI}, v63", decode3(60, ROLE["B"], 128))
    if GE > 1: a(gq.pop(0))
    if OPT.get("b4", 1): a(f"s_waitcnt vmcnt({2+GE})", "s_barrier", hdr_reads(vT0, [vT1, 59, EE+14, EE+15]))
    if OPT.get("qb"):
        rb = lambda q: vr(D + 4*q, 4)
        a(hdr_reads(63, [vT1, 59, EE+14, EE+15], rb), gather(0, 1), "s_waitcnt lgkmcnt(0)")
        gs = [[gather(0, 2)], [gather(0, 3)], [mkoff(1), gather(1, 0)], [gather(1, 1)], [gather(1, 2)], [gather(1, 3)], [], []]
        for b in range(4):
            wr = [f"v_accvgpr_write_b32 a{WB(b-1,0)+i}, v{DEN+16*(b-1)+i}" for i in range(16)] if b else []
            a(q_mfmas(b, DEN, rb), gs[2*b], interleave(q_mfmas(b), [wr[4*k:4*k+4] for k in range(4)] if b else [], 1, 1), gs[2*b+1])
        a([f"v_accvgpr_write_b32 a{WB(3,0)+i}, v{DEN+48+i}" for i in range(16)])
    else:
        a(f"v_mov_b32 v{EE}, v{vL16}", gq.pop(0), "s_waitcnt lgkmcnt(0)")
        for b in range(4):
            k = NL // 16
            tick2()
            a(interleave(q_mfmas(b), [wlate[4*k*b+k*j:4*k*b+k*j+k] for j in range(4)], 1, 1))
            a(gq.pop(0))
        a(gq)
        tick2()
        a(f"s_waitcnt lgkmcnt({0 if OPT.get('ticks') == 2 else min(15, NL - 16)})")
    a(mkoff(2), "s_waitcnt vmcnt(4)")
    tick2()
    st2(a, 6)
    if OPT.get("steps"): a("s_mov_b32 m0, 0")
    a(edge_mfmas(0, NUM, 0), "s_nop 7", "s_nop 2")
    a(".p2align 3")
    body, n = align8([f"s_mov_b64 exec, s[{sValid}:{sValid+1}]"] + step(0, True))
    tick2()
    a(body)
    tick2()
    a("s_branch K2_L1")
    if OPT.get("pg"): a(".p2align 12", "K2_STUB2:", "s_branch K2_RET2", ".p2align 3")
    else: a(".p2align 6")
    for k, u in enumerate((1, 2, 0)):
        body = step(u, False) + [f"s_cbranch_scc1 K2_X{u}" if k < 2 else "s_cbranch_scc0 K2_L1"]
        if k: body = ["s_nop 0"] + body
        body, n = align8(body)
        if k: body = body[1:]
        a(f"K2_L{u}:", body)
    for u in (0, 1, 2):
        a(f"K2_X{u}:", f"s_cmp_lg_u32 s{sStage}, 0", "s_cbranch_scc1 K2_TEND",
          f"s_mov_b32 s{sStage}, 1", f"s_mov_b32 s{sC}, 1", f"s_mov_b32 s{sX+2}, 0", f"v_add_u32 v{vPad}, 2, v{vPad}", f"s_branch K2_L{(u+1)%3}")
    if OPT.get("pg"): a(".p2align 12", "K2_STUB3:", "s_branch K2_RET3")
    a("K2_TEND:", f"s_bitcmp1_b32 s{sTile}, 7", "s_cbranch_scc1 K2_FINAL")
    st2(a, 7)
    if OPT.get("steps"):
        a("s_mov_b64 exec, -1", f"s_add_u32 s48, s44, {STAMP_OFF+(3<<20)}", "s_addc_u32 s49, s45, 0", "s_mov_b32 s50, 0x100000", "s_mov_b32 s51, 0x00020000",
          f"s_lshl_b32 s46, s{sBucket}, 2", f"s_add_u32 s46, s46, s{sWave}", "s_lshl_b32 s46, s46, 8",
          f"v_lshlrev_b32 v{vT1}, 2, v{vLane}", f"buffer_store_dword v{vT0}, v{vT1}, s[48:51], s46 offen", "s_waitcnt vmcnt(0)")
    n = epilogue(a, True)
    st2(a, 8)
    a(".p2align 3")
    body, n = align8([f"s_mov_b64 exec, s[{sValid}:{sValid+1}]"] + step(0, True, 11, 1))
    a(body, "s_branch K2_L1")
    a("K2_FINAL:")
    st2(a, 9)
    epilogue(a, False)
    st2(a, 10)
    if OPT.get("exp", 0): a(f"s_mov_b64 s[{sBad}:{sBad+1}], 0")
    a(f"s_mov_b64 exec, s[{sBad}:{sBad+1}]", f"ds_write_b32 v20, v21 offset:{L_FLAG}", "s_mov_b64 exec, -1")
    a("s_waitcnt lgkmcnt(0)", "s_barrier", f"ds_read_b32 v21, v20 offset:{L_FLAG}", "s_waitcnt lgkmcnt(0)", f"v_readfirstlane_b32 s{sTmp}, v21",
      f"s_cmp_lg_u32 s{sTmp}, 0", "s_cbranch_scc1 K2_SLOW")
    if OPT["stamps"]:
        a("K2_STOUT:", "s_waitcnt vmcnt(0)")
        st2(a, 11)
        a(f"s_add_u32 s48, s44, {STAMP_OFF}", "s_addc_u32 s49, s45, 0", "s_mov_b32 s50, 0x100000", "s_mov_b32 s51, 0x00020000",
          f"s_lshl_b32 s46, s{sBucket}, 2", f"s_add_u32 s46, s46, s{sWave}", "s_lshl_b32 s46, s46, 8",
          f"v_accvgpr_read_b32 v20, a{aStamp}", "s_nop 0", [f"v_writelane_b32 v20, s{52+2*k}, {48+k}" for k in range(13 if OPT.get("ticks") else 0)], f"v_lshlrev_b32 v21, 2, v{vLane}", "buffer_store_dword v20, v21, s[48:51], s46 offen")
    a("K2_END:", "s_endpgm")
    a("K2_BUILD:", cpf if OPT.get("pfl") else [], "s_sub_u32 s93, s2, 250", "s_lshl_b32 s93, s93, 2", f"s_add_u32 s93, s93, s{sWave}")
    def bmid(): a("s_waitcnt lgkmcnt(0)"); st2(a, 12)
    def bpost():
        a(init.l, ptrs, epoch); st2(a, 13); return 1
    gen_build(a, "KB", 93, lambda v, sr: a(f"buffer_store_dwordx4 {vr(v,4)}, v{vL16}, s[{sAux}:{sAux+3}], s{sr} offen sc1"), 80, bmid, bpost)
    st2(a, 14)
    a(consts.l, "s_waitcnt vmcnt(0) lgkmcnt(0)", mktag, f"v_mov_b32 v40, v{vTag+1}", f"v_mov_b32 v41, v{vTag}", f"v_mov_b32 v42, v{vTag+1}", f"v_mov_b32 v43, v{vTag}", "s_barrier")
    st2(a, 15); st2(a, 2)
    a(f"s_cmp_ge_u32 s{sWave}, 2", "s_cselect_b64 exec, 0, -1", f"buffer_store_dwordx4 v[40:43], v{vT16}, s[{sAux}:{sAux+3}], s47 offen sc1", "s_mov_b64 exec, -1")
    if OPT.get("bslp"): a(f"s_sleep {OPT['bslp']}")
    a("K2_WAITB:", f"s_movk_i32 s84, {TMO}")
    a("K2_WB1:", f"buffer_load_dwordx2 {vr(vE,2)}, v{vPB}, s[{sAux}:{sAux+3}], 0 offen sc1", "s_waitcnt vmcnt(0)", chk(),
      "s_cbranch_vccz K2_WGO", "s_sub_u32 s84, s84, 1", "s_cbranch_scc0 K2_WB1", "s_mov_b32 s32, 2", "s_branch K2_WGO")
    a("K2_RARE1:")
    for k in range(28, 40): a(load(k))
    a(f"v_cmp_lt_u32 vcc, 40, v{vCnt}", f"s_or_b64 s[{sBad}:{sBad+1}], s[{sBad}:{sBad+1}], vcc", "s_branch K2_P1")
    a("K2_RARE2:")
    for k in range(28, 40):
        a(f"v_cmpx_lt_u32 vcc, {k}, v{vCnt}", "s_nop 0", "s_cbranch_execz K2_P3", atom(k), "s_waitcnt lgkmcnt(0)", put(k))
    a("s_branch K2_P3")
    fixup(a, "T"); fixup(a, "F")
    gen_slow(a)

def gen_slow(a):
    tid, vStart, vCnt, vJ, vA = 0, 1, 2, 4, 5
    a("K2_SLOW:", "s_mov_b64 exec, -1", f"s_mov_b32 s94, s{sTmp}", "s_load_dwordx8 s[72:79], s[0:1], 32", "s_waitcnt vmcnt(0) lgkmcnt(0)", f"s_mov_b32 s{sX+2}, {X_BYTES}", "s_barrier")
    a(f"s_lshl_b32 s{sTmp}, s{sWave}, 6", f"v_add_u32 v{tid}, s{sTmp}, v{vLane}", f"v_lshlrev_b32 v23, 4, v{vLane}", f"v_add_u32 v23, {L_WS}, v23")
    a(f"s_mov_b32 s93, s{sWave}", "KS_BL:")
    gen_build(a, "KSB", 93, lambda v, sr: a(f"v_add_u32 v22, s{sr}, v23", f"ds_write_b128 v22, {vr(v,4)}"), 72)
    a("s_add_u32 s93, s93, 4", "s_cmp_lt_u32 s93, 24", "s_cbranch_scc1 KS_BL", "s_waitcnt lgkmcnt(0)", "s_barrier")
    a([f"ds_read_b128 {ar(4*f,4)}, v23 offset:{1024*f}" for f in range(NFRAG)])
    a("s_waitcnt lgkmcnt(0)", "s_barrier")
    a("KS_HAVE:", "s_load_dwordx8 s[72:79], s[0:1], 0")
    a(f"v_lshlrev_b32 v20, 11, v{tid}", f"s_lshl_b32 s{sTmp}, s{sBucket}, 3", f"s_add_u32 s{sTmp}, s{sTmp}, {TAB_REL}",
      f"buffer_load_dword v21, v20, s[{sAux}:{sAux+3}], s{sTmp} offen sc1")
    a("v_mov_b32 v24, 0", "v_mov_b32 v25, 0", "v_mov_b32 v26, 0", "v_mov_b32 v27, 0", f"v_lshlrev_b32 v22, 4, v{tid}", f"v_add_u32 v22, {L_TAB}, v22")
    for i in range(13): a(f"ds_write_b128 v22, v[24:27] offset:{4096*i}")
    a(selectors())
    a(f"v_mul_u32_u24 v{vStart}, {CH*12}, v{tid}", f"v_and_b32 v6, 31, v{vLane}", f"v_mul_u32_u24 v{vJ}, 12, v6", "v_lshlrev_b32 v6, 2, v6")
    a("s_waitcnt vmcnt(0) lgkmcnt(0)", "v_and_b32 v22, 0xfff, v21", f"v_bfe_u32 v{vCnt}, v21, 12, 12", f"v_mad_u32_u24 v{vStart}, v22, 12, v{vStart}", f"v_mul_u32_u24 v{vCnt}, 12, v{vCnt}", "s_barrier")
    srd(a, 56, 78, 79, E*4); srd(a, 60, 76, 77, E*4); srd(a, 64, 74, 75, E*8)
    a(f"s_mul_i32 s50, s{sBucket}, {NB*128}", f"s_mul_i32 s51, s{sBucket}, {NB}", "s_mov_b32 s46, 0", f"s_lshl_b32 s95, s{sWave}, 7")
    a("s_cmp_lt_u32 s94, 2", "s_cbranch_scc1 KS_SEG")
    a("KS_RAW:", f"s_cmp_ge_u32 s95, {E*4}", "s_cbranch_scc1 KS_DONE")
    a("buffer_load_dword v20, v6, s[56:59], s95 offen", "s_mov_b32 s96, s95", "s_add_u32 s95, s95, 512", "s_waitcnt vmcnt(0)",
      "v_subrev_u32 v20, s51, v20", f"v_cmp_gt_u32 vcc, {NB}, v20", "s_cbranch_vccz KS_RAW", f"s_mov_b64 s[{sValid}:{sValid+1}], vcc")
    a("s_lshl_b32 s97, s96, 1", "v_lshlrev_b32 v21, 1, v6", "buffer_load_dword v10, v6, s[60:63], s96 offen", "buffer_load_dwordx2 v[8:9], v21, s[64:67], s97 offen",
      "v_and_b32 v20, 0xff, v20", "v_lshlrev_b32 v20, 2, v20", "s_waitcnt vmcnt(0)", "v_lshl_or_b32 v10, v10, 16, v20", "s_branch KS_BODY")
    a("KS_SEG:", "s_nop 3", f"v_readlane_b32 s47, v{vStart}, s46", f"v_readlane_b32 s48, v{vCnt}, s46", "s_mov_b32 s49, 0")
    a("KS_GRP:", "s_cmp_ge_u32 s49, s48", "s_cbranch_scc1 KS_NEXT")
    a(f"v_add_u32 v20, s49, v{vJ}", f"v_cmp_gt_u32 s[{sValid}:{sValid+1}], s48, v20", "v_add_u32 v20, s47, v20")
    a(f"buffer_load_dwordx3 v[8:10], v20, s[{sRec}:{sRec+3}], 0 offen sc1", "s_waitcnt vmcnt(0)")
    a("KS_BODY:")
    a(mkoff(2), [gather(0, q) for q in range(4)])
    a("v_and_b32 v20, 0xffff, v10", f"v_lshl_add_u32 v{vOff}, v20, 5, v{vHalf}", f"v_add_u32 v{vOff}, s50, v{vOff}", [gather(2, q) for q in range(4)])
    a(f"v_lshlrev_b32 v{vA}, 6, v20", f"v_add_u32 v{vA}, v{vHalf}, v{vA}", f"v_add_u32 v{vA}, {L_TAB}, v{vA}")
    a("s_waitcnt vmcnt(0)")
    for b in range(4):
        a(q_mfmas(b))
        a(mf8(Q + 16*b, ar(WC(b), 2), "v[8:9]", vr(Q + 16*b, 16)))
        for q in range(4): a(mf16(Q + 16*b, ar(WA(b, q), 4), ar(RING[0] + 4*q, 4), vr(Q + 16*b, 16)))
    a(mf8(D, ar(B2F, 2), vr(SEL, 2), "0"), mf8(D + 16, ar(B2F, 2), vr(SEL + 2, 2), "0"), "s_nop 7", "s_nop 7")
    for i in range(64): a(f"v_exp_f32 v{NUM+i}, v{Q+i}")
    for i in range(64): a(f"v_add_f32 v{NUM+i}, 1.0, v{NUM+i}")
    for i in range(64): a(f"v_rcp_f32 v{NUM+i}, v{NUM+i}")
    for i in range(64): a(f"v_mul_f32 v{NUM+i}, v{NUM+i}, v{Q+i}")
    for i in range(32): a(f"v_cvt_pk_bf16_f32 v{DEN+i}, v{NUM+2*i}, v{NUM+2*i+1}")
    a("s_nop 1")
    for b in range(4):
        for m in range(2):
            for ob in range(2): a(mf16(D + 16*ob, ar(W2(b, m, ob), 4), vr(DEN + 8*b + 4*m, 4), vr(D + 16*ob, 16)))
    a("s_nop 7", "s_nop 7", f"s_mov_b64 exec, s[{sValid}:{sValid+1}]")
    for ob in range(2):
        for i in range(16): a(f"ds_add_f32 v{vA}, v{D+16*ob+i} offset:{4*(32*((i>>2)&1) + 4*(i&3) + 2*(i>>3) + ob)}")
    a("s_mov_b64 exec, -1", "s_waitcnt lgkmcnt(0)", "s_cmp_ge_u32 s94, 2", "s_cbranch_scc1 KS_RAW", f"s_add_u32 s49, s49, {32*12}", "s_branch KS_GRP")
    a("KS_NEXT:", "s_add_u32 s46, s46, 1", "s_cmp_lt_u32 s46, 64", "s_cbranch_scc1 KS_SEG")
    a("KS_DONE:", "s_waitcnt lgkmcnt(0)", "s_barrier")
    a(f"v_lshlrev_b32 v20, 5, v{tid}", f"v_add_u32 v20, {L_TAB}, v20", f"v_lshlrev_b32 v21, 4, v{tid}", "v_add_u32 v21, s50, v21")
    for i in range(7):
        if i == 6: a(f"v_cmp_gt_u32 vcc, {NB*8-1536}, v{tid}", "s_and_saveexec_b64 s[46:47], vcc", "s_cbranch_execz KS_END")
        a(f"ds_read_b128 v[24:27], v20 offset:{8192*i}", f"ds_read_b128 v[28:31], v20 offset:{8192*i+16}", "s_waitcnt lgkmcnt(0)")
        for j in range(4): a(f"v_cvt_pk_bf16_f32 v{32+j}, v{24+2*j}, v{25+2*j}")
        a(f"buffer_store_dwordx4 v[32:35], v21, s[{sOut}:{sOut+3}], 0 offen", "s_nop 1", "v_add_u32 v21, 4096, v21")
    a("KS_END:", "s_endpgm")

def kd(name, vgpr, accum, sgpr=102):
    return f""".amdhsa_kernel {name}
  .amdhsa_next_free_vgpr {vgpr}
  .amdhsa_next_free_sgpr {sgpr}
  .amdhsa_accum_offset {accum}
  .amdhsa_group_segment_fixed_size 0
  .amdhsa_kernarg_size 88
  .amdhsa_user_sgpr_count 2
  .amdhsa_user_sgpr_kernarg_segment_ptr 1
  .amdhsa_system_sgpr_workgroup_id_x 1
  .amdhsa_float_denorm_mode_32 3
.end_amdhsa_kernel
"""

def generate(**opt):
    OPT.update(opt)
    ref = open("standalone__edge_featured_mpnn_mpnn__graph.s.ref").read().split("\n")
    head = [x for x in ref if x.startswith(";") and "@launch" not in x and not x.startswith("; Override") and not x.startswith("; grid=")]
    head += [f"; @launch {'kernel=' + KNAME + ' ' if OPT.get('aslist') else ''}grid=(256,1,1) block=(256,1,1) lds={K2_LDS}"]
    a = Asm()
    a('.amdgcn_target "amdgcn-amd-amdhsa--gfx950"', ".text", f".globl {KNAME}", f".type {KNAME},@function")
    gen_k2(a)
    return "\n".join(head) + "\n" + a.text() + '.section .rodata,"a"\n.p2align 6\n' + kd(KNAME, 512, 256)

if __name__ == "__main__":
    out = sys.argv[1] if len(sys.argv) > 1 else "standalone__edge_featured_mpnn_mpnn__graph.s"
    opt = {}
    for x in sys.argv[2:]:
        k, v = x.split("="); opt[k] = int(v) if v.lstrip("-").isdigit() else v.replace("+", " ")
    open(out, "w").write(generate(**opt))
```

```python
import re, sys, struct, math

N, E = 50000, 800000
NB = 196
CH = 3200
NCH = 250
CAP = 42
REC_BYTES = E * 12
FRAG_OFF = REC_BYTES
NFRAG = 51
FRAG_BYTES = NFRAG * 1024
EPO_REL = 52 * 1024
TAB_REL = 53 * 1024
AUX_BYTES = TAB_REL + 256 * 2048
KNAME = "standalone__edge_featured_mpnn_mpnn__graph_kernel"
STAMP_OFF = 16 << 20
X_BYTES = N * 128

def f32(x): return "0x%08x" % struct.unpack("<I", struct.pack("<f", x))[0]
NLOG2E = f32(-math.log2(math.e))
NLN2 = f32(-math.log(2.0))

OPT = dict(stamps=False, force_slow=False, k1st="sc1", outst="sc1", late=4, onewait=0, pg=1)

class Asm:
    def __init__(self): self.l = []
    def __call__(self, *xs):
        for x in xs:
            if isinstance(x, (list, tuple)): self(*x)
            else:
                for y in x.split("\n"):
                    y = y.strip()
                    if y: self.l.append(y)
    def text(self):
        return "\n".join((x if (x.endswith(":") or x.startswith(".")) else "    " + x) for x in self.l) + "\n"

def vr(b, n): return f"v[{b}:{b+n-1}]"
def ar(b, n): return f"a[{b}:{b+n-1}]"

def srd(a, s, lo, hi, nrec):
    a(f"s_mov_b32 s{s}, s{lo}", f"s_mov_b32 s{s+1}, s{hi}", f"s_mov_b32 s{s+2}, {nrec}", f"s_mov_b32 s{s+3}, 0x00020000")

def wave_scan(a, v):
    for sh in (1, 2, 4, 8):
        a("s_nop 1", f"v_add_u32_dpp v{v}, v{v}, v{v} row_shr:{sh} row_mask:0xf bank_mask:0xf")
    a("s_nop 1", f"v_add_u32_dpp v{v}, v{v}, v{v} row_bcast:15 row_mask:0xa bank_mask:0xf")
    a("s_nop 1", f"v_add_u32_dpp v{v}, v{v}, v{v} row_bcast:31 row_mask:0xc bank_mask:0xf")

def isize(x):
    if x.endswith(":") or x.startswith("."): return 0
    op = x.split()[0]
    rest = x[len(op):]
    def lit():
        for tok in re.split(r"[,\s]+", rest):
            if re.fullmatch(r"-?(0x[0-9a-fA-F]+|\d+)", tok):
                v = int(tok, 0)
                if not (-16 <= v <= 64): return True
        return False
    if op in ("s_waitcnt", "s_nop", "s_barrier", "s_branch", "s_endpgm", "s_setprio") or op.startswith("s_cbranch"): return 4
    if op.startswith(("s_load", "s_memtime", "s_memrealtime")): return 8
    if op.startswith("s_"): return 8 if lit() else 4
    if op.startswith(("buffer_", "ds_", "global_", "v_mfma", "v_pk_", "v_accvgpr_read", "v_accvgpr_write")): return 8
    if op.endswith("_e64") or op.endswith("_dpp") or op.endswith("_sdwa"): return 8
    vop3 = ("v_mad_", "v_fma_", "v_max3", "v_min3", "v_cvt_pk_bf16", "v_lshl_add", "v_lshl_or", "v_bfe", "v_add3", "v_and_or",
            "v_readlane", "v_writelane", "v_maximum3", "v_bfi", "v_mul_lo", "v_mul_hi", "v_add_lshl", "v_perm_b32", "v_or3")
    if op.startswith(vop3): return 8
    if op.startswith("v_cmp"):
        if not rest.strip().startswith("vcc"): return 8
        return 8 if lit() else 4
    if op == "v_cndmask_b32" and not rest.strip().endswith("vcc"): return 8
    return 8 if lit() else 4

PROMOTE = ("v_exp_f32 ", "v_rcp_f32 ", "v_mul_f32 ", "v_mov_b32 ", "v_lshrrev_b32 ", "v_add_u32 ", "v_lshlrev_b32 ")
def align8(lines):
    o = sum([x.split("\n") for x in lines], []); pos = 0; last = None
    for i, x in enumerate(o):
        s = isize(x)
        if x.startswith("v_pk_") and pos % 8 == 4:
            assert last is not None, "cannot align " + x
            op = o[last].split()[0]; o[last] = o[last].replace(op, op + "_e64", 1); pos += 4; last = None
        if x.startswith(PROMOTE) and s == 4: last = i
        elif x.startswith("v_pk_"): last = None
        pos += s
    return o, pos

L_CNT, L_HIST, L_FLAG, L_RANK, L_OUTO, L_XR = 0, 1024, 1280, 1344, 2912, 3968
L_WS = L_XR + NB * 128
L_TAB = L_WS + 35 * 1024
P1_CNT, P1_BASE, P1_STG = 5120, 6144, 7168
ESZ = 12
K2_LDS = L_TAB + NB * CAP * ESZ

Q, NUM, DEN, D, EE = 16, 80, 144, 208, 240
ENT = (0, 4, 8)
vOff, vLds, vHalf, vPad, vLane, vT0, vT1 = 3, 7, 11, 12, 13, 14, 15
RING = (204, 220, 236)
aInfo, aNextL, aNextI, aStamp = 252, 253, 254, 255
def WA(b, q): return 4 * (4 * b + q)
def WC(b): return 64 + 2 * b
B1F, B2F = 72, 74
def WB(b, q): return 76 + 4 * (4 * b + q)
def W2(b, m, ob): return 140 + 4 * (4 * b + 2 * m + ob)
sX, sOut, sRec, sAux = 4, 8, 12, 16
sWave, sBucket, s128, sC, sStage, sTile, sL, sTmp, sTmp2, sP2B = 20, 21, 22, 23, 24, 25, 26, 27, 28, 29
sValid, sBad, sSave, sP2A = 30, 34, 36, 38
sMask0 = 52
TILE_A = [(0, 0, 30), (2, 0, 76), (2, 2, 104), (2, 4, 132)]
TILE_B = [(16, 160, 0), (14, 62, 192), (12, 18, 184), (12, 6, 176)]
assert all(t[0] % 2 == 0 and t[0] <= 4 for t in TILE_A) and all(t[0] % 2 == 0 and t[0] >= 12 for t in TILE_B)
def _check_map():
    seen = []
    for P, rp, rs in TILE_A + TILE_B: seen += list(range(rp, rp + P)) + list(range(rs, rs + 32 - 2*P))
    assert sorted(seen) == list(range(NB))
_check_map()

def pkfma(d, x, y, z): return f"v_pk_fma_f32 {vr(d,2)}, {vr(x,2)}, {vr(y,2)}, {vr(z,2)}"
def pkmul(d, x, y): return f"v_pk_mul_f32 {vr(d,2)}, {vr(x,2)}, {vr(y,2)}"
def mf16(d, A, B, c): return f"v_mfma_f32_32x32x16_bf16 {vr(d,16)}, {A}, {B}, {c}"
def mf8(d, A, B, c): return f"v_mfma_f32_32x32x8_bf16 {vr(d,16)}, {A}, {B}, {c}"

def edge_mfmas(b, dst, u):
    o = [mf8(dst, ar(WC(b), 2), vr(ENT[u], 2), vr(Q + 16*b, 16))]
    for q in range(4): o.append(mf16(dst, ar(WA(b, q), 4), ar(RING[u] + 4*q, 4), vr(dst, 16)))
    return o
def gather(u, q): return f"buffer_load_dwordx4 {ar(RING[u]+4*q,4)}, v{vOff}, s[{sX}:{sX+3}], 0 offen offset:{16*q}"
def mkoff(u): return f"v_mad_u32_u16 v{vOff}, v{ENT[u]+2}, s{s128}, v{vHalf} op_sel:[1,0,0,0]"
def entry(u, off): return f"ds_read_b96 {vr(ENT[u],3)}, v{vLds} offset:{off}"

def interleave(v, m, gap=3, start=0):
    o = []; k = 0
    for i, x in enumerate(v):
        if k < len(m) and i == start + k * gap: o.append(m[k]); k += 1
        o.append(x)
    return o + m[k:]

def icost(x):
    if x.startswith(("v_exp", "v_rcp", "v_mfma_f32_32x32x16")): return 8
    if x.startswith("buffer_"): return 12
    if x.startswith("ds_"): return 8
    return 4
def weave(fill, mf):
    o = []; k = 0; since = 99
    for i, x in enumerate(fill):
        if k < len(mf) and since >= 32 and i >= mf[k][1]:
            o.append(mf[k][0]); since = icost(mf[k][0]); k += 1
        o.append(x); since += icost(x)
    return o + [m for m, _ in mf[k:]]

def step(u, first, vm=3, b0=0):
    o = []
    nx, pre = (u + 1) % 3, (u + 2) % 3
    for b in range(b0, 4):
        n, dn = NUM + 16*b, DEN + 16*b
        t = n if first else D + 16*(b & 1)
        e = dn if first else EE
        ex = [f"v_exp_f32 v{e+i}, v{t+i}" for i in range(16)]
        if b < 3: m = edge_mfmas(b + 1, NUM + 16*(b+1) if first else D + 16*((b+1) & 1), u)
        else: m = edge_mfmas(0, D, nx)
        A = interleave(ex, m)
        if OPT.get("m16") and not first:
            bn = (b + 1) % 4; un = u if b < 3 else nx; dst = D + 16*((b+1) & 1); m = []
            for j in range(4): m.append(f"v_mfma_f32_16x16x16_bf16 {vr(dst+4*j,4)}, {ar(WC(bn),2)}, {vr(ENT[un],2)}, {vr(Q+16*bn+4*j,4)}")
            for k in range(2):
                for j in range(4): m.append(f"v_mfma_f32_16x16x32_bf16 {vr(dst+4*j,4)}, {ar(WA(bn, 2*(j>>1)+k),4)}, {ar(RING[un]+4*(2*(j&1)+k),4)}, {vr(dst+4*j,4)}")
            A = []
            for i in range(16):
                if i < 12: A.append(m[i])
                A.append(ex[i])
            if OPT["m16"] == 2:
                A = [m[0], ex[0], ex[1], m[1], ex[2], m[2], ex[3], ex[4], m[3], ex[5]] + sum([[m[4+i], ex[6+i]] for i in range(8)], []) + ex[14:]
        if OPT.get("onewait") == 1: A = [m[0]] + ex[:2] + interleave(ex[2:], m[1:])
        mid, end = [gather(pre, b)], []
        if b == 0 and not first: end = [f"v_cmpx_gt_i32 vcc, s{sC}, v{vPad}"]
        if b == 1:
            if not first: end = [f"s_sub_u32 s{sC}, s{sC}, 1"]
            if b0: mid, end = [gather(pre, 0)], [gather(pre, 1)]
        if b == 2:
            if OPT.get("onewait") == 2: A = [m[0]] + ex[:2] + [entry(u, 36 + ESZ*u)] + interleave(ex[2:], m[1:])
            elif OPT.get("onewait"): A = A[:6] + [entry(u, 36 + ESZ*u)] + A[6:]
            else: end = [entry(u, 36 + ESZ*u)]
        if b == 3:
            mid = [f"s_waitcnt vmcnt({vm}) lgkmcnt(0)"] + mid if OPT.get("onewait") else [f"s_waitcnt vmcnt({vm})"] + mid
            end = ([] if OPT.get("onewait") else ["s_waitcnt lgkmcnt(0)"]) + [mkoff(u)]
            if u == 2: end += [f"v_add_u32 v{vLds}, 36, v{vLds}"]
            if OPT.get("steps"): end += [f"v_writelane_b32 v{vT0}, s100, m0", "s_mov_b32 s99, m0", "s_addk_i32 s99, 1" if first else "s_cselect_b32 s98, 1, 0\ns_addk_i32 s99, 1\ns_cmp_lg_u32 s98, 0", "s_mov_b32 m0, s99"]
        if b == 2 and OPT.get("steps"): end = end + ["s_memtime s[100:101]"]
        if first:
            p = [f"v_pk_add_f32 {vr(dn+i,2)}, {vr(dn+i,2)}, 1.0 op_sel_hi:[1,0]" for i in range(0, 16, 2)]
        else:
            p = [pkfma(n+i, n+i, EE+i, n+i) for i in range(0, 16, 2)]
            p += [pkfma(n+i, t+i, dn+i, n+i) for i in range(0, 16, 2)]
            p += [pkfma(dn+i, dn+i, EE+i, dn+i) for i in range(0, 16, 2)]
        if not first and OPT.get("pkord", 0):
            pa, pb, pc = p[:8], p[8:16], p[16:]
            if OPT["pkord"] == 1: p = sum([[pa[i], pb[i], pc[i]] for i in range(8)], [])
            if OPT["pkord"] == 2:
                p = [pa[0]]
                for i in range(8): p += ([pa[i+1]] if i < 7 else []) + [pb[i], pc[i]]
            if OPT["pkord"] == 3:
                p = [pkfma(n+i, EE+i, n+i, n+i) for i in range(0, 16, 2)] + [pkfma(n+i, dn+i, t+i, n+i) for i in range(0, 16, 2)] + [pkfma(dn+i, EE+i, dn+i, dn+i) for i in range(0, 16, 2)]
        blk = A[:2] + mid + A[2:] + end + p
        x = OPT.get("exp", 0)
        if not first:
            if x & 1: blk = [("s_nop 1" if i.startswith("v_mfma") else i) for i in blk]
            if x & 2: blk = [("s_nop 0" if i.startswith("v_pk") else i) for i in blk]
            if x & 4: blk = [("s_nop 1" if (i.startswith("v_exp") and not i.endswith(f"v{t+15}")) else i) for i in blk]
            if x & 8: blk = [("s_nop 1" if i.startswith("buffer_load") else i) for i in blk]
            if x & 16:
                c0 = m[0].split(", ")[-1]
                blk = [("s_nop 0" if i == m[0] else (", ".join(i.split(", ")[:-1] + [c0]) if i == m[1] else i)) for i in blk]
            if x & 64: blk = [("s_nop 1" if i == m[4] else i) for i in blk]
            if x & 128: blk = [("s_nop 1" if i in (m[3], m[4]) else i) for i in blk]
            if x & 256:
                blk = [("v_pk_mov_b32 v[14:15], v[14:15], v[14:15]" if i in p[:8] else i) for i in blk]
            if x & 512: blk = [("v_pk_mov_b32 v[14:15], v[14:15], v[14:15]" if i in p[8:16] else i) for i in blk]
        o += blk
    return o

SEL = EE + 4
def selectors():
    return [f"v_mov_b32 v{SEL}, 0x3f80", f"v_mov_b32 v{SEL+1}, 0", f"v_mov_b32 v{SEL+2}, 1.0", f"v_mov_b32 v{SEL+3}, 0",
            f"v_mov_b32 v{SEL+4}, 0", f"v_mov_b32 v{SEL+5}, 0x3f80", f"v_mov_b32 v{SEL+6}, 0", f"v_mov_b32 v{SEL+7}, 1.0"]
def q_mfmas(b, dst=Q, rows=lambda q: ar(RING[2] + 4*q, 4)):
    o = [mf8(dst + 16*b, ar(B1F, 2), vr(SEL + 2*b, 2), "0")]
    for q in range(4): o.append(mf16(dst + 16*b, ar(WB(b, q), 4), rows(q), vr(dst + 16*b, 16)))
    return o
def hdr_reads(vinfo, tmp, rows=lambda q: ar(RING[2] + 4*q, 4)):
    o = [f"v_and_b32 v{tmp[0]}, 0xffff, v{vinfo}", f"ds_read_b128 {rows(0)}, v{tmp[0]} offset:{L_XR}"]
    for q in range(1, 4): o += [f"v_xor_b32 v{tmp[q]}, {16*q}, v{tmp[0]}", f"ds_read_b128 {rows(q)}, v{tmp[q]} offset:{L_XR}"]
    return o
def tile_scalars(vinfo, sp2):
    return [f"v_lshrrev_b32 v{vPad}, 16, v{vinfo}", f"s_mov_b32 s{sStage}, 0",
            f"v_readlane_b32 s{sL}, v{vPad}, 0", f"v_readlane_b32 s{sTmp}, v{vPad}, s{sp2}", f"v_cmp_lt_u32 s[{sValid}:{sValid+1}], 0, v{vPad}",
            f"s_max_u32 s{sL}, s{sL}, s{sTmp}", f"s_max_u32 s{sL}, s{sL}, 4", f"s_sub_u32 s{sC}, s{sL}, 4", f"s_sub_u32 s{sL}, s{sL}, 3",
            f"v_sub_u32 v{vPad}, s{sL}, v{vPad}"]

def epilogue(a, nxt):
    lab = "T" if nxt else "F"
    CHK, AD, P = EE + 12, DEN + 24, DEN + 32
    so = OPT.get("outst", "")
    a("s_mov_b64 exec, -1", f"s_cmp_lg_u64 s[{sValid}:{sValid+1}], -1", f"s_cbranch_scc1 K2_{lab}FIX", ".p2align 3", f"K2_{lab}GO:")
    o = [f"v_accvgpr_read_b32 v{EE+2}, a{aInfo}"]
    if nxt:
        o = [f"v_accvgpr_read_b32 v{vLds}, a{aNextL}", f"v_accvgpr_read_b32 v{vT0}, a{aNextI}", f"ds_read_b32 v{ENT[0]+2}, v{vLds} offset:8"] + o
        o += [f"s_mov_b32 s{sX+2}, {X_BYTES}"]
    o += [f"v_lshrrev_b32 v{EE+2}, 16, v{EE+2}", f"v_cvt_f32_u32 v{EE+2}, v{EE+2}", f"v_mov_b32 v{EE+1}, 0", f"v_mov_b32 v{EE+3}, 0", f"v_lshrrev_b32 v{EE}, 16, v{EE+2}"]
    def chk(b):
        dn = DEN + 16*b
        return [(pkmul(CHK, dn, dn + 8) if (b == 0 and i == 0) else pkfma(CHK, dn+i, dn+8+i, CHK)) for i in range(0, 8, 2)]
    def cvt(b): return [f"v_cvt_pk_bf16_f32 v{DEN+16*b+i//2}, v{NUM+16*b+i}, v{NUM+16*b+i+1}" for i in range(0, 16, 2)]
    def w2(b): return [mf16(D + 16*ob, vr(DEN + 16*b + 4*m, 4), ar(W2(b, m, ob), 4), vr(D + 16*ob, 16)) for m in range(2) for ob in range(2)]
    tk = [0]
    def tick():
        if OPT.get("ticks") == 1 and nxt: o.append(f"s_memtime s[{52+2*tk[0]}:{53+2*tk[0]}]"); tk[0] += 1
    if OPT.get("ticks") == 1 and nxt: o.insert(0, "s_memtime s[52:53]"); tk[0] = 1
    o += chk(0)
    JS = list(range(8)) if nxt else [0, 2, 4, 6, 7]
    ad = lambda j: AD + 4*(j & 1) + (j >> 1)
    oread = [f"v_lshrrev_b32 v{vT1}, 4, v{vLane}", f"v_lshl_add_u32 v{vT1}, v{vT1}, 5, s{sTile}", f"ds_read_b128 {vr(AD,4)}, v{vT1} offset:{L_OUTO}",
             f"ds_read_b128 {vr(AD+4,4)}, v{vT1} offset:{L_OUTO+16}" if nxt else f"ds_read_b32 v{AD+7}, v{vT1} offset:{L_OUTO+28}",
             f"v_and_b32 v{vT1}, 15, v{vLane}"]
    oadd = [f"v_lshl_add_u32 v{ad(j)}, v{vT1}, 3, v{ad(j)}" for j in JS]
    lim = [f"v_lshrrev_b32 v{EE}, 4, v{vHalf}", f"v_sub_u32 v{EE}, s{sP2A if nxt else sP2B}, v{EE}"]
    ts = tile_scalars(vT0, sP2B)
    Q4 = [q_mfmas(k) for k in range(4)]
    for b in range(4):
        n, dn = NUM + 16*b, DEN + 16*b
        rc = [f"v_rcp_f32 v{dn+i}, v{dn+i}" for i in range(16)]
        pre = cvt(b - 1) if b else []
        if b == 0: mf = [(mf8(D, vr(EE, 2), ar(B2F, 2), "0"), 0), (mf8(D + 16, vr(EE + 2, 2), ar(B2F, 2), "0"), 0)]
        else: mf = [(x, 6 if k < 2 else 10) for k, x in enumerate(w2(b - 1))]
        if nxt and OPT.get("qb"):
            qr = [f"v_accvgpr_read_b32 v{Q+16*b+i}, a{WB(b,0)+i}" for i in range(16)]
            ex = {0: ["s_waitcnt lgkmcnt(0)", mkoff(0), gather(0, 0), f"ds_read2_b32 {vr(ENT[0],2)}, v{vLds} offset0:0 offset1:1", entry(1, ESZ), entry(2, 2*ESZ), gather(0, 1)],
                  1: [gather(0, 2), f"v_accvgpr_write_b32 a{aInfo}, v{vT0}"] + lim + ts + [gather(0, 3)],
                  2: ["s_waitcnt lgkmcnt(0)", mkoff(1)] + oread + [gather(1, 0), f"s_add_u32 s{sTile}, s{sTile}, 128"],
                  3: [gather(1, 1), "s_waitcnt lgkmcnt(0)", f"v_add_f32 v{CHK}, v{CHK}, v{CHK+1}"] + oadd + [gather(1, 2)]}[b]
            fill = pre + interleave(rc, ex, 2 if b == 0 else 1, 1)
            if b < 3: fill += qr
            else:
                fm = edge_mfmas(0, NUM, 0); k = len(fill) - 19
                assert fill.index(gather(1, 1)) < k < fill.index(gather(1, 2))
                fill = fill[:k] + ["s_waitcnt vmcnt(2)"] + fill[k:]
                mf = [(fm[0], 0)] + mf + [(x, k + 1) for x in fm[1:]]
        elif nxt:
            if b == 0:
                fill = selectors() + ["s_waitcnt lgkmcnt(0)", mkoff(0), gather(0, 0)] + rc[:9] + ["s_waitcnt vmcnt(1)"] + \
                       interleave(hdr_reads(vT0, [vT1, vPad, EE+14, EE+15]), rc[9:13], 2, 2) + [gather(0, 1)] + rc[13:]
                mf = mf + [(Q4[k][0], 10) for k in range(4)]
            else:
                ex = {1: [f"ds_read2_b32 {vr(ENT[0],2)}, v{vLds} offset0:0 offset1:1", entry(1, ESZ), gather(0, 2), entry(2, 2*ESZ), f"v_accvgpr_write_b32 a{aInfo}, v{vT0}"] + lim + [gather(0, 3)],
                      2: ["s_waitcnt lgkmcnt(0)", mkoff(1)] + oread + [gather(1, 0), f"s_add_u32 s{sTile}, s{sTile}, 128"] + ts[:5],
                      3: [gather(1, 1), "s_waitcnt lgkmcnt(0)", f"v_add_f32 v{CHK}, v{CHK}, v{CHK+1}"] + oadd + [gather(1, 2)]}[b]
                fill = pre + interleave(rc, ex, 1, 1)
                if b == 1:
                    fill = ["s_waitcnt lgkmcnt(0)"] + fill
                    mf = [(x, 1) for x in Q4[0][1:]] + mf + [(Q4[2][1], 0)]
                elif b == 2: mf = [(x, 0) for x in Q4[1][1:]] + mf + [(Q4[2][2], 0)]
                else:
                    fm = edge_mfmas(0, NUM, 0); k = len(fill) - 19
                    assert fill.index(gather(1, 1)) < k < fill.index(gather(1, 2))
                    fill = fill[:k] + ["s_waitcnt vmcnt(2)"] + fill[k:]
                    mf = [(fm[0], 0)] + mf + [(x, k + 1) for x in fm[1:]]
        else:
            fill = pre + rc
        tick()
        o += weave(fill, mf)
        tick()
        mu = [pkmul(n+i, n+i, dn+i) for i in range(0, 16, 2)]
        o += interleave(mu, chk(b + 1), 2, 1) if b < 3 else mu
    wm = w2(3)
    c3 = cvt(3)
    mx = lambda j: f"v_maximum3_f32 v{CHK}, v{CHK}, |v{D+2*j}|, |v{D+2*j+1}|"
    bad = [f"v_cmp_ngt_f32 vcc, {f32(2.0**120)}, v{CHK}", f"s_or_b64 s[{sBad}:{sBad+1}], s[{sBad}:{sBad+1}], vcc"]
    def outp(js, tail):
        r = []; tail = list(tail)
        for k in range(len(js) + 2):
            if k < len(js):
                j = js[k]; r += [f"v_cvt_pk_bf16_f32 v{P+2*j}, v{D+2*j}, v{D+16+2*j}", f"v_cvt_pk_bf16_f32 v{P+2*j+1}, v{D+2*j+1}, v{D+17+2*j}"]
            else: r += tail[:2]; tail = tail[2:]
            if 1 <= k <= len(js): j = js[k-1]; r += [f"v_permlane16_swap_b32 v{P+2*j}, v{P+2*j+1}"]
            if k >= 2: j = js[k-2]; r += [f"buffer_store_dwordx2 {vr(P+2*j,2)}, v{ad(j)}, s[{sOut}:{sOut+3}], 0 offen {so}"]
        return r + tail
    if nxt:
        q3 = q_mfmas(3); n1 = edge_mfmas(1, NUM + 16, 0)
        tick()
        if OPT.get("qb"):
            o += weave(c3 + [f"v_exp_f32 v{DEN+i}, v{NUM+i}" for i in range(16)] + [gather(1, 3), mkoff(2)], [(wm[0], 6), (wm[1], 6), (wm[2], 10), (wm[3], 10)])
            q3 = [0]; bad = bad + qr
        else:
            o += weave(c3 + [f"v_exp_f32 v{DEN+i}, v{NUM+i}" for i in range(16)] + [gather(1, 3), mkoff(2)] + ts[5:],
                       [(Q4[2][3], 0), (wm[0], 6), (wm[1], 6), (wm[2], 10), (wm[3], 10), (Q4[2][4], 0)])
        tick()
        o += [f"v_pk_add_f32 {vr(DEN+i,2)}, {vr(DEN+i,2)}, 1.0 op_sel_hi:[1,0]" for i in range(0, 16, 2)]
        o += [f"v_cmpx_lt_i32_e64 vcc, 0, v{EE}"] + [f"v_pk_add_f32 {vr(D+16*ob,2)}, {vr(D+16*ob,2)}, {vr(D+16*ob+2,2)}" for ob in range(2)] + ["s_mov_b64 exec, -1"]
        tick()
        o += weave(outp(JS, [mx(j) for j in range(8)] + bad), [(x, 1) for x in n1 + q3[1:]])
        tick()
    else:
        o += c3[:6] + [wm[0]] + c3[6:] + oread[:3] + [wm[2]] + oread[3:] + lim + [f"v_add_f32 v{CHK}, v{CHK}, v{CHK+1}", wm[1], "s_nop 2", "s_waitcnt lgkmcnt(0)"] + oadd[:2] + [wm[3]] + oadd[2:]
        pa = lambda ob, g: f"v_pk_add_f32 {vr(D+16*ob+4*g,2)}, {vr(D+16*ob+4*g,2)}, {vr(D+16*ob+4*g+2,2)}"
        o += ["v_mov_b32 v20, 0", "v_mov_b32 v21, 1", "s_nop 3"] + [pa(0, g) for g in range(3)] + [pa(1, g) for g in range(3)]
        o += [f"v_cmpx_lt_i32_e64 vcc, 24, v{EE}", pa(0, 3), pa(1, 3), "s_mov_b64 exec, -1"]
        o += outp(JS, [mx(j) for j in JS] + bad)
    o, n = align8(o)
    a(o)
    return n

def fixup(a, lab):
    a(f"K2_{lab}FIX:", f"s_andn2_b64 exec, -1, s[{sValid}:{sValid+1}]")
    for i in range(64): a(f"v_mov_b32 v{NUM+i}, 0", f"v_mov_b32 v{DEN+i}, 1.0")
    a("s_mov_b64 exec, -1", f"s_branch K2_{lab}GO")

def st2(a, idx):
    if OPT.get("lite"):
        if idx == 0: a("s_memrealtime s[100:101]")
        if idx == 11: a("s_memrealtime s[50:51]", f"v_mov_b32 v{vT1}, 0", "s_waitcnt lgkmcnt(0)", f"v_writelane_b32 v{vT1}, s100, 16", f"v_writelane_b32 v{vT1}, s50, 27", "s_nop 0", f"v_accvgpr_write_b32 a{aStamp}, v{vT1}")
    elif OPT["stamps"]:
        a("s_memtime s[100:101]", "s_memrealtime s[50:51]", "s_mov_b64 s[48:49], exec", "s_mov_b64 exec, -1", f"v_accvgpr_read_b32 v{vT1}, a{aStamp}", "s_waitcnt lgkmcnt(0)", "s_nop 0",
          f"v_writelane_b32 v{vT1}, s100, {idx}", f"v_writelane_b32 v{vT1}, s50, {idx+16}", f"v_writelane_b32 v{vT1}, s{sL}, {idx+32}", "s_nop 0", f"v_accvgpr_write_b32 a{aStamp}, v{vT1}", "s_mov_b64 exec, s[48:49]")

def gen_build(a, lab, g, store, P, mid=None, post=None):
    R1, R2, R3, T = 64, 72, 80, 96
    for r_, n_ in ((56, 132*128*2), (60, 256), (64, 128*64*2), (68, 128)): a(f"s_mov_b32 s{r_+2}, {n_}", f"s_mov_b32 s{r_+3}, 0x00020000")
    a(f"v_and_b32 v{T}, 31, v{vLane}", f"v_lshrrev_b32 v{T+1}, 5, v{vLane}",
      f"v_lshlrev_b32 v{T+2}, 13, v{T+1}", f"v_lshl_add_u32 v{T+2}, v{T}, 1, v{T+2}",
      f"v_and_b32 v{T+5}, 15, v{T}", f"v_lshrrev_b32 v{T+4}, 4, v{T}", f"v_lshl_or_b32 v{T+5}, v{T+5}, 1, v{T+4}", f"v_lshlrev_b32 v{T+5}, 2, v{T+5}",
      f"v_lshl_add_u32 v{T+3}, v{T+1}, 9, v{T+5}", f"v_lshlrev_b32 v{T+4}, 1, v{T}", f"v_cmp_eq_u32 s[88:89], 1, v{T+1}")
    def w1(f, off, dst):
        a(f"s_and_b32 s{off}, s{f}, 3", f"s_lshl_b32 s{off}, s{off}, 11", f"s_bfe_u32 s99, s{f}, 0x20002", "s_lshl_b32 s99, s99, 6", f"s_add_u32 s{off}, s{off}, s99",
          f"s_lshr_b32 s99, s{f}, 4", f"s_mul_i32 s{dst}, s99, 3", "s_lshl_b32 s99, s99, 14", f"s_add_u32 s{off}, s{off}, s99", f"s_add_u32 s{dst}, s{dst}, s{f}", f"s_lshl_b32 s{dst}, s{dst}, 10")
    w1(g, 95, 90)
    a(f"s_add_u32 s98, s{g}, 24"); w1(98, 96, 91)
    a(f"s_sub_u32 s99, s{g}, 8", "s_add_u32 s98, s99, 35", "s_lshl_b32 s98, s98, 10", "s_lshr_b32 s97, s99, 1", "s_lshl_b32 s97, s97, 11", "s_and_b32 s99, s99, 1",
      "s_lshl_b32 s99, s99, 1", "s_add_u32 s97, s97, s99", f"s_cmp_ge_u32 s{g}, 8", "s_cselect_b32 s91, s98, s91", "s_cselect_b32 s96, s97, s96",
      f"s_sub_u32 s92, s{g}, 5", "s_lshl_b32 s92, s92, 10", f"s_sub_u32 s97, s{g}, 21", "s_lshl_b32 s97, s97, 7", f"s_add_u32 s97, s97, {128*256}")
    if mid: mid()
    for k in range(4): a(f"s_mov_b64 s[{56+4*k}:{57+4*k}], s[{P+2*k}:{P+2*k+1}]")
    for j in range(8): a(f"buffer_load_ushort v{R1+j}, v{T+2}, s[56:59], s95 offen offset:{256*j}")
    a(f"s_cmp_ge_u32 s{g}, 8", f"s_cbranch_scc1 {lab}_W2")
    for j in range(8): a(f"buffer_load_ushort v{R2+j}, v{T+2}, s[56:59], s96 offen offset:{256*j}")
    a(f"s_mov_b32 s99, {NLOG2E}", f"s_branch {lab}_C")
    a(f"{lab}_W2:")
    for j in range(8): a(f"buffer_load_ushort v{R2+j}, v{T+3}, s[64:67], s96 offen offset:{128*(8*(j>>2)+(j&3))}")
    a(f"s_mov_b32 s99, {NLN2}", f"s_cmp_lt_u32 s{g}, 21", f"s_cbranch_scc1 {lab}_C", f"s_cmp_eq_u32 s{g}, 23", f"s_cbranch_scc1 {lab}_B")
    for j in range(8): a(f"buffer_load_ushort v{R3+j}, v{T+4}, s[56:59], s97 offen offset:{256*(j&3)+64*(j>>2)}")
    a(f"s_branch {lab}_C")
    a(f"{lab}_B:")
    for j in range(4): a(f"buffer_load_ushort v{R3+j}, v{T+4}, s[60:63], 0 offen offset:{64*j}")
    a(f"buffer_load_dword v{T+6}, v{T+5}, s[68:71], 0 offen")
    for j in range(4, 8): a(f"v_mov_b32 v{R3+j}, 0")
    a(f"{lab}_C:", f"s_mov_b32 s98, {NLOG2E}")
    n = post() if post else 0
    a(f"s_waitcnt vmcnt({n})")
    for R, sc_, dst, o in ((R1, 98, 90, 108), (R2, 99, 91, 112)):
        for j in range(8): a(f"v_lshlrev_b32 v{R+j}, 16, v{R+j}", f"v_mul_f32 v{R+j}, s{sc_}, v{R+j}")
        for j in range(4): a(f"v_cvt_pk_bf16_f32 v{o+j}, v{R+2*j}, v{R+1+2*j}")
        store(o, dst)
    a(f"s_cmp_lt_u32 s{g}, 21", f"s_cbranch_scc1 {lab}_E")
    for j in range(8): a(f"v_lshlrev_b32 v{R3+j}, 16, v{R3+j}", f"v_mul_f32 v{R3+j}, s98, v{R3+j}")
    for j in range(4):
        a(f"v_cvt_pk_bf16_f32 v{R3+8+j}, v{R3+2*j}, v{R3+1+2*j}",
          f"v_lshlrev_b32 v{T+8}, 16, v{R3+8+j}", f"v_and_b32 v{T+9}, 0xffff0000, v{R3+8+j}",
          f"v_sub_f32 v{T+8}, v{R3+2*j}, v{T+8}", f"v_sub_f32 v{T+9}, v{R3+1+2*j}, v{T+9}",
          f"v_cvt_pk_bf16_f32 v{T+8}, v{T+8}, v{T+9}", f"v_cndmask_b32 v{R3+8+j}, v{R3+8+j}, v{T+8}, s[88:89]")
    a(f"s_cmp_eq_u32 s{g}, 23", f"s_cbranch_scc0 {lab}_S")
    a(f"v_cndmask_b32 v{R3+10}, v{T+6}, 0, s[88:89]")
    a(f"{lab}_S:"); store(R3 + 8, 92)
    a(f"{lab}_E:")

TMO = 600
def gen_k2(a):
    a(".p2align 12" if OPT.get("pg") else ".p2align 8", f"{KNAME}:")
    a("s_cmp_ge_u32 s2, 256", "s_cbranch_scc1 K2_END")
    if OPT["stamps"] and not OPT.get("lite"): a(f"v_accvgpr_write_b32 a{aStamp}, 0")
    st2(a, 0)
    a("s_load_dwordx16 s[72:87], s[0:1], 0", "s_load_dwordx2 s[44:45], s[0:1], 80", "s_load_dwordx2 s[42:43], s[0:1], 64")
    a("s_getpc_b64 s[52:53]", "K2_PC:", "s_mov_b32 s54, K2_SLOW-K2_PC", "s_mov_b32 s55, 0x00020000", "v_lshlrev_b32 v2, 7, v0")
    cpf = "buffer_load_dword v2, v2, s[52:55], 0 offen"
    if not OPT.get("pfl"): a(cpf)
    tid, vInit, vT4, vZ, vL16, vTag, vT16, vPoll, vPB = 16, 17, 18, 20, 25, 22, 19, 24, 35
    vE, vE2 = 56, 58
    a(f"v_mov_b32 v{tid}, v0", f"v_and_b32 v{vLane}, 63, v0", "v_lshrrev_b32 v1, 6, v0", "s_cmp_ge_u32 s2, 250")
    a(f"v_readfirstlane_b32 s{sWave}, v1", "s_cbranch_scc1 K2_BUILD")
    vJ16, vN16, vStart, vCnt, vTw, vXs = 27, 28, 31, 32, 33, 34
    vT32, vR4, vR8 = 60, 61, 62
    init = Asm(); c = init
    c(f"s_and_b32 s{sBucket}, s2, 7", f"s_lshl_b32 s{sBucket}, s{sBucket}, 5", "s_lshr_b32 s3, s2, 3", f"s_add_u32 s{sBucket}, s{sBucket}, s3")
    c(f"v_lshlrev_b32 v{vT16}, 4, v{tid}", f"v_lshlrev_b32 v{vL16}, 4, v{vLane}", f"v_and_b32 v36, 31, v{vLane}")
    c(f"v_mul_u32_u24 v{vInit}, {CAP*ESZ}, v{tid}", f"v_add_u32 v{vInit}, {L_TAB}, v{vInit}")
    c(f"v_lshlrev_b32 v{vT4}, 2, v{tid}", f"v_mov_b32 v{vZ}, 0", f"v_mov_b32 v{vZ+1}, 0", f"v_lshlrev_b32 v26, 3, v{vLane}")
    c(f"ds_write_b32 v{vT4}, v{vInit} offset:{L_CNT}", f"ds_write_b64 v26, v[{vZ}:{vZ+1}] offset:{L_HIST}", f"ds_write_b32 v{vT4}, v{vZ} offset:{P1_CNT}")
    for r_, n_ in ((sAux, AUX_BYTES), (sX, X_BYTES), (sOut, X_BYTES), (sRec, REC_BYTES)): c(f"s_mov_b32 s{r_+2}, {n_}", f"s_mov_b32 s{r_+3}, 0x00020000")
    c(f"s_mov_b32 s40, {EPO_REL}")
    ptrs = [f"s_add_u32 s{sAux}, s44, {FRAG_OFF}", f"s_addc_u32 s{sAux+1}, s45, 0",
            f"s_mov_b64 s[{sRec}:{sRec+1}], s[44:45]", f"s_mov_b64 s[{sX}:{sX+1}], s[72:73]", f"s_mov_b64 s[{sOut}:{sOut+1}], s[42:43]"]
    a(init.l)
    a(f"v_lshlrev_b32 v{vT32}, 5, v{tid}", f"v_lshl_add_u32 v{vR4}, v1, 5, v36", f"v_lshlrev_b32 v{vR8}, 3, v{vR4}", f"v_lshlrev_b32 v{vR4}, 2, v{vR4}")
    a(f"s_mul_i32 s88, s2, {CH*4}", "s_add_u32 s89, s88, 4096", "s_add_u32 s90, s88, 8192", "s_add_u32 s91, s88, 12288")
    for g in range(4): a(f"s_lshl_b32 s{92+g}, s{88+g}, 1")
    for r_, n_ in ((56, E*4), (60, E*4), (64, E*8), (68, CH*12)): a(f"s_mov_b32 s{r_+2}, {n_}", f"s_mov_b32 s{r_+3}, 0x00020000")
    a(f"s_mul_i32 s41, s2, {CH*12}")
    a("s_waitcnt lgkmcnt(0)")
    st2(a, 12)
    DS, SR, BK, RK, AT = 64, 80, 96, 112, 128
    a("s_mov_b64 s[56:57], s[78:79]")
    consts = Asm()
    c = consts
    c(f"s_movk_i32 s{s128}, 128", f"s_mov_b64 s[{sBad}:{sBad+1}], 0", "s_mov_b32 s32, 0", "s_mov_b32 s41, 0xffff")
    c(f"v_and_b32 v{vJ16}, 15, v{vLane}", f"v_not_b32 v{vN16}, v{vJ16}", f"v_mul_u32_u24 v{vJ16}, 12, v{vJ16}")
    c(f"v_lshrrev_b32 v{vHalf}, 5, v{vLane}", f"v_lshlrev_b32 v{vHalf}, 6, v{vHalf}", f"v_mov_b32 v{vTw}, 12")
    c(f"v_lshrrev_b32 v{vXs}, 3, v{vLane}", f"v_lshlrev_b32 v{vXs}, 4, v{vXs}", f"v_xor_b32 v{vXs}, v{vXs}, v{vL16}")
    c(f"v_mul_u32_u24 v{vStart}, {CH*12}, v{tid}")
    c("v_bfe_u32 v29, v36, 2, 1", "v_and_b32 v30, 1, v36", "v_lshl_or_b32 v29, v29, 1, v30", "v_bfe_u32 v30, v36, 1, 1", "v_lshl_or_b32 v29, v29, 1, v30",
      "v_lshrrev_b32 v30, 3, v36", "v_lshl_or_b32 v29, v29, 2, v30", "v_lshlrev_b32 v29, 2, v29")
    c(f"s_lshl_b32 s{sTmp}, s{sBucket}, 3", f"s_add_u32 s{sTmp}, s{sTmp}, {TAB_REL}", f"v_lshlrev_b32 v{vPoll}, 11, v{tid}", f"v_add_u32 v{vPoll}, s{sTmp}, v{vPoll}",
      f"v_min_u32 v{vPB}, 5, v{vLane}", f"v_add_u32 v{vPB}, 250, v{vPB}", f"v_lshlrev_b32 v{vPB}, 11, v{vPB}", f"v_add_u32 v{vPB}, s{sTmp}, v{vPB}")
    ROLE = {"A": 44, "B": 50}
    c(f"s_lshl_b32 s3, s{sWave}, 3", "s_or_b32 s3, s3, 0x80000", "v_lshrrev_b32 v37, 2, v36", "v_and_b32 v38, 1, v36", "v_lshl_or_b32 v37, v37, 1, v38", "v_bfe_u32 v38, v36, 1, 1")
    for nm, T, sp in (("A", TILE_A, sP2A), ("B", TILE_B, sP2B)):
        r = ROLE[nm]
        pk = lambda f: hex(sum((f(t) & 255) << (8*w) for w, t in enumerate(T)))
        c(f"s_bfe_u32 s{sp}, {pk(lambda t: 2*t[0])}, s3", f"s_bfe_u32 s46, {pk(lambda t: t[1])}, s3", f"s_bfe_u32 s47, {pk(lambda t: t[2])}, s3", f"s_sub_u32 s47, s47, s{sp}")
        c(f"v_cmp_gt_u32 vcc, s{sp}, v36", f"v_add_u32 v{r}, s47, v36", f"v_add_u32 v39, s46, v37", f"v_cndmask_b32 v{r}, v{r}, v39, vcc", f"v_lshlrev_b32 v{r}, 3, v{r}",
          f"v_cndmask_b32 v{r+2}, 0, 1, vcc", f"v_and_b32 v{r+3}, v{r+2}, v38", f"v_sub_u32 v{r+1}, v{r+2}, v{r+3}", f"v_lshlrev_b32 v{r+4}, 30, v{r+3}", f"v_mul_u32_u24 v{r+3}, 12, v{r+3}")
    c(f"s_mul_i32 s33, s{sWave}, 6144", f"s_mul_i32 s39, s{sBucket}, {NB*128}", "s_add_u32 s39, s39, s33", f"s_mul_i32 s46, s{sWave}, {9*1024}", f"s_min_u32 s46, s46, {26*1024}", f"s_lshl_b32 s3, s{sWave}, 12",
      "s_lshl_b32 s47, s2, 11", f"s_add_u32 s47, s47, {TAB_REL}")
    epoch = f"buffer_load_dwordx2 {vr(vTag,2)}, v{vZ}, s[{sAux}:{sAux+3}], s40 offen sc1"
    mktag = [f"v_add_u32 v{vTag}, 1, v{vTag}", f"v_and_b32 v{vTag+1}, 0xff000000, v{vTag+1}"]
    lo, full = ["s_mov_b32 exec_hi, 0"], ["s_mov_b32 exec_hi, -1"]
    vm = []
    for g in range(3): a(f"buffer_load_dwordx4 {vr(DS+4*g,4)}, v{vT16}, s[56:59], s{88+g} offen"); vm.append(("d", g))
    a(lo, f"buffer_load_dword v{DS+12}, v{vR4}, s[56:59], s91 offen", full); vm.append(("d", 3))
    a("s_mov_b64 s[60:61], s[76:77]", "s_mov_b64 s[64:65], s[74:75]", "s_add_u32 s68, s44, s41", "s_addc_u32 s69, s45, 0", ptrs)
    a("s_barrier")
    def grp(g):
        if g < 3:
            a(f"buffer_load_dwordx4 {vr(SR+4*g,4)}, v{vT16}, s[60:63], s{88+g} offen", f"buffer_load_dwordx4 {vr(AT+8*g,4)}, v{vT32}, s[64:67], s{92+g} offen",
              f"buffer_load_dwordx4 {vr(AT+8*g+4,4)}, v{vT32}, s[64:67], s{92+g} offen offset:16"); vm.extend([0, 0, ("g", g)])
        else:
            a(lo, f"buffer_load_dword v{SR+12}, v{vR4}, s[60:63], s91 offen", f"buffer_load_dwordx2 {vr(AT+24,2)}, v{vR8}, s[64:67], s95 offen", full, epoch); vm.extend([0, ("g", 3), "e"])
            if OPT.get("pfl"): a(cpf); vm.append(0)
            if OPT.get("pft"):
                a(f"v_lshlrev_b32 v3, 3, v{tid}", f"buffer_load_dword v3, v3, s[{sAux}:{sAux+3}], s47 offen sc1"); vm.append(0)
    def vmw(x): return f"s_waitcnt vmcnt({len(vm) - 1 - vm.index(x)})"
    G0 = OPT.get("g0", 1)
    for g in range(G0): grp(g)
    a(consts.l, "s_movk_i32 s96, -196", f"s_movk_i32 s97, {P1_STG}")
    for e in range(13):
        if e % 4 == 0: a(vmw(("d", e//4)))
        if e == 0: st2(a, 13)
        if e == 12: a(lo)
        a(f"v_mul_u32_u24 v{BK+e}, 85599, v{DS+e}", f"v_lshrrev_b32 v{BK+e}, 22, v{BK+e}", f"v_and_b32 v{BK+e}, 0x3fc, v{BK+e}",
          f"ds_add_rtn_u32 v{RK+e}, v{BK+e}, v{vTw} offset:{P1_CNT}")
    a(full)
    for g in range(G0, 4): grp(g)
    for e in range(13): a(f"v_lshlrev_b32 v{DS+e}, 2, v{DS+e}", f"v_mad_i32_i24 v{DS+e}, v{BK+e}, s96, v{DS+e}")
    a("s_waitcnt lgkmcnt(0)", "s_barrier")
    a(f"s_cmp_lg_u32 s{sWave}, 0", "s_cbranch_scc1 K2_SC")
    a(f"ds_read_b128 v[4:7], v{vT16} offset:{P1_CNT}", "s_waitcnt lgkmcnt(0)")
    a("v_add_u32 v8, v4, v5", "v_add3_u32 v8, v8, v6, v7", "v_mov_b32 v9, v8")
    wave_scan(a, 9)
    a("v_sub_u32 v40, v9, v8", "v_add_u32 v41, v40, v4", "v_add_u32 v42, v41, v5", "v_add_u32 v43, v42, v6")
    a(f"ds_write_b128 v{vT16}, v[40:43] offset:{P1_BASE}", "s_waitcnt lgkmcnt(0)")
    a("K2_SC:", f"v_lshlrev_b32 v8, 3, v{tid}", "s_barrier")
    st2(a, 14)
    ops = []
    def rd(e): a(f"ds_read_b32 v{BK+e}, v{BK+e} offset:{P1_BASE}"); ops.append(e)
    for e in range(5): rd(e)
    for e in range(13):
        if e % 4 == 0:
            a(vmw(("g", e//4)))
            for k in range(min(4, 13 - e)): a(f"v_lshl_or_b32 v{DS+e+k}, v{SR+e+k}, 16, v{DS+e+k}")
        a(f"s_waitcnt lgkmcnt({len(ops) - 1 - ops.index(e)})", f"v_add3_u32 v{RK+e}, v{RK+e}, v{BK+e}, s97")
        if e == 12: a(lo)
        a(f"ds_write2_b32 v{RK+e}, v{AT+2*e}, v{AT+1+2*e} offset0:0 offset1:1", f"ds_write_b32 v{RK+e}, v{DS+e} offset:8"); ops += [-1, -1]
        if e + 5 < 13: rd(e + 5)
    a(full)
    a(f"ds_read_b64 v[4:5], v8 offset:{P1_CNT}", f"ds_read_b64 v[6:7], v8 offset:{P1_BASE}", f"v_add_u32 v9, {P1_STG}, v{vT16}", vmw("e"), mktag)
    a("s_waitcnt lgkmcnt(0)", "s_barrier")
    st2(a, 15)
    for i in range(10): a(f"ds_read_b128 {vr(64+4*i,4)}, v9 offset:{4096*i}")
    for k in range(4): a(f"v_mul_u32_u24 v{4+k}, 5462, v{4+k}", f"v_lshrrev_b32 v{4+k}, 16, v{4+k}")
    a(f"v_lshl_or_b32 v40, v4, 12, v6", f"v_lshl_or_b32 v42, v5, 12, v7", f"v_or_b32 v40, v40, v{vTag+1}", f"v_or_b32 v42, v42, v{vTag+1}", f"v_mov_b32 v41, v{vTag}", f"v_mov_b32 v43, v{vTag}")
    for i in range(OPT.get("nst", 10)):
        if i: a(f"s_mov_b32 s84, {4096*i}")
        a(f"s_waitcnt lgkmcnt({9-i})", f"buffer_store_dwordx4 {vr(64+4*i,4)}, v{vT16}, s[68:71], {'s84' if i else '0'} offen sc1")
    def chk(e): return [f"v_xor_b32 v36, v{e}, v{vTag+1}", f"v_xor_b32 v37, v{e+1}, v{vTag}", "v_lshrrev_b32 v36, 24, v36", "v_or_b32 v36, v36, v37", "v_cmp_ne_u32 vcc, 0, v36"]
    pb = f"buffer_load_dwordx2 {vr(vE2,2)}, v{vPB}, s[{sAux}:{sAux+3}], 0 offen sc1"
    poll = f"buffer_load_dwordx2 {vr(vE,2)}, v{vPoll}, s[{sAux}:{sAux+3}], 0 offen sc1"
    if OPT.get("pg"):
        for k in (1, 2, 3): a(f"s_branch K2_STUB{k}", f"K2_RET{k}:")
    a(f"s_cmp_ge_u32 s{sWave}, 2", "s_cselect_b64 s[98:99], 0, -1", "s_waitcnt vmcnt(0)", "s_barrier")
    a("s_mov_b64 exec, s[98:99]", f"buffer_store_dwordx4 v[40:43], v{vT16}, s[{sAux}:{sAux+3}], s47 offen sc1", "s_mov_b64 exec, -1")
    st2(a, 2)
    a(pb, poll, "s_waitcnt vmcnt(0)", chk(vE2), "s_cbranch_vccnz K2_WAITB")
    F = "s_mov_b64 exec, -1"
    xl = lambda i: f"buffer_load_dwordx4 v{vXs}, s[{sX}:{sX+3}], s39 offen offset:{1024*i} lds"
    wl = lambda i: f"buffer_load_dwordx4 v{vL16}, s[{sAux}:{sAux+3}], s46 offen offset:{1024*i} sc1 lds"
    late = [[f"s_add_u32 m0, s33, {L_XR}", F, xl(0), xl(1)], [F, xl(2), xl(3)],
            [f"s_add_u32 m0, s33, {L_XR+4096}", "s_add_u32 s39, s39, 4096", F, xl(0), xl(1)], ["s_mov_b32 exec_lo, -1", "s_mov_b32 exec_hi, 0", xl(2), F]]
    wg = [[f"s_add_u32 m0, s46, {L_WS}", F, wl(0), wl(1)], [F, wl(2), wl(3)], ["s_add_u32 s46, s46, 4096", f"s_add_u32 m0, s46, {L_WS}", F, wl(0), wl(1)], [F, wl(2), wl(3)],
          ["s_add_u32 s46, s46, 4096", f"s_add_u32 m0, s46, {L_WS}", F, wl(0)]]
    a("K2_WGO:")
    for k in range(OPT.get("wpre", 0)): a(wg.pop(0))
    st2(a, 3)
    a(f"s_movk_i32 s84, {TMO}", "s_branch K2_POLL2")
    a("K2_POLL:", poll, "s_waitcnt vmcnt(0)", "K2_POLL2:", chk(vE),
      "s_and_b64 exec, exec, vcc", "s_cbranch_execz K2_POLLED", "s_sub_u32 s84, s84, 1", "s_cbranch_scc0 K2_POLL")
    a(f"v_mov_b32 v{vE}, 0", "s_mov_b32 s32, 2")
    a("K2_POLLED:", "s_mov_b64 exec, -1")
    st2(a, 1)
    a(f"v_and_b32 v36, 0xfff, v{vE}", f"v_bfe_u32 v{vCnt}, v{vE}, 12, 12", f"v_mad_u32_u24 v{vStart}, v36, 12, v{vStart}")
    RB = 64
    def dppr(i): return f"row_newbcast:{i} row_mask:0xf bank_mask:0xf"
    def rec(i): return RB + 4*i
    def addr(s): return f"v_add_u32_dpp v{rec(s)+3}, v{vStart}, v{vJ16} {dppr(s)}"
    rsc = OPT.get("rsc", "sc1")
    def load(s):
        if s < 16: return f"buffer_load_dwordx3 {vr(rec(s),3)}, v{rec(s)+3}, s[{sRec}:{sRec+3}], 0 offen {rsc}"
        return f"buffer_load_dwordx3 {vr(rec(s),3)}, v{vStart}, s[{sRec}:{sRec+3}], 0 offen offset:{12*s} {rsc}"
    def msk(s): return f"s[{sMask0+2*s}:{sMask0+2*s+1}]"
    def ex(s): return f"s_mov_b64 exec, {msk(s)}"
    def atom(s): return [f"v_and_b32 v{rec(s)+3}, s41, v{rec(s)+2}", f"ds_add_rtn_u32 v{rec(s)+3}, v{rec(s)+3}, v{vTw}"]
    def put(s): return [f"ds_write2_b32 v{rec(s)+3}, v{rec(s)}, v{rec(s)+1} offset0:0 offset1:1", f"ds_write_b32 v{rec(s)+3}, v{rec(s)+2} offset:8"]
    D0, W, LAG = OPT.get("d0", 4), OPT.get("win", 16), OPT.get("lag", 4)
    order = list(range(D0)) + list(range(16, 24)) + list(range(D0, 16))
    a(f"v_cmp_lt_u32 s[{sSave}:{sSave+1}], 24, v{vCnt}", "s_nop 0")
    for s in range(D0): a(addr(s), load(s))
    for s in range(16, 24): a(f"v_cmp_lt_u32 {msk(s)}, {s}, v{vCnt}")
    for s in range(D0, 16): a(addr(s))
    a(f"s_mov_b64 exec, s[{sSave}:{sSave+1}]", "s_cbranch_execz K2_P1")
    for s in range(24, 28): a(load(s))
    a(f"v_cmp_lt_u32 vcc, 28, v{vCnt}", "s_cbranch_vccnz K2_RARE1")
    a("K2_P1:")
    for s in order[D0:W]:
        a(ex(s) if s >= 16 else ("s_mov_b64 exec, -1" if s == D0 else []), load(s))
    a("s_mov_b64 exec, -1")
    side = []
    for i in range(16): side += [f"v_add_co_u32_dpp v37, vcc, v{vCnt}, v{vN16} {dppr(i)}", f"s_mov_b64 {msk(i)}, vcc"]
    a(side[:4])
    if OPT.get("pg"): a("s_branch K2_P1B", ".p2align 12", "K2_STUB1:", "s_branch K2_RET1", "K2_P1B:")
    a(side[4:])
    sx = OPT.get("sx", 0)
    if sx & 1: put = lambda s: ["s_nop 0", "s_nop 0"]
    if sx & 2: atom = lambda s: [f"v_and_b32 v{rec(s)+3}, 0xffff, v{rec(s)+2}", f"v_lshl_add_u32 v{rec(s)+3}, v{rec(s)+3}, 5, v{vInit}"]
    ops = []; vm = order[:W]
    for i in range(24 + LAG):
        if i < 24:
            s = order[i]
            a(f"s_waitcnt vmcnt({len(vm) - 1 - vm.index(s)})", ex(s), atom(s)); ops.append(("a", s))
        if i + W < 24:
            s = order[i + W]; a(ex(s), load(s)); vm.append(s)
        elif wg and i >= OPT.get("wat", 8):
            x = wg.pop(0); a(x); vm += [-1] * sum(y.startswith("buffer") for y in x)
        elif late and i >= 24 - OPT.get("late", 6):
            x = late.pop(0); a(x); vm += [-1] * sum(y.startswith("buffer") for y in x)
        if i >= LAG:
            s = order[i - LAG]
            n = len(ops) - 1 - ops.index(("a", s))
            a(f"s_waitcnt lgkmcnt({n})", ex(s), put(s)); ops += [("w", s), ("w", s)]
        if i == D0 + 7 + LAG:
            a(f"s_mov_b64 exec, s[{sSave}:{sSave+1}]", "s_cbranch_execz K2_P3")
            for k in range(24, 28): a(f"v_cmp_lt_u32 {msk(k-8)}, {k}, v{vCnt}")
            for k in range(24, 28): a(ex(k - 8), atom(k))
            a("s_waitcnt lgkmcnt(0)")
            for k in range(24, 28): a(ex(k - 8), put(k))
            a(f"v_cmp_lt_u32 vcc, 28, v{vCnt}", "s_cbranch_vccnz K2_RARE2", "K2_P3:")
    assert not wg
    for x in late: a(x)
    a("s_mov_b64 exec, -1")
    a("K2_P2:", f"v_add_u32 v{EE}, {L_WS}, v{vL16}", "s_waitcnt vmcnt(7) lgkmcnt(0)", "s_barrier")
    wrd = lambda f, pos=None: f"ds_read_b128 {ar(4*f,4)}, v{EE} offset:{1024*(f if pos is None else pos)}"
    wb = [wrd(f) for f in range(19, 35)]
    st2(a, 4)
    if sx: a("s_branch K2_STOUT")
    tk2 = [0]
    def tick2():
        if OPT.get("ticks") == 2: a(f"s_memtime s[{52+2*tk2[0]}:{53+2*tk2[0]}]"); tk2[0] += 1
    tick2()
    vD, vR, vS = 40, 41, 42
    a(f"ds_read_b32 v{vD}, v{vT4} offset:{L_CNT}", f"ds_read_b32 v58, v{vInit} offset:8", "v_mov_b32 v43, 1", f"v_cmp_gt_u32 vcc, {NB}, v{tid}", f"v_lshlrev_b32 v36, 2, v{vLane}",
      f"s_mov_b64 s[{sValid}:{sValid+1}], vcc", "s_waitcnt lgkmcnt(1)")
    a(f"v_sub_u32 v{vD}, v{vD}, v{vInit}", f"v_cmp_lt_u32 vcc, {CAP*ESZ}, v{vD}", f"v_min_u32 v{vD}, {63*12}, v{vD}", f"v_mul_u32_u24 v{vD}, 5462, v{vD}",
      f"s_or_b64 s[{sBad}:{sBad+1}], s[{sBad}:{sBad+1}], vcc", f"v_lshrrev_b32 v{vD}, 16, v{vD}", f"v_lshlrev_b32 v37, 2, v{vD}")
    a(f"s_mov_b64 exec, s[{sValid}:{sValid+1}]", f"ds_add_rtn_u32 v{vR}, v37, v43 offset:{L_HIST}")
    if OPT["force_slow"]: a(f"s_mov_b64 s[{sBad}:{sBad+1}], 1")
    if OPT.get("force_raw"): a("s_mov_b32 s32, 2")
    a(f"s_cmp_lg_u64 s[{sBad}:{sBad+1}], 0", "s_addc_u32 s32, s32, 0", "s_mov_b64 exec, 1", "v_mov_b32 v39, s32", f"ds_or_b32 v{vZ}, v39 offset:{L_FLAG}", "s_mov_b64 exec, -1")
    a(f"v_add_u32 v59, 1, v{vD}", "v_lshrrev_b32 v59, 1, v59", f"v_mad_u32_u24 v59, v59, 12, v{vInit}", "ds_read_b32 v59, v59 offset:8",
      f"v_lshl_or_b32 v{vD}, v{vD}, 8, v{tid}", wb[:4], "s_waitcnt lgkmcnt(5)", f"v_bfi_b32 v58, s41, v{vD}, v58", "s_barrier")
    tick2()
    a(f"ds_read_b32 v{vS}, v36 offset:{L_HIST}", f"ds_read_b32 v38, v{vZ} offset:{L_FLAG}", wb[4:8], "s_waitcnt lgkmcnt(4)")
    wave_scan(a, vS)
    a(f"v_sub_u32 v{vS}, {NB}, v{vS}", f"ds_bpermute_b32 v{vS}, v37, v{vS}", wb[8:12], f"v_readfirstlane_b32 s{sTmp}, v38",
      f"s_mul_i32 s{sTmp2}, s{sBucket}, {NB*128}", f"s_lshl_b32 s{sTile}, s{sWave}, 8", f"s_cmp_ge_u32 s{sTmp}, 2", "s_cbranch_scc1 K2_SLOW")
    a(f"s_mov_b64 exec, 1", f"buffer_store_dword v{vTag}, v{vZ}, s[{sAux}:{sAux+3}], s40 offen", "s_mov_b64 exec, -1", f"s_cmp_lg_u32 s{sTmp}, 0", "s_cbranch_scc1 K2_SLOW")
    a("s_waitcnt lgkmcnt(4)", f"v_add_lshl_u32 v{vS}, v{vS}, v{vR}, 3", f"s_mov_b64 exec, s[{sValid}:{sValid+1}]", f"ds_write_b64 v{vS}, v[58:59] offset:{L_RANK}", "s_mov_b64 exec, -1")
    a(f"s_movk_i32 s46, {CAP*ESZ}", f"v_mov_b32 v39, {L_TAB}", f"v_lshrrev_b32 v38, 4, v{vHalf}", f"v_add_u32 v36, s{sTile}, v29")
    tick2()
    a(f"v_cmp_ne_u32 vcc, 0, v{ROLE['A']+3}", "s_waitcnt lgkmcnt(0)" if OPT.get("b4", 1) else "s_waitcnt vmcnt(1) lgkmcnt(0)", "s_barrier")
    tick2()
    st2(a, 5)
    def decode1(w, r, base):
        return [f"v_bfe_u32 v{w+1}, v{w}, 8, 8", f"v_and_b32 v{w}, 0xff, v{w}", f"v_add_u32 v{w+2}, v{w+1}, v{r+1}", f"v_lshrrev_b32 v{w+2}, v{r+2}, v{w+2}",
                f"v_mad_u32_u24 v{base}, v{w}, s46, v39", f"v_sub_u32 v{w+1}, v{w+1}, v{w+2}", f"v_mad_u32_u24 v{base}, v{w+1}, v{r+3}, v{base}"]
    def decode2(w, r, info):
        return [f"v_and_b32 v{w+1}, 7, v{w}", f"v_xor_b32 v{w+1}, v{w+1}, v38", f"v_lshlrev_b32 v{w+1}, 4, v{w+1}", f"v_lshl_add_u32 v{w+1}, v{w}, 7, v{w+1}",
                f"v_lshl_or_b32 v{info}, v{w+2}, 16, v{w+1}"]
    def decode3(w, r, off):
        return [f"v_lshl_add_u32 v{w}, v{w}, 7, s{sTmp2}", f"v_or_b32 v{w}, v{w}, v{r+4}", f"ds_write_b32 v36, v{w} offset:{L_OUTO+off}"]
    a(f"ds_read_b64 v[56:57], v{ROLE['A']} offset:{L_RANK}", f"ds_read_b32 v60, v{ROLE['B']} offset:{L_RANK}")
    a(selectors())
    a("s_waitcnt lgkmcnt(1)", f"v_cndmask_b32 v{ENT[0]+2}, v56, v57, vcc", mkoff(0), gather(0, 0))
    tick2()
    a(decode1(56, ROLE["A"], vLds), wb[12:])
    a(f"ds_read_b32 v{ENT[1]+2}, v{vLds} offset:20", f"ds_read_b32 v{ENT[2]+2}, v{vLds} offset:32")
    a([f"ds_read2_b32 {vr(ENT[u],2)}, v{vLds} offset0:{3*u} offset1:{3*u+1}" for u in range(3)])
    a(decode2(56, ROLE["A"], vT0))
    if not OPT.get("b4", 1): a(hdr_reads(vT0, [vT1, 59, EE+14, EE+15]))
    a(tile_scalars(vT0, sP2A), f"v_accvgpr_write_b32 a{aInfo}, v{vT0}", decode3(56, ROLE["A"], 0), "s_waitcnt lgkmcnt(6)")
    gq = [[gather(0, 1)], [gather(0, 2)], [gather(0, 3)], [mkoff(1), gather(1, 0)], [gather(1, 1)], [gather(1, 2)], [gather(1, 3)]]
    GE = OPT.get("ge", 1)
    if GE: a(gq.pop(0))
    a(decode1(60, ROLE["B"], 63), f"v_accvgpr_write_b32 a{aNextL}, v63", decode2(60, ROLE["B"], 63), f"v_accvgpr_write_b32 a{aNextI}, v63", decode3(60, ROLE["B"], 128))
    if GE > 1: a(gq.pop(0))
    a([wrd(f) for f in (18, 16, 17)], f"s_add_u32 m0, s3, {L_WS+19*1024}", f"s_add_u32 s3, s3, {35*1024}")
    a(f"s_waitcnt vmcnt({2+GE}) lgkmcnt(3)", "s_barrier", hdr_reads(vT0, [vT1, 59, EE+14, EE+15]))
    a([f"buffer_load_dwordx4 v{vL16}, s[{sAux}:{sAux+3}], s3 offen offset:{1024*i} sc1 lds" for i in range(4)])
    if OPT.get("qb"):
        rb = lambda q: vr(D + 4*q, 4)
        a(hdr_reads(63, [vT1, 59, EE+14, EE+15], rb), gather(0, 1), "s_waitcnt lgkmcnt(0)")
        gs = [[gather(0, 2)], [gather(0, 3)], [mkoff(1), gather(1, 0)], [gather(1, 1)], [gather(1, 2)], [gather(1, 3)], [], []]
        for b in range(4):
            wr = [f"v_accvgpr_write_b32 a{WB(b-1,0)+i}, v{DEN+16*(b-1)+i}" for i in range(16)] if b else []
            a(q_mfmas(b, DEN, rb), gs[2*b], interleave(q_mfmas(b), [wr[4*k:4*k+4] for k in range(4)] if b else [], 1, 1), gs[2*b+1])
        a([f"v_accvgpr_write_b32 a{WB(3,0)+i}, v{DEN+48+i}" for i in range(16)])
    else:
        a(gq.pop(0), "s_waitcnt lgkmcnt(0)")
        for b in range(4):
            tick2()
            a(interleave(q_mfmas(b), [wrd(4*b+j) for j in range(4)], 1, 1))
            a(gq.pop(0))
        a(gq)
        tick2()
        a(f"s_waitcnt vmcnt({7-GE}) lgkmcnt(0)", "s_barrier")
    a(mkoff(2), "s_waitcnt vmcnt(4)")
    tick2()
    st2(a, 6)
    if OPT.get("steps"): a("s_mov_b32 m0, 0")
    a(interleave([wrd(35+f, 19+f) for f in range(16)], edge_mfmas(0, NUM, 0), 3), "s_nop 5")
    a(".p2align 3")
    body, n = align8([f"s_mov_b64 exec, s[{sValid}:{sValid+1}]"] + step(0, True))
    tick2()
    a(body)
    tick2()
    a("s_branch K2_L1")
    if OPT.get("pg"): a(".p2align 12", "K2_STUB2:", "s_branch K2_RET2", ".p2align 3")
    else: a(".p2align 6")
    for k, u in enumerate((1, 2, 0)):
        body = step(u, False) + [f"s_cbranch_scc1 K2_X{u}" if k < 2 else "s_cbranch_scc0 K2_L1"]
        if k: body = ["s_nop 0"] + body
        body, n = align8(body)
        if k: body = body[1:]
        a(f"K2_L{u}:", body)
    for u in (0, 1, 2):
        a(f"K2_X{u}:", f"s_cmp_lg_u32 s{sStage}, 0", "s_cbranch_scc1 K2_TEND",
          f"s_mov_b32 s{sStage}, 1", f"s_mov_b32 s{sC}, 1", f"s_mov_b32 s{sX+2}, 0", f"v_add_u32 v{vPad}, 2, v{vPad}", f"s_branch K2_L{(u+1)%3}")
    if OPT.get("pg"): a(".p2align 12", "K2_STUB3:", "s_branch K2_RET3")
    a("K2_TEND:", f"s_bitcmp1_b32 s{sTile}, 7", "s_cbranch_scc1 K2_FINAL")
    st2(a, 7)
    if OPT.get("steps"):
        a("s_mov_b64 exec, -1", f"s_add_u32 s48, s44, {STAMP_OFF+(3<<20)}", "s_addc_u32 s49, s45, 0", "s_mov_b32 s50, 0x100000", "s_mov_b32 s51, 0x00020000",
          f"s_lshl_b32 s46, s{sBucket}, 2", f"s_add_u32 s46, s46, s{sWave}", "s_lshl_b32 s46, s46, 8",
          f"v_lshlrev_b32 v{vT1}, 2, v{vLane}", f"buffer_store_dword v{vT0}, v{vT1}, s[48:51], s46 offen", "s_waitcnt vmcnt(0)")
    n = epilogue(a, True)
    st2(a, 8)
    a(".p2align 3")
    body, n = align8([f"s_mov_b64 exec, s[{sValid}:{sValid+1}]"] + step(0, True, 11, 1))
    a(body, "s_branch K2_L1")
    a("K2_FINAL:")
    st2(a, 9)
    epilogue(a, False)
    st2(a, 10)
    if OPT.get("exp", 0): a(f"s_mov_b64 s[{sBad}:{sBad+1}], 0")
    a(f"s_mov_b64 exec, s[{sBad}:{sBad+1}]", f"ds_write_b32 v20, v21 offset:{L_FLAG}", "s_mov_b64 exec, -1")
    a("s_waitcnt lgkmcnt(0)", "s_barrier", f"ds_read_b32 v21, v20 offset:{L_FLAG}", "s_waitcnt lgkmcnt(0)", f"v_readfirstlane_b32 s{sTmp}, v21",
      f"s_cmp_lg_u32 s{sTmp}, 0", "s_cbranch_scc1 K2_SLOW")
    if OPT["stamps"]:
        a("K2_STOUT:", "s_waitcnt vmcnt(0)")
        st2(a, 11)
        a(f"s_add_u32 s48, s44, {STAMP_OFF}", "s_addc_u32 s49, s45, 0", "s_mov_b32 s50, 0x100000", "s_mov_b32 s51, 0x00020000",
          f"s_lshl_b32 s46, s{sBucket}, 2", f"s_add_u32 s46, s46, s{sWave}", "s_lshl_b32 s46, s46, 8",
          f"v_accvgpr_read_b32 v20, a{aStamp}", "s_nop 0", [f"v_writelane_b32 v20, s{52+2*k}, {48+k}" for k in range(13 if OPT.get("ticks") else 0)], f"v_lshlrev_b32 v21, 2, v{vLane}", "buffer_store_dword v20, v21, s[48:51], s46 offen")
    a("K2_END:", "s_endpgm")
    a("K2_BUILD:", cpf if OPT.get("pfl") else [], "s_sub_u32 s93, s2, 250", "s_lshl_b32 s93, s93, 2", f"s_add_u32 s93, s93, s{sWave}")
    def bmid(): a("s_waitcnt lgkmcnt(0)"); st2(a, 12)
    def bpost():
        a(init.l, ptrs, epoch); st2(a, 13); return 1
    gen_build(a, "KB", 93, lambda v, sr: a(f"buffer_store_dwordx4 {vr(v,4)}, v{vL16}, s[{sAux}:{sAux+3}], s{sr} offen sc1"), 80, bmid, bpost)
    st2(a, 14)
    a(consts.l, "s_waitcnt vmcnt(0) lgkmcnt(0)", mktag, f"v_mov_b32 v40, v{vTag+1}", f"v_mov_b32 v41, v{vTag}", f"v_mov_b32 v42, v{vTag+1}", f"v_mov_b32 v43, v{vTag}", "s_barrier")
    st2(a, 15); st2(a, 2)
    a(f"s_cmp_ge_u32 s{sWave}, 2", "s_cselect_b64 exec, 0, -1", f"buffer_store_dwordx4 v[40:43], v{vT16}, s[{sAux}:{sAux+3}], s47 offen sc1", F, poll)
    a("K2_WAITB:", f"s_movk_i32 s84, {TMO}")
    a("K2_WB1:", pb, "s_waitcnt vmcnt(0)", chk(vE2),
      "s_cbranch_vccz K2_WGO", "s_sub_u32 s84, s84, 1", "s_cbranch_scc0 K2_WB1", "s_mov_b32 s32, 2", "s_branch K2_WGO")
    a("K2_RARE1:")
    for k in range(28, 40): a(load(k))
    a(f"v_cmp_lt_u32 vcc, 40, v{vCnt}", f"s_or_b64 s[{sBad}:{sBad+1}], s[{sBad}:{sBad+1}], vcc", "s_branch K2_P1")
    a("K2_RARE2:")
    for k in range(28, 40):
        a(f"v_cmpx_lt_u32 vcc, {k}, v{vCnt}", "s_nop 0", "s_cbranch_execz K2_P3", atom(k), "s_waitcnt lgkmcnt(0)", put(k))
    a("s_branch K2_P3")
    fixup(a, "T"); fixup(a, "F")
    gen_slow(a)

def gen_slow(a):
    tid, vStart, vCnt, vJ, vA = 0, 1, 2, 4, 5
    a("K2_SLOW:", "s_mov_b64 exec, -1", f"s_mov_b32 s94, s{sTmp}", "s_load_dwordx8 s[72:79], s[0:1], 32", "s_waitcnt vmcnt(0) lgkmcnt(0)", f"s_mov_b32 s{sX+2}, {X_BYTES}", "s_barrier")
    a(f"s_lshl_b32 s{sTmp}, s{sWave}, 6", f"v_add_u32 v{tid}, s{sTmp}, v{vLane}", f"v_lshlrev_b32 v23, 4, v{vLane}", f"v_add_u32 v23, {L_WS}, v23")
    a(f"s_mov_b32 s93, s{sWave}", "KS_BL:")
    gen_build(a, "KSB", 93, lambda v, sr: a(f"v_add_u32 v22, s{sr}, v23", f"ds_write_b128 v22, {vr(v,4)}"), 72)
    a("s_add_u32 s93, s93, 4", "s_cmp_lt_u32 s93, 24", "s_cbranch_scc1 KS_BL", "s_waitcnt lgkmcnt(0)", "s_barrier")
    a([f"ds_read_b128 {ar(4*f,4)}, v23 offset:{1024*f}" for f in range(NFRAG)])
    a("s_waitcnt lgkmcnt(0)", "s_barrier")
    a("KS_HAVE:", "s_load_dwordx8 s[72:79], s[0:1], 0")
    a(f"v_lshlrev_b32 v20, 11, v{tid}", f"s_lshl_b32 s{sTmp}, s{sBucket}, 3", f"s_add_u32 s{sTmp}, s{sTmp}, {TAB_REL}",
      f"buffer_load_dword v21, v20, s[{sAux}:{sAux+3}], s{sTmp} offen sc1")
    a("v_mov_b32 v24, 0", "v_mov_b32 v25, 0", "v_mov_b32 v26, 0", "v_mov_b32 v27, 0", f"v_lshlrev_b32 v22, 4, v{tid}", f"v_add_u32 v22, {L_TAB}, v22")
    for i in range(13): a(f"ds_write_b128 v22, v[24:27] offset:{4096*i}")
    a(selectors())
    a(f"v_mul_u32_u24 v{vStart}, {CH*12}, v{tid}", f"v_and_b32 v6, 31, v{vLane}", f"v_mul_u32_u24 v{vJ}, 12, v6", "v_lshlrev_b32 v6, 2, v6")
    a("s_waitcnt vmcnt(0) lgkmcnt(0)", "v_and_b32 v22, 0xfff, v21", f"v_bfe_u32 v{vCnt}, v21, 12, 12", f"v_mad_u32_u24 v{vStart}, v22, 12, v{vStart}", f"v_mul_u32_u24 v{vCnt}, 12, v{vCnt}", "s_barrier")
    srd(a, 56, 78, 79, E*4); srd(a, 60, 76, 77, E*4); srd(a, 64, 74, 75, E*8)
    a(f"s_mul_i32 s50, s{sBucket}, {NB*128}", f"s_mul_i32 s51, s{sBucket}, {NB}", "s_mov_b32 s46, 0", f"s_lshl_b32 s95, s{sWave}, 7")
    a("s_cmp_lt_u32 s94, 2", "s_cbranch_scc1 KS_SEG")
    a("KS_RAW:", f"s_cmp_ge_u32 s95, {E*4}", "s_cbranch_scc1 KS_DONE")
    a("buffer_load_dword v20, v6, s[56:59], s95 offen", "s_mov_b32 s96, s95", "s_add_u32 s95, s95, 512", "s_waitcnt vmcnt(0)",
      "v_subrev_u32 v20, s51, v20", f"v_cmp_gt_u32 vcc, {NB}, v20", "s_cbranch_vccz KS_RAW", f"s_mov_b64 s[{sValid}:{sValid+1}], vcc")
    a("s_lshl_b32 s97, s96, 1", "v_lshlrev_b32 v21, 1, v6", "buffer_load_dword v10, v6, s[60:63], s96 offen", "buffer_load_dwordx2 v[8:9], v21, s[64:67], s97 offen",
      "v_and_b32 v20, 0xff, v20", "v_lshlrev_b32 v20, 2, v20", "s_waitcnt vmcnt(0)", "v_lshl_or_b32 v10, v10, 16, v20", "s_branch KS_BODY")
    a("KS_SEG:", "s_nop 3", f"v_readlane_b32 s47, v{vStart}, s46", f"v_readlane_b32 s48, v{vCnt}, s46", "s_mov_b32 s49, 0")
    a("KS_GRP:", "s_cmp_ge_u32 s49, s48", "s_cbranch_scc1 KS_NEXT")
    a(f"v_add_u32 v20, s49, v{vJ}", f"v_cmp_gt_u32 s[{sValid}:{sValid+1}], s48, v20", "v_add_u32 v20, s47, v20")
    a(f"buffer_load_dwordx3 v[8:10], v20, s[{sRec}:{sRec+3}], 0 offen sc1", "s_waitcnt vmcnt(0)")
    a("KS_BODY:")
    a(mkoff(2), [gather(0, q) for q in range(4)])
    a("v_and_b32 v20, 0xffff, v10", f"v_lshl_add_u32 v{vOff}, v20, 5, v{vHalf}", f"v_add_u32 v{vOff}, s50, v{vOff}", [gather(2, q) for q in range(4)])
    a(f"v_lshlrev_b32 v{vA}, 6, v20", f"v_add_u32 v{vA}, v{vHalf}, v{vA}", f"v_add_u32 v{vA}, {L_TAB}, v{vA}")
    a("s_waitcnt vmcnt(0)")
    for b in range(4):
        a(q_mfmas(b))
        a(mf8(Q + 16*b, ar(WC(b), 2), "v[8:9]", vr(Q + 16*b, 16)))
        for q in range(4): a(mf16(Q + 16*b, ar(WA(b, q), 4), ar(RING[0] + 4*q, 4), vr(Q + 16*b, 16)))
    a(mf8(D, ar(B2F, 2), vr(SEL, 2), "0"), mf8(D + 16, ar(B2F, 2), vr(SEL + 2, 2), "0"), "s_nop 7", "s_nop 7")
    for i in range(64): a(f"v_exp_f32 v{NUM+i}, v{Q+i}")
    for i in range(64): a(f"v_add_f32 v{NUM+i}, 1.0, v{NUM+i}")
    for i in range(64): a(f"v_rcp_f32 v{NUM+i}, v{NUM+i}")
    for i in range(64): a(f"v_mul_f32 v{NUM+i}, v{NUM+i}, v{Q+i}")
    for i in range(32): a(f"v_cvt_pk_bf16_f32 v{DEN+i}, v{NUM+2*i}, v{NUM+2*i+1}")
    a("s_nop 1")
    for b in range(4):
        for m in range(2):
            for ob in range(2): a(mf16(D + 16*ob, ar(W2(b, m, ob), 4), vr(DEN + 8*b + 4*m, 4), vr(D + 16*ob, 16)))
    a("s_nop 7", "s_nop 7", f"s_mov_b64 exec, s[{sValid}:{sValid+1}]")
    for ob in range(2):
        for i in range(16): a(f"ds_add_f32 v{vA}, v{D+16*ob+i} offset:{4*(32*((i>>2)&1) + 4*(i&3) + 2*(i>>3) + ob)}")
    a("s_mov_b64 exec, -1", "s_waitcnt lgkmcnt(0)", "s_cmp_ge_u32 s94, 2", "s_cbranch_scc1 KS_RAW", f"s_add_u32 s49, s49, {32*12}", "s_branch KS_GRP")
    a("KS_NEXT:", "s_add_u32 s46, s46, 1", "s_cmp_lt_u32 s46, 64", "s_cbranch_scc1 KS_SEG")
    a("KS_DONE:", "s_waitcnt lgkmcnt(0)", "s_barrier")
    a(f"v_lshlrev_b32 v20, 5, v{tid}", f"v_add_u32 v20, {L_TAB}, v20", f"v_lshlrev_b32 v21, 4, v{tid}", "v_add_u32 v21, s50, v21")
    for i in range(7):
        if i == 6: a(f"v_cmp_gt_u32 vcc, {NB*8-1536}, v{tid}", "s_and_saveexec_b64 s[46:47], vcc", "s_cbranch_execz KS_END")
        a(f"ds_read_b128 v[24:27], v20 offset:{8192*i}", f"ds_read_b128 v[28:31], v20 offset:{8192*i+16}", "s_waitcnt lgkmcnt(0)")
        for j in range(4): a(f"v_cvt_pk_bf16_f32 v{32+j}, v{24+2*j}, v{25+2*j}")
        a(f"buffer_store_dwordx4 v[32:35], v21, s[{sOut}:{sOut+3}], 0 offen", "s_nop 1", "v_add_u32 v21, 4096, v21")
    a("KS_END:", "s_endpgm")

def kd(name, vgpr, accum, sgpr=102):
    return f""".amdhsa_kernel {name}
  .amdhsa_next_free_vgpr {vgpr}
  .amdhsa_next_free_sgpr {sgpr}
  .amdhsa_accum_offset {accum}
  .amdhsa_group_segment_fixed_size 0
  .amdhsa_kernarg_size 88
  .amdhsa_user_sgpr_count 2
  .amdhsa_user_sgpr_kernarg_segment_ptr 1
  .amdhsa_system_sgpr_workgroup_id_x 1
  .amdhsa_float_denorm_mode_32 3
.end_amdhsa_kernel
"""

def generate(**opt):
    OPT.update(opt)
    ref = open("standalone__edge_featured_mpnn_mpnn__graph.s.ref").read().split("\n")
    head = [x for x in ref if x.startswith(";") and "@launch" not in x and not x.startswith("; Override") and not x.startswith("; grid=")]
    head += [f"; @launch {'kernel=' + KNAME + ' ' if OPT.get('aslist') else ''}grid=(256,1,1) block=(256,1,1) lds={K2_LDS}"]
    a = Asm()
    a('.amdgcn_target "amdgcn-amd-amdhsa--gfx950"', ".text", f".globl {KNAME}", f".type {KNAME},@function")
    gen_k2(a)
    return "\n".join(head) + "\n" + a.text() + '.section .rodata,"a"\n.p2align 6\n' + kd(KNAME, 512, 256)

if __name__ == "__main__":
    out = sys.argv[1] if len(sys.argv) > 1 else "standalone__edge_featured_mpnn_mpnn__graph.s"
    opt = {}
    for x in sys.argv[2:]:
        k, v = x.split("="); opt[k] = int(v) if v.lstrip("-").isdigit() else v.replace("+", " ")
    open(out, "w").write(generate(**opt))
```

```python
import sys
sys.path.insert(0,'code')
import gen4, gen5
gen=gen4
def diag(s, kern, idx, red):
    i=s.index(".amdgcn_target"); s=s[:i]+"; @launch kernel=k3_kernel grid=(1,1,1) block=(1024,1,1) lds=64\n"+s[i:]
    if kern==2: ld=f"v_min_u32 v1, 1019, v0\n v_lshlrev_b32 v1, 8, v1\n buffer_load_dword v3, v1, s[8:11], 0 offen offset:{4*(16+idx)}"
    elif kern==3: ld=f"v_bfe_u32 v1, v0, 2, 3\n v_min_u32 v1, 5, v1\n v_add_u32 v1, 2, v1\n v_lshlrev_b32 v1, 7, v1\n v_add_u32 v1, 124, v1\n v_and_b32 v10, 3, v0\n v_add_u32 v1, v1, v10\n v_lshlrev_b32 v1, 8, v1\n buffer_load_dword v3, v1, s[8:11], 0 offen offset:{4*(16+idx)}"
    elif kern==1: ld=f"v_mov_b32 v1, v2\n buffer_load_dword v3, v1, s[8:11], s12 offen offset:{4*(16+idx)}"
    else: ld=f"v_mov_b32 v1, v2\n buffer_load_dword v3, v1, s[8:11], s12 offen offset:64"
    if kern==0: red='min'
    op={'max':'ds_max_u32','min':'ds_min_u32','avg':'ds_add_u32'}[red]
    init={'max':'0','min':'-1','avg':'0'}[red]
    k=f"""
.p2align 8
k3_kernel:
 s_cmp_lg_u32 s2, 0
 s_cbranch_scc1 K3_END
 s_load_dwordx2 s[4:5], s[0:1], 80
 v_mov_b32 v5, 0
 v_mov_b32 v6, -1
 v_mov_b32 v7, {init}
 ds_write_b32 v5, v6
 ds_write_b32 v5, v7 offset:4
 s_waitcnt lgkmcnt(0)
 s_add_u32 s8, s4, {gen.STAMP_OFF}
 s_addc_u32 s9, s5, 0
 s_mov_b32 s10, 0x300000
 s_mov_b32 s11, 0x00020000
 s_mov_b32 s12, 0x100000
 v_lshrrev_b32 v2, 2, v0
 v_min_u32 v2, 249, v2
 v_lshlrev_b32 v2, 12, v2
 v_and_b32 v8, 3, v0
 v_mul_u32_u24 v8, 512, v8
 v_add_u32 v2, v2, v8
 v_min_u32 v9, 1019, v0
 v_lshlrev_b32 v9, 8, v9
 buffer_load_dword v4, v9, s[8:11], 0 offen offset:64
 {ld}
 s_barrier
 s_waitcnt vmcnt(0)
 ds_min_u32 v5, v4
 s_waitcnt lgkmcnt(0)
 s_barrier
 ds_read_b32 v4, v5
 s_waitcnt lgkmcnt(0)
 v_sub_u32 v3, v3, v4
 {op} v5, v3 offset:4
 s_waitcnt lgkmcnt(0)
 s_barrier
 ds_read_b32 v3, v5 offset:4
 s_waitcnt lgkmcnt(0)
 {'v_lshrrev_b32 v3, 10, v3' if red=='avg' else 's_nop 0'}
 v_min_u32 v3, 5000, v3
 v_mul_u32_u24 v3, 10, v3
 v_add_u32 v3, 10000, v3
 s_nop 1
 v_readfirstlane_b32 s14, v3
 v_readfirstlane_b32 s15, v4
 s_mov_b32 s20, 400000
K3_L:
 s_memrealtime s[16:17]
 s_waitcnt lgkmcnt(0)
 s_sub_u32 s16, s16, s15
 s_sub_u32 s20, s20, 1
 s_cbranch_scc1 K3_END
 s_cmp_lt_u32 s16, s14
 s_cbranch_scc1 K3_L
K3_END:
 s_endpgm
"""
    i=s.index('.section .rodata')
    return s[:i]+k+s[i:]+".p2align 6\n"+gen.kd("k3_kernel",16,16,32)
if __name__=="__main__":
    opts={}
    specs=[]
    for x in sys.argv[1:]:
        if "=" in x: k,v=x.split("="); opts[k]=int(v) if v.isdigit() else v.replace("+"," ")
        else: specs.append(x)
    bases={m:dict(m.OPT) for m in (gen4,gen5)}
    for n,sp in enumerate(specs):
        kern,idx,red,*ex=sp.split(",")
        gen=gen5 if 'v:5' in ex else gen4
        gen.OPT.clear(); gen.OPT.update(bases[gen]); o=dict(opts)
        for x in ex: k,v=x.split(":"); o[k]=int(v) if v.isdigit() else v.replace("+"," ")
        s=gen.generate(stamps=1,aslist=1,**o)
        open(f"d{n}.s","w").write(diag(s,int(kern),int(idx),red))
```

```python
import re, sys, struct, math

N, E = 50000, 800000
NB = 196
CH = 3200
NCH = 250
CAP = 43
REC_BYTES = E * 12
FRAG_OFF = REC_BYTES
NFRAG = 51
FRAG_BYTES = NFRAG * 1024
EPO_REL = 52 * 1024
TAB_REL = 53 * 1024
AUX_BYTES = TAB_REL + 256 * 2048
KNAME = "standalone__edge_featured_mpnn_mpnn__graph_kernel"
STAMP_OFF = 16 << 20
X_BYTES = N * 128

def f32(x): return "0x%08x" % struct.unpack("<I", struct.pack("<f", x))[0]
NLOG2E = f32(-math.log2(math.e))
NLN2 = f32(-math.log(2.0))

OPT = dict(stamps=False, force_slow=False, k1st="sc1", outst="sc1", late=4, onewait=0, pg=1)

class Asm:
    def __init__(self): self.l = []
    def __call__(self, *xs):
        for x in xs:
            if isinstance(x, (list, tuple)): self(*x)
            else:
                for y in x.split("\n"):
                    y = y.strip()
                    if y: self.l.append(y)
    def text(self):
        return "\n".join((x if (x.endswith(":") or x.startswith(".")) else "    " + x) for x in self.l) + "\n"

def vr(b, n): return f"v[{b}:{b+n-1}]"
def ar(b, n): return f"a[{b}:{b+n-1}]"

def srd(a, s, lo, hi, nrec):
    a(f"s_mov_b32 s{s}, s{lo}", f"s_mov_b32 s{s+1}, s{hi}", f"s_mov_b32 s{s+2}, {nrec}", f"s_mov_b32 s{s+3}, 0x00020000")

def wave_scan(a, v):
    for sh in (1, 2, 4, 8):
        a("s_nop 1", f"v_add_u32_dpp v{v}, v{v}, v{v} row_shr:{sh} row_mask:0xf bank_mask:0xf")
    a("s_nop 1", f"v_add_u32_dpp v{v}, v{v}, v{v} row_bcast:15 row_mask:0xa bank_mask:0xf")
    a("s_nop 1", f"v_add_u32_dpp v{v}, v{v}, v{v} row_bcast:31 row_mask:0xc bank_mask:0xf")

def isize(x):
    if x.endswith(":") or x.startswith("."): return 0
    op = x.split()[0]
    rest = x[len(op):]
    def lit():
        for tok in re.split(r"[,\s]+", rest):
            if re.fullmatch(r"-?(0x[0-9a-fA-F]+|\d+)", tok):
                v = int(tok, 0)
                if not (-16 <= v <= 64): return True
        return False
    if op in ("s_waitcnt", "s_nop", "s_barrier", "s_branch", "s_endpgm", "s_setprio") or op.startswith("s_cbranch"): return 4
    if op.startswith(("s_load", "s_memtime", "s_memrealtime")): return 8
    if op.startswith("s_"): return 8 if lit() else 4
    if op.startswith(("buffer_", "ds_", "global_", "v_mfma", "v_pk_", "v_accvgpr_read", "v_accvgpr_write")): return 8
    if op.endswith("_e64") or op.endswith("_dpp") or op.endswith("_sdwa"): return 8
    vop3 = ("v_mad_", "v_fma_", "v_max3", "v_min3", "v_cvt_pk_bf16", "v_lshl_add", "v_lshl_or", "v_bfe", "v_add3", "v_and_or",
            "v_readlane", "v_writelane", "v_maximum3", "v_bfi", "v_mul_lo", "v_mul_hi", "v_add_lshl", "v_perm_b32", "v_or3")
    if op.startswith(vop3): return 8
    if op.startswith("v_cmp"):
        if not rest.strip().startswith("vcc"): return 8
        return 8 if lit() else 4
    if op == "v_cndmask_b32" and not rest.strip().endswith("vcc"): return 8
    return 8 if lit() else 4

PROMOTE = ("v_exp_f32 ", "v_rcp_f32 ", "v_mul_f32 ", "v_mov_b32 ", "v_lshrrev_b32 ", "v_add_u32 ", "v_lshlrev_b32 ")
def align8(lines):
    o = sum([x.split("\n") for x in lines], []); pos = 0; last = None
    for i, x in enumerate(o):
        s = isize(x)
        if x.startswith("v_pk_") and pos % 8 == 4:
            assert last is not None, "cannot align " + x
            op = o[last].split()[0]; o[last] = o[last].replace(op, op + "_e64", 1); pos += 4; last = None
        if x.startswith(PROMOTE) and s == 4: last = i
        elif x.startswith("v_pk_"): last = None
        pos += s
    return o, pos

L_CNT, L_HIST, L_FLAG, L_RANK, L_OUTO, L_XR = 0, 1024, 1280, 1536, 3200, 4224
L_WS = L_XR + NB * 128
L_TAB = L_WS + 32 * 1024
P1_CNT, P1_BASE, P1_STG = 5120, 6144, 7168
ESZ = 12
K2_LDS = L_TAB + NB * CAP * ESZ

Q, NUM, DEN, D, EE = 16, 80, 144, 208, 240
ENT = (0, 4, 8)
vOff, vLds, vHalf, vPad, vLane, vT0, vT1 = 3, 7, 11, 12, 13, 14, 15
RING = (204, 220, 236)
aInfo, aNextL, aNextI, aStamp = 252, 253, 254, 255
def WA(b, q): return 4 * (4 * b + q)
def WC(b): return 128 + 2 * b
B1F, B2F = 136, 138
def WB(b, q): return 140 + 4 * (4 * b + q)
def W2(b, m, ob): return 64 + 4 * (4 * b + 2 * m + ob)
sX, sOut, sRec, sAux = 4, 8, 12, 16
sWave, sBucket, s128, sC, sStage, sTile, sL, sTmp, sTmp2, sP2B = 20, 21, 22, 23, 24, 25, 26, 27, 28, 29
sValid, sBad, sSave, sP2A = 30, 34, 36, 38
sMask0 = 52
TILE_A = [(0, 0, 30), (2, 0, 76), (2, 2, 104), (2, 4, 132)]
TILE_B = [(16, 160, 0), (14, 62, 192), (12, 18, 184), (12, 6, 176)]
assert all(t[0] % 2 == 0 and t[0] <= 4 for t in TILE_A) and all(t[0] % 2 == 0 and t[0] >= 12 for t in TILE_B)
def _check_map():
    seen = []
    for P, rp, rs in TILE_A + TILE_B: seen += list(range(rp, rp + P)) + list(range(rs, rs + 32 - 2*P))
    assert sorted(seen) == list(range(NB))
_check_map()

def pkfma(d, x, y, z): return f"v_pk_fma_f32 {vr(d,2)}, {vr(x,2)}, {vr(y,2)}, {vr(z,2)}"
def pkmul(d, x, y): return f"v_pk_mul_f32 {vr(d,2)}, {vr(x,2)}, {vr(y,2)}"
def mf16(d, A, B, c): return f"v_mfma_f32_32x32x16_bf16 {vr(d,16)}, {A}, {B}, {c}"
def mf8(d, A, B, c): return f"v_mfma_f32_32x32x8_bf16 {vr(d,16)}, {A}, {B}, {c}"

def edge_mfmas(b, dst, u):
    o = [mf8(dst, ar(WC(b), 2), vr(ENT[u], 2), vr(Q + 16*b, 16))]
    for q in range(4): o.append(mf16(dst, ar(WA(b, q), 4), ar(RING[u] + 4*q, 4), vr(dst, 16)))
    return o
def gather(u, q): return f"buffer_load_dwordx4 {ar(RING[u]+4*q,4)}, v{vOff}, s[{sX}:{sX+3}], 0 offen offset:{16*q}"
def mkoff(u): return f"v_mad_u32_u16 v{vOff}, v{ENT[u]+2}, s{s128}, v{vHalf} op_sel:[1,0,0,0]"
def entry(u, off):
    if OPT.get("e2"): return f"ds_read2_b32 {vr(ENT[u],2)}, v{vLds} offset0:{off//4} offset1:{off//4+1}\nds_read_b32 v{ENT[u]+2}, v{vLds} offset:{off+8}"
    return f"ds_read_b96 {vr(ENT[u],3)}, v{vLds} offset:{off}"

def interleave(v, m, gap=3, start=0):
    o = []; k = 0
    for i, x in enumerate(v):
        if k < len(m) and i == start + k * gap: o.append(m[k]); k += 1
        o.append(x)
    return o + m[k:]

def icost(x):
    if x.startswith(("v_exp", "v_rcp", "v_mfma_f32_32x32x16")): return 8
    if x.startswith("buffer_"): return 12
    if x.startswith("ds_"): return 8
    return 4
def weave(fill, mf):
    o = []; k = 0; since = 99
    for i, x in enumerate(fill):
        if k < len(mf) and since >= 32 and i >= mf[k][1]:
            o.append(mf[k][0]); since = icost(mf[k][0]); k += 1
        o.append(x); since += icost(x)
    return o + [m for m, _ in mf[k:]]

def step(u, first, vm=3, b0=0):
    o = []
    nx, pre = (u + 1) % 3, (u + 2) % 3
    for b in range(b0, 4):
        n, dn = NUM + 16*b, DEN + 16*b
        t = n if first else D + 16*(b & 1)
        e = dn if first else EE
        ex = [f"v_exp_f32 v{e+i}, v{t+i}" for i in range(16)]
        if b < 3: m = edge_mfmas(b + 1, NUM + 16*(b+1) if first else D + 16*((b+1) & 1), u)
        else: m = edge_mfmas(0, D, nx)
        A = interleave(ex, m)
        if OPT.get("m16") and not first:
            bn = (b + 1) % 4; un = u if b < 3 else nx; dst = D + 16*((b+1) & 1); m = []
            for j in range(4): m.append(f"v_mfma_f32_16x16x16_bf16 {vr(dst+4*j,4)}, {ar(WC(bn),2)}, {vr(ENT[un],2)}, {vr(Q+16*bn+4*j,4)}")
            for k in range(2):
                for j in range(4): m.append(f"v_mfma_f32_16x16x32_bf16 {vr(dst+4*j,4)}, {ar(WA(bn, 2*(j>>1)+k),4)}, {ar(RING[un]+4*(2*(j&1)+k),4)}, {vr(dst+4*j,4)}")
            A = []
            for i in range(16):
                if i < 12: A.append(m[i])
                A.append(ex[i])
            if OPT["m16"] == 2:
                A = [m[0], ex[0], ex[1], m[1], ex[2], m[2], ex[3], ex[4], m[3], ex[5]] + sum([[m[4+i], ex[6+i]] for i in range(8)], []) + ex[14:]
        if OPT.get("onewait") == 1: A = [m[0]] + ex[:2] + interleave(ex[2:], m[1:])
        mid, end = [gather(pre, b)], []
        if b == 0 and not first: end = [f"v_cmpx_gt_i32 vcc, s{sC}, v{vPad}"]
        if b == 1:
            if not first: end = [f"s_sub_u32 s{sC}, s{sC}, 1"]
            if b0: mid, end = [gather(pre, 0)], [gather(pre, 1)]
        if b == 2:
            if OPT.get("onewait") == 2: A = [m[0]] + ex[:2] + [entry(u, 36 + ESZ*u)] + interleave(ex[2:], m[1:])
            elif OPT.get("onewait") == 4: A = A[:18] + [entry(u, 36 + ESZ*u)] + A[18:]
            elif OPT.get("onewait") == 1: A = A[:6] + [entry(u, 36 + ESZ*u)] + A[6:]
            else: end = [entry(u, 36 + ESZ*u)]
        if b == 3:
            if OPT.get("onewait", 0) >= 3 and not first: A = A[:4] + [f"s_waitcnt vmcnt({vm+1}) lgkmcnt(0)"] + A[4:]
            else: mid = [f"s_waitcnt vmcnt({vm}) lgkmcnt(0)"] + mid if OPT.get("onewait") else [f"s_waitcnt vmcnt({vm})"] + mid
            end = ([] if OPT.get("onewait") else ["s_waitcnt lgkmcnt(0)"]) + [mkoff(u)]
            if u == 2: end += [f"v_add_u32 v{vLds}, 36, v{vLds}"]
            if OPT.get("steps"): end += [f"v_writelane_b32 v{vT0}, s100, m0", "s_mov_b32 s99, m0", "s_addk_i32 s99, 1" if first else "s_cselect_b32 s98, 1, 0\ns_addk_i32 s99, 1\ns_cmp_lg_u32 s98, 0", "s_mov_b32 m0, s99"]
        if b == 2 and OPT.get("steps"): end = end + ["s_memtime s[100:101]"]
        if first:
            p = [f"v_pk_add_f32 {vr(dn+i,2)}, {vr(dn+i,2)}, 1.0 op_sel_hi:[1,0]" for i in range(0, 16, 2)]
        else:
            p = [pkfma(n+i, n+i, EE+i, n+i) for i in range(0, 16, 2)]
            p += [pkfma(n+i, t+i, dn+i, n+i) for i in range(0, 16, 2)]
            p += [pkfma(dn+i, dn+i, EE+i, dn+i) for i in range(0, 16, 2)]
        if not first and OPT.get("pkord", 0):
            pa, pb, pc = p[:8], p[8:16], p[16:]
            if OPT["pkord"] == 1: p = sum([[pa[i], pb[i], pc[i]] for i in range(8)], [])
            if OPT["pkord"] == 2:
                p = [pa[0]]
                for i in range(8): p += ([pa[i+1]] if i < 7 else []) + [pb[i], pc[i]]
            if OPT["pkord"] == 3:
                p = [pkfma(n+i, EE+i, n+i, n+i) for i in range(0, 16, 2)] + [pkfma(n+i, dn+i, t+i, n+i) for i in range(0, 16, 2)] + [pkfma(dn+i, EE+i, dn+i, dn+i) for i in range(0, 16, 2)]
        blk = A[:2] + mid + A[2:] + end + p
        x = OPT.get("exp", 0)
        if not first:
            if x & 1: blk = [("s_nop 1" if i.startswith("v_mfma") else i) for i in blk]
            if x & 2: blk = [("s_nop 0" if i.startswith("v_pk") else i) for i in blk]
            if x & 4: blk = [("s_nop 1" if (i.startswith("v_exp") and not i.endswith(f"v{t+15}")) else i) for i in blk]
            if x & 8: blk = [("s_nop 1" if i.startswith("buffer_load") else i) for i in blk]
            if x & 16:
                c0 = m[0].split(", ")[-1]
                blk = [("s_nop 0" if i == m[0] else (", ".join(i.split(", ")[:-1] + [c0]) if i == m[1] else i)) for i in blk]
            if x & 64: blk = [("s_nop 1" if i == m[4] else i) for i in blk]
            if x & 128: blk = [("s_nop 1" if i in (m[3], m[4]) else i) for i in blk]
            if x & 256:
                blk = [("v_pk_mov_b32 v[14:15], v[14:15], v[14:15]" if i in p[:8] else i) for i in blk]
            if x & 512: blk = [("v_pk_mov_b32 v[14:15], v[14:15], v[14:15]" if i in p[8:16] else i) for i in blk]
        o += blk
    return o

SEL = EE + 4
def selectors():
    return [f"v_mov_b32 v{SEL}, 0x3f80", f"v_mov_b32 v{SEL+1}, 0", f"v_mov_b32 v{SEL+2}, 1.0", f"v_mov_b32 v{SEL+3}, 0",
            f"v_mov_b32 v{SEL+4}, 0", f"v_mov_b32 v{SEL+5}, 0x3f80", f"v_mov_b32 v{SEL+6}, 0", f"v_mov_b32 v{SEL+7}, 1.0"]
def q_mfmas(b, dst=Q, rows=lambda q: ar(RING[2] + 4*q, 4)):
    o = [mf8(dst + 16*b, ar(B1F, 2), vr(SEL + 2*b, 2), "0")]
    for q in range(4): o.append(mf16(dst + 16*b, ar(WB(b, q), 4), rows(q), vr(dst + 16*b, 16)))
    return o
def hdr_reads(vinfo, tmp, rows=lambda q: ar(RING[2] + 4*q, 4)):
    o = [f"v_and_b32 v{tmp[0]}, 0xffff, v{vinfo}", f"ds_read_b128 {rows(0)}, v{tmp[0]} offset:{L_XR}"]
    for q in range(1, 4): o += [f"v_xor_b32 v{tmp[q]}, {16*q}, v{tmp[0]}", f"ds_read_b128 {rows(q)}, v{tmp[q]} offset:{L_XR}"]
    return o
def tile_scalars(vinfo, sp2):
    return [f"v_lshrrev_b32 v{vPad}, 16, v{vinfo}", f"s_mov_b32 s{sStage}, 0",
            f"v_readlane_b32 s{sL}, v{vPad}, 0", f"v_readlane_b32 s{sTmp}, v{vPad}, s{sp2}", f"v_cmp_lt_u32 s[{sValid}:{sValid+1}], 0, v{vPad}",
            f"s_max_u32 s{sL}, s{sL}, s{sTmp}", f"s_max_u32 s{sL}, s{sL}, 4", f"s_sub_u32 s{sC}, s{sL}, 4", f"s_sub_u32 s{sL}, s{sL}, 3",
            f"v_sub_u32 v{vPad}, s{sL}, v{vPad}"]

def epilogue(a, nxt):
    lab = "T" if nxt else "F"
    CHK, AD, P = EE + 12, DEN + 24, DEN + 32
    so = OPT.get("outst", "") if nxt else OPT.get("outstf", OPT.get("outst", ""))
    a("s_mov_b64 exec, -1", f"s_cmp_lg_u64 s[{sValid}:{sValid+1}], -1", f"s_cbranch_scc1 K2_{lab}FIX", ".p2align 3", f"K2_{lab}GO:")
    o = [f"v_accvgpr_read_b32 v{EE+2}, a{aInfo}"]
    if nxt:
        o = [f"v_accvgpr_read_b32 v{vLds}, a{aNextL}", f"v_accvgpr_read_b32 v{vT0}, a{aNextI}", f"ds_read_b32 v{ENT[0]+2}, v{vLds} offset:8"] + o
        o += [f"s_mov_b32 s{sX+2}, {X_BYTES}"]
    o += [f"v_lshrrev_b32 v{EE+2}, 16, v{EE+2}", f"v_cvt_f32_u32 v{EE+2}, v{EE+2}", f"v_mov_b32 v{EE+1}, 0", f"v_mov_b32 v{EE+3}, 0", f"v_lshrrev_b32 v{EE}, 16, v{EE+2}"]
    def chk(b):
        dn = DEN + 16*b
        return [(pkmul(CHK, dn, dn + 8) if (b == 0 and i == 0) else pkfma(CHK, dn+i, dn+8+i, CHK)) for i in range(0, 8, 2)]
    def cvt(b): return [f"v_cvt_pk_bf16_f32 v{DEN+16*b+i//2}, v{NUM+16*b+i}, v{NUM+16*b+i+1}" for i in range(0, 16, 2)]
    def w2(b): return [mf16(D + 16*ob, vr(DEN + 16*b + 4*m, 4), ar(W2(b, m, ob), 4), vr(D + 16*ob, 16)) for m in range(2) for ob in range(2)]
    tk = [0]
    def tick():
        if OPT.get("ticks") == 1 and nxt: o.append(f"s_memtime s[{52+2*tk[0]}:{53+2*tk[0]}]"); tk[0] += 1
    if OPT.get("ticks") == 1 and nxt: o.insert(0, "s_memtime s[52:53]"); tk[0] = 1
    o += chk(0)
    JS = list(range(8)) if nxt else [0, 2, 4, 6, 7]
    ad = lambda j: AD + 4*(j & 1) + (j >> 1)
    oread = [f"v_lshrrev_b32 v{vT1}, 4, v{vLane}", f"v_lshl_add_u32 v{vT1}, v{vT1}, 5, s{sTile}", f"ds_read_b128 {vr(AD,4)}, v{vT1} offset:{L_OUTO}",
             f"ds_read_b128 {vr(AD+4,4)}, v{vT1} offset:{L_OUTO+16}" if nxt else f"ds_read_b32 v{AD+7}, v{vT1} offset:{L_OUTO+28}",
             f"v_and_b32 v{vT1}, 15, v{vLane}"]
    oadd = [f"v_lshl_add_u32 v{ad(j)}, v{vT1}, 3, v{ad(j)}" for j in JS]
    lim = [f"v_lshrrev_b32 v{EE}, 4, v{vHalf}", f"v_sub_u32 v{EE}, s{sP2A if nxt else sP2B}, v{EE}"]
    ts = tile_scalars(vT0, sP2B)
    Q4 = [q_mfmas(k) for k in range(4)]
    for b in range(4):
        n, dn = NUM + 16*b, DEN + 16*b
        rc = [f"v_rcp_f32 v{dn+i}, v{dn+i}" for i in range(16)]
        pre = cvt(b - 1) if b else []
        if b == 0: mf = [(mf8(D, vr(EE, 2), ar(B2F, 2), "0"), 0), (mf8(D + 16, vr(EE + 2, 2), ar(B2F, 2), "0"), 0)]
        else: mf = [(x, 6 if k < 2 else 10) for k, x in enumerate(w2(b - 1))]
        if nxt and OPT.get("qb"):
            qr = [f"v_accvgpr_read_b32 v{Q+16*b+i}, a{WB(b,0)+i}" for i in range(16)]
            ex = {0: ["s_waitcnt lgkmcnt(0)", mkoff(0), gather(0, 0), f"ds_read2_b32 {vr(ENT[0],2)}, v{vLds} offset0:0 offset1:1", entry(1, ESZ), entry(2, 2*ESZ), gather(0, 1)],
                  1: [gather(0, 2), f"v_accvgpr_write_b32 a{aInfo}, v{vT0}"] + lim + ts + [gather(0, 3)],
                  2: ["s_waitcnt lgkmcnt(0)", mkoff(1)] + oread + [gather(1, 0), f"s_add_u32 s{sTile}, s{sTile}, 128"],
                  3: [gather(1, 1), "s_waitcnt lgkmcnt(0)", f"v_add_f32 v{CHK}, v{CHK}, v{CHK+1}"] + oadd + [gather(1, 2)]}[b]
            fill = pre + interleave(rc, ex, 2 if b == 0 else 1, 1)
            if b < 3: fill += qr
            else:
                fm = edge_mfmas(0, NUM, 0); k = len(fill) - 19
                assert fill.index(gather(1, 1)) < k < fill.index(gather(1, 2))
                fill = fill[:k] + ["s_waitcnt vmcnt(2)"] + fill[k:]
                mf = [(fm[0], 0)] + mf + [(x, k + 1) for x in fm[1:]]
        elif nxt:
            if b == 0:
                fill = selectors() + ["s_waitcnt lgkmcnt(0)", mkoff(0), gather(0, 0)] + rc[:9] + ["s_waitcnt vmcnt(1)"] + \
                       interleave(hdr_reads(vT0, [vT1, vPad, EE+14, EE+15]), rc[9:13], 2, 2) + [gather(0, 1)] + rc[13:]
                mf = mf + [(Q4[k][0], 10) for k in range(4)]
            else:
                ex = {1: [f"ds_read2_b32 {vr(ENT[0],2)}, v{vLds} offset0:0 offset1:1", entry(1, ESZ), gather(0, 2), entry(2, 2*ESZ), f"v_accvgpr_write_b32 a{aInfo}, v{vT0}"] + lim + [gather(0, 3)],
                      2: ["s_waitcnt lgkmcnt(0)", mkoff(1)] + oread + [gather(1, 0), f"s_add_u32 s{sTile}, s{sTile}, 128"] + ts[:5],
                      3: [gather(1, 1), "s_waitcnt lgkmcnt(0)", f"v_add_f32 v{CHK}, v{CHK}, v{CHK+1}"] + oadd + [gather(1, 2)]}[b]
                fill = pre + interleave(rc, ex, 1, 1)
                if b == 1:
                    fill = ["s_waitcnt lgkmcnt(0)"] + fill
                    mf = [(x, 1) for x in Q4[0][1:]] + mf + [(Q4[2][1], 0)]
                elif b == 2: mf = [(x, 0) for x in Q4[1][1:]] + mf + [(Q4[2][2], 0)]
                else:
                    fm = edge_mfmas(0, NUM, 0); k = len(fill) - 19
                    assert fill.index(gather(1, 1)) < k < fill.index(gather(1, 2))
                    fill = fill[:k] + ["s_waitcnt vmcnt(2)"] + fill[k:]
                    mf = [(fm[0], 0)] + mf + [(x, k + 1) for x in fm[1:]]
        else:
            fill = pre + rc
        tick()
        o += weave(fill, mf)
        tick()
        mu = [pkmul(n+i, n+i, dn+i) for i in range(0, 16, 2)]
        o += interleave(mu, chk(b + 1), 2, 1) if b < 3 else mu
    wm = w2(3)
    c3 = cvt(3)
    mx = lambda j: f"v_maximum3_f32 v{CHK}, v{CHK}, |v{D+2*j}|, |v{D+2*j+1}|"
    bad = [f"v_cmp_ngt_f32 vcc, {f32(2.0**126)}, v{CHK}", f"s_or_b64 s[{sBad}:{sBad+1}], s[{sBad}:{sBad+1}], vcc"]
    def outp(js, tail):
        r = []; tail = list(tail)
        for k in range(len(js) + 2):
            if k < len(js):
                j = js[k]; r += [f"v_cvt_pk_bf16_f32 v{P+2*j}, v{D+2*j}, v{D+16+2*j}", f"v_cvt_pk_bf16_f32 v{P+2*j+1}, v{D+2*j+1}, v{D+17+2*j}"]
            else: r += tail[:2]; tail = tail[2:]
            if 1 <= k <= len(js): j = js[k-1]; r += [f"v_permlane16_swap_b32 v{P+2*j}, v{P+2*j+1}"]
            if k >= 2: j = js[k-2]; r += [f"buffer_store_dwordx2 {vr(P+2*j,2)}, v{ad(j)}, s[{sOut}:{sOut+3}], 0 offen {so}"]
        return r + tail
    if nxt:
        q3 = q_mfmas(3); n1 = edge_mfmas(1, NUM + 16, 0)
        tick()
        if OPT.get("qb"):
            o += weave(c3 + [f"v_exp_f32 v{DEN+i}, v{NUM+i}" for i in range(16)] + [gather(1, 3), mkoff(2)], [(wm[0], 6), (wm[1], 6), (wm[2], 10), (wm[3], 10)])
            q3 = [0]; bad = bad + qr
        else:
            o += weave(c3 + [f"v_exp_f32 v{DEN+i}, v{NUM+i}" for i in range(16)] + [gather(1, 3), mkoff(2)] + ts[5:],
                       [(Q4[2][3], 0), (wm[0], 6), (wm[1], 6), (wm[2], 10), (wm[3], 10), (Q4[2][4], 0)])
        tick()
        o += [f"v_pk_add_f32 {vr(DEN+i,2)}, {vr(DEN+i,2)}, 1.0 op_sel_hi:[1,0]" for i in range(0, 16, 2)]
        o += [f"v_cmpx_lt_i32_e64 vcc, 0, v{EE}"] + [f"v_pk_add_f32 {vr(D+16*ob,2)}, {vr(D+16*ob,2)}, {vr(D+16*ob+2,2)}" for ob in range(2)] + ["s_mov_b64 exec, -1"]
        tick()
        o += weave(outp(JS, [mx(j) for j in range(8)] + bad), [(x, 1) for x in n1 + q3[1:]])
        tick()
    else:
        o += c3[:6] + [wm[0]] + c3[6:] + oread[:3] + [wm[2]] + oread[3:] + lim + [f"v_add_f32 v{CHK}, v{CHK}, v{CHK+1}", wm[1], "s_nop 2", "s_waitcnt lgkmcnt(0)"] + oadd[:2] + [wm[3]] + oadd[2:]
        pa = lambda ob, g: f"v_pk_add_f32 {vr(D+16*ob+4*g,2)}, {vr(D+16*ob+4*g,2)}, {vr(D+16*ob+4*g+2,2)}"
        o += ["v_mov_b32 v20, 0", "v_mov_b32 v21, 1", "s_nop 3"] + [pa(0, g) for g in range(3)] + [pa(1, g) for g in range(3)]
        o += [f"v_cmpx_lt_i32_e64 vcc, 24, v{EE}", pa(0, 3), pa(1, 3), "s_mov_b64 exec, -1"]
        o += outp(JS, [mx(j) for j in JS] + bad)
    o, n = align8(o)
    a(o)
    return n

def fixup(a, lab):
    a(f"K2_{lab}FIX:", f"s_andn2_b64 exec, -1, s[{sValid}:{sValid+1}]")
    for i in range(64): a(f"v_mov_b32 v{NUM+i}, 0", f"v_mov_b32 v{DEN+i}, 1.0")
    a("s_mov_b64 exec, -1", f"s_branch K2_{lab}GO")

def st2(a, idx):
    if OPT.get("lite"):
        if idx == 0: a("s_memrealtime s[100:101]")
        if idx == 11: a("s_memrealtime s[50:51]", f"v_mov_b32 v{vT1}, 0", "s_waitcnt lgkmcnt(0)", f"v_writelane_b32 v{vT1}, s100, 16", f"v_writelane_b32 v{vT1}, s50, 27", "s_nop 0", f"v_accvgpr_write_b32 a{aStamp}, v{vT1}")
    elif OPT["stamps"]:
        a("s_memtime s[100:101]", "s_memrealtime s[50:51]", "s_mov_b64 s[48:49], exec", "s_mov_b64 exec, -1", f"v_accvgpr_read_b32 v{vT1}, a{aStamp}", "s_waitcnt lgkmcnt(0)", "s_nop 0",
          f"v_writelane_b32 v{vT1}, s100, {idx}", f"v_writelane_b32 v{vT1}, s50, {idx+16}", f"v_writelane_b32 v{vT1}, s{sL}, {idx+32}", "s_nop 0", f"v_accvgpr_write_b32 a{aStamp}, v{vT1}", "s_mov_b64 exec, s[48:49]")

def gen_build(a, lab, g, store, P, mid=None, post=None):
    R1, R2, R3, T = 64, 72, 80, 96
    for r_, n_ in ((56, 132*128*2), (60, 256), (64, 128*64*2), (68, 128)): a(f"s_mov_b32 s{r_+2}, {n_}", f"s_mov_b32 s{r_+3}, 0x00020000")
    a(f"v_and_b32 v{T}, 31, v{vLane}", f"v_lshrrev_b32 v{T+1}, 5, v{vLane}",
      f"v_lshlrev_b32 v{T+2}, 13, v{T+1}", f"v_lshl_add_u32 v{T+2}, v{T}, 1, v{T+2}",
      f"v_and_b32 v{T+5}, 15, v{T}", f"v_lshrrev_b32 v{T+4}, 4, v{T}", f"v_lshl_or_b32 v{T+5}, v{T+5}, 1, v{T+4}", f"v_lshlrev_b32 v{T+5}, 2, v{T+5}",
      f"v_lshl_add_u32 v{T+3}, v{T+1}, 9, v{T+5}", f"v_lshlrev_b32 v{T+4}, 1, v{T}", f"v_cmp_eq_u32 s[88:89], 1, v{T+1}")
    def w1(f, off, dst):
        a(f"s_and_b32 s{off}, s{f}, 3", f"s_lshl_b32 s{off}, s{off}, 11", f"s_bfe_u32 s99, s{f}, 0x20002", "s_lshl_b32 s99, s99, 6", f"s_add_u32 s{off}, s{off}, s99",
          f"s_lshr_b32 s99, s{f}, 4", f"s_mul_i32 s{dst}, s99, 19", "s_lshl_b32 s99, s99, 14", f"s_add_u32 s{off}, s{off}, s99", f"s_add_u32 s{dst}, s{dst}, s{f}", f"s_lshl_b32 s{dst}, s{dst}, 10")
    w1(g, 95, 90)
    a(f"s_add_u32 s98, s{g}, 24"); w1(98, 96, 91)
    a(f"s_sub_u32 s99, s{g}, 8", "s_add_u32 s98, s99, 16", "s_lshl_b32 s98, s98, 10", "s_lshr_b32 s97, s99, 1", "s_lshl_b32 s97, s97, 11", "s_and_b32 s99, s99, 1",
      "s_lshl_b32 s99, s99, 1", "s_add_u32 s97, s97, s99", f"s_cmp_ge_u32 s{g}, 8", "s_cselect_b32 s91, s98, s91", "s_cselect_b32 s96, s97, s96",
      f"s_add_u32 s92, s{g}, 11", "s_lshl_b32 s92, s92, 10", f"s_sub_u32 s97, s{g}, 21", "s_lshl_b32 s97, s97, 7", f"s_add_u32 s97, s97, {128*256}")
    if mid: mid()
    for k in range(4): a(f"s_mov_b64 s[{56+4*k}:{57+4*k}], s[{P+2*k}:{P+2*k+1}]")
    for j in range(8): a(f"buffer_load_ushort v{R1+j}, v{T+2}, s[56:59], s95 offen offset:{256*j}")
    a(f"s_cmp_ge_u32 s{g}, 8", f"s_cbranch_scc1 {lab}_W2")
    for j in range(8): a(f"buffer_load_ushort v{R2+j}, v{T+2}, s[56:59], s96 offen offset:{256*j}")
    a(f"s_mov_b32 s99, {NLOG2E}", f"s_branch {lab}_C")
    a(f"{lab}_W2:")
    for j in range(8): a(f"buffer_load_ushort v{R2+j}, v{T+3}, s[64:67], s96 offen offset:{128*(8*(j>>2)+(j&3))}")
    a(f"s_mov_b32 s99, {NLN2}", f"s_cmp_lt_u32 s{g}, 21", f"s_cbranch_scc1 {lab}_C", f"s_cmp_eq_u32 s{g}, 23", f"s_cbranch_scc1 {lab}_B")
    for j in range(8): a(f"buffer_load_ushort v{R3+j}, v{T+4}, s[56:59], s97 offen offset:{256*(j&3)+64*(j>>2)}")
    a(f"s_branch {lab}_C")
    a(f"{lab}_B:")
    for j in range(4): a(f"buffer_load_ushort v{R3+j}, v{T+4}, s[60:63], 0 offen offset:{64*j}")
    a(f"buffer_load_dword v{T+6}, v{T+5}, s[68:71], 0 offen")
    for j in range(4, 8): a(f"v_mov_b32 v{R3+j}, 0")
    a(f"{lab}_C:", f"s_mov_b32 s98, {NLOG2E}")
    n = post() if post else 0
    a(f"s_waitcnt vmcnt({n})")
    for R, sc_, dst, o in ((R1, 98, 90, 108), (R2, 99, 91, 112)):
        for j in range(8): a(f"v_lshlrev_b32 v{R+j}, 16, v{R+j}", f"v_mul_f32 v{R+j}, s{sc_}, v{R+j}")
        for j in range(4): a(f"v_cvt_pk_bf16_f32 v{o+j}, v{R+2*j}, v{R+1+2*j}")
        store(o, dst)
    a(f"s_cmp_lt_u32 s{g}, 21", f"s_cbranch_scc1 {lab}_E")
    for j in range(8): a(f"v_lshlrev_b32 v{R3+j}, 16, v{R3+j}", f"v_mul_f32 v{R3+j}, s98, v{R3+j}")
    for j in range(4):
        a(f"v_cvt_pk_bf16_f32 v{R3+8+j}, v{R3+2*j}, v{R3+1+2*j}",
          f"v_lshlrev_b32 v{T+8}, 16, v{R3+8+j}", f"v_and_b32 v{T+9}, 0xffff0000, v{R3+8+j}",
          f"v_sub_f32 v{T+8}, v{R3+2*j}, v{T+8}", f"v_sub_f32 v{T+9}, v{R3+1+2*j}, v{T+9}",
          f"v_cvt_pk_bf16_f32 v{T+8}, v{T+8}, v{T+9}", f"v_cndmask_b32 v{R3+8+j}, v{R3+8+j}, v{T+8}, s[88:89]")
    a(f"s_cmp_eq_u32 s{g}, 23", f"s_cbranch_scc0 {lab}_S")
    a(f"v_cndmask_b32 v{R3+10}, v{T+6}, 0, s[88:89]")
    a(f"{lab}_S:"); store(R3 + 8, 92)
    a(f"{lab}_E:")

TMO = 600
def gen_k2(a):
    a(".p2align 12" if OPT.get("pg") else ".p2align 8", f"{KNAME}:")
    a("s_cmp_ge_u32 s2, 256", "s_cbranch_scc1 K2_END")
    if OPT["stamps"] and not OPT.get("lite"): a(f"v_accvgpr_write_b32 a{aStamp}, 0")
    st2(a, 0)
    a("s_load_dwordx16 s[72:87], s[0:1], 0", "s_load_dwordx2 s[44:45], s[0:1], 80", "s_load_dwordx2 s[42:43], s[0:1], 64")
    a("s_getpc_b64 s[52:53]", "K2_PC:", "v_lshlrev_b32 v2, 7, v0", "v_min_u32 v2, K2_SLOW-K2_PC, v2", "v_mov_b32 v3, 0", "v_lshl_add_u64 v[2:3], v[2:3], 0, s[52:53]")
    cpf = "global_load_dword v2, v[2:3], off"
    if not OPT.get("pfl"): a(cpf)
    tid, vInit, vT4, vZ, vL16, vTag, vT16, vPoll, vPB = 16, 17, 18, 20, 25, 22, 19, 24, 35
    vE = 56
    a(f"v_mov_b32 v{tid}, v0", f"v_and_b32 v{vLane}, 63, v0", "v_lshrrev_b32 v1, 6, v0", "s_cmp_ge_u32 s2, 250")
    a(f"v_readfirstlane_b32 s{sWave}, v1", "s_cbranch_scc1 K2_BUILD")
    vJ16, vN16, vStart, vCnt, vTw, vXs = 27, 28, 31, 32, 33, 34
    vT32, vR4, vR8 = 60, 61, 62
    init = Asm(); c = init
    c(f"s_and_b32 s{sBucket}, s2, 7", f"s_lshl_b32 s{sBucket}, s{sBucket}, 5", "s_lshr_b32 s3, s2, 3", f"s_add_u32 s{sBucket}, s{sBucket}, s3")
    c(f"v_lshlrev_b32 v{vT16}, 4, v{tid}", f"v_lshlrev_b32 v{vL16}, 4, v{vLane}", f"v_and_b32 v36, 31, v{vLane}")
    c(f"v_mul_u32_u24 v{vInit}, {CAP*ESZ}, v{tid}", f"v_add_u32 v{vInit}, {L_TAB}, v{vInit}")
    c(f"v_lshlrev_b32 v{vT4}, 2, v{tid}", f"v_mov_b32 v{vZ}, 0", f"v_mov_b32 v{vZ+1}, 0", f"v_lshlrev_b32 v26, 3, v{vLane}")
    c(f"ds_write_b32 v{vT4}, v{vInit} offset:{L_CNT}", f"ds_write_b64 v26, v[{vZ}:{vZ+1}] offset:{L_HIST}", f"ds_write_b32 v{vT4}, v{vZ} offset:{P1_CNT}")
    for r_, n_ in ((sAux, AUX_BYTES), (sX, X_BYTES), (sOut, X_BYTES), (sRec, REC_BYTES)): c(f"s_mov_b32 s{r_+2}, {n_}", f"s_mov_b32 s{r_+3}, 0x00020000")
    c(f"s_mov_b32 s40, {EPO_REL}")
    ptrs = [f"s_add_u32 s{sAux}, s44, {FRAG_OFF}", f"s_addc_u32 s{sAux+1}, s45, 0",
            f"s_mov_b64 s[{sRec}:{sRec+1}], s[44:45]", f"s_mov_b64 s[{sX}:{sX+1}], s[72:73]", f"s_mov_b64 s[{sOut}:{sOut+1}], s[42:43]"]
    a(init.l)
    a(f"v_lshlrev_b32 v{vT32}, 5, v{tid}", f"v_lshl_add_u32 v{vR4}, v1, 5, v36", f"v_lshlrev_b32 v{vR8}, 3, v{vR4}", f"v_lshlrev_b32 v{vR4}, 2, v{vR4}")
    a(f"s_mul_i32 s88, s2, {CH*4}", "s_add_u32 s89, s88, 4096", "s_add_u32 s90, s88, 8192", "s_add_u32 s91, s88, 12288")
    for g in range(4): a(f"s_lshl_b32 s{92+g}, s{88+g}, 1")
    for r_, n_ in ((56, E*4), (60, E*4), (64, E*8), (68, CH*12)): a(f"s_mov_b32 s{r_+2}, {n_}", f"s_mov_b32 s{r_+3}, 0x00020000")
    a(f"s_mul_i32 s41, s2, {CH*12}")
    a("s_waitcnt lgkmcnt(0)")
    st2(a, 12)
    if OPT.get("wso"): a(f"s_add_u32 s44, s44, {OPT['wso'] << 20}", "s_addc_u32 s45, s45, 0")
    DS, SR, BK, RK, AT = 64, 80, 96, 112, 128
    a("s_mov_b64 s[56:57], s[78:79]")
    consts = Asm()
    c = consts
    c(f"s_movk_i32 s{s128}, 128", f"s_mov_b64 s[{sBad}:{sBad+1}], 0", "s_mov_b32 s32, 0", "s_mov_b32 s41, 0xffff")
    c(f"v_and_b32 v{vJ16}, 15, v{vLane}", f"v_not_b32 v{vN16}, v{vJ16}", f"v_mul_u32_u24 v{vJ16}, 12, v{vJ16}")
    c(f"v_lshrrev_b32 v{vHalf}, 5, v{vLane}", f"v_lshlrev_b32 v{vHalf}, 6, v{vHalf}", f"v_mov_b32 v{vTw}, 12")
    c(f"v_lshrrev_b32 v{vXs}, 3, v{vLane}", f"v_lshlrev_b32 v{vXs}, 4, v{vXs}", f"v_xor_b32 v{vXs}, v{vXs}, v{vL16}")
    c(f"v_mul_u32_u24 v{vStart}, {CH*12}, v{tid}")
    c("v_bfe_u32 v29, v36, 2, 1", "v_and_b32 v30, 1, v36", "v_lshl_or_b32 v29, v29, 1, v30", "v_bfe_u32 v30, v36, 1, 1", "v_lshl_or_b32 v29, v29, 1, v30",
      "v_lshrrev_b32 v30, 3, v36", "v_lshl_or_b32 v29, v29, 2, v30", "v_lshlrev_b32 v29, 2, v29")
    c(f"s_lshl_b32 s{sTmp}, s{sBucket}, 3", f"s_add_u32 s{sTmp}, s{sTmp}, {TAB_REL}", f"v_lshlrev_b32 v{vPoll}, 11, v{tid}", f"v_add_u32 v{vPoll}, s{sTmp}, v{vPoll}",
      f"v_min_u32 v{vPB}, 5, v{vLane}", f"v_add_u32 v{vPB}, 250, v{vPB}", f"v_lshlrev_b32 v{vPB}, 11, v{vPB}", f"v_add_u32 v{vPB}, s{sTmp}, v{vPB}")
    ROLE = {"A": 44, "B": 50}
    c(f"s_lshl_b32 s3, s{sWave}, 3", "s_or_b32 s3, s3, 0x80000", "v_lshrrev_b32 v37, 2, v36", "v_and_b32 v38, 1, v36", "v_lshl_or_b32 v37, v37, 1, v38", "v_bfe_u32 v38, v36, 1, 1")
    for nm, T, sp in (("A", TILE_A, sP2A), ("B", TILE_B, sP2B)):
        r = ROLE[nm]
        pk = lambda f: hex(sum((f(t) & 255) << (8*w) for w, t in enumerate(T)))
        c(f"s_bfe_u32 s{sp}, {pk(lambda t: 2*t[0])}, s3", f"s_bfe_u32 s46, {pk(lambda t: t[1])}, s3", f"s_bfe_u32 s47, {pk(lambda t: t[2])}, s3", f"s_sub_u32 s47, s47, s{sp}")
        c(f"v_cmp_gt_u32 vcc, s{sp}, v36", f"v_add_u32 v{r}, s47, v36", f"v_add_u32 v39, s46, v37", f"v_cndmask_b32 v{r}, v{r}, v39, vcc", f"v_lshlrev_b32 v{r}, 3, v{r}",
          f"v_cndmask_b32 v{r+2}, 0, 1, vcc", f"v_and_b32 v{r+3}, v{r+2}, v38", f"v_sub_u32 v{r+1}, v{r+2}, v{r+3}", f"v_lshlrev_b32 v{r+4}, 30, v{r+3}", f"v_mul_u32_u24 v{r+3}, 12, v{r+3}")
    c(f"s_mul_i32 s33, s{sWave}, 6144", f"s_mul_i32 s39, s{sBucket}, {NB*128}", "s_add_u32 s39, s39, s33", f"s_mul_i32 s46, s{sWave}, {13*1024}",
      "s_lshl_b32 s47, s2, 11", f"s_add_u32 s47, s47, {TAB_REL}")
    epoch = f"buffer_load_dwordx2 {vr(vTag,2)}, v{vZ}, s[{sAux}:{sAux+3}], s40 offen sc1"
    mktag = [f"v_add_u32 v{vTag}, 1, v{vTag}", f"v_and_b32 v{vTag+1}, 0xff000000, v{vTag+1}"]
    lo, full = ["s_mov_b32 exec_hi, 0"], ["s_mov_b32 exec_hi, -1"]
    vm = []
    for g in range(3): a(f"buffer_load_dwordx4 {vr(DS+4*g,4)}, v{vT16}, s[56:59], s{88+g} offen"); vm.append(("d", g))
    a(lo, f"buffer_load_dword v{DS+12}, v{vR4}, s[56:59], s91 offen", full); vm.append(("d", 3))
    a("s_mov_b64 s[60:61], s[76:77]", "s_mov_b64 s[64:65], s[74:75]", "s_add_u32 s68, s44, s41", "s_addc_u32 s69, s45, 0", ptrs)
    if OPT.get("ee"): a(epoch); vm.append("e")
    a("s_barrier")
    def grp(g):
        if g < 3:
            a(f"buffer_load_dwordx4 {vr(SR+4*g,4)}, v{vT16}, s[60:63], s{88+g} offen", f"buffer_load_dwordx4 {vr(AT+8*g,4)}, v{vT32}, s[64:67], s{92+g} offen",
              f"buffer_load_dwordx4 {vr(AT+8*g+4,4)}, v{vT32}, s[64:67], s{92+g} offen offset:16"); vm.extend([0, 0, ("g", g)])
        else:
            a(lo, f"buffer_load_dword v{SR+12}, v{vR4}, s[60:63], s91 offen", f"buffer_load_dwordx2 {vr(AT+24,2)}, v{vR8}, s[64:67], s95 offen", full); vm.extend([0, ("g", 3)])
            if not OPT.get("ee"): a(epoch); vm.append("e")
            if OPT.get("pfl"): a(cpf); vm.append(0)
            if OPT.get("pft"):
                a(f"v_lshlrev_b32 v3, 3, v{tid}", f"buffer_load_dword v3, v3, s[{sAux}:{sAux+3}], s47 offen sc1"); vm.append(0)
    def vmw(x): return f"s_waitcnt vmcnt({len(vm) - 1 - vm.index(x)})"
    G0 = OPT.get("g0", 1)
    for g in range(G0): grp(g)
    a(consts.l, "s_movk_i32 s96, -196", f"s_movk_i32 s97, {P1_STG}")
    for e in range(13):
        if e % 4 == 0: a(vmw(("d", e//4)))
        if e == 0: st2(a, 13)
        if e in {0: (), 1: (0,), 2: (0, 4), 3: (0, 4, 8), 4: (4, 8), 5: (8,)}[OPT.get("gi", 0)] and G0 < 4: grp(G0); G0 += 1
        if e == 12: a(lo)
        a(f"v_mul_u32_u24 v{BK+e}, 85599, v{DS+e}", f"v_lshrrev_b32 v{BK+e}, 22, v{BK+e}", f"v_and_b32 v{BK+e}, 0x3fc, v{BK+e}",
          f"ds_add_rtn_u32 v{RK+e}, v{BK+e}, v{vTw} offset:{P1_CNT}")
    a(full)
    for g in range(G0, 4): grp(g)
    for e in range(13): a(f"v_lshlrev_b32 v{DS+e}, 2, v{DS+e}", f"v_mad_i32_i24 v{DS+e}, v{BK+e}, s96, v{DS+e}")
    a("s_waitcnt lgkmcnt(0)", "s_barrier")
    a(f"s_cmp_lg_u32 s{sWave}, 0", "s_cbranch_scc1 K2_SC")
    a(f"ds_read_b128 v[4:7], v{vT16} offset:{P1_CNT}", "s_waitcnt lgkmcnt(0)")
    a("v_add_u32 v8, v4, v5", "v_add3_u32 v8, v8, v6, v7", "v_mov_b32 v9, v8")
    wave_scan(a, 9)
    a("v_sub_u32 v40, v9, v8", "v_add_u32 v41, v40, v4", "v_add_u32 v42, v41, v5", "v_add_u32 v43, v42, v6")
    a(f"ds_write_b128 v{vT16}, v[40:43] offset:{P1_BASE}", "s_waitcnt lgkmcnt(0)")
    a("K2_SC:", f"v_lshlrev_b32 v8, 3, v{tid}", "s_barrier")
    st2(a, 14)
    ops = []
    def rd(e): a(f"ds_read_b32 v{BK+e}, v{BK+e} offset:{P1_BASE}"); ops.append(e)
    for e in range(5): rd(e)
    for e in range(13):
        if e % 4 == 0:
            a(vmw(("g", e//4)))
            for k in range(min(4, 13 - e)): a(f"v_lshl_or_b32 v{DS+e+k}, v{SR+e+k}, 16, v{DS+e+k}")
        a(f"s_waitcnt lgkmcnt({len(ops) - 1 - ops.index(e)})", f"v_add3_u32 v{RK+e}, v{RK+e}, v{BK+e}, s97")
        if e == 12: a(lo)
        a(f"ds_write2_b32 v{RK+e}, v{AT+2*e}, v{AT+1+2*e} offset0:0 offset1:1", f"ds_write_b32 v{RK+e}, v{DS+e} offset:8"); ops += [-1, -1]
        if e + 5 < 13: rd(e + 5)
    a(full)
    a(f"ds_read_b64 v[4:5], v8 offset:{P1_CNT}", f"ds_read_b64 v[6:7], v8 offset:{P1_BASE}", f"v_add_u32 v9, {P1_STG}, v{vT16}", vmw("e"), mktag)
    a("s_waitcnt lgkmcnt(0)", "s_barrier")
    st2(a, 15)
    for i in range(10): a(f"ds_read_b128 {vr(64+4*i,4)}, v9 offset:{4096*i}")
    for k in range(4): a(f"v_mul_u32_u24 v{4+k}, 5462, v{4+k}", f"v_lshrrev_b32 v{4+k}, 16, v{4+k}")
    a(f"v_lshl_or_b32 v40, v4, 12, v6", f"v_lshl_or_b32 v42, v5, 12, v7", f"v_or_b32 v40, v40, v{vTag+1}", f"v_or_b32 v42, v42, v{vTag+1}", f"v_mov_b32 v41, v{vTag}", f"v_mov_b32 v43, v{vTag}")
    for i in range(OPT.get("nst", 10)):
        if i: a(f"s_mov_b32 s84, {4096*i}")
        a(f"s_waitcnt lgkmcnt({9-i})", f"buffer_store_dwordx4 {vr(64+4*i,4)}, v{vT16}, s[68:71], {'s84' if i else '0'} offen sc1")
    def chk(): return [f"v_xor_b32 v36, v{vE}, v{vTag+1}", f"v_xor_b32 v37, v{vE+1}, v{vTag}", "v_lshrrev_b32 v36, 24, v36", "v_or_b32 v36, v36, v37", "v_cmp_ne_u32 vcc, 0, v36"]
    if OPT.get("nst"): st2(a, 13)
    pb = f"buffer_load_dwordx2 {vr(vE,2)}, v{vPB}, s[{sAux}:{sAux+3}], 0 offen sc1"
    if OPT.get("pbl", 0): a(f"s_waitcnt vmcnt({OPT['pbl']})", pb)
    a("s_waitcnt vmcnt(0)", "s_barrier")
    st2(a, 2)
    if not OPT.get("pbl", 0): a(pb)
    a(f"s_cmp_ge_u32 s{sWave}, 2", "s_cselect_b64 exec, 0, -1")
    a(f"buffer_store_dwordx4 v[40:43], v{vT16}, s[{sAux}:{sAux+3}], s47 offen sc1", "s_mov_b64 exec, -1")
    if not OPT.get("pbl", 0): a("s_waitcnt vmcnt(1)")
    a(chk(), "s_cbranch_vccnz K2_WAITB")
    a("K2_WGO:")
    SP = OPT.get("split", 0)
    wdma = []
    if SP:
        wl = lambda i: f"buffer_load_dwordx4 v{vL16}, s[{sAux}:{sAux+3}], s85 offen offset:{1024*i} sc1 lds"
        a(f"s_mul_i32 s85, s{sWave}, {5*1024}", f"s_min_u32 s85, s85, {14*1024}", f"s_add_u32 s85, s85, {32*1024}", f"s_add_u32 m0, s85, {L_WS}", "s_nop 0", [wl(i) for i in range(4)])
        a("s_add_u32 s85, s85, 4096", f"s_add_u32 m0, s85, {L_WS}", "s_nop 0", wl(0))
        wdma = [[f"s_lshl_b32 s85, s{sWave}, 13", f"s_add_u32 m0, s85, {L_WS}", "s_nop 0"] + [wl(i) for i in range(4)],
                ["s_add_u32 s85, s85, 4096", f"s_add_u32 m0, s85, {L_WS}", "s_nop 0"] + [wl(i) for i in range(4)]]
        if SP == 2: a(wdma.pop(0))
    for g in range(4):
        if SP: break
        a(f"s_add_u32 m0, s46, {L_WS+4096*g}", f"s_add_u32 s84, s46, {4096*g}")
        for i in range(4 if g < 3 else 1):
            if not OPT.get("now"): a(f"buffer_load_dwordx4 v{vL16}, s[{sAux}:{sAux+3}], s84 offen offset:{1024*i} {OPT.get('wsc', 'sc1')} lds")
    xl = lambda i: f"buffer_load_dwordx4 v{vXs}, s[{sX}:{sX+3}], s39 offen offset:{1024*i} lds"
    late = [[f"s_add_u32 m0, s33, {L_XR}", "s_mov_b64 exec, -1", xl(0), xl(1)], ["s_mov_b64 exec, -1", xl(2), xl(3)],
            [f"s_add_u32 m0, s33, {L_XR+4096}", "s_add_u32 s39, s39, 4096", "s_mov_b64 exec, -1", xl(0), xl(1)], ["s_mov_b32 exec_lo, -1", "s_mov_b32 exec_hi, 0", xl(2), "s_mov_b64 exec, -1"]]
    if OPT.get("nox"): late = []
    for k in range(OPT.get("xpre", 0)): a(late.pop(0))
    a(f"v_add_u32 v39, {L_WS}, v{vL16}")
    NL = OPT.get("nl", 32)
    wrd = [f"ds_read_b128 {ar(4*f,4)}, v39 offset:{1024*f}" for f in range(NL, NFRAG)]
    wlate = [f"ds_read_b128 {ar(4*f,4)}, v{EE} offset:{L_WS+1024*f}" for f in range(NL)]
    st2(a, 3)
    poll = f"buffer_load_dwordx2 {vr(vE,2)}, v{vPoll}, s[{sAux}:{sAux+3}], 0 offen sc1"
    a(f"s_movk_i32 s84, {TMO}")
    if OPT.get("pg"):
        a(poll, wdma)
        for k in (1, 2, 3): a(f"s_branch K2_STUB{k}", f"K2_RET{k}:")
        a(f"s_waitcnt vmcnt({4*len(wdma)})", "s_branch K2_POLL2")
    if OPT.get("one"):
        a("K2_POLL:", poll, "K2_POLL2:", "s_waitcnt vmcnt(0)", chk(), "s_and_b64 exec, exec, vcc", "s_cbranch_execz K2_POLLED")
        a("s_mov_b64 s[86:87], exec", "s_ff1_i32_b64 s85, exec", "s_lshl_b64 exec, 1, s85")
        a("K2_POLL3:", poll, "s_waitcnt vmcnt(0)", chk(), "s_sub_u32 s84, s84, 1", "s_cbranch_scc1 K2_POLL4", "s_cbranch_vccnz K2_POLL3")
        a("s_andn2_b64 exec, s[86:87], exec", "s_cbranch_execnz K2_POLL", "s_branch K2_POLLED", "K2_POLL4:", "s_mov_b64 exec, s[86:87]")
    else:
        a("K2_POLL:", f"s_sleep {OPT['slp']}" if OPT.get("slp") else [], poll, "s_waitcnt vmcnt(0)", "K2_POLL2:", chk(),
          "s_and_b64 exec, exec, vcc", "s_cbranch_execz K2_POLLED", "s_sub_u32 s84, s84, 1", "s_cbranch_scc0 K2_POLL")
    a(f"v_mov_b32 v{vE}, 0", "s_mov_b32 s32, 2")
    a("K2_POLLED:", "s_mov_b64 exec, -1")
    st2(a, 1)
    a(f"v_and_b32 v36, 0xfff, v{vE}", f"v_bfe_u32 v{vCnt}, v{vE}, 12, 12", f"v_mad_u32_u24 v{vStart}, v36, 12, v{vStart}")
    RB = 64
    def dppr(i): return f"row_newbcast:{i} row_mask:0xf bank_mask:0xf"
    def rec(i): return RB + 4*i
    def addr(s): return f"v_add_u32_dpp v{rec(s)+3}, v{vStart}, v{vJ16} {dppr(s)}"
    rsc = OPT.get("rsc", "sc1")
    def load(s):
        if s < 16: return f"buffer_load_dwordx3 {vr(rec(s),3)}, v{rec(s)+3}, s[{sRec}:{sRec+3}], 0 offen {rsc}"
        return f"buffer_load_dwordx3 {vr(rec(s),3)}, v{vStart}, s[{sRec}:{sRec+3}], 0 offen offset:{12*s} {rsc}"
    def msk(s): return f"s[{sMask0+2*s}:{sMask0+2*s+1}]"
    def ex(s): return f"s_mov_b64 exec, {msk(s)}"
    def atom(s): return [f"v_and_b32 v{rec(s)+3}, s41, v{rec(s)+2}", f"ds_add_rtn_u32 v{rec(s)+3}, v{rec(s)+3}, v{vTw}"]
    def put(s): return [f"ds_write2_b32 v{rec(s)+3}, v{rec(s)}, v{rec(s)+1} offset0:0 offset1:1", f"ds_write_b32 v{rec(s)+3}, v{rec(s)+2} offset:8"]
    D0, W, LAG = OPT.get("d0", 4), OPT.get("win", 16), OPT.get("lag", 4)
    order = list(range(D0)) + list(range(16, 24)) + list(range(D0, 16))
    a(f"v_cmp_lt_u32 s[{sSave}:{sSave+1}], 24, v{vCnt}", "s_nop 0")
    for s in range(D0): a(addr(s), load(s))
    for s in range(16, 24): a(f"v_cmp_lt_u32 {msk(s)}, {s}, v{vCnt}")
    for s in range(D0, 16): a(addr(s))
    a(f"s_mov_b64 exec, s[{sSave}:{sSave+1}]", "s_cbranch_execz K2_P1")
    for s in range(24, 28): a(load(s))
    a(f"v_cmp_lt_u32 vcc, 28, v{vCnt}", "s_cbranch_vccnz K2_RARE1")
    if OPT.get("pg"): a("s_branch K2_P1", ".p2align 12", "K2_STUB1:", "s_branch K2_RET1")
    a("K2_P1:")
    for s in order[D0:W]:
        a(ex(s) if s >= 16 else ("s_mov_b64 exec, -1" if s == D0 else []), load(s))
    a("s_mov_b64 exec, -1")
    side = []
    for i in range(16): side += [f"v_add_co_u32_dpp v37, vcc, v{vCnt}, v{vN16} {dppr(i)}", f"s_mov_b64 {msk(i)}, vcc"]
    a("s_barrier", interleave(wrd, side, 1, 1))
    a("s_waitcnt lgkmcnt(0)", "s_barrier")
    sx = OPT.get("sx", 0)
    if sx & 1: put = lambda s: ["s_nop 0", "s_nop 0"]
    if sx & 2: atom = lambda s: [f"v_and_b32 v{rec(s)+3}, 0xffff, v{rec(s)+2}", f"v_lshl_add_u32 v{rec(s)+3}, v{rec(s)+3}, 5, v{vInit}"]
    ops = []; vm = order[:W]
    for i in range(24 + LAG):
        if i < 24:
            s = order[i]
            a(f"s_waitcnt vmcnt({len(vm) - 1 - vm.index(s)})", ex(s), atom(s)); ops.append(("a", s))
        if i + W < 24:
            s = order[i + W]; a(ex(s), load(s)); vm.append(s)
        elif late and i >= 24 - OPT.get("late", 6):
            x = late.pop(0); a(x); vm += [-1] * sum(y.startswith("buffer") for y in x)
        if i >= LAG:
            s = order[i - LAG]
            n = len(ops) - 1 - ops.index(("a", s))
            a(f"s_waitcnt lgkmcnt({n})", ex(s), put(s)); ops += [("w", s), ("w", s)]
        if i == D0 + 7 + LAG:
            a(f"s_mov_b64 exec, s[{sSave}:{sSave+1}]", "s_cbranch_execz K2_P3")
            for k in range(24, 28): a(f"v_cmp_lt_u32 {msk(k-8)}, {k}, v{vCnt}")
            for k in range(24, 28): a(ex(k - 8), atom(k))
            a("s_waitcnt lgkmcnt(0)")
            for k in range(24, 28): a(ex(k - 8), put(k))
            a(f"v_cmp_lt_u32 vcc, 28, v{vCnt}", "s_cbranch_vccnz K2_RARE2", "K2_P3:")
    for x in late: a(x)
    a("s_mov_b64 exec, -1")
    a("K2_P2:", "s_waitcnt lgkmcnt(0)", "s_barrier")
    st2(a, 4)
    if sx: a("s_branch K2_STOUT")
    tk2 = [0]
    def tick2():
        if OPT.get("ticks") == 2: a(f"s_memtime s[{52+2*tk2[0]}:{53+2*tk2[0]}]"); tk2[0] += 1
    tick2()
    vD, vR, vS = 40, 41, 42
    a(f"ds_read_b32 v{vD}, v{vT4} offset:{L_CNT}", f"ds_read_b32 v58, v{vInit} offset:8", "v_mov_b32 v43, 1", f"v_cmp_gt_u32 vcc, {NB}, v{tid}", f"v_lshlrev_b32 v36, 2, v{vLane}",
      f"s_mov_b64 s[{sValid}:{sValid+1}], vcc", "s_waitcnt lgkmcnt(1)")
    a(f"v_sub_u32 v{vD}, v{vD}, v{vInit}", f"v_cmp_lt_u32 vcc, {CAP*ESZ}, v{vD}", f"v_min_u32 v{vD}, {63*12}, v{vD}", f"v_mul_u32_u24 v{vD}, 5462, v{vD}",
      f"s_or_b64 s[{sBad}:{sBad+1}], s[{sBad}:{sBad+1}], vcc", f"v_lshrrev_b32 v{vD}, 16, v{vD}", f"v_lshlrev_b32 v37, 2, v{vD}")
    a(f"s_mov_b64 exec, s[{sValid}:{sValid+1}]", f"ds_add_rtn_u32 v{vR}, v37, v43 offset:{L_HIST}")
    if OPT["force_slow"]: a(f"s_mov_b64 s[{sBad}:{sBad+1}], 1")
    if OPT.get("force_raw"): a("s_mov_b32 s32, 2")
    a(f"s_cmp_lg_u64 s[{sBad}:{sBad+1}], 0", "s_addc_u32 s32, s32, 0", "s_mov_b64 exec, 1", "v_mov_b32 v39, s32", f"ds_or_b32 v{vZ}, v39 offset:{L_FLAG}", "s_mov_b64 exec, -1")
    a(f"v_add_u32 v59, 1, v{vD}", "v_lshrrev_b32 v59, 1, v59", f"v_mad_u32_u24 v59, v59, 12, v{vInit}", "ds_read_b32 v59, v59 offset:8",
      f"v_lshl_or_b32 v{vD}, v{vD}, 8, v{tid}", "s_waitcnt lgkmcnt(1)", f"v_bfi_b32 v58, s41, v{vD}, v58", "s_barrier")
    tick2()
    a(f"ds_read_b32 v{vS}, v36 offset:{L_HIST}", f"ds_read_b32 v38, v{vZ} offset:{L_FLAG}", "s_waitcnt lgkmcnt(1)")
    wave_scan(a, vS)
    a(f"v_sub_u32 v{vS}, {NB}, v{vS}", f"ds_bpermute_b32 v{vS}, v37, v{vS}", "s_waitcnt lgkmcnt(1)", f"v_readfirstlane_b32 s{sTmp}, v38",
      f"s_mul_i32 s{sTmp2}, s{sBucket}, {NB*128}", f"s_lshl_b32 s{sTile}, s{sWave}, 8", f"s_cmp_ge_u32 s{sTmp}, 2", "s_cbranch_scc1 K2_SLOW")
    a(f"s_mov_b64 exec, 1", f"buffer_store_dword v{vTag}, v{vZ}, s[{sAux}:{sAux+3}], s40 offen", "s_mov_b64 exec, -1", f"s_cmp_lg_u32 s{sTmp}, 0", "s_cbranch_scc1 K2_SLOW")
    a("s_waitcnt lgkmcnt(0)", f"v_add_lshl_u32 v{vS}, v{vS}, v{vR}, 3", f"s_mov_b64 exec, s[{sValid}:{sValid+1}]", f"ds_write_b64 v{vS}, v[58:59] offset:{L_RANK}", "s_mov_b64 exec, -1")
    a(f"s_movk_i32 s46, {CAP*ESZ}", f"v_mov_b32 v39, {L_TAB}", f"v_lshrrev_b32 v38, 4, v{vHalf}", f"v_add_u32 v36, s{sTile}, v29")
    tick2()
    a(f"v_cmp_ne_u32 vcc, 0, v{ROLE['A']+3}", "s_waitcnt lgkmcnt(0)" if OPT.get("b4", 1) else "s_waitcnt vmcnt(1) lgkmcnt(0)", "s_barrier")
    tick2()
    st2(a, 5)
    def decode1(w, r, base):
        return [f"v_bfe_u32 v{w+1}, v{w}, 8, 8", f"v_and_b32 v{w}, 0xff, v{w}", f"v_add_u32 v{w+2}, v{w+1}, v{r+1}", f"v_lshrrev_b32 v{w+2}, v{r+2}, v{w+2}",
                f"v_mad_u32_u24 v{base}, v{w}, s46, v39", f"v_sub_u32 v{w+1}, v{w+1}, v{w+2}", f"v_mad_u32_u24 v{base}, v{w+1}, v{r+3}, v{base}"]
    def decode2(w, r, info):
        return [f"v_and_b32 v{w+1}, 7, v{w}", f"v_xor_b32 v{w+1}, v{w+1}, v38", f"v_lshlrev_b32 v{w+1}, 4, v{w+1}", f"v_lshl_add_u32 v{w+1}, v{w}, 7, v{w+1}",
                f"v_lshl_or_b32 v{info}, v{w+2}, 16, v{w+1}"]
    def decode3(w, r, off):
        return [f"v_lshl_add_u32 v{w}, v{w}, 7, s{sTmp2}", f"v_or_b32 v{w}, v{w}, v{r+4}", f"ds_write_b32 v36, v{w} offset:{L_OUTO+off}"]
    a(f"ds_read_b64 v[56:57], v{ROLE['A']} offset:{L_RANK}", f"ds_read_b32 v60, v{ROLE['B']} offset:{L_RANK}")
    a(selectors())
    a("s_waitcnt lgkmcnt(1)", f"v_cndmask_b32 v{ENT[0]+2}, v56, v57, vcc", mkoff(0), gather(0, 0))
    tick2()
    a(decode1(56, ROLE["A"], vLds))
    a(f"ds_read_b32 v{ENT[1]+2}, v{vLds} offset:20", f"ds_read_b32 v{ENT[2]+2}, v{vLds} offset:32")
    a([f"ds_read2_b32 {vr(ENT[u],2)}, v{vLds} offset0:{3*u} offset1:{3*u+1}" for u in range(3)])
    a(decode2(56, ROLE["A"], vT0))
    if not OPT.get("b4", 1): a(hdr_reads(vT0, [vT1, 59, EE+14, EE+15]))
    a(tile_scalars(vT0, sP2A), f"v_accvgpr_write_b32 a{aInfo}, v{vT0}", decode3(56, ROLE["A"], 0), "s_waitcnt lgkmcnt(6)")
    gq = [[gather(0, 1)], [gather(0, 2)], [gather(0, 3)], [mkoff(1), gather(1, 0)], [gather(1, 1)], [gather(1, 2)], [gather(1, 3)]]
    GE = OPT.get("ge", 1)
    if GE: a(gq.pop(0))
    a(decode1(60, ROLE["B"], 63), f"v_accvgpr_write_b32 a{aNextL}, v63", decode2(60, ROLE["B"], 63), f"v_accvgpr_write_b32 a{aNextI}, v63", decode3(60, ROLE["B"], 128))
    if GE > 1: a(gq.pop(0))
    if OPT.get("b4", 1): a(f"s_waitcnt vmcnt({2+GE})", "s_barrier", hdr_reads(vT0, [vT1, 59, EE+14, EE+15]))
    if OPT.get("qb"):
        rb = lambda q: vr(D + 4*q, 4)
        a(hdr_reads(63, [vT1, 59, EE+14, EE+15], rb), gather(0, 1), "s_waitcnt lgkmcnt(0)")
        gs = [[gather(0, 2)], [gather(0, 3)], [mkoff(1), gather(1, 0)], [gather(1, 1)], [gather(1, 2)], [gather(1, 3)], [], []]
        for b in range(4):
            wr = [f"v_accvgpr_write_b32 a{WB(b-1,0)+i}, v{DEN+16*(b-1)+i}" for i in range(16)] if b else []
            a(q_mfmas(b, DEN, rb), gs[2*b], interleave(q_mfmas(b), [wr[4*k:4*k+4] for k in range(4)] if b else [], 1, 1), gs[2*b+1])
        a([f"v_accvgpr_write_b32 a{WB(3,0)+i}, v{DEN+48+i}" for i in range(16)])
    else:
        a(f"v_mov_b32 v{EE}, v{vL16}", gq.pop(0), "s_waitcnt lgkmcnt(0)")
        for b in range(4):
            k = NL // 16
            tick2()
            a(interleave(q_mfmas(b), [wlate[4*k*b+k*j:4*k*b+k*j+k] for j in range(4)], 1, 1))
            a(gq.pop(0))
        a(gq)
        tick2()
        a(f"s_waitcnt lgkmcnt({0 if OPT.get('ticks') == 2 else min(15, NL - 16)})")
    a(mkoff(2), "s_waitcnt vmcnt(4)")
    tick2()
    st2(a, 6)
    if OPT.get("steps"): a("s_mov_b32 m0, 0")
    a(edge_mfmas(0, NUM, 0), "s_nop 7", "s_nop 2")
    a(".p2align 3")
    body, n = align8([f"s_mov_b64 exec, s[{sValid}:{sValid+1}]"] + step(0, True))
    tick2()
    a(body)
    tick2()
    a("s_branch K2_L1")
    if OPT.get("pg"): a(".p2align 12", "K2_STUB2:", "s_branch K2_RET2", ".p2align 3")
    else: a(".p2align 6")
    for k, u in enumerate((1, 2, 0)):
        body = step(u, False) + [f"s_cbranch_scc1 K2_X{u}" if k < 2 else "s_cbranch_scc0 K2_L1"]
        if k: body = ["s_nop 0"] + body
        body, n = align8(body)
        if k: body = body[1:]
        a(f"K2_L{u}:", body)
    for u in (0, 1, 2):
        a(f"K2_X{u}:", f"s_cmp_lg_u32 s{sStage}, 0", "s_cbranch_scc1 K2_TEND",
          f"s_mov_b32 s{sStage}, 1", f"s_mov_b32 s{sC}, 1", f"s_mov_b32 s{sX+2}, 0", f"v_add_u32 v{vPad}, 2, v{vPad}", f"s_branch K2_L{(u+1)%3}")
    if OPT.get("pg"): a(".p2align 12", "K2_STUB3:", "s_branch K2_RET3")
    a("K2_TEND:", f"s_bitcmp1_b32 s{sTile}, 7", "s_cbranch_scc1 K2_FINAL")
    st2(a, 7)
    if OPT.get("steps"):
        a("s_mov_b64 exec, -1", f"s_add_u32 s48, s44, {STAMP_OFF+(3<<20)}", "s_addc_u32 s49, s45, 0", "s_mov_b32 s50, 0x100000", "s_mov_b32 s51, 0x00020000",
          f"s_lshl_b32 s46, s{sBucket}, 2", f"s_add_u32 s46, s46, s{sWave}", "s_lshl_b32 s46, s46, 8",
          f"v_lshlrev_b32 v{vT1}, 2, v{vLane}", f"buffer_store_dword v{vT0}, v{vT1}, s[48:51], s46 offen", "s_waitcnt vmcnt(0)")
    n = epilogue(a, True)
    st2(a, 8)
    a(".p2align 3")
    body, n = align8([f"s_mov_b64 exec, s[{sValid}:{sValid+1}]"] + step(0, True, 11, 1))
    a(body, "s_branch K2_L1")
    a("K2_FINAL:")
    st2(a, 9)
    epilogue(a, False)
    st2(a, 10)
    if OPT.get("exp", 0): a(f"s_mov_b64 s[{sBad}:{sBad+1}], 0")
    a(f"s_mov_b64 exec, s[{sBad}:{sBad+1}]", f"ds_write_b32 v20, v21 offset:{L_FLAG}", "s_mov_b64 exec, -1")
    a("s_waitcnt lgkmcnt(0)", "s_barrier", f"ds_read_b32 v21, v20 offset:{L_FLAG}", "s_waitcnt lgkmcnt(0)", f"v_readfirstlane_b32 s{sTmp}, v21",
      f"s_cmp_lg_u32 s{sTmp}, 0", "s_cbranch_scc1 K2_SLOW")
    if OPT["stamps"]:
        a("K2_STOUT:", "s_waitcnt vmcnt(0)")
        st2(a, 11)
        if OPT.get("wso"): a(f"s_sub_u32 s44, s44, {OPT['wso'] << 20}", "s_subb_u32 s45, s45, 0")
        a(f"s_add_u32 s48, s44, {STAMP_OFF}", "s_addc_u32 s49, s45, 0", "s_mov_b32 s50, 0x100000", "s_mov_b32 s51, 0x00020000",
          f"s_lshl_b32 s46, s{sBucket}, 2", f"s_add_u32 s46, s46, s{sWave}", "s_lshl_b32 s46, s46, 8",
          f"v_accvgpr_read_b32 v20, a{aStamp}", "s_nop 0", [f"v_writelane_b32 v20, s{52+2*k}, {48+k}" for k in range(13 if OPT.get("ticks") else 0)], f"v_lshlrev_b32 v21, 2, v{vLane}", "buffer_store_dword v20, v21, s[48:51], s46 offen")
    a("K2_END:", "s_endpgm")
    a("K2_BUILD:", cpf if OPT.get("pfl") else [], "s_sub_u32 s93, s2, 250", "s_lshl_b32 s93, s93, 2", f"s_add_u32 s93, s93, s{sWave}")
    def bmid():
        a("s_waitcnt lgkmcnt(0)"); st2(a, 12)
        if OPT.get("wso"): a(f"s_add_u32 s44, s44, {OPT['wso'] << 20}", "s_addc_u32 s45, s45, 0")
    def bpost():
        a(init.l, ptrs, epoch); st2(a, 13); return 1
    gen_build(a, "KB", 93, lambda v, sr: a(f"buffer_store_dwordx4 {vr(v,4)}, v{vL16}, s[{sAux}:{sAux+3}], s{sr} offen sc1"), 80, bmid, bpost)
    st2(a, 14)
    a(consts.l, "s_waitcnt vmcnt(0) lgkmcnt(0)", mktag, f"v_mov_b32 v40, v{vTag+1}", f"v_mov_b32 v41, v{vTag}", f"v_mov_b32 v42, v{vTag+1}", f"v_mov_b32 v43, v{vTag}", "s_barrier")
    st2(a, 15); st2(a, 2)
    a(f"s_cmp_ge_u32 s{sWave}, 2", "s_cselect_b64 exec, 0, -1", f"buffer_store_dwordx4 v[40:43], v{vT16}, s[{sAux}:{sAux+3}], s47 offen sc1", "s_mov_b64 exec, -1")
    if OPT.get("bslp"): a(f"s_sleep {OPT['bslp']}")
    a("K2_WAITB:", f"s_movk_i32 s84, {TMO}")
    a("K2_WB1:", f"buffer_load_dwordx2 {vr(vE,2)}, v{vPB}, s[{sAux}:{sAux+3}], 0 offen sc1", "s_waitcnt vmcnt(0)", chk(),
      "s_cbranch_vccz K2_WGO", "s_sub_u32 s84, s84, 1", "s_cbranch_scc0 K2_WB1", "s_mov_b32 s32, 2", "s_branch K2_WGO")
    a("K2_RARE1:")
    for k in range(28, 40): a(load(k))
    a(f"v_cmp_lt_u32 vcc, 40, v{vCnt}", f"s_or_b64 s[{sBad}:{sBad+1}], s[{sBad}:{sBad+1}], vcc", "s_branch K2_P1")
    a("K2_RARE2:")
    for k in range(28, 40):
        a(f"v_cmpx_lt_u32 vcc, {k}, v{vCnt}", "s_nop 0", "s_cbranch_execz K2_P3", atom(k), "s_waitcnt lgkmcnt(0)", put(k))
    a("s_branch K2_P3")
    fixup(a, "T"); fixup(a, "F")
    gen_slow(a)

def gen_slow(a):
    tid, vStart, vCnt, vJ, vA = 0, 1, 2, 4, 5
    a("K2_SLOW:", "s_mov_b64 exec, -1", f"s_mov_b32 s94, s{sTmp}", "s_load_dwordx8 s[72:79], s[0:1], 32", "s_waitcnt vmcnt(0) lgkmcnt(0)", f"s_mov_b32 s{sX+2}, {X_BYTES}", "s_barrier")
    a(f"s_lshl_b32 s{sTmp}, s{sWave}, 6", f"v_add_u32 v{tid}, s{sTmp}, v{vLane}", f"v_lshlrev_b32 v23, 4, v{vLane}", f"v_add_u32 v23, {L_WS}, v23")
    a(f"s_mov_b32 s93, s{sWave}", "KS_BL:")
    gen_build(a, "KSB", 93, lambda v, sr: a(f"v_add_u32 v22, s{sr}, v23", f"ds_write_b128 v22, {vr(v,4)}"), 72)
    a("s_add_u32 s93, s93, 4", "s_cmp_lt_u32 s93, 24", "s_cbranch_scc1 KS_BL", "s_waitcnt lgkmcnt(0)", "s_barrier")
    a([f"ds_read_b128 {ar(4*f,4)}, v23 offset:{1024*f}" for f in range(NFRAG)])
    a("s_waitcnt lgkmcnt(0)", "s_barrier")
    a("KS_HAVE:", "s_load_dwordx8 s[72:79], s[0:1], 0")
    a(f"v_lshlrev_b32 v20, 11, v{tid}", f"s_lshl_b32 s{sTmp}, s{sBucket}, 3", f"s_add_u32 s{sTmp}, s{sTmp}, {TAB_REL}",
      f"buffer_load_dword v21, v20, s[{sAux}:{sAux+3}], s{sTmp} offen sc1")
    a("v_mov_b32 v24, 0", "v_mov_b32 v25, 0", "v_mov_b32 v26, 0", "v_mov_b32 v27, 0", f"v_lshlrev_b32 v22, 4, v{tid}", f"v_add_u32 v22, {L_TAB}, v22")
    for i in range(13): a(f"ds_write_b128 v22, v[24:27] offset:{4096*i}")
    a(selectors())
    a(f"v_mul_u32_u24 v{vStart}, {CH*12}, v{tid}", f"v_and_b32 v6, 31, v{vLane}", f"v_mul_u32_u24 v{vJ}, 12, v6", "v_lshlrev_b32 v6, 2, v6")
    a("s_waitcnt vmcnt(0) lgkmcnt(0)", "v_and_b32 v22, 0xfff, v21", f"v_bfe_u32 v{vCnt}, v21, 12, 12", f"v_mad_u32_u24 v{vStart}, v22, 12, v{vStart}", f"v_mul_u32_u24 v{vCnt}, 12, v{vCnt}", "s_barrier")
    srd(a, 56, 78, 79, E*4); srd(a, 60, 76, 77, E*4); srd(a, 64, 74, 75, E*8)
    a(f"s_mul_i32 s50, s{sBucket}, {NB*128}", f"s_mul_i32 s51, s{sBucket}, {NB}", "s_mov_b32 s46, 0", f"s_lshl_b32 s95, s{sWave}, 7")
    a("s_cmp_lt_u32 s94, 2", "s_cbranch_scc1 KS_SEG")
    a("KS_RAW:", f"s_cmp_ge_u32 s95, {E*4}", "s_cbranch_scc1 KS_DONE")
    a("buffer_load_dword v20, v6, s[56:59], s95 offen", "s_mov_b32 s96, s95", "s_add_u32 s95, s95, 512", "s_waitcnt vmcnt(0)",
      "v_subrev_u32 v20, s51, v20", f"v_cmp_gt_u32 vcc, {NB}, v20", "s_cbranch_vccz KS_RAW", f"s_mov_b64 s[{sValid}:{sValid+1}], vcc")
    a("s_lshl_b32 s97, s96, 1", "v_lshlrev_b32 v21, 1, v6", "buffer_load_dword v10, v6, s[60:63], s96 offen", "buffer_load_dwordx2 v[8:9], v21, s[64:67], s97 offen",
      "v_and_b32 v20, 0xff, v20", "v_lshlrev_b32 v20, 2, v20", "s_waitcnt vmcnt(0)", "v_lshl_or_b32 v10, v10, 16, v20", "s_branch KS_BODY")
    a("KS_SEG:", "s_nop 3", f"v_readlane_b32 s47, v{vStart}, s46", f"v_readlane_b32 s48, v{vCnt}, s46", "s_mov_b32 s49, 0")
    a("KS_GRP:", "s_cmp_ge_u32 s49, s48", "s_cbranch_scc1 KS_NEXT")
    a(f"v_add_u32 v20, s49, v{vJ}", f"v_cmp_gt_u32 s[{sValid}:{sValid+1}], s48, v20", "v_add_u32 v20, s47, v20")
    a(f"buffer_load_dwordx3 v[8:10], v20, s[{sRec}:{sRec+3}], 0 offen sc1", "s_waitcnt vmcnt(0)")
    a("KS_BODY:")
    a(mkoff(2), [gather(0, q) for q in range(4)])
    a("v_and_b32 v20, 0xffff, v10", f"v_lshl_add_u32 v{vOff}, v20, 5, v{vHalf}", f"v_add_u32 v{vOff}, s50, v{vOff}", [gather(2, q) for q in range(4)])
    a(f"v_lshlrev_b32 v{vA}, 6, v20", f"v_add_u32 v{vA}, v{vHalf}, v{vA}", f"v_add_u32 v{vA}, {L_TAB}, v{vA}")
    a("s_waitcnt vmcnt(0)")
    for b in range(4):
        a(q_mfmas(b))
        a(mf8(Q + 16*b, ar(WC(b), 2), "v[8:9]", vr(Q + 16*b, 16)))
        for q in range(4): a(mf16(Q + 16*b, ar(WA(b, q), 4), ar(RING[0] + 4*q, 4), vr(Q + 16*b, 16)))
    a(mf8(D, ar(B2F, 2), vr(SEL, 2), "0"), mf8(D + 16, ar(B2F, 2), vr(SEL + 2, 2), "0"), "s_nop 7", "s_nop 7")
    for i in range(64): a(f"v_exp_f32 v{NUM+i}, v{Q+i}")
    for i in range(64): a(f"v_add_f32 v{NUM+i}, 1.0, v{NUM+i}")
    for i in range(64): a(f"v_rcp_f32 v{NUM+i}, v{NUM+i}")
    for i in range(64): a(f"v_mul_f32 v{NUM+i}, v{NUM+i}, v{Q+i}")
    for i in range(32): a(f"v_cvt_pk_bf16_f32 v{DEN+i}, v{NUM+2*i}, v{NUM+2*i+1}")
    a("s_nop 1")
    for b in range(4):
        for m in range(2):
            for ob in range(2): a(mf16(D + 16*ob, ar(W2(b, m, ob), 4), vr(DEN + 8*b + 4*m, 4), vr(D + 16*ob, 16)))
    a("s_nop 7", "s_nop 7", f"s_mov_b64 exec, s[{sValid}:{sValid+1}]")
    for ob in range(2):
        for i in range(16): a(f"ds_add_f32 v{vA}, v{D+16*ob+i} offset:{4*(32*((i>>2)&1) + 4*(i&3) + 2*(i>>3) + ob)}")
    a("s_mov_b64 exec, -1", "s_waitcnt lgkmcnt(0)", "s_cmp_ge_u32 s94, 2", "s_cbranch_scc1 KS_RAW", f"s_add_u32 s49, s49, {32*12}", "s_branch KS_GRP")
    a("KS_NEXT:", "s_add_u32 s46, s46, 1", "s_cmp_lt_u32 s46, 64", "s_cbranch_scc1 KS_SEG")
    a("KS_DONE:", "s_waitcnt lgkmcnt(0)", "s_barrier")
    a(f"v_lshlrev_b32 v20, 5, v{tid}", f"v_add_u32 v20, {L_TAB}, v20", f"v_lshlrev_b32 v21, 4, v{tid}", "v_add_u32 v21, s50, v21")
    for i in range(7):
        if i == 6: a(f"v_cmp_gt_u32 vcc, {NB*8-1536}, v{tid}", "s_and_saveexec_b64 s[46:47], vcc", "s_cbranch_execz KS_END")
        a(f"ds_read_b128 v[24:27], v20 offset:{8192*i}", f"ds_read_b128 v[28:31], v20 offset:{8192*i+16}", "s_waitcnt lgkmcnt(0)")
        for j in range(4): a(f"v_cvt_pk_bf16_f32 v{32+j}, v{24+2*j}, v{25+2*j}")
        a(f"buffer_store_dwordx4 v[32:35], v21, s[{sOut}:{sOut+3}], 0 offen", "s_nop 1", "v_add_u32 v21, 4096, v21")
    a("KS_END:", "s_endpgm")

def kd(name, vgpr, accum, sgpr=102):
    return f""".amdhsa_kernel {name}
  .amdhsa_next_free_vgpr {vgpr}
  .amdhsa_next_free_sgpr {sgpr}
  .amdhsa_accum_offset {accum}
  .amdhsa_group_segment_fixed_size 0
  .amdhsa_kernarg_size 88
  .amdhsa_user_sgpr_count 2
  .amdhsa_user_sgpr_kernarg_segment_ptr 1
  .amdhsa_system_sgpr_workgroup_id_x 1
  .amdhsa_float_denorm_mode_32 3
.end_amdhsa_kernel
"""

def generate(**opt):
    OPT.update(opt)
    ref = open("standalone__edge_featured_mpnn_mpnn__graph.s.ref").read().split("\n")
    head = [x for x in ref if x.startswith(";") and "@launch" not in x and not x.startswith("; Override") and not x.startswith("; grid=")]
    head += [f"; @launch {'kernel=' + KNAME + ' ' if OPT.get('aslist') else ''}grid=(256,1,1) block=(256,1,1) lds={K2_LDS}"]
    a = Asm()
    a('.amdgcn_target "amdgcn-amd-amdhsa--gfx950"', ".text", f".globl {KNAME}", f".type {KNAME},@function")
    gen_k2(a)
    return "\n".join(head) + "\n" + a.text() + '.section .rodata,"a"\n.p2align 6\n' + kd(KNAME, 512, 256)

if __name__ == "__main__":
    out = sys.argv[1] if len(sys.argv) > 1 else "standalone__edge_featured_mpnn_mpnn__graph.s"
    opt = {}
    for x in sys.argv[2:]:
        k, v = x.split("="); opt[k] = int(v) if v.lstrip("-").isdigit() else v.replace("+", " ")
    open(out, "w").write(generate(**opt))
```

```python
import re, sys, struct, math

N, E = 50000, 800000
NB = 196
CH = 3200
NCH = 250
CAP = 43
REC_BYTES = E * 12
FRAG_OFF = REC_BYTES
NFRAG = 51
FRAG_BYTES = NFRAG * 1024
EPO_REL = 52 * 1024
TAB_REL = 53 * 1024
AUX_BYTES = TAB_REL + 256 * 2048
KNAME = "standalone__edge_featured_mpnn_mpnn__graph_kernel"
STAMP_OFF = 16 << 20
X_BYTES = N * 128

def f32(x): return "0x%08x" % struct.unpack("<I", struct.pack("<f", x))[0]
NLOG2E = f32(-math.log2(math.e))
NLN2 = f32(-math.log(2.0))

OPT = dict(stamps=False, force_slow=False, k1st="sc1", outst="sc1", late=4, onewait=0, pg=1)

class Asm:
    def __init__(self): self.l = []
    def __call__(self, *xs):
        for x in xs:
            if isinstance(x, (list, tuple)): self(*x)
            else:
                for y in x.split("\n"):
                    y = y.strip()
                    if y: self.l.append(y)
    def text(self):
        return "\n".join((x if (x.endswith(":") or x.startswith(".")) else "    " + x) for x in self.l) + "\n"

def vr(b, n): return f"v[{b}:{b+n-1}]"
def ar(b, n): return f"a[{b}:{b+n-1}]"

def srd(a, s, lo, hi, nrec):
    a(f"s_mov_b32 s{s}, s{lo}", f"s_mov_b32 s{s+1}, s{hi}", f"s_mov_b32 s{s+2}, {nrec}", f"s_mov_b32 s{s+3}, 0x00020000")

def wave_scan(a, v):
    for sh in (1, 2, 4, 8):
        a("s_nop 1", f"v_add_u32_dpp v{v}, v{v}, v{v} row_shr:{sh} row_mask:0xf bank_mask:0xf")
    a("s_nop 1", f"v_add_u32_dpp v{v}, v{v}, v{v} row_bcast:15 row_mask:0xa bank_mask:0xf")
    a("s_nop 1", f"v_add_u32_dpp v{v}, v{v}, v{v} row_bcast:31 row_mask:0xc bank_mask:0xf")

def isize(x):
    if x.endswith(":") or x.startswith("."): return 0
    op = x.split()[0]
    rest = x[len(op):]
    def lit():
        for tok in re.split(r"[,\s]+", rest):
            if re.fullmatch(r"-?(0x[0-9a-fA-F]+|\d+)", tok):
                v = int(tok, 0)
                if not (-16 <= v <= 64): return True
        return False
    if op in ("s_waitcnt", "s_nop", "s_barrier", "s_branch", "s_endpgm", "s_setprio") or op.startswith("s_cbranch"): return 4
    if op.startswith(("s_load", "s_memtime", "s_memrealtime")): return 8
    if op.startswith(("s_movk", "s_cmpk", "s_addk")): return 4
    if op.startswith("s_"): return 8 if lit() else 4
    if op.startswith(("buffer_", "ds_", "global_", "v_mfma", "v_pk_", "v_accvgpr_read", "v_accvgpr_write")): return 8
    if op.endswith("_e64") or op.endswith("_dpp") or op.endswith("_sdwa"): return 8
    vop3 = ("v_mad_", "v_fma_", "v_max3", "v_min3", "v_cvt_pk_bf16", "v_lshl_add", "v_lshl_or", "v_bfe", "v_add3", "v_and_or",
            "v_readlane", "v_writelane", "v_maximum3", "v_bfi", "v_mul_lo", "v_mul_hi", "v_add_lshl", "v_perm_b32", "v_or3")
    if op.startswith(vop3): return 8
    if op.startswith("v_cmp"):
        if not rest.strip().startswith("vcc"): return 8
        return 8 if lit() else 4
    if op == "v_cndmask_b32" and not rest.strip().endswith("vcc"): return 8
    return 8 if lit() else 4

PROMOTE = ("v_exp_f32 ", "v_rcp_f32 ", "v_mul_f32 ", "v_mov_b32 ", "v_lshrrev_b32 ", "v_add_u32 ", "v_lshlrev_b32 ")
def align8(lines):
    o = sum([x.split("\n") for x in lines], []); pos = 0; last = None
    for i, x in enumerate(o):
        s = isize(x)
        if x.startswith("v_pk_") and pos % 8 == 4:
            assert last is not None, "cannot align " + x
            op = o[last].split()[0]; o[last] = o[last].replace(op, op + "_e64", 1); pos += 4; last = None
        if x.startswith(PROMOTE) and s == 4: last = i
        elif x.startswith("v_pk_"): last = None
        pos += s
    return o, pos

L_CNT, L_HIST, L_FLAG, L_RANK, L_OUTO, L_XR = 0, 1024, 1280, 1536, 3200, 4224
L_WS = L_XR + NB * 128
L_TAB = L_WS + 32 * 1024
P1_CNT, P1_BASE, P1_STG = 5120, 6144, 7168
ESZ = 12
K2_LDS = L_TAB + NB * CAP * ESZ

Q, NUM, DEN, D, EE = 16, 80, 144, 208, 240
ENT = (0, 4, 8)
vOff, vLds, vHalf, vPad, vLane, vT0, vT1 = 3, 7, 11, 12, 13, 14, 15
RING = (204, 220, 236)
aInfo, aNextL, aNextI, aStamp = 252, 253, 254, 255
def WA(b, q): return 4 * (4 * b + q)
def WC(b): return 128 + 2 * b
B1F, B2F = 136, 138
def WB(b, q): return 140 + 4 * (4 * b + q)
def W2(b, m, ob): return 64 + 4 * (4 * b + 2 * m + ob)
sX, sOut, sRec, sAux = 4, 8, 12, 16
sWave, sBucket, s128, sC, sStage, sTile, sL, sTmp, sTmp2, sP2B = 20, 21, 22, 23, 24, 25, 26, 27, 28, 29
sValid, sBad, sSave, sP2A = 30, 34, 36, 38
sMask0 = 52
TILE_A = [(0, 0, 30), (2, 0, 76), (2, 2, 104), (2, 4, 132)]
TILE_B = [(16, 160, 0), (14, 62, 192), (12, 18, 184), (12, 6, 176)]
assert all(t[0] % 2 == 0 and t[0] <= 4 for t in TILE_A) and all(t[0] % 2 == 0 and t[0] >= 12 for t in TILE_B)
def _check_map():
    seen = []
    for P, rp, rs in TILE_A + TILE_B: seen += list(range(rp, rp + P)) + list(range(rs, rs + 32 - 2*P))
    assert sorted(seen) == list(range(NB))
_check_map()

def pkfma(d, x, y, z): return f"v_pk_fma_f32 {vr(d,2)}, {vr(x,2)}, {vr(y,2)}, {vr(z,2)}"
def pkmul(d, x, y): return f"v_pk_mul_f32 {vr(d,2)}, {vr(x,2)}, {vr(y,2)}"
def mf16(d, A, B, c): return f"v_mfma_f32_32x32x16_bf16 {vr(d,16)}, {A}, {B}, {c}"
def mf8(d, A, B, c): return f"v_mfma_f32_32x32x8_bf16 {vr(d,16)}, {A}, {B}, {c}"

def edge_mfmas(b, dst, u):
    o = [mf8(dst, ar(WC(b), 2), vr(ENT[u], 2), vr(Q + 16*b, 16))]
    for q in range(4): o.append(mf16(dst, ar(WA(b, q), 4), ar(RING[u] + 4*q, 4), vr(dst, 16)))
    return o
def gather(u, q): return f"buffer_load_dwordx4 {ar(RING[u]+4*q,4)}, v{vOff}, s[{sX}:{sX+3}], 0 offen offset:{16*q}"
def mkoff(u): return f"v_mad_u32_u16 v{vOff}, v{ENT[u]+2}, s{s128}, v{vHalf} op_sel:[1,0,0,0]"
def entry(u, off):
    if OPT.get("e2"): return f"ds_read2_b32 {vr(ENT[u],2)}, v{vLds} offset0:{off//4} offset1:{off//4+1}\nds_read_b32 v{ENT[u]+2}, v{vLds} offset:{off+8}"
    return f"ds_read_b96 {vr(ENT[u],3)}, v{vLds} offset:{off}"

def interleave(v, m, gap=3, start=0):
    o = []; k = 0
    for i, x in enumerate(v):
        if k < len(m) and i == start + k * gap: o.append(m[k]); k += 1
        o.append(x)
    return o + m[k:]

def icost(x):
    if x.startswith(("v_exp", "v_rcp", "v_mfma_f32_32x32x16")): return 8
    if x.startswith("buffer_"): return 12
    if x.startswith("ds_"): return 8
    return 4
def weave(fill, mf):
    o = []; k = 0; since = 99
    for i, x in enumerate(fill):
        if k < len(mf) and since >= 32 and i >= mf[k][1]:
            o.append(mf[k][0]); since = icost(mf[k][0]); k += 1
        o.append(x); since += icost(x)
    return o + [m for m, _ in mf[k:]]

def step(u, first, vm=3, b0=0):
    o = []
    nx, pre = (u + 1) % 3, (u + 2) % 3
    for b in range(b0, 4):
        n, dn = NUM + 16*b, DEN + 16*b
        t = n if first else D + 16*(b & 1)
        e = dn if first else EE
        ex = [f"v_exp_f32 v{e+i}, v{t+i}" for i in range(16)]
        if b < 3: m = edge_mfmas(b + 1, NUM + 16*(b+1) if first else D + 16*((b+1) & 1), u)
        else: m = edge_mfmas(0, D, nx)
        A = interleave(ex, m)
        if OPT.get("m16") and not first:
            bn = (b + 1) % 4; un = u if b < 3 else nx; dst = D + 16*((b+1) & 1); m = []
            for j in range(4): m.append(f"v_mfma_f32_16x16x16_bf16 {vr(dst+4*j,4)}, {ar(WC(bn),2)}, {vr(ENT[un],2)}, {vr(Q+16*bn+4*j,4)}")
            for k in range(2):
                for j in range(4): m.append(f"v_mfma_f32_16x16x32_bf16 {vr(dst+4*j,4)}, {ar(WA(bn, 2*(j>>1)+k),4)}, {ar(RING[un]+4*(2*(j&1)+k),4)}, {vr(dst+4*j,4)}")
            A = []
            for i in range(16):
                if i < 12: A.append(m[i])
                A.append(ex[i])
            if OPT["m16"] == 2:
                A = [m[0], ex[0], ex[1], m[1], ex[2], m[2], ex[3], ex[4], m[3], ex[5]] + sum([[m[4+i], ex[6+i]] for i in range(8)], []) + ex[14:]
        if OPT.get("onewait") == 1: A = [m[0]] + ex[:2] + interleave(ex[2:], m[1:])
        mid, end = [gather(pre, b)], []
        if b == 0 and not first: end = [f"v_cmpx_gt_i32 vcc, s{sC}, v{vPad}"]
        if b == 1:
            if not first: end = [f"s_sub_u32 s{sC}, s{sC}, 1"]
            if b0: mid, end = [gather(pre, 0)], [gather(pre, 1)]
        if b == 2:
            if OPT.get("onewait") == 2: A = [m[0]] + ex[:2] + [entry(u, 36 + ESZ*u)] + interleave(ex[2:], m[1:])
            elif OPT.get("onewait") == 4: A = A[:18] + [entry(u, 36 + ESZ*u)] + A[18:]
            elif OPT.get("onewait") == 1: A = A[:6] + [entry(u, 36 + ESZ*u)] + A[6:]
            else: end = [entry(u, 36 + ESZ*u)]
        if b == 3:
            if OPT.get("onewait", 0) >= 3 and not first: A = A[:4] + [f"s_waitcnt vmcnt({vm+1}) lgkmcnt(0)"] + A[4:]
            else: mid = [f"s_waitcnt vmcnt({vm}) lgkmcnt(0)"] + mid if OPT.get("onewait") else [f"s_waitcnt vmcnt({vm})"] + mid
            end = ([] if OPT.get("onewait") else ["s_waitcnt lgkmcnt(0)"]) + [mkoff(u)]
            if u == 2: end += [f"v_add_u32 v{vLds}, 36, v{vLds}"]
            if OPT.get("steps"): end += [f"v_writelane_b32 v{vT0}, s100, m0", "s_mov_b32 s99, m0", "s_addk_i32 s99, 1" if first else "s_cselect_b32 s98, 1, 0\ns_addk_i32 s99, 1\ns_cmp_lg_u32 s98, 0", "s_mov_b32 m0, s99"]
        if b == 2 and OPT.get("steps"): end = end + ["s_memtime s[100:101]"]
        if first:
            p = [f"v_pk_add_f32 {vr(dn+i,2)}, {vr(dn+i,2)}, 1.0 op_sel_hi:[1,0]" for i in range(0, 16, 2)]
        else:
            p = [pkfma(n+i, n+i, EE+i, n+i) for i in range(0, 16, 2)]
            p += [pkfma(n+i, t+i, dn+i, n+i) for i in range(0, 16, 2)]
            p += [pkfma(dn+i, dn+i, EE+i, dn+i) for i in range(0, 16, 2)]
        if not first and OPT.get("pkord", 0):
            pa, pb, pc = p[:8], p[8:16], p[16:]
            if OPT["pkord"] == 1: p = sum([[pa[i], pb[i], pc[i]] for i in range(8)], [])
            if OPT["pkord"] == 2:
                p = [pa[0]]
                for i in range(8): p += ([pa[i+1]] if i < 7 else []) + [pb[i], pc[i]]
            if OPT["pkord"] == 3:
                p = [pkfma(n+i, EE+i, n+i, n+i) for i in range(0, 16, 2)] + [pkfma(n+i, dn+i, t+i, n+i) for i in range(0, 16, 2)] + [pkfma(dn+i, EE+i, dn+i, dn+i) for i in range(0, 16, 2)]
        blk = A[:2] + mid + A[2:] + end + p
        x = OPT.get("exp", 0)
        if not first:
            if x & 1: blk = [("s_nop 1" if i.startswith("v_mfma") else i) for i in blk]
            if x & 2: blk = [("s_nop 0" if i.startswith("v_pk") else i) for i in blk]
            if x & 4: blk = [("s_nop 1" if (i.startswith("v_exp") and not i.endswith(f"v{t+15}")) else i) for i in blk]
            if x & 8: blk = [("s_nop 1" if i.startswith("buffer_load") else i) for i in blk]
            if x & 16:
                c0 = m[0].split(", ")[-1]
                blk = [("s_nop 0" if i == m[0] else (", ".join(i.split(", ")[:-1] + [c0]) if i == m[1] else i)) for i in blk]
            if x & 64: blk = [("s_nop 1" if i == m[4] else i) for i in blk]
            if x & 128: blk = [("s_nop 1" if i in (m[3], m[4]) else i) for i in blk]
            if x & 256:
                blk = [("v_pk_mov_b32 v[14:15], v[14:15], v[14:15]" if i in p[:8] else i) for i in blk]
            if x & 512: blk = [("v_pk_mov_b32 v[14:15], v[14:15], v[14:15]" if i in p[8:16] else i) for i in blk]
        o += blk
    return o

SEL = EE + 4
def selectors():
    return [f"v_mov_b32 v{SEL}, 0x3f80", f"v_mov_b32 v{SEL+1}, 0", f"v_mov_b32 v{SEL+2}, 1.0", f"v_mov_b32 v{SEL+3}, 0",
            f"v_mov_b32 v{SEL+4}, 0", f"v_mov_b32 v{SEL+5}, 0x3f80", f"v_mov_b32 v{SEL+6}, 0", f"v_mov_b32 v{SEL+7}, 1.0"]
def q_mfmas(b, dst=Q, rows=lambda q: ar(RING[2] + 4*q, 4)):
    o = [mf8(dst + 16*b, ar(B1F, 2), vr(SEL + 2*b, 2), "0")]
    for q in range(4): o.append(mf16(dst + 16*b, ar(WB(b, q), 4), rows(q), vr(dst + 16*b, 16)))
    return o
def hdr_reads(vinfo, tmp, rows=lambda q: ar(RING[2] + 4*q, 4)):
    o = [f"v_and_b32 v{tmp[0]}, 0xffff, v{vinfo}", f"ds_read_b128 {rows(0)}, v{tmp[0]} offset:{L_XR}"]
    for q in range(1, 4): o += [f"v_xor_b32 v{tmp[q]}, {16*q}, v{tmp[0]}", f"ds_read_b128 {rows(q)}, v{tmp[q]} offset:{L_XR}"]
    return o
def tile_scalars(vinfo, sp2):
    return [f"v_lshrrev_b32 v{vPad}, 16, v{vinfo}", f"s_movk_i32 s{sStage}, {0 if sp2 == sP2A else 128}",
            f"v_readlane_b32 s{sL}, v{vPad}, 0", f"v_readlane_b32 s{sTmp}, v{vPad}, s{sp2}", f"v_cmp_lt_u32 s[{sValid}:{sValid+1}], 0, v{vPad}",
            f"s_max_u32 s{sL}, s{sL}, s{sTmp}", f"s_max_u32 s{sL}, s{sL}, 4", f"s_sub_u32 s{sC}, s{sL}, 4", f"s_sub_u32 s{sL}, s{sL}, 3",
            f"v_sub_u32 v{vPad}, s{sL}, v{vPad}"]

def epilogue(a, nxt):
    lab = "T" if nxt else "F"
    CHK, AD, P = EE + 12, DEN + 24, DEN + 32
    so = OPT.get("outst", "") if nxt else OPT.get("outstf", OPT.get("outst", ""))
    a("s_mov_b64 exec, -1", f"s_cmp_lg_u64 s[{sValid}:{sValid+1}], -1", f"s_cbranch_scc1 K2_{lab}FIX", ".p2align 3", f"K2_{lab}GO:")
    o = [f"v_accvgpr_read_b32 v{EE+2}, a{aInfo}"]
    if nxt:
        o = [f"v_accvgpr_read_b32 v{vLds}, a{aNextL}", f"v_accvgpr_read_b32 v{vT0}, a{aNextI}", f"ds_read_b32 v{ENT[0]+2}, v{vLds} offset:8"] + o
        o += [f"s_mov_b32 s{sX+2}, {X_BYTES}"]
    o += [f"v_lshrrev_b32 v{EE+2}, 16, v{EE+2}", f"v_cvt_f32_u32 v{EE+2}, v{EE+2}", f"v_mov_b32 v{EE+1}, 0", f"v_mov_b32 v{EE+3}, 0", f"v_lshrrev_b32 v{EE}, 16, v{EE+2}"]
    def chk(b):
        dn = DEN + 16*b
        return [(pkmul(CHK, dn, dn + 8) if (b == 0 and i == 0) else pkfma(CHK, dn+i, dn+8+i, CHK)) for i in range(0, 8, 2)]
    def cvt(b): return [f"v_cvt_pk_bf16_f32 v{DEN+16*b+i//2}, v{NUM+16*b+i}, v{NUM+16*b+i+1}" for i in range(0, 16, 2)]
    def w2(b): return [mf16(D + 16*ob, vr(DEN + 16*b + 4*m, 4), ar(W2(b, m, ob), 4), vr(D + 16*ob, 16)) for m in range(2) for ob in range(2)]
    tk = [0]
    def tick():
        if OPT.get("ticks") == 1 and nxt: o.append(f"s_memtime s[{52+2*tk[0]}:{53+2*tk[0]}]"); tk[0] += 1
    if OPT.get("ticks") == 1 and nxt: o.insert(0, "s_memtime s[52:53]"); tk[0] = 1
    o += chk(0)
    JS = list(range(8)) if nxt else [0, 2, 4, 6, 7]
    ad = lambda j: AD + 4*(j & 1) + (j >> 1)
    oread = [f"v_lshrrev_b32 v{vT1}, 4, v{vLane}", f"v_lshl_add_u32 v{vT1}, v{vT1}, 5, s{sTile}", f"ds_read_b128 {vr(AD,4)}, v{vT1} offset:{L_OUTO}",
             f"ds_read_b128 {vr(AD+4,4)}, v{vT1} offset:{L_OUTO+16}" if nxt else f"ds_read_b32 v{AD+7}, v{vT1} offset:{L_OUTO+28}",
             f"v_and_b32 v{vT1}, 15, v{vLane}"]
    oadd = [f"v_lshl_add_u32 v{ad(j)}, v{vT1}, 3, v{ad(j)}" for j in JS]
    lim = [f"v_lshrrev_b32 v{EE}, 4, v{vHalf}", f"v_sub_u32 v{EE}, s{sP2A if nxt else sP2B}, v{EE}"]
    ts = tile_scalars(vT0, sP2B)
    Q4 = [q_mfmas(k) for k in range(4)]
    for b in range(4):
        n, dn = NUM + 16*b, DEN + 16*b
        rc = [f"v_rcp_f32 v{dn+i}, v{dn+i}" for i in range(16)]
        pre = cvt(b - 1) if b else []
        if b == 0: mf = [(mf8(D, vr(EE, 2), ar(B2F, 2), "0"), 0), (mf8(D + 16, vr(EE + 2, 2), ar(B2F, 2), "0"), 0)]
        else: mf = [(x, 6 if k < 2 else 10) for k, x in enumerate(w2(b - 1))]
        if nxt and OPT.get("qb"):
            qr = [f"v_accvgpr_read_b32 v{Q+16*b+i}, a{WB(b,0)+i}" for i in range(16)]
            ex = {0: ["s_waitcnt lgkmcnt(0)", mkoff(0), gather(0, 0), f"ds_read2_b32 {vr(ENT[0],2)}, v{vLds} offset0:0 offset1:1", entry(1, ESZ), entry(2, 2*ESZ), gather(0, 1)],
                  1: [gather(0, 2), f"v_accvgpr_write_b32 a{aInfo}, v{vT0}"] + lim + ts + [gather(0, 3)],
                  2: ["s_waitcnt lgkmcnt(0)", mkoff(1)] + oread + [gather(1, 0), f"s_add_u32 s{sTile}, s{sTile}, 128"],
                  3: [gather(1, 1), "s_waitcnt lgkmcnt(0)", f"v_add_f32 v{CHK}, v{CHK}, v{CHK+1}"] + oadd + [gather(1, 2)]}[b]
            fill = pre + interleave(rc, ex, 2 if b == 0 else 1, 1)
            if b < 3: fill += qr
            else:
                fm = edge_mfmas(0, NUM, 0); k = len(fill) - 19
                assert fill.index(gather(1, 1)) < k < fill.index(gather(1, 2))
                fill = fill[:k] + ["s_waitcnt vmcnt(2)"] + fill[k:]
                mf = [(fm[0], 0)] + mf + [(x, k + 1) for x in fm[1:]]
        elif nxt:
            if b == 0:
                fill = selectors() + ["s_waitcnt lgkmcnt(0)", mkoff(0), gather(0, 0)] + rc[:9] + ["s_waitcnt vmcnt(1)"] + \
                       interleave(hdr_reads(vT0, [vT1, vPad, EE+14, EE+15]), rc[9:13], 2, 2) + [gather(0, 1)] + rc[13:]
                mf = mf + [(Q4[k][0], 10) for k in range(4)]
            else:
                ex = {1: [f"ds_read2_b32 {vr(ENT[0],2)}, v{vLds} offset0:0 offset1:1", entry(1, ESZ), gather(0, 2), entry(2, 2*ESZ), f"v_accvgpr_write_b32 a{aInfo}, v{vT0}"] + lim + [gather(0, 3)],
                      2: ["s_waitcnt lgkmcnt(0)", mkoff(1)] + oread + [gather(1, 0), f"s_add_u32 s{sTile}, s{sTile}, 128"] + ts[:5],
                      3: [gather(1, 1), "s_waitcnt lgkmcnt(0)", f"v_add_f32 v{CHK}, v{CHK}, v{CHK+1}"] + oadd + [gather(1, 2)]}[b]
                fill = pre + interleave(rc, ex, 1, 1)
                if b == 1:
                    fill = ["s_waitcnt lgkmcnt(0)"] + fill
                    mf = [(x, 1) for x in Q4[0][1:]] + mf + [(Q4[2][1], 0)]
                elif b == 2: mf = [(x, 0) for x in Q4[1][1:]] + mf + [(Q4[2][2], 0)]
                else:
                    fm = edge_mfmas(0, NUM, 0); k = len(fill) - 19
                    assert fill.index(gather(1, 1)) < k < fill.index(gather(1, 2))
                    fill = fill[:k] + ["s_waitcnt vmcnt(2)"] + fill[k:]
                    mf = [(fm[0], 0)] + mf + [(x, k + 1) for x in fm[1:]]
        else:
            fill = pre + rc
        tick()
        o += weave(fill, mf)
        tick()
        mu = [pkmul(n+i, n+i, dn+i) for i in range(0, 16, 2)]
        o += interleave(mu, chk(b + 1), 2, 1) if b < 3 else mu
    wm = w2(3)
    c3 = cvt(3)
    mx = lambda j: f"v_maximum3_f32 v{CHK}, v{CHK}, |v{D+2*j}|, |v{D+2*j+1}|"
    bad = [f"v_cmp_ngt_f32 vcc, {f32(2.0**126)}, v{CHK}", f"s_or_b64 s[{sBad}:{sBad+1}], s[{sBad}:{sBad+1}], vcc"]
    def outp(js, tail):
        r = []; tail = list(tail)
        for k in range(len(js) + 2):
            if k < len(js):
                j = js[k]; r += [f"v_cvt_pk_bf16_f32 v{P+2*j}, v{D+2*j}, v{D+16+2*j}", f"v_cvt_pk_bf16_f32 v{P+2*j+1}, v{D+2*j+1}, v{D+17+2*j}"]
            else: r += tail[:2]; tail = tail[2:]
            if 1 <= k <= len(js): j = js[k-1]; r += [f"v_permlane16_swap_b32 v{P+2*j}, v{P+2*j+1}"]
            if k >= 2: j = js[k-2]; r += [f"buffer_store_dwordx2 {vr(P+2*j,2)}, v{ad(j)}, s[{sOut}:{sOut+3}], 0 offen {so}"]
        return r + tail
    if nxt:
        q3 = q_mfmas(3); n1 = edge_mfmas(1, NUM + 16, 0)
        tick()
        if OPT.get("qb"):
            o += weave(c3 + [f"v_exp_f32 v{DEN+i}, v{NUM+i}" for i in range(16)] + [gather(1, 3), mkoff(2)], [(wm[0], 6), (wm[1], 6), (wm[2], 10), (wm[3], 10)])
            q3 = [0]; bad = bad + qr
        else:
            o += weave(c3 + [f"v_exp_f32 v{DEN+i}, v{NUM+i}" for i in range(16)] + [gather(1, 3), mkoff(2)] + ts[5:],
                       [(Q4[2][3], 0), (wm[0], 6), (wm[1], 6), (wm[2], 10), (wm[3], 10), (Q4[2][4], 0)])
        tick()
        o += [f"v_pk_add_f32 {vr(DEN+i,2)}, {vr(DEN+i,2)}, 1.0 op_sel_hi:[1,0]" for i in range(0, 16, 2)]
        o += [f"v_cmpx_lt_i32_e64 vcc, 0, v{EE}"] + [f"v_pk_add_f32 {vr(D+16*ob,2)}, {vr(D+16*ob,2)}, {vr(D+16*ob+2,2)}" for ob in range(2)] + ["s_mov_b64 exec, -1"]
        tick()
        o += weave(outp(JS, [mx(j) for j in range(8)] + bad), [(x, 1) for x in n1 + q3[1:]])
        tick()
    else:
        o += c3[:6] + [wm[0]] + c3[6:] + oread[:3] + [wm[2]] + oread[3:] + lim + [f"v_add_f32 v{CHK}, v{CHK}, v{CHK+1}", wm[1], "s_nop 2", "s_waitcnt lgkmcnt(0)"] + oadd[:2] + [wm[3]] + oadd[2:]
        pa = lambda ob, g: f"v_pk_add_f32 {vr(D+16*ob+4*g,2)}, {vr(D+16*ob+4*g,2)}, {vr(D+16*ob+4*g+2,2)}"
        o += ["v_mov_b32 v20, 0", "v_mov_b32 v21, 1", "s_nop 3"] + [pa(0, g) for g in range(3)] + [pa(1, g) for g in range(3)]
        o += [f"v_cmpx_lt_i32_e64 vcc, 24, v{EE}", pa(0, 3), pa(1, 3), "s_mov_b64 exec, -1"]
        o += outp(JS, [mx(j) for j in JS] + bad)
    o, n = align8(o)
    a(o)
    return n

def fixup(a, lab):
    a(f"K2_{lab}FIX:", f"s_andn2_b64 exec, -1, s[{sValid}:{sValid+1}]")
    for i in range(64): a(f"v_mov_b32 v{NUM+i}, 0", f"v_mov_b32 v{DEN+i}, 1.0")
    a("s_mov_b64 exec, -1", f"s_branch K2_{lab}GO")

def st2(a, idx):
    if OPT.get("lite"):
        if idx == 0: a("s_memrealtime s[100:101]")
        if idx == 11: a("s_memrealtime s[50:51]", f"v_mov_b32 v{vT1}, 0", "s_waitcnt lgkmcnt(0)", f"v_writelane_b32 v{vT1}, s100, 16", f"v_writelane_b32 v{vT1}, s50, 27", "s_nop 0", f"v_accvgpr_write_b32 a{aStamp}, v{vT1}")
    elif OPT["stamps"]:
        a("s_memtime s[100:101]", "s_memrealtime s[50:51]", "s_mov_b64 s[48:49], exec", "s_mov_b64 exec, -1", f"v_accvgpr_read_b32 v{vT1}, a{aStamp}", "s_waitcnt lgkmcnt(0)", "s_nop 0",
          f"v_writelane_b32 v{vT1}, s100, {idx}", f"v_writelane_b32 v{vT1}, s50, {idx+16}", f"v_writelane_b32 v{vT1}, s{sL}, {idx+32}", "s_nop 0", f"v_accvgpr_write_b32 a{aStamp}, v{vT1}", "s_mov_b64 exec, s[48:49]")

def gen_build(a, lab, g, store, P, mid=None, post=None):
    R1, R2, R3, T = 64, 72, 80, 96
    for r_, n_ in ((56, 132*128*2), (60, 256), (64, 128*64*2), (68, 128)): a(f"s_mov_b32 s{r_+2}, {n_}", f"s_mov_b32 s{r_+3}, 0x00020000")
    a(f"v_and_b32 v{T}, 31, v{vLane}", f"v_lshrrev_b32 v{T+1}, 5, v{vLane}",
      f"v_lshlrev_b32 v{T+2}, 13, v{T+1}", f"v_lshl_add_u32 v{T+2}, v{T}, 1, v{T+2}",
      f"v_and_b32 v{T+5}, 15, v{T}", f"v_lshrrev_b32 v{T+4}, 4, v{T}", f"v_lshl_or_b32 v{T+5}, v{T+5}, 1, v{T+4}", f"v_lshlrev_b32 v{T+5}, 2, v{T+5}",
      f"v_lshl_add_u32 v{T+3}, v{T+1}, 9, v{T+5}", f"v_lshlrev_b32 v{T+4}, 1, v{T}", f"v_cmp_eq_u32 s[88:89], 1, v{T+1}")
    def w1(f, off, dst):
        a(f"s_and_b32 s{off}, s{f}, 3", f"s_lshl_b32 s{off}, s{off}, 11", f"s_bfe_u32 s99, s{f}, 0x20002", "s_lshl_b32 s99, s99, 6", f"s_add_u32 s{off}, s{off}, s99",
          f"s_lshr_b32 s99, s{f}, 4", f"s_mul_i32 s{dst}, s99, 19", "s_lshl_b32 s99, s99, 14", f"s_add_u32 s{off}, s{off}, s99", f"s_add_u32 s{dst}, s{dst}, s{f}", f"s_lshl_b32 s{dst}, s{dst}, 10")
    w1(g, 95, 90)
    a(f"s_add_u32 s98, s{g}, 24"); w1(98, 96, 91)
    a(f"s_sub_u32 s99, s{g}, 8", "s_add_u32 s98, s99, 16", "s_lshl_b32 s98, s98, 10", "s_lshr_b32 s97, s99, 1", "s_lshl_b32 s97, s97, 11", "s_and_b32 s99, s99, 1",
      "s_lshl_b32 s99, s99, 1", "s_add_u32 s97, s97, s99", f"s_cmp_ge_u32 s{g}, 8", "s_cselect_b32 s91, s98, s91", "s_cselect_b32 s96, s97, s96",
      f"s_add_u32 s92, s{g}, 11", "s_lshl_b32 s92, s92, 10", f"s_sub_u32 s97, s{g}, 21", "s_lshl_b32 s97, s97, 7", f"s_add_u32 s97, s97, {128*256}")
    if mid: mid()
    for k in range(4): a(f"s_mov_b64 s[{56+4*k}:{57+4*k}], s[{P+2*k}:{P+2*k+1}]")
    for j in range(8): a(f"buffer_load_ushort v{R1+j}, v{T+2}, s[56:59], s95 offen offset:{256*j}")
    a(f"s_cmp_ge_u32 s{g}, 8", f"s_cbranch_scc1 {lab}_W2")
    for j in range(8): a(f"buffer_load_ushort v{R2+j}, v{T+2}, s[56:59], s96 offen offset:{256*j}")
    a(f"s_mov_b32 s99, {NLOG2E}", f"s_branch {lab}_C")
    a(f"{lab}_W2:")
    for j in range(8): a(f"buffer_load_ushort v{R2+j}, v{T+3}, s[64:67], s96 offen offset:{128*(8*(j>>2)+(j&3))}")
    a(f"s_mov_b32 s99, {NLN2}", f"s_cmp_lt_u32 s{g}, 21", f"s_cbranch_scc1 {lab}_C", f"s_cmp_eq_u32 s{g}, 23", f"s_cbranch_scc1 {lab}_B")
    for j in range(8): a(f"buffer_load_ushort v{R3+j}, v{T+4}, s[56:59], s97 offen offset:{256*(j&3)+64*(j>>2)}")
    a(f"s_branch {lab}_C")
    a(f"{lab}_B:")
    for j in range(4): a(f"buffer_load_ushort v{R3+j}, v{T+4}, s[60:63], 0 offen offset:{64*j}")
    a(f"buffer_load_dword v{T+6}, v{T+5}, s[68:71], 0 offen")
    for j in range(4, 8): a(f"v_mov_b32 v{R3+j}, 0")
    a(f"{lab}_C:", f"s_mov_b32 s98, {NLOG2E}")
    n = post() if post else 0
    a(f"s_waitcnt vmcnt({n})")
    for R, sc_, dst, o in ((R1, 98, 90, 108), (R2, 99, 91, 112)):
        for j in range(8): a(f"v_lshlrev_b32 v{R+j}, 16, v{R+j}", f"v_mul_f32 v{R+j}, s{sc_}, v{R+j}")
        for j in range(4): a(f"v_cvt_pk_bf16_f32 v{o+j}, v{R+2*j}, v{R+1+2*j}")
        store(o, dst)
    a(f"s_cmp_lt_u32 s{g}, 21", f"s_cbranch_scc1 {lab}_E")
    for j in range(8): a(f"v_lshlrev_b32 v{R3+j}, 16, v{R3+j}", f"v_mul_f32 v{R3+j}, s98, v{R3+j}")
    for j in range(4):
        a(f"v_cvt_pk_bf16_f32 v{R3+8+j}, v{R3+2*j}, v{R3+1+2*j}",
          f"v_lshlrev_b32 v{T+8}, 16, v{R3+8+j}", f"v_and_b32 v{T+9}, 0xffff0000, v{R3+8+j}",
          f"v_sub_f32 v{T+8}, v{R3+2*j}, v{T+8}", f"v_sub_f32 v{T+9}, v{R3+1+2*j}, v{T+9}",
          f"v_cvt_pk_bf16_f32 v{T+8}, v{T+8}, v{T+9}", f"v_cndmask_b32 v{R3+8+j}, v{R3+8+j}, v{T+8}, s[88:89]")
    a(f"s_cmp_eq_u32 s{g}, 23", f"s_cbranch_scc0 {lab}_S")
    a(f"v_cndmask_b32 v{R3+10}, v{T+6}, 0, s[88:89]")
    a(f"{lab}_S:"); store(R3 + 8, 92)
    a(f"{lab}_E:")

TMO = 600
def gen_k2(a):
    a(".p2align 12" if OPT.get("pg") else [], ".p2align 8", f"{KNAME}:")
    a("s_cmp_ge_u32 s2, 256", "s_cbranch_scc1 K2_END")
    if OPT["stamps"] and not OPT.get("lite"): a(f"v_accvgpr_write_b32 a{aStamp}, 0")
    st2(a, 0)
    a("s_load_dwordx16 s[72:87], s[0:1], 0", "s_load_dwordx2 s[44:45], s[0:1], 80", "s_load_dwordx2 s[42:43], s[0:1], 64")
    a("s_getpc_b64 s[52:53]", "K2_PC:", "v_lshlrev_b32 v2, 7, v0", "v_min_u32 v2, K2_SLOW-K2_PC, v2", "v_mov_b32 v3, 0", "v_lshl_add_u64 v[2:3], v[2:3], 0, s[52:53]")
    cpf = "global_load_dword v2, v[2:3], off"
    if not OPT.get("pfl"): a(cpf)
    tid, vInit, vT4, vZ, vL16, vTag, vT16, vPoll, vPB = 16, 17, 18, 20, 25, 22, 19, 24, 35
    vE = 56
    a(f"v_mov_b32 v{tid}, v0", f"v_and_b32 v{vLane}, 63, v0", "v_lshrrev_b32 v1, 6, v0", "s_cmp_ge_u32 s2, 250")
    a(f"v_readfirstlane_b32 s{sWave}, v1", "s_cbranch_scc1 K2_BUILD")
    vJ16, vN16, vStart, vCnt, vTw, vXs = 27, 28, 31, 32, 33, 34
    vT32, vR4, vR8 = 60, 61, 62
    init = Asm(); c = init
    c(f"s_and_b32 s{sBucket}, s2, 7", f"s_lshl_b32 s{sBucket}, s{sBucket}, 5", "s_lshr_b32 s3, s2, 3", f"s_add_u32 s{sBucket}, s{sBucket}, s3")
    c(f"v_lshlrev_b32 v{vT16}, 4, v{tid}", f"v_lshlrev_b32 v{vL16}, 4, v{vLane}", f"v_and_b32 v36, 31, v{vLane}")
    c(f"v_mul_u32_u24 v{vInit}, {CAP*ESZ}, v{tid}", f"v_add_u32 v{vInit}, {L_TAB}, v{vInit}")
    c(f"v_lshlrev_b32 v{vT4}, 2, v{tid}", f"v_mov_b32 v{vZ}, 0", f"v_mov_b32 v{vZ+1}, 0", f"v_lshlrev_b32 v26, 3, v{vLane}")
    c(f"ds_write_b32 v{vT4}, v{vInit} offset:{L_CNT}", f"ds_write_b64 v26, v[{vZ}:{vZ+1}] offset:{L_HIST}", f"ds_write_b32 v{vT4}, v{vZ} offset:{P1_CNT}")
    for r_, n_ in ((sAux, AUX_BYTES), (sX, X_BYTES), (sOut, X_BYTES), (sRec, REC_BYTES)): c(f"s_mov_b32 s{r_+2}, {n_}", f"s_mov_b32 s{r_+3}, 0x00020000")
    c(f"s_mov_b32 s40, {EPO_REL}")
    ptrs = [f"s_add_u32 s{sAux}, s44, {FRAG_OFF}", f"s_addc_u32 s{sAux+1}, s45, 0",
            f"s_mov_b64 s[{sRec}:{sRec+1}], s[44:45]", f"s_mov_b64 s[{sX}:{sX+1}], s[72:73]", f"s_mov_b64 s[{sOut}:{sOut+1}], s[42:43]"]
    a(init.l)
    a(f"v_lshlrev_b32 v{vT32}, 5, v{tid}", f"v_lshl_add_u32 v{vR4}, v1, 5, v36", f"v_lshlrev_b32 v{vR8}, 3, v{vR4}", f"v_lshlrev_b32 v{vR4}, 2, v{vR4}")
    a(f"s_mul_i32 s88, s2, {CH*4}", "s_add_u32 s89, s88, 4096", "s_add_u32 s90, s88, 8192", "s_add_u32 s91, s88, 12288")
    for g in range(4): a(f"s_lshl_b32 s{92+g}, s{88+g}, 1")
    for r_, n_ in ((56, E*4), (60, E*4), (64, E*8), (68, CH*12)): a(f"s_mov_b32 s{r_+2}, {n_}", f"s_mov_b32 s{r_+3}, 0x00020000")
    a(f"s_mul_i32 s41, s2, {CH*12}")
    a("s_waitcnt lgkmcnt(0)")
    st2(a, 12)
    if OPT.get("wso"): a(f"s_add_u32 s44, s44, {OPT['wso'] << 20}", "s_addc_u32 s45, s45, 0")
    DS, SR, BK, RK, AT = 64, 80, 96, 112, 128
    a("s_mov_b64 s[56:57], s[78:79]")
    consts = Asm()
    c = consts
    c(f"s_movk_i32 s{s128}, 128", f"s_mov_b64 s[{sBad}:{sBad+1}], 0", "s_mov_b32 s32, 0", "s_mov_b32 s41, 0xffff")
    c(f"v_and_b32 v{vJ16}, 15, v{vLane}", f"v_not_b32 v{vN16}, v{vJ16}", f"v_mul_u32_u24 v{vJ16}, 12, v{vJ16}")
    c(f"v_lshrrev_b32 v{vHalf}, 5, v{vLane}", f"v_lshlrev_b32 v{vHalf}, 6, v{vHalf}", f"v_mov_b32 v{vTw}, 12")
    c(f"v_lshrrev_b32 v{vXs}, 3, v{vLane}", f"v_lshlrev_b32 v{vXs}, 4, v{vXs}", f"v_xor_b32 v{vXs}, v{vXs}, v{vL16}")
    c(f"v_mul_u32_u24 v{vStart}, {CH*12}, v{tid}")
    c("v_bfe_u32 v29, v36, 2, 1", "v_and_b32 v30, 1, v36", "v_lshl_or_b32 v29, v29, 1, v30", "v_bfe_u32 v30, v36, 1, 1", "v_lshl_or_b32 v29, v29, 1, v30",
      "v_lshrrev_b32 v30, 3, v36", "v_lshl_or_b32 v29, v29, 2, v30", "v_lshlrev_b32 v29, 2, v29")
    c(f"s_lshl_b32 s{sTmp}, s{sBucket}, 3", f"s_add_u32 s{sTmp}, s{sTmp}, {TAB_REL}", f"v_lshlrev_b32 v{vPoll}, 11, v{tid}", f"v_add_u32 v{vPoll}, s{sTmp}, v{vPoll}",
      f"v_min_u32 v{vPB}, 5, v{vLane}", f"v_add_u32 v{vPB}, 250, v{vPB}", f"v_lshlrev_b32 v{vPB}, 11, v{vPB}", f"v_add_u32 v{vPB}, s{sTmp}, v{vPB}")
    ROLE = {"A": 44, "B": 50}
    c(f"s_lshl_b32 s3, s{sWave}, 3", "s_or_b32 s3, s3, 0x80000", "v_lshrrev_b32 v37, 2, v36", "v_and_b32 v38, 1, v36", "v_lshl_or_b32 v37, v37, 1, v38", "v_bfe_u32 v38, v36, 1, 1")
    for nm, T, sp in (("A", TILE_A, sP2A), ("B", TILE_B, sP2B)):
        r = ROLE[nm]
        pk = lambda f: hex(sum((f(t) & 255) << (8*w) for w, t in enumerate(T)))
        c(f"s_bfe_u32 s{sp}, {pk(lambda t: 2*t[0])}, s3", f"s_bfe_u32 s46, {pk(lambda t: t[1])}, s3", f"s_bfe_u32 s47, {pk(lambda t: t[2])}, s3", f"s_sub_u32 s47, s47, s{sp}")
        c(f"v_cmp_gt_u32 vcc, s{sp}, v36", f"v_add_u32 v{r}, s47, v36", f"v_add_u32 v39, s46, v37", f"v_cndmask_b32 v{r}, v{r}, v39, vcc", f"v_lshlrev_b32 v{r}, 3, v{r}",
          f"v_cndmask_b32 v{r+2}, 0, 1, vcc", f"v_and_b32 v{r+3}, v{r+2}, v38", f"v_sub_u32 v{r+1}, v{r+2}, v{r+3}", f"v_lshlrev_b32 v{r+4}, 30, v{r+3}", f"v_mul_u32_u24 v{r+3}, 12, v{r+3}")
    c(f"s_mul_i32 s33, s{sWave}, 6144", f"s_mul_i32 s39, s{sBucket}, {NB*128}", "s_add_u32 s39, s39, s33", f"s_mul_i32 s46, s{sWave}, {13*1024}",
      "s_lshl_b32 s47, s2, 11", f"s_add_u32 s47, s47, {TAB_REL}")
    epoch = f"buffer_load_dwordx2 {vr(vTag,2)}, v{vZ}, s[{sAux}:{sAux+3}], s40 offen sc1"
    mktag = [f"v_add_u32 v{vTag}, 1, v{vTag}", f"v_and_b32 v{vTag+1}, 0xff000000, v{vTag+1}"]
    lo, full = ["s_mov_b32 exec_hi, 0"], ["s_mov_b32 exec_hi, -1"]
    vm = []
    for g in range(3): a(f"buffer_load_dwordx4 {vr(DS+4*g,4)}, v{vT16}, s[56:59], s{88+g} offen"); vm.append(("d", g))
    a(lo, f"buffer_load_dword v{DS+12}, v{vR4}, s[56:59], s91 offen", full); vm.append(("d", 3))
    a("s_mov_b64 s[60:61], s[76:77]", "s_mov_b64 s[64:65], s[74:75]", "s_add_u32 s68, s44, s41", "s_addc_u32 s69, s45, 0", ptrs)
    if OPT.get("ee"): a(epoch); vm.append("e")
    a("s_barrier")
    def grp(g):
        if g < 3:
            a(f"buffer_load_dwordx4 {vr(SR+4*g,4)}, v{vT16}, s[60:63], s{88+g} offen", f"buffer_load_dwordx4 {vr(AT+8*g,4)}, v{vT32}, s[64:67], s{92+g} offen",
              f"buffer_load_dwordx4 {vr(AT+8*g+4,4)}, v{vT32}, s[64:67], s{92+g} offen offset:16"); vm.extend([0, 0, ("g", g)])
        else:
            a(lo, f"buffer_load_dword v{SR+12}, v{vR4}, s[60:63], s91 offen", f"buffer_load_dwordx2 {vr(AT+24,2)}, v{vR8}, s[64:67], s95 offen", full); vm.extend([0, ("g", 3)])
            if not OPT.get("ee"): a(epoch); vm.append("e")
            if OPT.get("pfl"): a(cpf); vm.append(0)
            if OPT.get("pft"):
                a(f"v_lshlrev_b32 v3, 3, v{tid}", f"buffer_load_dword v3, v3, s[{sAux}:{sAux+3}], s47 offen sc1"); vm.append(0)
    def vmw(x): return f"s_waitcnt vmcnt({len(vm) - 1 - vm.index(x)})"
    G0 = OPT.get("g0", 1)
    for g in range(G0): grp(g)
    a(consts.l, "s_movk_i32 s96, -196", f"s_movk_i32 s97, {P1_STG}")
    for e in range(13):
        if e % 4 == 0: a(vmw(("d", e//4)))
        if e == 0: st2(a, 13)
        if e in {0: (), 1: (0,), 2: (0, 4), 3: (0, 4, 8), 4: (4, 8), 5: (8,)}[OPT.get("gi", 0)] and G0 < 4: grp(G0); G0 += 1
        if e == 12: a(lo)
        a(f"v_mul_u32_u24 v{BK+e}, 85599, v{DS+e}", f"v_lshrrev_b32 v{BK+e}, 22, v{BK+e}", f"v_and_b32 v{BK+e}, 0x3fc, v{BK+e}",
          f"ds_add_rtn_u32 v{RK+e}, v{BK+e}, v{vTw} offset:{P1_CNT}")
    a(full)
    for g in range(G0, 4): grp(g)
    for e in range(13): a(f"v_lshlrev_b32 v{DS+e}, 2, v{DS+e}", f"v_mad_i32_i24 v{DS+e}, v{BK+e}, s96, v{DS+e}")
    a("s_waitcnt lgkmcnt(0)", "s_barrier")
    a(f"s_cmp_lg_u32 s{sWave}, 0", "s_cbranch_scc1 K2_SC")
    a(f"ds_read_b128 v[4:7], v{vT16} offset:{P1_CNT}", "s_waitcnt lgkmcnt(0)")
    a("v_add_u32 v8, v4, v5", "v_add3_u32 v8, v8, v6, v7", "v_mov_b32 v9, v8")
    wave_scan(a, 9)
    a("v_sub_u32 v40, v9, v8", "v_add_u32 v41, v40, v4", "v_add_u32 v42, v41, v5", "v_add_u32 v43, v42, v6")
    a(f"ds_write_b128 v{vT16}, v[40:43] offset:{P1_BASE}", "s_waitcnt lgkmcnt(0)")
    a("K2_SC:", f"v_lshlrev_b32 v8, 3, v{tid}", "s_barrier")
    st2(a, 14)
    ops = []
    def rd(e): a(f"ds_read_b32 v{BK+e}, v{BK+e} offset:{P1_BASE}"); ops.append(e)
    for e in range(5): rd(e)
    for e in range(13):
        if e % 4 == 0:
            a(vmw(("g", e//4)))
            for k in range(min(4, 13 - e)): a(f"v_lshl_or_b32 v{DS+e+k}, v{SR+e+k}, 16, v{DS+e+k}")
        a(f"s_waitcnt lgkmcnt({len(ops) - 1 - ops.index(e)})", f"v_add3_u32 v{RK+e}, v{RK+e}, v{BK+e}, s97")
        if e == 12: a(lo)
        a(f"ds_write2_b32 v{RK+e}, v{AT+2*e}, v{AT+1+2*e} offset0:0 offset1:1", f"ds_write_b32 v{RK+e}, v{DS+e} offset:8"); ops += [-1, -1]
        if e + 5 < 13: rd(e + 5)
    a(full)
    a(f"ds_read_b64 v[4:5], v8 offset:{P1_CNT}", f"ds_read_b64 v[6:7], v8 offset:{P1_BASE}", f"v_add_u32 v9, {P1_STG}, v{vT16}", vmw("e"), mktag)
    a("s_waitcnt lgkmcnt(0)", "s_barrier")
    st2(a, 15)
    for i in range(10): a(f"ds_read_b128 {vr(64+4*i,4)}, v9 offset:{4096*i}")
    for k in range(4): a(f"v_mul_u32_u24 v{4+k}, 5462, v{4+k}", f"v_lshrrev_b32 v{4+k}, 16, v{4+k}")
    a(f"v_lshl_or_b32 v40, v4, 12, v6", f"v_lshl_or_b32 v42, v5, 12, v7", f"v_or_b32 v40, v40, v{vTag+1}", f"v_or_b32 v42, v42, v{vTag+1}", f"v_mov_b32 v41, v{vTag}", f"v_mov_b32 v43, v{vTag}")
    for i in range(OPT.get("nst", 10)):
        if i: a(f"s_mov_b32 s84, {4096*i}")
        a(f"s_waitcnt lgkmcnt({9-i})", f"buffer_store_dwordx4 {vr(64+4*i,4)}, v{vT16}, s[68:71], {'s84' if i else '0'} offen sc1")
    def chk(): return [f"v_xor_b32 v36, v{vE}, v{vTag+1}", f"v_xor_b32 v37, v{vE+1}, v{vTag}", "v_lshrrev_b32 v36, 24, v36", "v_or_b32 v36, v36, v37", "v_cmp_ne_u32 vcc, 0, v36"]
    if OPT.get("nst"): st2(a, 13)
    pb = f"buffer_load_dwordx2 {vr(vE,2)}, v{vPB}, s[{sAux}:{sAux+3}], 0 offen sc1"
    if OPT.get("pbl", 0): a(f"s_waitcnt vmcnt({OPT['pbl']})", pb)
    a("s_waitcnt vmcnt(0)", "s_barrier")
    st2(a, 2)
    if not OPT.get("pbl", 0): a(pb)
    a(f"s_cmp_ge_u32 s{sWave}, 2", "s_cselect_b64 exec, 0, -1")
    a(f"buffer_store_dwordx4 v[40:43], v{vT16}, s[{sAux}:{sAux+3}], s47 offen sc1", "s_mov_b64 exec, -1")
    if not OPT.get("pbl", 0): a("s_waitcnt vmcnt(1)")
    a(chk(), "s_cbranch_vccnz K2_WAITB")
    a("K2_WGO:")
    SP = OPT.get("split", 0)
    wdma = []
    if SP:
        wl = lambda i: f"buffer_load_dwordx4 v{vL16}, s[{sAux}:{sAux+3}], s85 offen offset:{1024*i} sc1 lds"
        a(f"s_mul_i32 s85, s{sWave}, {5*1024}", f"s_min_u32 s85, s85, {14*1024}", f"s_add_u32 s85, s85, {32*1024}", f"s_add_u32 m0, s85, {L_WS}", "s_nop 0", [wl(i) for i in range(4)])
        a("s_add_u32 s85, s85, 4096", f"s_add_u32 m0, s85, {L_WS}", "s_nop 0", wl(0))
        wdma = [[f"s_lshl_b32 s85, s{sWave}, 13", f"s_add_u32 m0, s85, {L_WS}", "s_nop 0"] + [wl(i) for i in range(4)],
                ["s_add_u32 s85, s85, 4096", f"s_add_u32 m0, s85, {L_WS}", "s_nop 0"] + [wl(i) for i in range(4)]]
        if SP == 2: a(wdma.pop(0))
    for g in range(4):
        if SP: break
        a(f"s_add_u32 m0, s46, {L_WS+4096*g}", f"s_add_u32 s84, s46, {4096*g}")
        for i in range(4 if g < 3 else 1):
            if not OPT.get("now"): a(f"buffer_load_dwordx4 v{vL16}, s[{sAux}:{sAux+3}], s84 offen offset:{1024*i} {OPT.get('wsc', 'sc1')} lds")
    xl = lambda i: f"buffer_load_dwordx4 v{vXs}, s[{sX}:{sX+3}], s39 offen offset:{1024*i} lds"
    late = [[f"s_add_u32 m0, s33, {L_XR}", "s_mov_b64 exec, -1", xl(0), xl(1)], ["s_mov_b64 exec, -1", xl(2), xl(3)],
            [f"s_add_u32 m0, s33, {L_XR+4096}", "s_add_u32 s39, s39, 4096", "s_mov_b64 exec, -1", xl(0), xl(1)], ["s_mov_b32 exec_lo, -1", "s_mov_b32 exec_hi, 0", xl(2), "s_mov_b64 exec, -1"]]
    if OPT.get("nox"): late = []
    for k in range(OPT.get("xpre", 0)): a(late.pop(0))
    a(f"v_add_u32 v39, {L_WS}, v{vL16}")
    NL = OPT.get("nl", 32)
    wrd = [f"ds_read_b128 {ar(4*f,4)}, v39 offset:{1024*f}" for f in range(NL, NFRAG)]
    wlate = [f"ds_read_b128 {ar(4*f,4)}, v{EE} offset:{L_WS+1024*f}" for f in range(NL)]
    st2(a, 3)
    poll = f"buffer_load_dwordx2 {vr(vE,2)}, v{vPoll}, s[{sAux}:{sAux+3}], 0 offen sc1"
    a(f"s_movk_i32 s84, {TMO}")
    if OPT.get("pg"):
        a(poll, wdma)
        for k in (1, 2, 3): a(f"s_branch K2_STUB{k}", f"K2_RET{k}:")
        a(f"s_waitcnt vmcnt({4*len(wdma)})", "s_branch K2_POLL2")
    if OPT.get("one"):
        a("K2_POLL:", poll, "K2_POLL2:", "s_waitcnt vmcnt(0)", chk(), "s_and_b64 exec, exec, vcc", "s_cbranch_execz K2_POLLED")
        a("s_mov_b64 s[86:87], exec", "s_ff1_i32_b64 s85, exec", "s_lshl_b64 exec, 1, s85")
        a("K2_POLL3:", poll, "s_waitcnt vmcnt(0)", chk(), "s_sub_u32 s84, s84, 1", "s_cbranch_scc1 K2_POLL4", "s_cbranch_vccnz K2_POLL3")
        a("s_andn2_b64 exec, s[86:87], exec", "s_cbranch_execnz K2_POLL", "s_branch K2_POLLED", "K2_POLL4:", "s_mov_b64 exec, s[86:87]")
    else:
        a("K2_POLL:", f"s_sleep {OPT['slp']}" if OPT.get("slp") else [], poll, "s_waitcnt vmcnt(0)", "K2_POLL2:", chk(),
          "s_and_b64 exec, exec, vcc", "s_cbranch_execz K2_POLLED", "s_sub_u32 s84, s84, 1", "s_cbranch_scc0 K2_POLL")
    a(f"v_mov_b32 v{vE}, 0", "s_mov_b32 s32, 2")
    a("K2_POLLED:", "s_mov_b64 exec, -1")
    st2(a, 1)
    a(f"v_and_b32 v36, 0xfff, v{vE}", f"v_bfe_u32 v{vCnt}, v{vE}, 12, 12", f"v_mad_u32_u24 v{vStart}, v36, 12, v{vStart}")
    RB = 64
    def dppr(i): return f"row_newbcast:{i} row_mask:0xf bank_mask:0xf"
    def rec(i): return RB + 4*i
    def addr(s): return f"v_add_u32_dpp v{rec(s)+3}, v{vStart}, v{vJ16} {dppr(s)}"
    rsc = OPT.get("rsc", "sc1")
    def load(s):
        if s < 16: return f"buffer_load_dwordx3 {vr(rec(s),3)}, v{rec(s)+3}, s[{sRec}:{sRec+3}], 0 offen {rsc}"
        return f"buffer_load_dwordx3 {vr(rec(s),3)}, v{vStart}, s[{sRec}:{sRec+3}], 0 offen offset:{12*s} {rsc}"
    def msk(s): return f"s[{sMask0+2*s}:{sMask0+2*s+1}]"
    def ex(s): return f"s_mov_b64 exec, {msk(s)}"
    def atom(s): return [f"v_and_b32 v{rec(s)+3}, s41, v{rec(s)+2}", f"ds_add_rtn_u32 v{rec(s)+3}, v{rec(s)+3}, v{vTw}"]
    def put(s): return [f"ds_write2_b32 v{rec(s)+3}, v{rec(s)}, v{rec(s)+1} offset0:0 offset1:1", f"ds_write_b32 v{rec(s)+3}, v{rec(s)+2} offset:8"]
    D0, W, LAG = OPT.get("d0", 4), OPT.get("win", 16), OPT.get("lag", 4)
    order = list(range(D0)) + list(range(16, 24)) + list(range(D0, 16))
    a(f"v_cmp_lt_u32 s[{sSave}:{sSave+1}], 24, v{vCnt}", "s_nop 0")
    for s in range(D0): a(addr(s), load(s))
    for s in range(16, 24): a(f"v_cmp_lt_u32 {msk(s)}, {s}, v{vCnt}")
    for s in range(D0, 16): a(addr(s))
    a(f"s_mov_b64 exec, s[{sSave}:{sSave+1}]", "s_cbranch_execz K2_P1")
    for s in range(24, 28): a(load(s))
    a(f"v_cmp_lt_u32 vcc, 28, v{vCnt}", "s_cbranch_vccnz K2_RARE1")
    if OPT.get("pg"): a("s_branch K2_P1", ".p2align 12", "K2_STUB1:", "s_branch K2_RET1")
    a("K2_P1:")
    for s in order[D0:W]:
        a(ex(s) if s >= 16 else ("s_mov_b64 exec, -1" if s == D0 else []), load(s))
    a("s_mov_b64 exec, -1")
    side = []
    for i in range(16): side += [f"v_add_co_u32_dpp v37, vcc, v{vCnt}, v{vN16} {dppr(i)}", f"s_mov_b64 {msk(i)}, vcc"]
    a("s_barrier", interleave(wrd, side, 1, 1))
    a("s_waitcnt lgkmcnt(0)", "s_barrier")
    sx = OPT.get("sx", 0)
    if sx & 1: put = lambda s: ["s_nop 0", "s_nop 0"]
    if sx & 2: atom = lambda s: [f"v_and_b32 v{rec(s)+3}, 0xffff, v{rec(s)+2}", f"v_lshl_add_u32 v{rec(s)+3}, v{rec(s)+3}, 5, v{vInit}"]
    ops = []; vm = order[:W]
    for i in range(24 + LAG):
        if i < 24:
            s = order[i]
            a(f"s_waitcnt vmcnt({len(vm) - 1 - vm.index(s)})", ex(s), atom(s)); ops.append(("a", s))
        if i + W < 24:
            s = order[i + W]; a(ex(s), load(s)); vm.append(s)
        elif late and i >= 24 - OPT.get("late", 6):
            x = late.pop(0); a(x); vm += [-1] * sum(y.startswith("buffer") for y in x)
        if i >= LAG:
            s = order[i - LAG]
            n = len(ops) - 1 - ops.index(("a", s))
            a(f"s_waitcnt lgkmcnt({n})", ex(s), put(s)); ops += [("w", s), ("w", s)]
        if i == D0 + 7 + LAG:
            a(f"s_mov_b64 exec, s[{sSave}:{sSave+1}]", "s_cbranch_execz K2_P3")
            for k in range(24, 28): a(f"v_cmp_lt_u32 {msk(k-8)}, {k}, v{vCnt}")
            for k in range(24, 28): a(ex(k - 8), atom(k))
            a("s_waitcnt lgkmcnt(0)")
            for k in range(24, 28): a(ex(k - 8), put(k))
            a(f"v_cmp_lt_u32 vcc, 28, v{vCnt}", "s_cbranch_vccnz K2_RARE2", "K2_P3:")
    for x in late: a(x)
    a("s_mov_b64 exec, -1")
    a("K2_P2:", "s_waitcnt lgkmcnt(0)", "s_barrier")
    st2(a, 4)
    if sx: a("s_branch K2_STOUT")
    tk2 = [0]
    def tick2():
        if OPT.get("ticks") == 2: a(f"s_memtime s[{52+2*tk2[0]}:{53+2*tk2[0]}]"); tk2[0] += 1
    tick2()
    vD, vR, vS = 40, 41, 42
    a(f"ds_read_b32 v{vD}, v{vT4} offset:{L_CNT}", f"ds_read_b32 v58, v{vInit} offset:8", "v_mov_b32 v43, 1", f"v_cmp_gt_u32 vcc, {NB}, v{tid}", f"v_lshlrev_b32 v36, 2, v{vLane}",
      f"s_mov_b64 s[{sValid}:{sValid+1}], vcc", "s_waitcnt lgkmcnt(1)")
    a(f"v_sub_u32 v{vD}, v{vD}, v{vInit}", f"v_cmp_lt_u32 vcc, {CAP*ESZ}, v{vD}", f"v_min_u32 v{vD}, {63*12}, v{vD}", f"v_mul_u32_u24 v{vD}, 5462, v{vD}",
      f"s_or_b64 s[{sBad}:{sBad+1}], s[{sBad}:{sBad+1}], vcc", f"v_lshrrev_b32 v{vD}, 16, v{vD}", f"v_lshlrev_b32 v37, 2, v{vD}")
    a(f"s_mov_b64 exec, s[{sValid}:{sValid+1}]", f"ds_add_rtn_u32 v{vR}, v37, v43 offset:{L_HIST}")
    if OPT["force_slow"]: a(f"s_mov_b64 s[{sBad}:{sBad+1}], 1")
    if OPT.get("force_raw"): a("s_mov_b32 s32, 2")
    a(f"s_cmp_lg_u64 s[{sBad}:{sBad+1}], 0", "s_addc_u32 s32, s32, 0", "s_mov_b64 exec, 1", "v_mov_b32 v39, s32", f"ds_or_b32 v{vZ}, v39 offset:{L_FLAG}", "s_mov_b64 exec, -1")
    a(f"v_add_u32 v59, 1, v{vD}", "v_lshrrev_b32 v59, 1, v59", f"v_mad_u32_u24 v59, v59, 12, v{vInit}", "ds_read_b32 v59, v59 offset:8",
      f"v_lshl_or_b32 v{vD}, v{vD}, 8, v{tid}", "s_waitcnt lgkmcnt(1)", f"v_bfi_b32 v58, s41, v{vD}, v58", "s_barrier")
    tick2()
    a(f"ds_read_b32 v{vS}, v36 offset:{L_HIST}", f"ds_read_b32 v38, v{vZ} offset:{L_FLAG}", "s_waitcnt lgkmcnt(1)")
    wave_scan(a, vS)
    a(f"v_sub_u32 v{vS}, {NB}, v{vS}", f"ds_bpermute_b32 v{vS}, v37, v{vS}", "s_waitcnt lgkmcnt(1)", f"v_readfirstlane_b32 s{sTmp}, v38",
      f"s_mul_i32 s{sTmp2}, s{sBucket}, {NB*128}", f"s_lshl_b32 s{sTile}, s{sWave}, 8", f"s_cmp_ge_u32 s{sTmp}, 2", "s_cbranch_scc1 K2_SLOW")
    a(f"s_mov_b64 exec, 1", f"buffer_store_dword v{vTag}, v{vZ}, s[{sAux}:{sAux+3}], s40 offen", f"s_mov_b64 exec, s[{sValid}:{sValid+1}]", f"s_cmp_lg_u32 s{sTmp}, 0", "s_cbranch_scc1 K2_SLOW")
    a("s_waitcnt lgkmcnt(0)", f"v_add_lshl_u32 v{vS}, v{vS}, v{vR}, 3", f"ds_write_b64 v{vS}, v[58:59] offset:{L_RANK}", "s_mov_b64 exec, -1")
    a(f"s_movk_i32 s46, {CAP*ESZ}", f"v_mov_b32 v39, {L_TAB}", f"v_lshrrev_b32 v38, 4, v{vHalf}", f"v_add_u32 v36, s{sTile}, v29")
    tick2()
    a(f"v_cmp_ne_u32 vcc, 0, v{ROLE['A']+3}", "s_waitcnt lgkmcnt(0)" if OPT.get("b4", 1) else "s_waitcnt vmcnt(1) lgkmcnt(0)", "s_barrier")
    tick2()
    st2(a, 5)
    def decode1(w, r, base):
        return [f"v_bfe_u32 v{w+1}, v{w}, 8, 8", f"v_and_b32 v{w}, 0xff, v{w}", f"v_add_u32 v{w+2}, v{w+1}, v{r+1}", f"v_lshrrev_b32 v{w+2}, v{r+2}, v{w+2}",
                f"v_mad_u32_u24 v{base}, v{w}, s46, v39", f"v_sub_u32 v{w+1}, v{w+1}, v{w+2}", f"v_mad_u32_u24 v{base}, v{w+1}, v{r+3}, v{base}"]
    def decode2(w, r, info):
        return [f"v_and_b32 v{w+1}, 7, v{w}", f"v_xor_b32 v{w+1}, v{w+1}, v38", f"v_lshlrev_b32 v{w+1}, 4, v{w+1}", f"v_lshl_add_u32 v{w+1}, v{w}, 7, v{w+1}",
                f"v_lshl_or_b32 v{info}, v{w+2}, 16, v{w+1}"]
    def decode3(w, r, off):
        return [f"v_lshl_add_u32 v{w}, v{w}, 7, s{sTmp2}", f"v_or_b32 v{w}, v{w}, v{r+4}", f"ds_write_b32 v36, v{w} offset:{L_OUTO+off}"]
    a(f"ds_read_b64 v[56:57], v{ROLE['A']} offset:{L_RANK}", f"ds_read_b32 v60, v{ROLE['B']} offset:{L_RANK}")
    a(selectors())
    a("s_waitcnt lgkmcnt(1)", f"v_cndmask_b32 v{ENT[0]+2}, v56, v57, vcc", mkoff(0), gather(0, 0))
    tick2()
    a(decode1(56, ROLE["A"], vLds))
    a(f"ds_read_b32 v{ENT[1]+2}, v{vLds} offset:20", f"ds_read_b32 v{ENT[2]+2}, v{vLds} offset:32")
    a([f"ds_read2_b32 {vr(ENT[u],2)}, v{vLds} offset0:{3*u} offset1:{3*u+1}" for u in range(3)])
    a(decode2(56, ROLE["A"], vT0))
    if not OPT.get("b4", 1): a(hdr_reads(vT0, [vT1, 59, EE+14, EE+15]))
    a(tile_scalars(vT0, sP2A), f"v_accvgpr_write_b32 a{aInfo}, v{vT0}", decode3(56, ROLE["A"], 0), "s_waitcnt lgkmcnt(6)")
    gq = [[gather(0, 1)], [gather(0, 2)], [gather(0, 3)], [mkoff(1), gather(1, 0)], [gather(1, 1)], [gather(1, 2)], [gather(1, 3)]]
    GE = OPT.get("ge", 1)
    if GE: a(gq.pop(0))
    a(decode1(60, ROLE["B"], 63), f"v_accvgpr_write_b32 a{aNextL}, v63", decode2(60, ROLE["B"], 63), f"v_accvgpr_write_b32 a{aNextI}, v63", decode3(60, ROLE["B"], 128))
    if GE > 1: a(gq.pop(0))
    if OPT.get("b4", 1): a(f"s_waitcnt vmcnt({2+GE})", "s_barrier", hdr_reads(vT0, [vT1, 59, EE+14, EE+15]))
    if OPT.get("qb"):
        rb = lambda q: vr(D + 4*q, 4)
        a(hdr_reads(63, [vT1, 59, EE+14, EE+15], rb), gather(0, 1), "s_waitcnt lgkmcnt(0)")
        gs = [[gather(0, 2)], [gather(0, 3)], [mkoff(1), gather(1, 0)], [gather(1, 1)], [gather(1, 2)], [gather(1, 3)], [], []]
        for b in range(4):
            wr = [f"v_accvgpr_write_b32 a{WB(b-1,0)+i}, v{DEN+16*(b-1)+i}" for i in range(16)] if b else []
            a(q_mfmas(b, DEN, rb), gs[2*b], interleave(q_mfmas(b), [wr[4*k:4*k+4] for k in range(4)] if b else [], 1, 1), gs[2*b+1])
        a([f"v_accvgpr_write_b32 a{WB(3,0)+i}, v{DEN+48+i}" for i in range(16)])
    else:
        a(f"v_mov_b32 v{EE}, v{vL16}", gq.pop(0), "s_waitcnt lgkmcnt(0)")
        for b in range(4):
            k = NL // 16
            tick2()
            a(interleave(q_mfmas(b), [wlate[4*k*b+k*j:4*k*b+k*j+k] for j in range(4)], 1, 1))
            a(gq.pop(0))
        a(gq)
        tick2()
        a(f"s_waitcnt lgkmcnt({0 if OPT.get('ticks') == 2 else min(15, NL - 16)})")
    em = edge_mfmas(0, NUM, 0)
    a(em[0], mkoff(2), "s_waitcnt vmcnt(7)", em[1], "s_waitcnt vmcnt(6)", em[2], "s_waitcnt vmcnt(5)", em[3], "s_waitcnt vmcnt(4)")
    tick2()
    st2(a, 6)
    if OPT.get("steps"): a("s_mov_b32 m0, 0")
    a(em[4], "s_nop 10")
    a(".p2align 3")
    body, n = align8([f"s_mov_b64 exec, s[{sValid}:{sValid+1}]"] + step(0, True))
    tick2()
    a(body)
    tick2()
    a("s_branch K2_L1")
    if OPT.get("pg"): a(".p2align 12", "K2_STUB2:", "s_branch K2_RET2", ".p2align 3")
    else: a(".p2align 6")
    for k, u in enumerate((1, 2, 0)):
        body = step(u, False) + [f"s_cbranch_scc1 K2_X{u}" if k < 2 else "s_cbranch_scc0 K2_L1"]
        if k: body = ["s_nop 0"] + body
        body, n = align8(body)
        if k: body = body[1:]
        a(f"K2_L{u}:", body)
    for u in (0, 1, 2):
        a(f"K2_X{u}:", f"s_cmpk_eq_u32 s{sStage}, 129", "s_cbranch_scc1 K2_FINAL", f"s_cmp_eq_u32 s{sStage}, 1", "s_cbranch_scc1 K2_TEND",
          f"s_or_b32 s{sStage}, s{sStage}, 1", f"s_mov_b32 s{sC}, 1", f"s_mov_b32 s{sX+2}, 0", f"v_add_u32 v{vPad}, 2, v{vPad}", f"s_branch K2_L{(u+1)%3}")
    if OPT.get("pg"): a(".p2align 12", "K2_STUB3:", "s_branch K2_RET3")
    a("K2_TEND:")
    st2(a, 7)
    if OPT.get("steps"):
        a("s_mov_b64 exec, -1", f"s_add_u32 s48, s44, {STAMP_OFF+(3<<20)}", "s_addc_u32 s49, s45, 0", "s_mov_b32 s50, 0x100000", "s_mov_b32 s51, 0x00020000",
          f"s_lshl_b32 s46, s{sBucket}, 2", f"s_add_u32 s46, s46, s{sWave}", "s_lshl_b32 s46, s46, 8",
          f"v_lshlrev_b32 v{vT1}, 2, v{vLane}", f"buffer_store_dword v{vT0}, v{vT1}, s[48:51], s46 offen", "s_waitcnt vmcnt(0)")
    n = epilogue(a, True)
    st2(a, 8)
    a(".p2align 3")
    body, n = align8([f"s_mov_b64 exec, s[{sValid}:{sValid+1}]"] + step(0, True, 11, 1))
    a(body, "s_branch K2_L1")
    a("K2_FINAL:")
    st2(a, 9)
    epilogue(a, False)
    st2(a, 10)
    if OPT.get("exp", 0): a(f"s_mov_b64 s[{sBad}:{sBad+1}], 0")
    a(f"s_mov_b64 exec, s[{sBad}:{sBad+1}]", f"ds_write_b32 v20, v21 offset:{L_FLAG}", "s_mov_b64 exec, -1")
    a("s_waitcnt lgkmcnt(0)", "s_barrier", f"ds_read_b32 v21, v20 offset:{L_FLAG}", "s_waitcnt lgkmcnt(0)", f"v_readfirstlane_b32 s{sTmp}, v21",
      f"s_cmp_lg_u32 s{sTmp}, 0", "s_cbranch_scc1 K2_SLOW")
    if OPT["stamps"]:
        a("K2_STOUT:", "s_waitcnt vmcnt(0)")
        st2(a, 11)
        if OPT.get("wso"): a(f"s_sub_u32 s44, s44, {OPT['wso'] << 20}", "s_subb_u32 s45, s45, 0")
        a(f"s_add_u32 s48, s44, {STAMP_OFF}", "s_addc_u32 s49, s45, 0", "s_mov_b32 s50, 0x100000", "s_mov_b32 s51, 0x00020000",
          f"s_lshl_b32 s46, s{sBucket}, 2", f"s_add_u32 s46, s46, s{sWave}", "s_lshl_b32 s46, s46, 8",
          f"v_accvgpr_read_b32 v20, a{aStamp}", "s_nop 0", [f"v_writelane_b32 v20, s{52+2*k}, {48+k}" for k in range(13 if OPT.get("ticks") else 0)], f"v_lshlrev_b32 v21, 2, v{vLane}", "buffer_store_dword v20, v21, s[48:51], s46 offen")
    a("K2_END:", "s_endpgm")
    a("K2_BUILD:", cpf if OPT.get("pfl") else [], "s_sub_u32 s93, s2, 250", "s_lshl_b32 s93, s93, 2", f"s_add_u32 s93, s93, s{sWave}")
    def bmid():
        a("s_waitcnt lgkmcnt(0)"); st2(a, 12)
        if OPT.get("wso"): a(f"s_add_u32 s44, s44, {OPT['wso'] << 20}", "s_addc_u32 s45, s45, 0")
    def bpost():
        a(init.l, ptrs, epoch); st2(a, 13); return 1
    gen_build(a, "KB", 93, lambda v, sr: a(f"buffer_store_dwordx4 {vr(v,4)}, v{vL16}, s[{sAux}:{sAux+3}], s{sr} offen sc1"), 80, bmid, bpost)
    st2(a, 14)
    a(consts.l, "s_waitcnt vmcnt(0) lgkmcnt(0)", mktag, f"v_mov_b32 v40, v{vTag+1}", f"v_mov_b32 v41, v{vTag}", f"v_mov_b32 v42, v{vTag+1}", f"v_mov_b32 v43, v{vTag}", "s_barrier")
    st2(a, 15); st2(a, 2)
    a(f"s_cmp_ge_u32 s{sWave}, 2", "s_cselect_b64 exec, 0, -1", f"buffer_store_dwordx4 v[40:43], v{vT16}, s[{sAux}:{sAux+3}], s47 offen sc1", "s_mov_b64 exec, -1")
    if OPT.get("bslp"): a(f"s_sleep {OPT['bslp']}")
    a("K2_WAITB:", f"s_movk_i32 s84, {TMO}")
    a("K2_WB1:", f"buffer_load_dwordx2 {vr(vE,2)}, v{vPB}, s[{sAux}:{sAux+3}], 0 offen sc1", "s_waitcnt vmcnt(0)", chk(),
      "s_cbranch_vccz K2_WGO", "s_sub_u32 s84, s84, 1", "s_cbranch_scc0 K2_WB1", "s_mov_b32 s32, 2", "s_branch K2_WGO")
    a("K2_RARE1:")
    for k in range(28, 40): a(load(k))
    a(f"v_cmp_lt_u32 vcc, 40, v{vCnt}", f"s_or_b64 s[{sBad}:{sBad+1}], s[{sBad}:{sBad+1}], vcc", "s_branch K2_P1")
    a("K2_RARE2:")
    for k in range(28, 40):
        a(f"v_cmpx_lt_u32 vcc, {k}, v{vCnt}", "s_nop 0", "s_cbranch_execz K2_P3", atom(k), "s_waitcnt lgkmcnt(0)", put(k))
    a("s_branch K2_P3")
    fixup(a, "T"); fixup(a, "F")
    gen_slow(a)

def gen_slow(a):
    tid, vStart, vCnt, vJ, vA = 0, 1, 2, 4, 5
    a("K2_SLOW:", "s_mov_b64 exec, -1", f"s_mov_b32 s94, s{sTmp}", "s_load_dwordx8 s[72:79], s[0:1], 32", "s_waitcnt vmcnt(0) lgkmcnt(0)", f"s_mov_b32 s{sX+2}, {X_BYTES}", "s_barrier")
    a(f"s_lshl_b32 s{sTmp}, s{sWave}, 6", f"v_add_u32 v{tid}, s{sTmp}, v{vLane}", f"v_lshlrev_b32 v23, 4, v{vLane}", f"v_add_u32 v23, {L_WS}, v23")
    a(f"s_mov_b32 s93, s{sWave}", "KS_BL:")
    gen_build(a, "KSB", 93, lambda v, sr: a(f"v_add_u32 v22, s{sr}, v23", f"ds_write_b128 v22, {vr(v,4)}"), 72)
    a("s_add_u32 s93, s93, 4", "s_cmp_lt_u32 s93, 24", "s_cbranch_scc1 KS_BL", "s_waitcnt lgkmcnt(0)", "s_barrier")
    a([f"ds_read_b128 {ar(4*f,4)}, v23 offset:{1024*f}" for f in range(NFRAG)])
    a("s_waitcnt lgkmcnt(0)", "s_barrier")
    a("KS_HAVE:", "s_load_dwordx8 s[72:79], s[0:1], 0")
    a(f"v_lshlrev_b32 v20, 11, v{tid}", f"s_lshl_b32 s{sTmp}, s{sBucket}, 3", f"s_add_u32 s{sTmp}, s{sTmp}, {TAB_REL}",
      f"buffer_load_dword v21, v20, s[{sAux}:{sAux+3}], s{sTmp} offen sc1")
    a("v_mov_b32 v24, 0", "v_mov_b32 v25, 0", "v_mov_b32 v26, 0", "v_mov_b32 v27, 0", f"v_lshlrev_b32 v22, 4, v{tid}", f"v_add_u32 v22, {L_TAB}, v22")
    for i in range(13): a(f"ds_write_b128 v22, v[24:27] offset:{4096*i}")
    a(selectors())
    a(f"v_mul_u32_u24 v{vStart}, {CH*12}, v{tid}", f"v_and_b32 v6, 31, v{vLane}", f"v_mul_u32_u24 v{vJ}, 12, v6", "v_lshlrev_b32 v6, 2, v6")
    a("s_waitcnt vmcnt(0) lgkmcnt(0)", "v_and_b32 v22, 0xfff, v21", f"v_bfe_u32 v{vCnt}, v21, 12, 12", f"v_mad_u32_u24 v{vStart}, v22, 12, v{vStart}", f"v_mul_u32_u24 v{vCnt}, 12, v{vCnt}", "s_barrier")
    srd(a, 56, 78, 79, E*4); srd(a, 60, 76, 77, E*4); srd(a, 64, 74, 75, E*8)
    a(f"s_mul_i32 s50, s{sBucket}, {NB*128}", f"s_mul_i32 s51, s{sBucket}, {NB}", "s_mov_b32 s46, 0", f"s_lshl_b32 s95, s{sWave}, 7")
    a("s_cmp_lt_u32 s94, 2", "s_cbranch_scc1 KS_SEG")
    a("KS_RAW:", f"s_cmp_ge_u32 s95, {E*4}", "s_cbranch_scc1 KS_DONE")
    a("buffer_load_dword v20, v6, s[56:59], s95 offen", "s_mov_b32 s96, s95", "s_add_u32 s95, s95, 512", "s_waitcnt vmcnt(0)",
      "v_subrev_u32 v20, s51, v20", f"v_cmp_gt_u32 vcc, {NB}, v20", "s_cbranch_vccz KS_RAW", f"s_mov_b64 s[{sValid}:{sValid+1}], vcc")
    a("s_lshl_b32 s97, s96, 1", "v_lshlrev_b32 v21, 1, v6", "buffer_load_dword v10, v6, s[60:63], s96 offen", "buffer_load_dwordx2 v[8:9], v21, s[64:67], s97 offen",
      "v_and_b32 v20, 0xff, v20", "v_lshlrev_b32 v20, 2, v20", "s_waitcnt vmcnt(0)", "v_lshl_or_b32 v10, v10, 16, v20", "s_branch KS_BODY")
    a("KS_SEG:", "s_nop 3", f"v_readlane_b32 s47, v{vStart}, s46", f"v_readlane_b32 s48, v{vCnt}, s46", "s_mov_b32 s49, 0")
    a("KS_GRP:", "s_cmp_ge_u32 s49, s48", "s_cbranch_scc1 KS_NEXT")
    a(f"v_add_u32 v20, s49, v{vJ}", f"v_cmp_gt_u32 s[{sValid}:{sValid+1}], s48, v20", "v_add_u32 v20, s47, v20")
    a(f"buffer_load_dwordx3 v[8:10], v20, s[{sRec}:{sRec+3}], 0 offen sc1", "s_waitcnt vmcnt(0)")
    a("KS_BODY:")
    a(mkoff(2), [gather(0, q) for q in range(4)])
    a("v_and_b32 v20, 0xffff, v10", f"v_lshl_add_u32 v{vOff}, v20, 5, v{vHalf}", f"v_add_u32 v{vOff}, s50, v{vOff}", [gather(2, q) for q in range(4)])
    a(f"v_lshlrev_b32 v{vA}, 6, v20", f"v_add_u32 v{vA}, v{vHalf}, v{vA}", f"v_add_u32 v{vA}, {L_TAB}, v{vA}")
    a("s_waitcnt vmcnt(0)")
    for b in range(4):
        a(q_mfmas(b))
        a(mf8(Q + 16*b, ar(WC(b), 2), "v[8:9]", vr(Q + 16*b, 16)))
        for q in range(4): a(mf16(Q + 16*b, ar(WA(b, q), 4), ar(RING[0] + 4*q, 4), vr(Q + 16*b, 16)))
    a(mf8(D, ar(B2F, 2), vr(SEL, 2), "0"), mf8(D + 16, ar(B2F, 2), vr(SEL + 2, 2), "0"), "s_nop 7", "s_nop 7")
    for i in range(64): a(f"v_exp_f32 v{NUM+i}, v{Q+i}")
    for i in range(64): a(f"v_add_f32 v{NUM+i}, 1.0, v{NUM+i}")
    for i in range(64): a(f"v_rcp_f32 v{NUM+i}, v{NUM+i}")
    for i in range(64): a(f"v_mul_f32 v{NUM+i}, v{NUM+i}, v{Q+i}")
    for i in range(32): a(f"v_cvt_pk_bf16_f32 v{DEN+i}, v{NUM+2*i}, v{NUM+2*i+1}")
    a("s_nop 1")
    for b in range(4):
        for m in range(2):
            for ob in range(2): a(mf16(D + 16*ob, ar(W2(b, m, ob), 4), vr(DEN + 8*b + 4*m, 4), vr(D + 16*ob, 16)))
    a("s_nop 7", "s_nop 7", f"s_mov_b64 exec, s[{sValid}:{sValid+1}]")
    for ob in range(2):
        for i in range(16): a(f"ds_add_f32 v{vA}, v{D+16*ob+i} offset:{4*(32*((i>>2)&1) + 4*(i&3) + 2*(i>>3) + ob)}")
    a("s_mov_b64 exec, -1", "s_waitcnt lgkmcnt(0)", "s_cmp_ge_u32 s94, 2", "s_cbranch_scc1 KS_RAW", f"s_add_u32 s49, s49, {32*12}", "s_branch KS_GRP")
    a("KS_NEXT:", "s_add_u32 s46, s46, 1", "s_cmp_lt_u32 s46, 64", "s_cbranch_scc1 KS_SEG")
    a("KS_DONE:", "s_waitcnt lgkmcnt(0)", "s_barrier")
    a(f"v_lshlrev_b32 v20, 5, v{tid}", f"v_add_u32 v20, {L_TAB}, v20", f"v_lshlrev_b32 v21, 4, v{tid}", "v_add_u32 v21, s50, v21")
    for i in range(7):
        if i == 6: a(f"v_cmp_gt_u32 vcc, {NB*8-1536}, v{tid}", "s_and_saveexec_b64 s[46:47], vcc", "s_cbranch_execz KS_END")
        a(f"ds_read_b128 v[24:27], v20 offset:{8192*i}", f"ds_read_b128 v[28:31], v20 offset:{8192*i+16}", "s_waitcnt lgkmcnt(0)")
        for j in range(4): a(f"v_cvt_pk_bf16_f32 v{32+j}, v{24+2*j}, v{25+2*j}")
        a(f"buffer_store_dwordx4 v[32:35], v21, s[{sOut}:{sOut+3}], 0 offen", "s_nop 1", "v_add_u32 v21, 4096, v21")
    a("KS_END:", "s_endpgm")

def kd(name, vgpr, accum, sgpr=102):
    return f""".amdhsa_kernel {name}
  .amdhsa_next_free_vgpr {vgpr}
  .amdhsa_next_free_sgpr {sgpr}
  .amdhsa_accum_offset {accum}
  .amdhsa_group_segment_fixed_size 0
  .amdhsa_kernarg_size 88
  .amdhsa_user_sgpr_count 2
  .amdhsa_user_sgpr_kernarg_segment_ptr 1
  .amdhsa_system_sgpr_workgroup_id_x 1
  .amdhsa_float_denorm_mode_32 3
.end_amdhsa_kernel
"""

def generate(**opt):
    OPT.update(opt)
    ref = open("standalone__edge_featured_mpnn_mpnn__graph.s.ref").read().split("\n")
    head = [x for x in ref if x.startswith(";") and "@launch" not in x and not x.startswith("; Override") and not x.startswith("; grid=")]
    head += """; Edge-featured MPNN layer in one launch, one workgroup (4 waves, 512 registers each) per CU.
;  1. workgroups 0..249 split 3200 edges each by destination bucket (196 nodes) and hand the sorted records over through d_ws;
;     workgroups 250..255 build the MFMA weight fragments (w1, b1 scaled by -log2(e), w2 by -ln(2)).
;     Hand-off: write-through stores, drain, barrier, then a table row tagged with (epoch word of d_ws) + 1.
;  2. every workgroup collects its bucket, files the records per node in LDS, ranks the nodes by degree and maps them to
;     8 tiles of 32 columns (long lists are split over two columns).
;  3. per tile and step, t = -log2(e) * (pre-activation) comes from MFMAs; sum_i t_i / (1 + 2^t_i) is kept as one fraction
;     num / den per element; second layer, degree * b2 and the store follow once per tile.
;  A generic path (per-edge MLP, f32 sums in LDS) takes over for a bucket when a list is too long, when den or the result
;  leaves the float range, or (from the raw edge list) when the hand-off does not complete.""".split("\n")
    head += [f"; @launch {'kernel=' + KNAME + ' ' if OPT.get('aslist') else ''}grid=(256,1,1) block=(256,1,1) lds={K2_LDS}"]
    a = Asm()
    a('.amdgcn_target "amdgcn-amd-amdhsa--gfx950"', ".text", f".globl {KNAME}", f".type {KNAME},@function")
    gen_k2(a)
    return "\n".join(head) + "\n" + a.text() + '.section .rodata,"a"\n.p2align 6\n' + kd(KNAME, 512, 256)

if __name__ == "__main__":
    out = sys.argv[1] if len(sys.argv) > 1 else "standalone__edge_featured_mpnn_mpnn__graph.s"
    opt = {}
    for x in sys.argv[2:]:
        k, v = x.split("="); opt[k] = int(v) if v.lstrip("-").isdigit() else v.replace("+", " ")
    open(out, "w").write(generate(**opt))
```

```python
import re, sys, struct, math

N, E = 50000, 800000
NB = 196
CH = 3200
NCH = 250
CAP = 43
REC_BYTES = E * 12
FRAG_OFF = REC_BYTES
NFRAG = 51
FRAG_BYTES = NFRAG * 1024
EPO_REL = 52 * 1024
TAB_REL = 53 * 1024
AUX_BYTES = TAB_REL + 256 * 2048
KNAME = "standalone__edge_featured_mpnn_mpnn__graph_kernel"
STAMP_OFF = 16 << 20
X_BYTES = N * 128

def f32(x): return "0x%08x" % struct.unpack("<I", struct.pack("<f", x))[0]
NLOG2E = f32(-math.log2(math.e))
NLN2 = f32(-math.log(2.0))

OPT = dict(stamps=False, force_slow=False, k1st="sc1", outst="sc1", late=4, onewait=0, pg=1)

class Asm:
    def __init__(self): self.l = []
    def __call__(self, *xs):
        for x in xs:
            if isinstance(x, (list, tuple)): self(*x)
            else:
                for y in x.split("\n"):
                    y = y.strip()
                    if y: self.l.append(y)
    def text(self):
        return "\n".join((x if (x.endswith(":") or x.startswith(".")) else "    " + x) for x in self.l) + "\n"

def vr(b, n): return f"v[{b}:{b+n-1}]"
def ar(b, n): return f"a[{b}:{b+n-1}]"

def srd(a, s, lo, hi, nrec):
    a(f"s_mov_b32 s{s}, s{lo}", f"s_mov_b32 s{s+1}, s{hi}", f"s_mov_b32 s{s+2}, {nrec}", f"s_mov_b32 s{s+3}, 0x00020000")

def wave_scan(a, v):
    for sh in (1, 2, 4, 8):
        a("s_nop 1", f"v_add_u32_dpp v{v}, v{v}, v{v} row_shr:{sh} row_mask:0xf bank_mask:0xf")
    a("s_nop 1", f"v_add_u32_dpp v{v}, v{v}, v{v} row_bcast:15 row_mask:0xa bank_mask:0xf")
    a("s_nop 1", f"v_add_u32_dpp v{v}, v{v}, v{v} row_bcast:31 row_mask:0xc bank_mask:0xf")

def isize(x):
    if x.endswith(":") or x.startswith("."): return 0
    op = x.split()[0]
    rest = x[len(op):]
    def lit():
        for tok in re.split(r"[,\s]+", rest):
            if re.fullmatch(r"-?(0x[0-9a-fA-F]+|\d+)", tok):
                v = int(tok, 0)
                if not (-16 <= v <= 64): return True
        return False
    if op in ("s_waitcnt", "s_nop", "s_barrier", "s_branch", "s_endpgm", "s_setprio") or op.startswith("s_cbranch"): return 4
    if op.startswith(("s_load", "s_memtime", "s_memrealtime")): return 8
    if op.startswith(("s_movk", "s_cmpk", "s_addk")): return 4
    if op.startswith("s_"): return 8 if lit() else 4
    if op.startswith(("buffer_", "ds_", "global_", "v_mfma", "v_pk_", "v_accvgpr_read", "v_accvgpr_write")): return 8
    if op.endswith("_e64") or op.endswith("_dpp") or op.endswith("_sdwa"): return 8
    vop3 = ("v_mad_", "v_fma_", "v_max3", "v_min3", "v_cvt_pk_bf16", "v_lshl_add", "v_lshl_or", "v_bfe", "v_add3", "v_and_or",
            "v_readlane", "v_writelane", "v_maximum3", "v_bfi", "v_mul_lo", "v_mul_hi", "v_add_lshl", "v_perm_b32", "v_or3")
    if op.startswith(vop3): return 8
    if op.startswith("v_cmp"):
        if not rest.strip().startswith("vcc"): return 8
        return 8 if lit() else 4
    if op == "v_cndmask_b32" and not rest.strip().endswith("vcc"): return 8
    return 8 if lit() else 4

PROMOTE = ("v_exp_f32 ", "v_rcp_f32 ", "v_mul_f32 ", "v_mov_b32 ", "v_lshrrev_b32 ", "v_add_u32 ", "v_lshlrev_b32 ")
def align8(lines):
    o = sum([x.split("\n") for x in lines], []); pos = 0; last = None
    for i, x in enumerate(o):
        s = isize(x)
        if x.startswith("v_pk_") and pos % 8 == 4:
            assert last is not None, "cannot align " + x
            op = o[last].split()[0]; o[last] = o[last].replace(op, op + "_e64", 1); pos += 4; last = None
        if x.startswith(PROMOTE) and s == 4: last = i
        elif x.startswith("v_pk_"): last = None
        pos += s
    return o, pos

L_CNT, L_HIST, L_FLAG, L_RANK, L_OUTO, L_XR = 0, 1024, 1280, 1536, 3200, 4224
L_WS = L_XR + NB * 128
L_TAB = L_WS + 32 * 1024
P1_CNT, P1_BASE, P1_STG = 5120, 6144, 7168
ESZ = 12
K2_LDS = L_TAB + NB * CAP * ESZ

Q, NUM, DEN, D, EE = 16, 80, 144, 208, 240
ENT = (0, 4, 8)
vOff, vLds, vHalf, vPad, vLane, vT0, vT1 = 3, 7, 11, 12, 13, 14, 15
RING = (204, 220, 236)
aInfo, aNextL, aNextI, aStamp = 252, 253, 254, 255
def WA(b, q): return 4 * (4 * b + q)
def WC(b): return 128 + 2 * b
B1F, B2F = 136, 138
def WB(b, q): return 140 + 4 * (4 * b + q)
def W2(b, m, ob): return 64 + 4 * (4 * b + 2 * m + ob)
sX, sOut, sRec, sAux = 4, 8, 12, 16
sWave, sBucket, s128, sC, sStage, sTile, sL, sTmp, sTmp2, sP2B = 20, 21, 22, 23, 24, 25, 26, 27, 28, 29
sValid, sBad, sSave, sP2A = 30, 34, 36, 38
sMask0 = 52
TILE_A = [(0, 0, 30), (2, 0, 76), (2, 2, 104), (2, 4, 132)]
TILE_B = [(16, 160, 0), (14, 62, 192), (12, 18, 184), (12, 6, 176)]
assert all(t[0] % 2 == 0 and t[0] <= 4 for t in TILE_A) and all(t[0] % 2 == 0 and t[0] >= 12 for t in TILE_B)
def _check_map():
    seen = []
    for P, rp, rs in TILE_A + TILE_B: seen += list(range(rp, rp + P)) + list(range(rs, rs + 32 - 2*P))
    assert sorted(seen) == list(range(NB))
_check_map()

def pkfma(d, x, y, z): return f"v_pk_fma_f32 {vr(d,2)}, {vr(x,2)}, {vr(y,2)}, {vr(z,2)}"
def pkmul(d, x, y): return f"v_pk_mul_f32 {vr(d,2)}, {vr(x,2)}, {vr(y,2)}"
def mf16(d, A, B, c): return f"v_mfma_f32_32x32x16_bf16 {vr(d,16)}, {A}, {B}, {c}"
def mf8(d, A, B, c): return f"v_mfma_f32_32x32x8_bf16 {vr(d,16)}, {A}, {B}, {c}"

def edge_mfmas(b, dst, u):
    o = [mf8(dst, ar(WC(b), 2), vr(ENT[u], 2), vr(Q + 16*b, 16))]
    for q in range(4): o.append(mf16(dst, ar(WA(b, q), 4), ar(RING[u] + 4*q, 4), vr(dst, 16)))
    return o
def gather(u, q): return f"buffer_load_dwordx4 {ar(RING[u]+4*q,4)}, v{vOff}, s[{sX}:{sX+3}], 0 offen offset:{16*q}"
def mkoff(u): return f"v_mad_u32_u16 v{vOff}, v{ENT[u]+2}, s{s128}, v{vHalf} op_sel:[1,0,0,0]"
def entry(u, off):
    if OPT.get("e2"): return f"ds_read2_b32 {vr(ENT[u],2)}, v{vLds} offset0:{off//4} offset1:{off//4+1}\nds_read_b32 v{ENT[u]+2}, v{vLds} offset:{off+8}"
    return f"ds_read_b96 {vr(ENT[u],3)}, v{vLds} offset:{off}"

def interleave(v, m, gap=3, start=0):
    o = []; k = 0
    for i, x in enumerate(v):
        if k < len(m) and i == start + k * gap: o.append(m[k]); k += 1
        o.append(x)
    return o + m[k:]

def icost(x):
    if x.startswith(("v_exp", "v_rcp", "v_mfma_f32_32x32x16")): return 8
    if x.startswith("buffer_"): return 12
    if x.startswith("ds_"): return 8
    return 4
def weave(fill, mf):
    o = []; k = 0; since = 99
    for i, x in enumerate(fill):
        if k < len(mf) and since >= 32 and i >= mf[k][1]:
            o.append(mf[k][0]); since = icost(mf[k][0]); k += 1
        o.append(x); since += icost(x)
    return o + [m for m, _ in mf[k:]]

def step(u, first, vm=3, b0=0):
    o = []
    nx, pre = (u + 1) % 3, (u + 2) % 3
    for b in range(b0, 4):
        n, dn = NUM + 16*b, DEN + 16*b
        t = n if first else D + 16*(b & 1)
        e = dn if first else EE
        ex = [f"v_exp_f32 v{e+i}, v{t+i}" for i in range(16)]
        if b < 3: m = edge_mfmas(b + 1, NUM + 16*(b+1) if first else D + 16*((b+1) & 1), u)
        else: m = edge_mfmas(0, D, nx)
        A = interleave(ex, m)
        if OPT.get("m16") and not first:
            bn = (b + 1) % 4; un = u if b < 3 else nx; dst = D + 16*((b+1) & 1); m = []
            for j in range(4): m.append(f"v_mfma_f32_16x16x16_bf16 {vr(dst+4*j,4)}, {ar(WC(bn),2)}, {vr(ENT[un],2)}, {vr(Q+16*bn+4*j,4)}")
            for k in range(2):
                for j in range(4): m.append(f"v_mfma_f32_16x16x32_bf16 {vr(dst+4*j,4)}, {ar(WA(bn, 2*(j>>1)+k),4)}, {ar(RING[un]+4*(2*(j&1)+k),4)}, {vr(dst+4*j,4)}")
            A = []
            for i in range(16):
                if i < 12: A.append(m[i])
                A.append(ex[i])
            if OPT["m16"] == 2:
                A = [m[0], ex[0], ex[1], m[1], ex[2], m[2], ex[3], ex[4], m[3], ex[5]] + sum([[m[4+i], ex[6+i]] for i in range(8)], []) + ex[14:]
        if OPT.get("onewait") == 1: A = [m[0]] + ex[:2] + interleave(ex[2:], m[1:])
        mid, end = [gather(pre, b)], []
        if b == 0 and not first: end = [f"v_cmpx_gt_i32 vcc, s{sC}, v{vPad}"]
        if b == 1:
            if not first: end = [f"s_sub_u32 s{sC}, s{sC}, 1"]
            if b0: mid, end = [gather(pre, 0)], [gather(pre, 1)]
        if b == 2:
            if OPT.get("onewait") == 2: A = [m[0]] + ex[:2] + [entry(u, 36 + ESZ*u)] + interleave(ex[2:], m[1:])
            elif OPT.get("onewait") == 4: A = A[:18] + [entry(u, 36 + ESZ*u)] + A[18:]
            elif OPT.get("onewait") == 1: A = A[:6] + [entry(u, 36 + ESZ*u)] + A[6:]
            else: end = [entry(u, 36 + ESZ*u)]
        if b == 3:
            if OPT.get("onewait", 0) >= 3 and not first: A = A[:4] + [f"s_waitcnt vmcnt({vm+1}) lgkmcnt(0)"] + A[4:]
            else: mid = [f"s_waitcnt vmcnt({vm}) lgkmcnt(0)"] + mid if OPT.get("onewait") else [f"s_waitcnt vmcnt({vm})"] + mid
            end = ([] if OPT.get("onewait") else ["s_waitcnt lgkmcnt(0)"]) + [mkoff(u)]
            if u == 2: end += [f"v_add_u32 v{vLds}, 36, v{vLds}"]
            if OPT.get("steps"): end += [f"v_writelane_b32 v{vT0}, s100, m0", "s_mov_b32 s99, m0", "s_addk_i32 s99, 1" if first else "s_cselect_b32 s98, 1, 0\ns_addk_i32 s99, 1\ns_cmp_lg_u32 s98, 0", "s_mov_b32 m0, s99"]
        if b == 2 and OPT.get("steps"): end = end + ["s_memtime s[100:101]"]
        if first:
            p = [f"v_pk_add_f32 {vr(dn+i,2)}, {vr(dn+i,2)}, 1.0 op_sel_hi:[1,0]" for i in range(0, 16, 2)]
        else:
            p = [pkfma(n+i, n+i, EE+i, n+i) for i in range(0, 16, 2)]
            p += [pkfma(n+i, t+i, dn+i, n+i) for i in range(0, 16, 2)]
            p += [pkfma(dn+i, dn+i, EE+i, dn+i) for i in range(0, 16, 2)]
        if not first and OPT.get("pkord", 0):
            pa, pb, pc = p[:8], p[8:16], p[16:]
            if OPT["pkord"] == 1: p = sum([[pa[i], pb[i], pc[i]] for i in range(8)], [])
            if OPT["pkord"] == 2:
                p = [pa[0]]
                for i in range(8): p += ([pa[i+1]] if i < 7 else []) + [pb[i], pc[i]]
            if OPT["pkord"] == 3:
                p = [pkfma(n+i, EE+i, n+i, n+i) for i in range(0, 16, 2)] + [pkfma(n+i, dn+i, t+i, n+i) for i in range(0, 16, 2)] + [pkfma(dn+i, EE+i, dn+i, dn+i) for i in range(0, 16, 2)]
        blk = A[:2] + mid + A[2:] + end + p
        if OPT.get("x8l") and not first:
            c0 = m[0].split(", ")[-1]; dd = m[1].split(", ")[-1]
            mm = [", ".join(m[1].split(", ")[:-1] + [c0]), m[2], m[3], m[4], ", ".join(m[0].split(", ")[:-1] + [dd])]
            ld = gather(pre, b)
            head = [f"s_waitcnt vmcnt({vm})"] if b == 3 else []
            f1 = {0: [], 1: end, 2: [], 3: end[:1]}[b]; f2 = {0: end, 1: [], 2: end, 3: end[1:]}[b]
            n4 = OPT["x8l"]
            blk = head + interleave(ex[:9], mm[:3]) + [mm[3], ex[9], ld] + ex[10:9+n4] + f1 + [mm[4]] + ex[9+n4:] + f2 + p
        x = OPT.get("exp", 0)
        if not first:
            if x & 1: blk = [("s_nop 1" if i.startswith("v_mfma") else i) for i in blk]
            if x & 2: blk = [("s_nop 0" if i.startswith("v_pk") else i) for i in blk]
            if x & 4: blk = [("s_nop 1" if (i.startswith("v_exp") and not i.endswith(f"v{t+15}")) else i) for i in blk]
            if x & 8: blk = [("s_nop 1" if i.startswith("buffer_load") else i) for i in blk]
            if x & 16:
                c0 = m[0].split(", ")[-1]
                blk = [("s_nop 0" if i == m[0] else (", ".join(i.split(", ")[:-1] + [c0]) if i == m[1] else i)) for i in blk]
            if x & 64: blk = [("s_nop 1" if i == m[4] else i) for i in blk]
            if x & 128: blk = [("s_nop 1" if i in (m[3], m[4]) else i) for i in blk]
            if x & 256:
                blk = [("v_pk_mov_b32 v[14:15], v[14:15], v[14:15]" if i in p[:8] else i) for i in blk]
            if x & 512: blk = [("v_pk_mov_b32 v[14:15], v[14:15], v[14:15]" if i in p[8:16] else i) for i in blk]
        o += blk
    return o

SEL = EE + 4
def selectors():
    return [f"v_mov_b32 v{SEL}, 0x3f80", f"v_mov_b32 v{SEL+1}, 0", f"v_mov_b32 v{SEL+2}, 1.0", f"v_mov_b32 v{SEL+3}, 0",
            f"v_mov_b32 v{SEL+4}, 0", f"v_mov_b32 v{SEL+5}, 0x3f80", f"v_mov_b32 v{SEL+6}, 0", f"v_mov_b32 v{SEL+7}, 1.0"]
def q_mfmas(b, dst=Q, rows=lambda q: ar(RING[2] + 4*q, 4)):
    o = [mf8(dst + 16*b, ar(B1F, 2), vr(SEL + 2*b, 2), "0")]
    for q in range(4): o.append(mf16(dst + 16*b, ar(WB(b, q), 4), rows(q), vr(dst + 16*b, 16)))
    return o
def hdr_reads(vinfo, tmp, rows=lambda q: ar(RING[2] + 4*q, 4)):
    o = [f"v_and_b32 v{tmp[0]}, 0xffff, v{vinfo}", f"ds_read_b128 {rows(0)}, v{tmp[0]} offset:{L_XR}"]
    for q in range(1, 4): o += [f"v_xor_b32 v{tmp[q]}, {16*q}, v{tmp[0]}", f"ds_read_b128 {rows(q)}, v{tmp[q]} offset:{L_XR}"]
    return o
def tile_scalars(vinfo, sp2):
    return [f"v_lshrrev_b32 v{vPad}, 16, v{vinfo}", f"s_movk_i32 s{sStage}, {0 if sp2 == sP2A else 128}",
            f"v_readlane_b32 s{sL}, v{vPad}, 0", f"v_readlane_b32 s{sTmp}, v{vPad}, s{sp2}", f"v_cmp_lt_u32 s[{sValid}:{sValid+1}], 0, v{vPad}",
            f"s_max_u32 s{sL}, s{sL}, s{sTmp}", f"s_max_u32 s{sL}, s{sL}, 4", f"s_sub_u32 s{sC}, s{sL}, 4", f"s_sub_u32 s{sL}, s{sL}, 3",
            f"v_sub_u32 v{vPad}, s{sL}, v{vPad}"]

def epilogue(a, nxt):
    lab = "T" if nxt else "F"
    CHK, AD, P = EE + 12, DEN + 24, DEN + 32
    so = OPT.get("outst", "") if nxt else OPT.get("outstf", OPT.get("outst", ""))
    a("s_mov_b64 exec, -1", f"s_cmp_lg_u64 s[{sValid}:{sValid+1}], -1", f"s_cbranch_scc1 K2_{lab}FIX", ".p2align 3", f"K2_{lab}GO:")
    o = [f"v_accvgpr_read_b32 v{EE+2}, a{aInfo}"]
    if nxt:
        o = [f"v_accvgpr_read_b32 v{vLds}, a{aNextL}", f"v_accvgpr_read_b32 v{vT0}, a{aNextI}", f"ds_read_b32 v{ENT[0]+2}, v{vLds} offset:8"] + o
        o += [f"s_mov_b32 s{sX+2}, {X_BYTES}"]
    o += [f"v_lshrrev_b32 v{EE+2}, 16, v{EE+2}", f"v_cvt_f32_u32 v{EE+2}, v{EE+2}", f"v_mov_b32 v{EE+1}, 0", f"v_mov_b32 v{EE+3}, 0", f"v_lshrrev_b32 v{EE}, 16, v{EE+2}"]
    def chk(b):
        dn = DEN + 16*b
        return [(pkmul(CHK, dn, dn + 8) if (b == 0 and i == 0) else pkfma(CHK, dn+i, dn+8+i, CHK)) for i in range(0, 8, 2)]
    def cvt(b): return [f"v_cvt_pk_bf16_f32 v{DEN+16*b+i//2}, v{NUM+16*b+i}, v{NUM+16*b+i+1}" for i in range(0, 16, 2)]
    def w2(b): return [mf16(D + 16*ob, vr(DEN + 16*b + 4*m, 4), ar(W2(b, m, ob), 4), vr(D + 16*ob, 16)) for m in range(2) for ob in range(2)]
    tk = [0]
    def tick():
        if OPT.get("ticks") == 1 and nxt: o.append(f"s_memtime s[{52+2*tk[0]}:{53+2*tk[0]}]"); tk[0] += 1
    if OPT.get("ticks") == 1 and nxt: o.insert(0, "s_memtime s[52:53]"); tk[0] = 1
    o += chk(0)
    JS = list(range(8)) if nxt else [0, 2, 4, 6, 7]
    ad = lambda j: AD + 4*(j & 1) + (j >> 1)
    oread = [f"v_lshrrev_b32 v{vT1}, 4, v{vLane}", f"v_lshl_add_u32 v{vT1}, v{vT1}, 5, s{sTile}", f"ds_read_b128 {vr(AD,4)}, v{vT1} offset:{L_OUTO}",
             f"ds_read_b128 {vr(AD+4,4)}, v{vT1} offset:{L_OUTO+16}" if nxt else f"ds_read_b32 v{AD+7}, v{vT1} offset:{L_OUTO+28}",
             f"v_and_b32 v{vT1}, 15, v{vLane}"]
    oadd = [f"v_lshl_add_u32 v{ad(j)}, v{vT1}, 3, v{ad(j)}" for j in JS]
    lim = [f"v_lshrrev_b32 v{EE}, 4, v{vHalf}", f"v_sub_u32 v{EE}, s{sP2A if nxt else sP2B}, v{EE}"]
    ts = tile_scalars(vT0, sP2B)
    Q4 = [q_mfmas(k) for k in range(4)]
    for b in range(4):
        n, dn = NUM + 16*b, DEN + 16*b
        rc = [f"v_rcp_f32 v{dn+i}, v{dn+i}" for i in range(16)]
        pre = cvt(b - 1) if b else []
        if b == 0: mf = [(mf8(D, vr(EE, 2), ar(B2F, 2), "0"), 0), (mf8(D + 16, vr(EE + 2, 2), ar(B2F, 2), "0"), 0)]
        else: mf = [(x, 6 if k < 2 else 10) for k, x in enumerate(w2(b - 1))]
        if nxt and OPT.get("qb"):
            qr = [f"v_accvgpr_read_b32 v{Q+16*b+i}, a{WB(b,0)+i}" for i in range(16)]
            ex = {0: ["s_waitcnt lgkmcnt(0)", mkoff(0), gather(0, 0), f"ds_read2_b32 {vr(ENT[0],2)}, v{vLds} offset0:0 offset1:1", entry(1, ESZ), entry(2, 2*ESZ), gather(0, 1)],
                  1: [gather(0, 2), f"v_accvgpr_write_b32 a{aInfo}, v{vT0}"] + lim + ts + [gather(0, 3)],
                  2: ["s_waitcnt lgkmcnt(0)", mkoff(1)] + oread + [gather(1, 0), f"s_add_u32 s{sTile}, s{sTile}, 128"],
                  3: [gather(1, 1), "s_waitcnt lgkmcnt(0)", f"v_add_f32 v{CHK}, v{CHK}, v{CHK+1}"] + oadd + [gather(1, 2)]}[b]
            fill = pre + interleave(rc, ex, 2 if b == 0 else 1, 1)
            if b < 3: fill += qr
            else:
                fm = edge_mfmas(0, NUM, 0); k = len(fill) - 19
                assert fill.index(gather(1, 1)) < k < fill.index(gather(1, 2))
                fill = fill[:k] + ["s_waitcnt vmcnt(2)"] + fill[k:]
                mf = [(fm[0], 0)] + mf + [(x, k + 1) for x in fm[1:]]
        elif nxt:
            if b == 0:
                fill = selectors() + ["s_waitcnt lgkmcnt(0)", mkoff(0), gather(0, 0)] + rc[:9] + ["s_waitcnt vmcnt(1)"] + \
                       interleave(hdr_reads(vT0, [vT1, vPad, EE+14, EE+15]), rc[9:13], 2, 2) + [gather(0, 1)] + rc[13:]
                mf = mf + [(Q4[k][0], 10) for k in range(4)]
            else:
                ex = {1: [f"ds_read2_b32 {vr(ENT[0],2)}, v{vLds} offset0:0 offset1:1", entry(1, ESZ), gather(0, 2), entry(2, 2*ESZ), f"v_accvgpr_write_b32 a{aInfo}, v{vT0}"] + lim + [gather(0, 3)],
                      2: ["s_waitcnt lgkmcnt(0)", mkoff(1)] + oread + [gather(1, 0), f"s_add_u32 s{sTile}, s{sTile}, 128"] + ts[:5],
                      3: [gather(1, 1), "s_waitcnt lgkmcnt(0)", f"v_add_f32 v{CHK}, v{CHK}, v{CHK+1}"] + oadd + [gather(1, 2)]}[b]
                fill = pre + interleave(rc, ex, 1, 1)
                if b == 1:
                    fill = ["s_waitcnt lgkmcnt(0)"] + fill
                    mf = [(x, 1) for x in Q4[0][1:]] + mf + [(Q4[2][1], 0)]
                elif b == 2: mf = [(x, 0) for x in Q4[1][1:]] + mf + [(Q4[2][2], 0)]
                else:
                    fm = edge_mfmas(0, NUM, 0); k = len(fill) - 19
                    assert fill.index(gather(1, 1)) < k < fill.index(gather(1, 2))
                    fill = fill[:k] + ["s_waitcnt vmcnt(2)"] + fill[k:]
                    mf = [(fm[0], 0)] + mf + [(x, k + 1) for x in fm[1:]]
        else:
            fill = pre + rc
        tick()
        o += weave(fill, mf)
        tick()
        mu = [pkmul(n+i, n+i, dn+i) for i in range(0, 16, 2)]
        o += interleave(mu, chk(b + 1), 2, 1) if b < 3 else mu
    wm = w2(3)
    c3 = cvt(3)
    mx = lambda j: f"v_maximum3_f32 v{CHK}, v{CHK}, |v{D+2*j}|, |v{D+2*j+1}|"
    bad = [f"v_cmp_ngt_f32 vcc, {f32(2.0**126)}, v{CHK}", f"s_or_b64 s[{sBad}:{sBad+1}], s[{sBad}:{sBad+1}], vcc"]
    def outp(js, tail):
        r = []; tail = list(tail)
        for k in range(len(js) + 2):
            if k < len(js):
                j = js[k]; r += [f"v_cvt_pk_bf16_f32 v{P+2*j}, v{D+2*j}, v{D+16+2*j}", f"v_cvt_pk_bf16_f32 v{P+2*j+1}, v{D+2*j+1}, v{D+17+2*j}"]
            else: r += tail[:2]; tail = tail[2:]
            if 1 <= k <= len(js): j = js[k-1]; r += [f"v_permlane16_swap_b32 v{P+2*j}, v{P+2*j+1}"]
            if k >= 2: j = js[k-2]; r += [f"buffer_store_dwordx2 {vr(P+2*j,2)}, v{ad(j)}, s[{sOut}:{sOut+3}], 0 offen {so}"]
        return r + tail
    if nxt:
        q3 = q_mfmas(3); n1 = edge_mfmas(1, NUM + 16, 0)
        tick()
        if OPT.get("qb"):
            o += weave(c3 + [f"v_exp_f32 v{DEN+i}, v{NUM+i}" for i in range(16)] + [gather(1, 3), mkoff(2)], [(wm[0], 6), (wm[1], 6), (wm[2], 10), (wm[3], 10)])
            q3 = [0]; bad = bad + qr
        else:
            o += weave(c3 + [f"v_exp_f32 v{DEN+i}, v{NUM+i}" for i in range(16)] + [gather(1, 3), mkoff(2)] + ts[5:],
                       [(Q4[2][3], 0), (wm[0], 6), (wm[1], 6), (wm[2], 10), (wm[3], 10), (Q4[2][4], 0)])
        tick()
        o += [f"v_pk_add_f32 {vr(DEN+i,2)}, {vr(DEN+i,2)}, 1.0 op_sel_hi:[1,0]" for i in range(0, 16, 2)]
        o += [f"v_cmpx_lt_i32_e64 vcc, 0, v{EE}"] + [f"v_pk_add_f32 {vr(D+16*ob,2)}, {vr(D+16*ob,2)}, {vr(D+16*ob+2,2)}" for ob in range(2)] + ["s_mov_b64 exec, -1"]
        tick()
        o += weave(outp(JS, [mx(j) for j in range(8)] + bad), [(x, 1) for x in n1 + q3[1:]])
        tick()
    else:
        o += c3[:6] + [wm[0]] + c3[6:] + oread[:3] + [wm[2]] + oread[3:] + lim + [f"v_add_f32 v{CHK}, v{CHK}, v{CHK+1}", wm[1], "s_nop 2", "s_waitcnt lgkmcnt(0)"] + oadd[:2] + [wm[3]] + oadd[2:]
        pa = lambda ob, g: f"v_pk_add_f32 {vr(D+16*ob+4*g,2)}, {vr(D+16*ob+4*g,2)}, {vr(D+16*ob+4*g+2,2)}"
        o += ["v_mov_b32 v20, 0", "v_mov_b32 v21, 1", "s_nop 3"] + [pa(0, g) for g in range(3)] + [pa(1, g) for g in range(3)]
        o += [f"v_cmpx_lt_i32_e64 vcc, 24, v{EE}", pa(0, 3), pa(1, 3), "s_mov_b64 exec, -1"]
        o += outp(JS, [mx(j) for j in JS] + bad)
    o, n = align8(o)
    a(o)
    return n

def fixup(a, lab):
    a(f"K2_{lab}FIX:", f"s_andn2_b64 exec, -1, s[{sValid}:{sValid+1}]")
    for i in range(64): a(f"v_mov_b32 v{NUM+i}, 0", f"v_mov_b32 v{DEN+i}, 1.0")
    a("s_mov_b64 exec, -1", f"s_branch K2_{lab}GO")

def st2(a, idx):
    if OPT.get("lite"):
        if idx == 0: a("s_memrealtime s[100:101]")
        if idx == 11: a("s_memrealtime s[50:51]", f"v_mov_b32 v{vT1}, 0", "s_waitcnt lgkmcnt(0)", f"v_writelane_b32 v{vT1}, s100, 16", f"v_writelane_b32 v{vT1}, s50, 27", "s_nop 0", f"v_accvgpr_write_b32 a{aStamp}, v{vT1}")
    elif OPT["stamps"]:
        a("s_memtime s[100:101]", "s_memrealtime s[50:51]", "s_mov_b64 s[48:49], exec", "s_mov_b64 exec, -1", f"v_accvgpr_read_b32 v{vT1}, a{aStamp}", "s_waitcnt lgkmcnt(0)", "s_nop 0",
          f"v_writelane_b32 v{vT1}, s100, {idx}", f"v_writelane_b32 v{vT1}, s50, {idx+16}", f"v_writelane_b32 v{vT1}, s{sL}, {idx+32}", "s_nop 0", f"v_accvgpr_write_b32 a{aStamp}, v{vT1}", "s_mov_b64 exec, s[48:49]")

def gen_build(a, lab, g, store, P, mid=None, post=None):
    R1, R2, R3, T = 64, 72, 80, 96
    for r_, n_ in ((56, 132*128*2), (60, 256), (64, 128*64*2), (68, 128)): a(f"s_mov_b32 s{r_+2}, {n_}", f"s_mov_b32 s{r_+3}, 0x00020000")
    a(f"v_and_b32 v{T}, 31, v{vLane}", f"v_lshrrev_b32 v{T+1}, 5, v{vLane}",
      f"v_lshlrev_b32 v{T+2}, 13, v{T+1}", f"v_lshl_add_u32 v{T+2}, v{T}, 1, v{T+2}",
      f"v_and_b32 v{T+5}, 15, v{T}", f"v_lshrrev_b32 v{T+4}, 4, v{T}", f"v_lshl_or_b32 v{T+5}, v{T+5}, 1, v{T+4}", f"v_lshlrev_b32 v{T+5}, 2, v{T+5}",
      f"v_lshl_add_u32 v{T+3}, v{T+1}, 9, v{T+5}", f"v_lshlrev_b32 v{T+4}, 1, v{T}", f"v_cmp_eq_u32 s[88:89], 1, v{T+1}")
    def w1(f, off, dst):
        a(f"s_and_b32 s{off}, s{f}, 3", f"s_lshl_b32 s{off}, s{off}, 11", f"s_bfe_u32 s99, s{f}, 0x20002", "s_lshl_b32 s99, s99, 6", f"s_add_u32 s{off}, s{off}, s99",
          f"s_lshr_b32 s99, s{f}, 4", f"s_mul_i32 s{dst}, s99, 19", "s_lshl_b32 s99, s99, 14", f"s_add_u32 s{off}, s{off}, s99", f"s_add_u32 s{dst}, s{dst}, s{f}", f"s_lshl_b32 s{dst}, s{dst}, 10")
    w1(g, 95, 90)
    a(f"s_add_u32 s98, s{g}, 24"); w1(98, 96, 91)
    a(f"s_sub_u32 s99, s{g}, 8", "s_add_u32 s98, s99, 16", "s_lshl_b32 s98, s98, 10", "s_lshr_b32 s97, s99, 1", "s_lshl_b32 s97, s97, 11", "s_and_b32 s99, s99, 1",
      "s_lshl_b32 s99, s99, 1", "s_add_u32 s97, s97, s99", f"s_cmp_ge_u32 s{g}, 8", "s_cselect_b32 s91, s98, s91", "s_cselect_b32 s96, s97, s96",
      f"s_add_u32 s92, s{g}, 11", "s_lshl_b32 s92, s92, 10", f"s_sub_u32 s97, s{g}, 21", "s_lshl_b32 s97, s97, 7", f"s_add_u32 s97, s97, {128*256}")
    if mid: mid()
    for k in range(4): a(f"s_mov_b64 s[{56+4*k}:{57+4*k}], s[{P+2*k}:{P+2*k+1}]")
    for j in range(8): a(f"buffer_load_ushort v{R1+j}, v{T+2}, s[56:59], s95 offen offset:{256*j}")
    a(f"s_cmp_ge_u32 s{g}, 8", f"s_cbranch_scc1 {lab}_W2")
    for j in range(8): a(f"buffer_load_ushort v{R2+j}, v{T+2}, s[56:59], s96 offen offset:{256*j}")
    a(f"s_mov_b32 s99, {NLOG2E}", f"s_branch {lab}_C")
    a(f"{lab}_W2:")
    for j in range(8): a(f"buffer_load_ushort v{R2+j}, v{T+3}, s[64:67], s96 offen offset:{128*(8*(j>>2)+(j&3))}")
    a(f"s_mov_b32 s99, {NLN2}", f"s_cmp_lt_u32 s{g}, 21", f"s_cbranch_scc1 {lab}_C", f"s_cmp_eq_u32 s{g}, 23", f"s_cbranch_scc1 {lab}_B")
    for j in range(8): a(f"buffer_load_ushort v{R3+j}, v{T+4}, s[56:59], s97 offen offset:{256*(j&3)+64*(j>>2)}")
    a(f"s_branch {lab}_C")
    a(f"{lab}_B:")
    for j in range(4): a(f"buffer_load_ushort v{R3+j}, v{T+4}, s[60:63], 0 offen offset:{64*j}")
    a(f"buffer_load_dword v{T+6}, v{T+5}, s[68:71], 0 offen")
    for j in range(4, 8): a(f"v_mov_b32 v{R3+j}, 0")
    a(f"{lab}_C:", f"s_mov_b32 s98, {NLOG2E}")
    n = post() if post else 0
    a(f"s_waitcnt vmcnt({n})")
    for R, sc_, dst, o in ((R1, 98, 90, 108), (R2, 99, 91, 112)):
        for j in range(8): a(f"v_lshlrev_b32 v{R+j}, 16, v{R+j}", f"v_mul_f32 v{R+j}, s{sc_}, v{R+j}")
        for j in range(4): a(f"v_cvt_pk_bf16_f32 v{o+j}, v{R+2*j}, v{R+1+2*j}")
        store(o, dst)
    a(f"s_cmp_lt_u32 s{g}, 21", f"s_cbranch_scc1 {lab}_E")
    for j in range(8): a(f"v_lshlrev_b32 v{R3+j}, 16, v{R3+j}", f"v_mul_f32 v{R3+j}, s98, v{R3+j}")
    for j in range(4):
        a(f"v_cvt_pk_bf16_f32 v{R3+8+j}, v{R3+2*j}, v{R3+1+2*j}",
          f"v_lshlrev_b32 v{T+8}, 16, v{R3+8+j}", f"v_and_b32 v{T+9}, 0xffff0000, v{R3+8+j}",
          f"v_sub_f32 v{T+8}, v{R3+2*j}, v{T+8}", f"v_sub_f32 v{T+9}, v{R3+1+2*j}, v{T+9}",
          f"v_cvt_pk_bf16_f32 v{T+8}, v{T+8}, v{T+9}", f"v_cndmask_b32 v{R3+8+j}, v{R3+8+j}, v{T+8}, s[88:89]")
    a(f"s_cmp_eq_u32 s{g}, 23", f"s_cbranch_scc1 {lab}_S2" if OPT.get("nolo") else f"s_cbranch_scc0 {lab}_S")
    if OPT.get("nolo"): a([f"v_cndmask_b32 v{R3+8+j}, v{R3+8+j}, 0, s[88:89]" for j in range(4)], f"s_branch {lab}_S", f"{lab}_S2:")
    a(f"v_cndmask_b32 v{R3+10}, v{T+6}, 0, s[88:89]")
    a(f"{lab}_S:"); store(R3 + 8, 92)
    a(f"{lab}_E:")

TMO = 600
def gen_k2(a):
    a(".p2align 12" if OPT.get("pg") else [], ".p2align 8", f"{KNAME}:")
    a("s_cmp_ge_u32 s2, 256", "s_cbranch_scc1 K2_END")
    if OPT["stamps"] and not OPT.get("lite"): a(f"v_accvgpr_write_b32 a{aStamp}, 0")
    st2(a, 0)
    a("s_load_dwordx16 s[72:87], s[0:1], 0", "s_load_dwordx2 s[44:45], s[0:1], 80", "s_load_dwordx2 s[42:43], s[0:1], 64")
    a("s_getpc_b64 s[52:53]", "K2_PC:", "v_lshlrev_b32 v2, 7, v0", "v_min_u32 v2, K2_SLOW-K2_PC, v2", "v_mov_b32 v3, 0", "v_lshl_add_u64 v[2:3], v[2:3], 0, s[52:53]")
    cpf = "global_load_dword v2, v[2:3], off"
    if not OPT.get("pfl"): a(cpf)
    tid, vInit, vT4, vZ, vL16, vTag, vT16, vPoll, vPB = 16, 17, 18, 20, 25, 22, 19, 24, 35
    vE = 56
    a(f"v_mov_b32 v{tid}, v0", f"v_and_b32 v{vLane}, 63, v0", "v_lshrrev_b32 v1, 6, v0", "s_cmp_ge_u32 s2, 250")
    a(f"v_readfirstlane_b32 s{sWave}, v1", "s_cbranch_scc1 K2_BUILD")
    vJ16, vN16, vStart, vCnt, vTw, vXs = 27, 28, 31, 32, 33, 34
    vT32, vR4, vR8 = 60, 61, 62
    init = Asm(); c = init
    c(f"s_and_b32 s{sBucket}, s2, 7", f"s_lshl_b32 s{sBucket}, s{sBucket}, 5", "s_lshr_b32 s3, s2, 3", f"s_add_u32 s{sBucket}, s{sBucket}, s3")
    c(f"v_lshlrev_b32 v{vT16}, 4, v{tid}", f"v_lshlrev_b32 v{vL16}, 4, v{vLane}", f"v_and_b32 v36, 31, v{vLane}")
    c(f"v_mul_u32_u24 v{vInit}, {CAP*ESZ}, v{tid}", f"v_add_u32 v{vInit}, {L_TAB}, v{vInit}")
    c(f"v_lshlrev_b32 v{vT4}, 2, v{tid}", f"v_mov_b32 v{vZ}, 0", f"v_mov_b32 v{vZ+1}, 0", f"v_lshlrev_b32 v26, 3, v{vLane}")
    c(f"ds_write_b32 v{vT4}, v{vInit} offset:{L_CNT}", f"ds_write_b64 v26, v[{vZ}:{vZ+1}] offset:{L_HIST}", f"ds_write_b32 v{vT4}, v{vZ} offset:{P1_CNT}")
    for r_, n_ in ((sAux, AUX_BYTES), (sX, X_BYTES), (sOut, X_BYTES), (sRec, REC_BYTES)): c(f"s_mov_b32 s{r_+2}, {n_}", f"s_mov_b32 s{r_+3}, 0x00020000")
    c(f"s_mov_b32 s40, {EPO_REL}")
    ptrs = [f"s_add_u32 s{sAux}, s44, {FRAG_OFF}", f"s_addc_u32 s{sAux+1}, s45, 0",
            f"s_mov_b64 s[{sRec}:{sRec+1}], s[44:45]", f"s_mov_b64 s[{sX}:{sX+1}], s[72:73]", f"s_mov_b64 s[{sOut}:{sOut+1}], s[42:43]"]
    a(init.l)
    a(f"v_lshlrev_b32 v{vT32}, 5, v{tid}", f"v_lshl_add_u32 v{vR4}, v1, 5, v36", f"v_lshlrev_b32 v{vR8}, 3, v{vR4}", f"v_lshlrev_b32 v{vR4}, 2, v{vR4}")
    a(f"s_mul_i32 s88, s2, {CH*4}", "s_add_u32 s89, s88, 4096", "s_add_u32 s90, s88, 8192", "s_add_u32 s91, s88, 12288")
    for g in range(4): a(f"s_lshl_b32 s{92+g}, s{88+g}, 1")
    for r_, n_ in ((56, E*4), (60, E*4), (64, E*8), (68, CH*12)): a(f"s_mov_b32 s{r_+2}, {n_}", f"s_mov_b32 s{r_+3}, 0x00020000")
    a(f"s_mul_i32 s41, s2, {CH*12}")
    a("s_waitcnt lgkmcnt(0)")
    st2(a, 12)
    if OPT.get("wso"): a(f"s_add_u32 s44, s44, {OPT['wso'] << 20}", "s_addc_u32 s45, s45, 0")
    DS, SR, BK, RK, AT = 64, 80, 96, 112, 128
    a("s_mov_b64 s[56:57], s[78:79]")
    consts = Asm()
    c = consts
    c(f"s_movk_i32 s{s128}, 128", f"s_mov_b64 s[{sBad}:{sBad+1}], 0", "s_mov_b32 s32, 0", "s_mov_b32 s41, 0xffff")
    c(f"v_and_b32 v{vJ16}, 15, v{vLane}", f"v_not_b32 v{vN16}, v{vJ16}", f"v_mul_u32_u24 v{vJ16}, 12, v{vJ16}")
    c(f"v_lshrrev_b32 v{vHalf}, 5, v{vLane}", f"v_lshlrev_b32 v{vHalf}, 6, v{vHalf}", f"v_mov_b32 v{vTw}, 12")
    c(f"v_lshrrev_b32 v{vXs}, 3, v{vLane}", f"v_lshlrev_b32 v{vXs}, 4, v{vXs}", f"v_xor_b32 v{vXs}, v{vXs}, v{vL16}")
    c(f"v_mul_u32_u24 v{vStart}, {CH*12}, v{tid}")
    c("v_bfe_u32 v29, v36, 2, 1", "v_and_b32 v30, 1, v36", "v_lshl_or_b32 v29, v29, 1, v30", "v_bfe_u32 v30, v36, 1, 1", "v_lshl_or_b32 v29, v29, 1, v30",
      "v_lshrrev_b32 v30, 3, v36", "v_lshl_or_b32 v29, v29, 2, v30", "v_lshlrev_b32 v29, 2, v29")
    c(f"s_lshl_b32 s{sTmp}, s{sBucket}, 3", f"s_add_u32 s{sTmp}, s{sTmp}, {TAB_REL}", f"v_lshlrev_b32 v{vPoll}, 11, v{tid}", f"v_add_u32 v{vPoll}, s{sTmp}, v{vPoll}",
      f"v_min_u32 v{vPB}, 5, v{vLane}", f"v_add_u32 v{vPB}, 250, v{vPB}", f"v_lshlrev_b32 v{vPB}, 11, v{vPB}", f"v_add_u32 v{vPB}, s{sTmp}, v{vPB}")
    ROLE = {"A": 44, "B": 50}
    c(f"s_lshl_b32 s3, s{sWave}, 3", "s_or_b32 s3, s3, 0x80000", "v_lshrrev_b32 v37, 2, v36", "v_and_b32 v38, 1, v36", "v_lshl_or_b32 v37, v37, 1, v38", "v_bfe_u32 v38, v36, 1, 1")
    for nm, T, sp in (("A", TILE_A, sP2A), ("B", TILE_B, sP2B)):
        r = ROLE[nm]
        pk = lambda f: hex(sum((f(t) & 255) << (8*w) for w, t in enumerate(T)))
        c(f"s_bfe_u32 s{sp}, {pk(lambda t: 2*t[0])}, s3", f"s_bfe_u32 s46, {pk(lambda t: t[1])}, s3", f"s_bfe_u32 s47, {pk(lambda t: t[2])}, s3", f"s_sub_u32 s47, s47, s{sp}")
        c(f"v_cmp_gt_u32 vcc, s{sp}, v36", f"v_add_u32 v{r}, s47, v36", f"v_add_u32 v39, s46, v37", f"v_cndmask_b32 v{r}, v{r}, v39, vcc", f"v_lshlrev_b32 v{r}, 3, v{r}",
          f"v_cndmask_b32 v{r+2}, 0, 1, vcc", f"v_and_b32 v{r+3}, v{r+2}, v38", f"v_sub_u32 v{r+1}, v{r+2}, v{r+3}", f"v_lshlrev_b32 v{r+4}, 30, v{r+3}", f"v_mul_u32_u24 v{r+3}, 12, v{r+3}")
    c(f"s_mul_i32 s33, s{sWave}, 6144", f"s_mul_i32 s39, s{sBucket}, {NB*128}", "s_add_u32 s39, s39, s33", f"s_mul_i32 s46, s{sWave}, {13*1024}",
      "s_lshl_b32 s47, s2, 11", f"s_add_u32 s47, s47, {TAB_REL}")
    epoch = f"buffer_load_dwordx2 {vr(vTag,2)}, v{vZ}, s[{sAux}:{sAux+3}], s40 offen sc1"
    mktag = [f"v_add_u32 v{vTag}, 1, v{vTag}", f"v_and_b32 v{vTag+1}, 0xff000000, v{vTag+1}"]
    lo, full = ["s_mov_b32 exec_hi, 0"], ["s_mov_b32 exec_hi, -1"]
    vm = []
    for g in range(3): a(f"buffer_load_dwordx4 {vr(DS+4*g,4)}, v{vT16}, s[56:59], s{88+g} offen"); vm.append(("d", g))
    a(lo, f"buffer_load_dword v{DS+12}, v{vR4}, s[56:59], s91 offen", full); vm.append(("d", 3))
    a("s_mov_b64 s[60:61], s[76:77]", "s_mov_b64 s[64:65], s[74:75]", "s_add_u32 s68, s44, s41", "s_addc_u32 s69, s45, 0", ptrs)
    if OPT.get("ee"): a(epoch); vm.append("e")
    a("s_barrier")
    def grp(g):
        if g < 3:
            a(f"buffer_load_dwordx4 {vr(SR+4*g,4)}, v{vT16}, s[60:63], s{88+g} offen", f"buffer_load_dwordx4 {vr(AT+8*g,4)}, v{vT32}, s[64:67], s{92+g} offen",
              f"buffer_load_dwordx4 {vr(AT+8*g+4,4)}, v{vT32}, s[64:67], s{92+g} offen offset:16"); vm.extend([0, 0, ("g", g)])
        else:
            a(lo, f"buffer_load_dword v{SR+12}, v{vR4}, s[60:63], s91 offen", f"buffer_load_dwordx2 {vr(AT+24,2)}, v{vR8}, s[64:67], s95 offen", full); vm.extend([0, ("g", 3)])
            if not OPT.get("ee"): a(epoch); vm.append("e")
            if OPT.get("pfl"): a(cpf); vm.append(0)
            if OPT.get("pft"):
                a(f"v_lshlrev_b32 v3, 3, v{tid}", f"buffer_load_dword v3, v3, s[{sAux}:{sAux+3}], s47 offen sc1"); vm.append(0)
    def vmw(x): return f"s_waitcnt vmcnt({len(vm) - 1 - vm.index(x)})"
    G0 = OPT.get("g0", 1)
    for g in range(G0): grp(g)
    STG = OPT.get("stag", 0)
    if STG:
        a("s_bitcmp1_b32 s2, 3", "s_cselect_b64 s[98:99], -1, 0", "s_mov_b64 exec, s[98:99]")
        for g in range(G0, G0 + STG): grp(g); vm[-1] = 0
        a("s_mov_b64 exec, -1")
    a(consts.l, "s_movk_i32 s96, -196", f"s_movk_i32 s97, {P1_STG}")
    for e in range(13):
        if e % 4 == 0: a(vmw(("d", e//4)))
        if e == 0: st2(a, 13)
        if e in {0: (), 1: (0,), 2: (0, 4), 3: (0, 4, 8), 4: (4, 8), 5: (8,)}[OPT.get("gi", 0)] and G0 < 4: grp(G0); G0 += 1
        if e == 12: a(lo)
        a(f"v_mul_u32_u24 v{BK+e}, 85599, v{DS+e}", f"v_lshrrev_b32 v{BK+e}, 22, v{BK+e}", f"v_and_b32 v{BK+e}, 0x3fc, v{BK+e}",
          f"ds_add_rtn_u32 v{RK+e}, v{BK+e}, v{vTw} offset:{P1_CNT}")
    a(full)
    if STG: a("s_not_b64 exec, s[98:99]")
    for g in range(G0, 4):
        if STG and g == G0 + STG: a("s_mov_b64 exec, -1")
        grp(g)
    for e in range(13): a(f"v_lshlrev_b32 v{DS+e}, 2, v{DS+e}", f"v_mad_i32_i24 v{DS+e}, v{BK+e}, s96, v{DS+e}")
    a("s_waitcnt lgkmcnt(0)", "s_barrier")
    a(f"s_cmp_lg_u32 s{sWave}, 0", "s_cbranch_scc1 K2_SC")
    a(f"ds_read_b128 v[4:7], v{vT16} offset:{P1_CNT}", "s_waitcnt lgkmcnt(0)")
    a("v_add_u32 v8, v4, v5", "v_add3_u32 v8, v8, v6, v7", "v_mov_b32 v9, v8")
    wave_scan(a, 9)
    a("v_sub_u32 v40, v9, v8", "v_add_u32 v41, v40, v4", "v_add_u32 v42, v41, v5", "v_add_u32 v43, v42, v6")
    a(f"ds_write_b128 v{vT16}, v[40:43] offset:{P1_BASE}", "s_waitcnt lgkmcnt(0)")
    a("K2_SC:", f"v_lshlrev_b32 v8, 3, v{tid}", "s_barrier")
    st2(a, 14)
    ops = []
    def rd(e): a(f"ds_read_b32 v{BK+e}, v{BK+e} offset:{P1_BASE}"); ops.append(e)
    for e in range(5): rd(e)
    for e in range(13):
        if e % 4 == 0:
            a(vmw(("g", e//4)))
            for k in range(min(4, 13 - e)): a(f"v_lshl_or_b32 v{DS+e+k}, v{SR+e+k}, 16, v{DS+e+k}")
        a(f"s_waitcnt lgkmcnt({len(ops) - 1 - ops.index(e)})", f"v_add3_u32 v{RK+e}, v{RK+e}, v{BK+e}, s97")
        if e == 12: a(lo)
        a(f"ds_write2_b32 v{RK+e}, v{AT+2*e}, v{AT+1+2*e} offset0:0 offset1:1", f"ds_write_b32 v{RK+e}, v{DS+e} offset:8"); ops += [-1, -1]
        if e + 5 < 13: rd(e + 5)
    a(full)
    a(f"ds_read_b64 v[4:5], v8 offset:{P1_CNT}", f"ds_read_b64 v[6:7], v8 offset:{P1_BASE}", f"v_add_u32 v9, {P1_STG}, v{vT16}", vmw("e"), mktag)
    a("s_waitcnt lgkmcnt(0)", "s_barrier")
    st2(a, 15)
    for i in range(10): a(f"ds_read_b128 {vr(64+4*i,4)}, v9 offset:{4096*i}")
    for k in range(4): a(f"v_mul_u32_u24 v{4+k}, 5462, v{4+k}", f"v_lshrrev_b32 v{4+k}, 16, v{4+k}")
    a(f"v_lshl_or_b32 v40, v4, 12, v6", f"v_lshl_or_b32 v42, v5, 12, v7", f"v_or_b32 v40, v40, v{vTag+1}", f"v_or_b32 v42, v42, v{vTag+1}", f"v_mov_b32 v41, v{vTag}", f"v_mov_b32 v43, v{vTag}")
    for i in range(OPT.get("nst", 10)):
        if i: a(f"s_mov_b32 s84, {4096*i}")
        a(f"s_waitcnt lgkmcnt({9-i})", f"buffer_store_dwordx4 {vr(64+4*i,4)}, v{vT16}, s[68:71], {'s84' if i else '0'} offen sc1")
    def chk(): return [f"v_xor_b32 v36, v{vE}, v{vTag+1}", f"v_xor_b32 v37, v{vE+1}, v{vTag}", "v_lshrrev_b32 v36, 24, v36", "v_or_b32 v36, v36, v37", "v_cmp_ne_u32 vcc, 0, v36"]
    if OPT.get("nst"): st2(a, 13)
    pb = f"buffer_load_dwordx2 {vr(vE,2)}, v{vPB}, s[{sAux}:{sAux+3}], 0 offen sc1"
    if OPT.get("pbl", 0): a(f"s_waitcnt vmcnt({OPT['pbl']})", pb)
    a("s_waitcnt vmcnt(0)", "s_barrier")
    st2(a, 2)
    if not OPT.get("pbl", 0): a(pb)
    a(f"s_cmp_ge_u32 s{sWave}, 2", "s_cselect_b64 exec, 0, -1")
    a(f"buffer_store_dwordx4 v[40:43], v{vT16}, s[{sAux}:{sAux+3}], s47 offen sc1", "s_mov_b64 exec, -1")
    if not OPT.get("pbl", 0): a("s_waitcnt vmcnt(1)")
    a(chk(), "s_cbranch_vccnz K2_WAITB")
    a("K2_WGO:")
    SP = OPT.get("split", 0)
    wdma = []
    if SP:
        wl = lambda i: f"buffer_load_dwordx4 v{vL16}, s[{sAux}:{sAux+3}], s85 offen offset:{1024*i} sc1 lds"
        a(f"s_mul_i32 s85, s{sWave}, {5*1024}", f"s_min_u32 s85, s85, {14*1024}", f"s_add_u32 s85, s85, {32*1024}", f"s_add_u32 m0, s85, {L_WS}", "s_nop 0", [wl(i) for i in range(4)])
        a("s_add_u32 s85, s85, 4096", f"s_add_u32 m0, s85, {L_WS}", "s_nop 0", wl(0))
        wdma = [[f"s_lshl_b32 s85, s{sWave}, 13", f"s_add_u32 m0, s85, {L_WS}", "s_nop 0"] + [wl(i) for i in range(4)],
                ["s_add_u32 s85, s85, 4096", f"s_add_u32 m0, s85, {L_WS}", "s_nop 0"] + [wl(i) for i in range(4)]]
        if SP == 2: a(wdma.pop(0))
    for g in range(4):
        if SP: break
        a(f"s_add_u32 m0, s46, {L_WS+4096*g}", f"s_add_u32 s84, s46, {4096*g}")
        for i in range(4 if g < 3 else 1):
            if not OPT.get("now"): a(f"buffer_load_dwordx4 v{vL16}, s[{sAux}:{sAux+3}], s84 offen offset:{1024*i} {OPT.get('wsc', 'sc1')} lds")
    xl = lambda i: f"buffer_load_dwordx4 v{vXs}, s[{sX}:{sX+3}], s39 offen offset:{1024*i} lds"
    late = [[f"s_add_u32 m0, s33, {L_XR}", "s_mov_b64 exec, -1", xl(0), xl(1)], ["s_mov_b64 exec, -1", xl(2), xl(3)],
            [f"s_add_u32 m0, s33, {L_XR+4096}", "s_add_u32 s39, s39, 4096", "s_mov_b64 exec, -1", xl(0), xl(1)], ["s_mov_b32 exec_lo, -1", "s_mov_b32 exec_hi, 0", xl(2), "s_mov_b64 exec, -1"]]
    if OPT.get("nox"): late = []
    for k in range(OPT.get("xpre", 0)): a(late.pop(0))
    a(f"v_add_u32 v39, {L_WS}, v{vL16}")
    NL = OPT.get("nl", 32)
    wrd = [f"ds_read_b128 {ar(4*f,4)}, v39 offset:{1024*f}" for f in range(NL, NFRAG)]
    wlate = [f"ds_read_b128 {ar(4*f,4)}, v{EE} offset:{L_WS+1024*f}" for f in range(NL)]
    st2(a, 3)
    poll = f"buffer_load_dwordx2 {vr(vE,2)}, v{vPoll}, s[{sAux}:{sAux+3}], 0 offen sc1"
    a(f"s_movk_i32 s84, {TMO}")
    if OPT.get("pg"):
        a(poll, wdma)
        for k in (1, 2, 3): a(f"s_branch K2_STUB{k}", f"K2_RET{k}:")
        a(f"s_waitcnt vmcnt({4*len(wdma)})", "s_branch K2_POLL2")
    if OPT.get("one"):
        a("K2_POLL:", poll, "K2_POLL2:", "s_waitcnt vmcnt(0)", chk(), "s_and_b64 exec, exec, vcc", "s_cbranch_execz K2_POLLED")
        a("s_mov_b64 s[86:87], exec", "s_ff1_i32_b64 s85, exec", "s_lshl_b64 exec, 1, s85")
        a("K2_POLL3:", poll, "s_waitcnt vmcnt(0)", chk(), "s_sub_u32 s84, s84, 1", "s_cbranch_scc1 K2_POLL4", "s_cbranch_vccnz K2_POLL3")
        a("s_andn2_b64 exec, s[86:87], exec", "s_cbranch_execnz K2_POLL", "s_branch K2_POLLED", "K2_POLL4:", "s_mov_b64 exec, s[86:87]")
    else:
        a("K2_POLL:", f"s_sleep {OPT['slp']}" if OPT.get("slp") else [], poll, "s_waitcnt vmcnt(0)", "K2_POLL2:", chk(),
          "s_and_b64 exec, exec, vcc", "s_cbranch_execz K2_POLLED", "s_sub_u32 s84, s84, 1", "s_cbranch_scc0 K2_POLL")
    a(f"v_mov_b32 v{vE}, 0", "s_mov_b32 s32, 2")
    a("K2_POLLED:", "s_mov_b64 exec, -1")
    st2(a, 1)
    a(f"v_and_b32 v36, 0xfff, v{vE}", f"v_bfe_u32 v{vCnt}, v{vE}, 12, 12", f"v_mad_u32_u24 v{vStart}, v36, 12, v{vStart}")
    RB = 64
    def dppr(i): return f"row_newbcast:{i} row_mask:0xf bank_mask:0xf"
    def rec(i): return RB + 4*i
    def addr(s): return f"v_add_u32_dpp v{rec(s)+3}, v{vStart}, v{vJ16} {dppr(s)}"
    rsc = OPT.get("rsc", "sc1")
    def load(s):
        if s < 16: return f"buffer_load_dwordx3 {vr(rec(s),3)}, v{rec(s)+3}, s[{sRec}:{sRec+3}], 0 offen {rsc}"
        return f"buffer_load_dwordx3 {vr(rec(s),3)}, v{vStart}, s[{sRec}:{sRec+3}], 0 offen offset:{12*s} {rsc}"
    def msk(s): return f"s[{sMask0+2*s}:{sMask0+2*s+1}]"
    def ex(s): return f"s_mov_b64 exec, {msk(s)}"
    def atom(s): return [f"v_and_b32 v{rec(s)+3}, s41, v{rec(s)+2}", f"ds_add_rtn_u32 v{rec(s)+3}, v{rec(s)+3}, v{vTw}"]
    def put(s): return [f"ds_write2_b32 v{rec(s)+3}, v{rec(s)}, v{rec(s)+1} offset0:0 offset1:1", f"ds_write_b32 v{rec(s)+3}, v{rec(s)+2} offset:8"]
    D0, W, LAG = OPT.get("d0", 4), OPT.get("win", 16), OPT.get("lag", 4)
    order = list(range(D0)) + list(range(16, 24)) + list(range(D0, 16))
    a(f"v_cmp_lt_u32 s[{sSave}:{sSave+1}], 24, v{vCnt}", "s_nop 0")
    for s in range(D0): a(addr(s), load(s))
    for s in range(16, 24): a(f"v_cmp_lt_u32 {msk(s)}, {s}, v{vCnt}")
    for s in range(D0, 16): a(addr(s))
    a(f"s_mov_b64 exec, s[{sSave}:{sSave+1}]", "s_cbranch_execz K2_P1")
    for s in range(24, 28): a(load(s))
    a(f"v_cmp_lt_u32 vcc, 28, v{vCnt}", "s_cbranch_vccnz K2_RARE1")
    if OPT.get("pg"): a("s_branch K2_P1", ".p2align 12", "K2_STUB1:", "s_branch K2_RET1")
    a("K2_P1:")
    for s in order[D0:W]:
        a(ex(s) if s >= 16 else ("s_mov_b64 exec, -1" if s == D0 else []), load(s))
    a("s_mov_b64 exec, -1")
    side = []
    for i in range(16): side += [f"v_add_co_u32_dpp v37, vcc, v{vCnt}, v{vN16} {dppr(i)}", f"s_mov_b64 {msk(i)}, vcc"]
    a("s_barrier", interleave(wrd, side, 1, 1))
    a("s_waitcnt lgkmcnt(0)", "s_barrier")
    sx = OPT.get("sx", 0)
    if sx & 1: put = lambda s: ["s_nop 0", "s_nop 0"]
    if sx & 2: atom = lambda s: [f"v_and_b32 v{rec(s)+3}, 0xffff, v{rec(s)+2}", f"v_lshl_add_u32 v{rec(s)+3}, v{rec(s)+3}, 5, v{vInit}"]
    ops = []; vm = order[:W]
    for i in range(24 + LAG):
        if i < 24:
            s = order[i]
            a(f"s_waitcnt vmcnt({len(vm) - 1 - vm.index(s)})", ex(s), atom(s)); ops.append(("a", s))
        if i + W < 24:
            s = order[i + W]; a(ex(s), load(s)); vm.append(s)
        elif late and i >= 24 - OPT.get("late", 6):
            x = late.pop(0); a(x); vm += [-1] * sum(y.startswith("buffer") for y in x)
        if i >= LAG:
            s = order[i - LAG]
            n = len(ops) - 1 - ops.index(("a", s))
            a(f"s_waitcnt lgkmcnt({n})", ex(s), put(s)); ops += [("w", s), ("w", s)]
        if i == D0 + 7 + LAG:
            a(f"s_mov_b64 exec, s[{sSave}:{sSave+1}]", "s_cbranch_execz K2_P3")
            for k in range(24, 28): a(f"v_cmp_lt_u32 {msk(k-8)}, {k}, v{vCnt}")
            for k in range(24, 28): a(ex(k - 8), atom(k))
            a("s_waitcnt lgkmcnt(0)")
            for k in range(24, 28): a(ex(k - 8), put(k))
            a(f"v_cmp_lt_u32 vcc, 28, v{vCnt}", "s_cbranch_vccnz K2_RARE2", "K2_P3:")
    for x in late: a(x)
    a("s_mov_b64 exec, -1")
    a("K2_P2:", "s_waitcnt lgkmcnt(0)", "s_barrier")
    st2(a, 4)
    if sx: a("s_branch K2_STOUT")
    tk2 = [0]
    def tick2():
        if OPT.get("ticks") == 2: a(f"s_memtime s[{52+2*tk2[0]}:{53+2*tk2[0]}]"); tk2[0] += 1
    tick2()
    vD, vR, vS = 40, 41, 42
    a(f"ds_read_b32 v{vD}, v{vT4} offset:{L_CNT}", f"ds_read_b32 v58, v{vInit} offset:8", "v_mov_b32 v43, 1", f"v_cmp_gt_u32 vcc, {NB}, v{tid}", f"v_lshlrev_b32 v36, 2, v{vLane}",
      f"s_mov_b64 s[{sValid}:{sValid+1}], vcc", "s_waitcnt lgkmcnt(1)")
    a(f"v_sub_u32 v{vD}, v{vD}, v{vInit}", f"v_cmp_lt_u32 vcc, {CAP*ESZ}, v{vD}", f"v_min_u32 v{vD}, {63*12}, v{vD}", f"v_mul_u32_u24 v{vD}, 5462, v{vD}",
      f"s_or_b64 s[{sBad}:{sBad+1}], s[{sBad}:{sBad+1}], vcc", f"v_lshrrev_b32 v{vD}, 16, v{vD}", f"v_lshlrev_b32 v37, 2, v{vD}")
    a(f"s_mov_b64 exec, s[{sValid}:{sValid+1}]", f"ds_add_rtn_u32 v{vR}, v37, v43 offset:{L_HIST}")
    if OPT["force_slow"]: a(f"s_mov_b64 s[{sBad}:{sBad+1}], 1")
    if OPT.get("force_raw"): a("s_mov_b32 s32, 2")
    a(f"s_cmp_lg_u64 s[{sBad}:{sBad+1}], 0", "s_addc_u32 s32, s32, 0", "s_mov_b64 exec, 1", "v_mov_b32 v39, s32", f"ds_or_b32 v{vZ}, v39 offset:{L_FLAG}", "s_mov_b64 exec, -1")
    a(f"v_add_u32 v59, 1, v{vD}", "v_lshrrev_b32 v59, 1, v59", f"v_mad_u32_u24 v59, v59, 12, v{vInit}", "ds_read_b32 v59, v59 offset:8",
      f"v_lshl_or_b32 v{vD}, v{vD}, 8, v{tid}", "s_waitcnt lgkmcnt(1)", f"v_bfi_b32 v58, s41, v{vD}, v58", "s_barrier")
    tick2()
    a(f"ds_read_b32 v{vS}, v36 offset:{L_HIST}", f"ds_read_b32 v38, v{vZ} offset:{L_FLAG}", "s_waitcnt lgkmcnt(1)")
    wave_scan(a, vS)
    a(f"v_sub_u32 v{vS}, {NB}, v{vS}", f"ds_bpermute_b32 v{vS}, v37, v{vS}", "s_waitcnt lgkmcnt(1)", f"v_readfirstlane_b32 s{sTmp}, v38",
      f"s_mul_i32 s{sTmp2}, s{sBucket}, {NB*128}", f"s_lshl_b32 s{sTile}, s{sWave}, 8", f"s_cmp_ge_u32 s{sTmp}, 2", "s_cbranch_scc1 K2_SLOW")
    a(f"s_mov_b64 exec, 1", f"buffer_store_dword v{vTag}, v{vZ}, s[{sAux}:{sAux+3}], s40 offen", f"s_mov_b64 exec, s[{sValid}:{sValid+1}]", f"s_cmp_lg_u32 s{sTmp}, 0", "s_cbranch_scc1 K2_SLOW")
    a("s_waitcnt lgkmcnt(0)", f"v_add_lshl_u32 v{vS}, v{vS}, v{vR}, 3", f"ds_write_b64 v{vS}, v[58:59] offset:{L_RANK}", "s_mov_b64 exec, -1")
    a(f"s_movk_i32 s46, {CAP*ESZ}", f"v_mov_b32 v39, {L_TAB}", f"v_lshrrev_b32 v38, 4, v{vHalf}", f"v_add_u32 v36, s{sTile}, v29")
    tick2()
    a(f"v_cmp_ne_u32 vcc, 0, v{ROLE['A']+3}", "s_waitcnt lgkmcnt(0)" if OPT.get("b4", 1) else "s_waitcnt vmcnt(1) lgkmcnt(0)", "s_barrier")
    tick2()
    st2(a, 5)
    def decode1(w, r, base):
        return [f"v_bfe_u32 v{w+1}, v{w}, 8, 8", f"v_and_b32 v{w}, 0xff, v{w}", f"v_add_u32 v{w+2}, v{w+1}, v{r+1}", f"v_lshrrev_b32 v{w+2}, v{r+2}, v{w+2}",
                f"v_mad_u32_u24 v{base}, v{w}, s46, v39", f"v_sub_u32 v{w+1}, v{w+1}, v{w+2}", f"v_mad_u32_u24 v{base}, v{w+1}, v{r+3}, v{base}"]
    def decode2(w, r, info):
        return [f"v_and_b32 v{w+1}, 7, v{w}", f"v_xor_b32 v{w+1}, v{w+1}, v38", f"v_lshlrev_b32 v{w+1}, 4, v{w+1}", f"v_lshl_add_u32 v{w+1}, v{w}, 7, v{w+1}",
                f"v_lshl_or_b32 v{info}, v{w+2}, 16, v{w+1}"]
    def decode3(w, r, off):
        return [f"v_lshl_add_u32 v{w}, v{w}, 7, s{sTmp2}", f"v_or_b32 v{w}, v{w}, v{r+4}", f"ds_write_b32 v36, v{w} offset:{L_OUTO+off}"]
    a(f"ds_read_b64 v[56:57], v{ROLE['A']} offset:{L_RANK}", f"ds_read_b32 v60, v{ROLE['B']} offset:{L_RANK}")
    a(selectors())
    a("s_waitcnt lgkmcnt(1)", f"v_cndmask_b32 v{ENT[0]+2}, v56, v57, vcc", mkoff(0), gather(0, 0))
    tick2()
    a(decode1(56, ROLE["A"], vLds))
    a(f"ds_read_b32 v{ENT[1]+2}, v{vLds} offset:20", f"ds_read_b32 v{ENT[2]+2}, v{vLds} offset:32")
    a([f"ds_read2_b32 {vr(ENT[u],2)}, v{vLds} offset0:{3*u} offset1:{3*u+1}" for u in range(3)])
    a(decode2(56, ROLE["A"], vT0))
    if not OPT.get("b4", 1): a(hdr_reads(vT0, [vT1, 59, EE+14, EE+15]))
    a(tile_scalars(vT0, sP2A), f"v_accvgpr_write_b32 a{aInfo}, v{vT0}", decode3(56, ROLE["A"], 0), "s_waitcnt lgkmcnt(6)")
    gq = [[gather(0, 1)], [gather(0, 2)], [gather(0, 3)], [mkoff(1), gather(1, 0)], [gather(1, 1)], [gather(1, 2)], [gather(1, 3)]]
    GE = OPT.get("ge", 1)
    if GE: a(gq.pop(0))
    a(decode1(60, ROLE["B"], 63), f"v_accvgpr_write_b32 a{aNextL}, v63", decode2(60, ROLE["B"], 63), f"v_accvgpr_write_b32 a{aNextI}, v63", decode3(60, ROLE["B"], 128))
    if GE > 1: a(gq.pop(0))
    if OPT.get("b4", 1): a(f"s_waitcnt vmcnt({2+GE})", "s_barrier", hdr_reads(vT0, [vT1, 59, EE+14, EE+15]))
    if OPT.get("qb"):
        rb = lambda q: vr(D + 4*q, 4)
        a(hdr_reads(63, [vT1, 59, EE+14, EE+15], rb), gather(0, 1), "s_waitcnt lgkmcnt(0)")
        gs = [[gather(0, 2)], [gather(0, 3)], [mkoff(1), gather(1, 0)], [gather(1, 1)], [gather(1, 2)], [gather(1, 3)], [], []]
        for b in range(4):
            wr = [f"v_accvgpr_write_b32 a{WB(b-1,0)+i}, v{DEN+16*(b-1)+i}" for i in range(16)] if b else []
            a(q_mfmas(b, DEN, rb), gs[2*b], interleave(q_mfmas(b), [wr[4*k:4*k+4] for k in range(4)] if b else [], 1, 1), gs[2*b+1])
        a([f"v_accvgpr_write_b32 a{WB(3,0)+i}, v{DEN+48+i}" for i in range(16)])
    else:
        a(f"v_mov_b32 v{EE}, v{vL16}", gq.pop(0), "s_waitcnt lgkmcnt(0)")
        for b in range(4):
            k = NL // 16
            tick2()
            a(interleave(q_mfmas(b), [wlate[4*k*b+k*j:4*k*b+k*j+k] for j in range(4)], 1, 1))
            a(gq.pop(0))
        a(gq)
        tick2()
        a(f"s_waitcnt lgkmcnt({0 if OPT.get('ticks') == 2 else min(15, NL - 16)})")
    em = edge_mfmas(0, NUM, 0)
    a(em[0], mkoff(2), "s_waitcnt vmcnt(7)", em[1], "s_waitcnt vmcnt(6)", em[2], "s_waitcnt vmcnt(5)", em[3], "s_waitcnt vmcnt(4)")
    tick2()
    st2(a, 6)
    if OPT.get("steps"): a("s_mov_b32 m0, 0")
    a(em[4], "s_nop 10")
    a(".p2align 3")
    body, n = align8([f"s_mov_b64 exec, s[{sValid}:{sValid+1}]"] + step(0, True))
    tick2()
    a(body)
    tick2()
    a("s_branch K2_L1")
    if OPT.get("pg"): a(".p2align 12", "K2_STUB2:", "s_branch K2_RET2", ".p2align 3")
    else: a(".p2align 6")
    for k, u in enumerate((1, 2, 0)):
        body = step(u, False) + [f"s_cbranch_scc1 K2_X{u}" if k < 2 else "s_cbranch_scc0 K2_L1"]
        if k: body = ["s_nop 0"] + body
        body, n = align8(body)
        if k: body = body[1:]
        a(f"K2_L{u}:", body)
    for u in (0, 1, 2):
        a(f"K2_X{u}:", f"s_cmpk_eq_u32 s{sStage}, 129", "s_cbranch_scc1 K2_FINAL", f"s_cmp_eq_u32 s{sStage}, 1", "s_cbranch_scc1 K2_TEND",
          f"s_or_b32 s{sStage}, s{sStage}, 1", f"s_mov_b32 s{sC}, 1", f"s_mov_b32 s{sX+2}, 0", f"v_add_u32 v{vPad}, 2, v{vPad}", f"s_branch K2_L{(u+1)%3}")
    if OPT.get("pg"): a(".p2align 12", "K2_STUB3:", "s_branch K2_RET3")
    a("K2_TEND:")
    st2(a, 7)
    if OPT.get("steps"):
        a("s_mov_b64 exec, -1", f"s_add_u32 s48, s44, {STAMP_OFF+(3<<20)}", "s_addc_u32 s49, s45, 0", "s_mov_b32 s50, 0x100000", "s_mov_b32 s51, 0x00020000",
          f"s_lshl_b32 s46, s{sBucket}, 2", f"s_add_u32 s46, s46, s{sWave}", "s_lshl_b32 s46, s46, 8",
          f"v_lshlrev_b32 v{vT1}, 2, v{vLane}", f"buffer_store_dword v{vT0}, v{vT1}, s[48:51], s46 offen", "s_waitcnt vmcnt(0)")
    n = epilogue(a, True)
    st2(a, 8)
    a(".p2align 3")
    body, n = align8([f"s_mov_b64 exec, s[{sValid}:{sValid+1}]"] + step(0, True, 11, 1))
    a(body, "s_branch K2_L1")
    a("K2_FINAL:")
    st2(a, 9)
    epilogue(a, False)
    st2(a, 10)
    if OPT.get("exp", 0): a(f"s_mov_b64 s[{sBad}:{sBad+1}], 0")
    a(f"s_mov_b64 exec, s[{sBad}:{sBad+1}]", f"ds_write_b32 v20, v21 offset:{L_FLAG}", "s_mov_b64 exec, -1")
    a("s_waitcnt lgkmcnt(0)", "s_barrier", f"ds_read_b32 v21, v20 offset:{L_FLAG}", "s_waitcnt lgkmcnt(0)", f"v_readfirstlane_b32 s{sTmp}, v21",
      f"s_cmp_lg_u32 s{sTmp}, 0", "s_cbranch_scc1 K2_SLOW")
    if OPT["stamps"]:
        a("K2_STOUT:", "s_waitcnt vmcnt(0)")
        st2(a, 11)
        if OPT.get("wso"): a(f"s_sub_u32 s44, s44, {OPT['wso'] << 20}", "s_subb_u32 s45, s45, 0")
        a(f"s_add_u32 s48, s44, {STAMP_OFF}", "s_addc_u32 s49, s45, 0", "s_mov_b32 s50, 0x100000", "s_mov_b32 s51, 0x00020000",
          f"s_lshl_b32 s46, s{sBucket}, 2", f"s_add_u32 s46, s46, s{sWave}", "s_lshl_b32 s46, s46, 8",
          f"v_accvgpr_read_b32 v20, a{aStamp}", "s_nop 0", [f"v_writelane_b32 v20, s{52+2*k}, {48+k}" for k in range(13 if OPT.get("ticks") else 0)], f"v_lshlrev_b32 v21, 2, v{vLane}", "buffer_store_dword v20, v21, s[48:51], s46 offen")
    a("K2_END:", "s_endpgm")
    a("K2_BUILD:", cpf if OPT.get("pfl") else [], "s_sub_u32 s93, s2, 250", "s_lshl_b32 s93, s93, 2", f"s_add_u32 s93, s93, s{sWave}")
    def bmid():
        a("s_waitcnt lgkmcnt(0)"); st2(a, 12)
        if OPT.get("wso"): a(f"s_add_u32 s44, s44, {OPT['wso'] << 20}", "s_addc_u32 s45, s45, 0")
    def bpost():
        a(init.l, ptrs, epoch); st2(a, 13); return 1
    gen_build(a, "KB", 93, lambda v, sr: a(f"buffer_store_dwordx4 {vr(v,4)}, v{vL16}, s[{sAux}:{sAux+3}], s{sr} offen sc1"), 80, bmid, bpost)
    st2(a, 14)
    a(consts.l, "s_waitcnt vmcnt(0) lgkmcnt(0)", mktag, f"v_mov_b32 v40, v{vTag+1}", f"v_mov_b32 v41, v{vTag}", f"v_mov_b32 v42, v{vTag+1}", f"v_mov_b32 v43, v{vTag}", "s_barrier")
    st2(a, 15); st2(a, 2)
    a(f"s_cmp_ge_u32 s{sWave}, 2", "s_cselect_b64 exec, 0, -1", f"buffer_store_dwordx4 v[40:43], v{vT16}, s[{sAux}:{sAux+3}], s47 offen sc1", "s_mov_b64 exec, -1")
    if OPT.get("bslp"): a(f"s_sleep {OPT['bslp']}")
    a("K2_WAITB:", f"s_movk_i32 s84, {TMO}")
    a("K2_WB1:", f"buffer_load_dwordx2 {vr(vE,2)}, v{vPB}, s[{sAux}:{sAux+3}], 0 offen sc1", "s_waitcnt vmcnt(0)", chk(),
      "s_cbranch_vccz K2_WGO", "s_sub_u32 s84, s84, 1", "s_cbranch_scc0 K2_WB1", "s_mov_b32 s32, 2", "s_branch K2_WGO")
    a("K2_RARE1:")
    for k in range(28, 40): a(load(k))
    a(f"v_cmp_lt_u32 vcc, 40, v{vCnt}", f"s_or_b64 s[{sBad}:{sBad+1}], s[{sBad}:{sBad+1}], vcc", "s_branch K2_P1")
    a("K2_RARE2:")
    for k in range(28, 40):
        a(f"v_cmpx_lt_u32 vcc, {k}, v{vCnt}", "s_nop 0", "s_cbranch_execz K2_P3", atom(k), "s_waitcnt lgkmcnt(0)", put(k))
    a("s_branch K2_P3")
    fixup(a, "T"); fixup(a, "F")
    gen_slow(a)

def gen_slow(a):
    tid, vStart, vCnt, vJ, vA = 0, 1, 2, 4, 5
    a("K2_SLOW:", "s_mov_b64 exec, -1", f"s_mov_b32 s94, s{sTmp}", "s_load_dwordx8 s[72:79], s[0:1], 32", "s_waitcnt vmcnt(0) lgkmcnt(0)", f"s_mov_b32 s{sX+2}, {X_BYTES}", "s_barrier")
    a(f"s_lshl_b32 s{sTmp}, s{sWave}, 6", f"v_add_u32 v{tid}, s{sTmp}, v{vLane}", f"v_lshlrev_b32 v23, 4, v{vLane}", f"v_add_u32 v23, {L_WS}, v23")
    a(f"s_mov_b32 s93, s{sWave}", "KS_BL:")
    gen_build(a, "KSB", 93, lambda v, sr: a(f"v_add_u32 v22, s{sr}, v23", f"ds_write_b128 v22, {vr(v,4)}"), 72)
    a("s_add_u32 s93, s93, 4", "s_cmp_lt_u32 s93, 24", "s_cbranch_scc1 KS_BL", "s_waitcnt lgkmcnt(0)", "s_barrier")
    a([f"ds_read_b128 {ar(4*f,4)}, v23 offset:{1024*f}" for f in range(NFRAG)])
    a("s_waitcnt lgkmcnt(0)", "s_barrier")
    a("KS_HAVE:", "s_load_dwordx8 s[72:79], s[0:1], 0")
    a(f"v_lshlrev_b32 v20, 11, v{tid}", f"s_lshl_b32 s{sTmp}, s{sBucket}, 3", f"s_add_u32 s{sTmp}, s{sTmp}, {TAB_REL}",
      f"buffer_load_dword v21, v20, s[{sAux}:{sAux+3}], s{sTmp} offen sc1")
    a("v_mov_b32 v24, 0", "v_mov_b32 v25, 0", "v_mov_b32 v26, 0", "v_mov_b32 v27, 0", f"v_lshlrev_b32 v22, 4, v{tid}", f"v_add_u32 v22, {L_TAB}, v22")
    for i in range(13): a(f"ds_write_b128 v22, v[24:27] offset:{4096*i}")
    a(selectors())
    a(f"v_mul_u32_u24 v{vStart}, {CH*12}, v{tid}", f"v_and_b32 v6, 31, v{vLane}", f"v_mul_u32_u24 v{vJ}, 12, v6", "v_lshlrev_b32 v6, 2, v6")
    a("s_waitcnt vmcnt(0) lgkmcnt(0)", "v_and_b32 v22, 0xfff, v21", f"v_bfe_u32 v{vCnt}, v21, 12, 12", f"v_mad_u32_u24 v{vStart}, v22, 12, v{vStart}", f"v_mul_u32_u24 v{vCnt}, 12, v{vCnt}", "s_barrier")
    srd(a, 56, 78, 79, E*4); srd(a, 60, 76, 77, E*4); srd(a, 64, 74, 75, E*8)
    a(f"s_mul_i32 s50, s{sBucket}, {NB*128}", f"s_mul_i32 s51, s{sBucket}, {NB}", "s_mov_b32 s46, 0", f"s_lshl_b32 s95, s{sWave}, 7")
    a("s_cmp_lt_u32 s94, 2", "s_cbranch_scc1 KS_SEG")
    a("KS_RAW:", f"s_cmp_ge_u32 s95, {E*4}", "s_cbranch_scc1 KS_DONE")
    a("buffer_load_dword v20, v6, s[56:59], s95 offen", "s_mov_b32 s96, s95", "s_add_u32 s95, s95, 512", "s_waitcnt vmcnt(0)",
      "v_subrev_u32 v20, s51, v20", f"v_cmp_gt_u32 vcc, {NB}, v20", "s_cbranch_vccz KS_RAW", f"s_mov_b64 s[{sValid}:{sValid+1}], vcc")
    a("s_lshl_b32 s97, s96, 1", "v_lshlrev_b32 v21, 1, v6", "buffer_load_dword v10, v6, s[60:63], s96 offen", "buffer_load_dwordx2 v[8:9], v21, s[64:67], s97 offen",
      "v_and_b32 v20, 0xff, v20", "v_lshlrev_b32 v20, 2, v20", "s_waitcnt vmcnt(0)", "v_lshl_or_b32 v10, v10, 16, v20", "s_branch KS_BODY")
    a("KS_SEG:", "s_nop 3", f"v_readlane_b32 s47, v{vStart}, s46", f"v_readlane_b32 s48, v{vCnt}, s46", "s_mov_b32 s49, 0")
    a("KS_GRP:", "s_cmp_ge_u32 s49, s48", "s_cbranch_scc1 KS_NEXT")
    a(f"v_add_u32 v20, s49, v{vJ}", f"v_cmp_gt_u32 s[{sValid}:{sValid+1}], s48, v20", "v_add_u32 v20, s47, v20")
    a(f"buffer_load_dwordx3 v[8:10], v20, s[{sRec}:{sRec+3}], 0 offen sc1", "s_waitcnt vmcnt(0)")
    a("KS_BODY:")
    a(mkoff(2), [gather(0, q) for q in range(4)])
    a("v_and_b32 v20, 0xffff, v10", f"v_lshl_add_u32 v{vOff}, v20, 5, v{vHalf}", f"v_add_u32 v{vOff}, s50, v{vOff}", [gather(2, q) for q in range(4)])
    a(f"v_lshlrev_b32 v{vA}, 6, v20", f"v_add_u32 v{vA}, v{vHalf}, v{vA}", f"v_add_u32 v{vA}, {L_TAB}, v{vA}")
    a("s_waitcnt vmcnt(0)")
    for b in range(4):
        a(q_mfmas(b))
        a(mf8(Q + 16*b, ar(WC(b), 2), "v[8:9]", vr(Q + 16*b, 16)))
        for q in range(4): a(mf16(Q + 16*b, ar(WA(b, q), 4), ar(RING[0] + 4*q, 4), vr(Q + 16*b, 16)))
    a(mf8(D, ar(B2F, 2), vr(SEL, 2), "0"), mf8(D + 16, ar(B2F, 2), vr(SEL + 2, 2), "0"), "s_nop 7", "s_nop 7")
    for i in range(64): a(f"v_exp_f32 v{NUM+i}, v{Q+i}")
    for i in range(64): a(f"v_add_f32 v{NUM+i}, 1.0, v{NUM+i}")
    for i in range(64): a(f"v_rcp_f32 v{NUM+i}, v{NUM+i}")
    for i in range(64): a(f"v_mul_f32 v{NUM+i}, v{NUM+i}, v{Q+i}")
    for i in range(32): a(f"v_cvt_pk_bf16_f32 v{DEN+i}, v{NUM+2*i}, v{NUM+2*i+1}")
    a("s_nop 1")
    for b in range(4):
        for m in range(2):
            for ob in range(2): a(mf16(D + 16*ob, ar(W2(b, m, ob), 4), vr(DEN + 8*b + 4*m, 4), vr(D + 16*ob, 16)))
    a("s_nop 7", "s_nop 7", f"s_mov_b64 exec, s[{sValid}:{sValid+1}]")
    for ob in range(2):
        for i in range(16): a(f"ds_add_f32 v{vA}, v{D+16*ob+i} offset:{4*(32*((i>>2)&1) + 4*(i&3) + 2*(i>>3) + ob)}")
    a("s_mov_b64 exec, -1", "s_waitcnt lgkmcnt(0)", "s_cmp_ge_u32 s94, 2", "s_cbranch_scc1 KS_RAW", f"s_add_u32 s49, s49, {32*12}", "s_branch KS_GRP")
    a("KS_NEXT:", "s_add_u32 s46, s46, 1", "s_cmp_lt_u32 s46, 64", "s_cbranch_scc1 KS_SEG")
    a("KS_DONE:", "s_waitcnt lgkmcnt(0)", "s_barrier")
    a(f"v_lshlrev_b32 v20, 5, v{tid}", f"v_add_u32 v20, {L_TAB}, v20", f"v_lshlrev_b32 v21, 4, v{tid}", "v_add_u32 v21, s50, v21")
    for i in range(7):
        if i == 6: a(f"v_cmp_gt_u32 vcc, {NB*8-1536}, v{tid}", "s_and_saveexec_b64 s[46:47], vcc", "s_cbranch_execz KS_END")
        a(f"ds_read_b128 v[24:27], v20 offset:{8192*i}", f"ds_read_b128 v[28:31], v20 offset:{8192*i+16}", "s_waitcnt lgkmcnt(0)")
        for j in range(4): a(f"v_cvt_pk_bf16_f32 v{32+j}, v{24+2*j}, v{25+2*j}")
        a(f"buffer_store_dwordx4 v[32:35], v21, s[{sOut}:{sOut+3}], 0 offen", "s_nop 1", "v_add_u32 v21, 4096, v21")
    a("KS_END:", "s_endpgm")

def kd(name, vgpr, accum, sgpr=102):
    return f""".amdhsa_kernel {name}
  .amdhsa_next_free_vgpr {vgpr}
  .amdhsa_next_free_sgpr {sgpr}
  .amdhsa_accum_offset {accum}
  .amdhsa_group_segment_fixed_size 0
  .amdhsa_kernarg_size 88
  .amdhsa_user_sgpr_count 2
  .amdhsa_user_sgpr_kernarg_segment_ptr 1
  .amdhsa_system_sgpr_workgroup_id_x 1
  .amdhsa_float_denorm_mode_32 3
.end_amdhsa_kernel
"""

def generate(**opt):
    OPT.update(opt)
    ref = open("standalone__edge_featured_mpnn_mpnn__graph.s.ref").read().split("\n")
    head = [x for x in ref if x.startswith(";") and "@launch" not in x and not x.startswith("; Override") and not x.startswith("; grid=")]
    head += """; Edge-featured MPNN layer in one launch, one workgroup (4 waves, 512 registers each) per CU.
;  1. workgroups 0..249 split 3200 edges each by destination bucket (196 nodes) and hand the sorted records over through d_ws;
;     workgroups 250..255 build the MFMA weight fragments (w1, b1 scaled by -log2(e), w2 by -ln(2)).
;     Hand-off: write-through stores, drain, barrier, then a table row tagged with (epoch word of d_ws) + 1.
;  2. every workgroup collects its bucket, files the records per node in LDS, ranks the nodes by degree and maps them to
;     8 tiles of 32 columns (long lists are split over two columns).
;  3. per tile and step, t = -log2(e) * (pre-activation) comes from MFMAs; sum_i t_i / (1 + 2^t_i) is kept as one fraction
;     num / den per element; second layer, degree * b2 and the store follow once per tile.
;  A generic path (per-edge MLP, f32 sums in LDS) takes over for a bucket when a list is too long, when den or the result
;  leaves the float range, or (from the raw edge list) when the hand-off does not complete.""".split("\n")
    head += [f"; @launch {'kernel=' + KNAME + ' ' if OPT.get('aslist') else ''}grid=(256,1,1) block=(256,1,1) lds={K2_LDS}"]
    a = Asm()
    a('.amdgcn_target "amdgcn-amd-amdhsa--gfx950"', ".text", f".globl {KNAME}", f".type {KNAME},@function")
    gen_k2(a)
    return "\n".join(head) + "\n" + a.text() + '.section .rodata,"a"\n.p2align 6\n' + kd(KNAME, 512, 256)

if __name__ == "__main__":
    out = sys.argv[1] if len(sys.argv) > 1 else "standalone__edge_featured_mpnn_mpnn__graph.s"
    opt = {}
    for x in sys.argv[2:]:
        k, v = x.split("="); opt[k] = int(v) if v.lstrip("-").isdigit() else v.replace("+", " ")
    open(out, "w").write(generate(**opt))
```
